```python
import torch

def _softmax(x, axis=-1):
    return torch.softmax(x, dim=axis)

def _gelu(x):
    return torch.nn.functional.gelu(x, approximate='tanh')

def _silu(x):
    return torch.nn.functional.silu(x)

def _sigmoid(x):
    return torch.sigmoid(x)

def _layernorm(x, axis=-1, eps=1e-05):
    m = x.mean(dim=axis, keepdim=True)
    v = x.var(dim=axis, keepdim=True, unbiased=False)
    return (x - m) / torch.sqrt(v + eps)

def _scatter_add(tgt, idx, src, axis=0):
    return tgt.clone().index_add_(axis, idx, src)

def _segment_sum(src, seg, n):
    out = torch.zeros((n,) + src.shape[1:], dtype=src.dtype)
    return out.index_add_(0, seg, src)

def _pad(x, pw):
    flat = tuple((v for pair in reversed(pw) for v in pair))
    return torch.nn.functional.pad(x, flat)
kernel_name = 'adaLN_cond__sliding_local_dilated__swiglu_ffn__prompt'

def setup_inputs():

    _w = lambda a: (lambda t: t.to(torch.bfloat16) if t.is_floating_point() else t)(torch.as_tensor(a))

    def _A_setup():
        B, S, D = (1, 2048, 1024)
        return {'x': _w((lambda *s: torch.randn(*s, dtype=torch.bfloat16) * 0.05)(B, S, D)), 'wqkv': _w((lambda *s: torch.randn(*s, dtype=torch.bfloat16) * 0.05)(D, 3 * D)), 'wo': _w((lambda *s: torch.randn(*s, dtype=torch.bfloat16) * 0.05)(D, D))}
    _A_in = _A_setup()

    def _B_setup():
        B, S, D, F = (1, 2048, 1024, 3584)
        return {'x': _w((lambda *s: torch.randn(*s, dtype=torch.bfloat16) * 0.05)(B, S, D)), 'w_gate': _w((lambda *s: torch.randn(*s, dtype=torch.bfloat16) * 0.05)(D, F)), 'w_up': _w((lambda *s: torch.randn(*s, dtype=torch.bfloat16) * 0.05)(D, F)), 'w_down': _w((lambda *s: torch.randn(*s, dtype=torch.bfloat16) * 0.05)(F, D))}
    _B_in = _B_setup()
    return {'A_x': _A_in['x'], 'A_wqkv': _A_in['wqkv'], 'A_wo': _A_in['wo'], 'B_x': _B_in['x'], 'B_w_gate': _B_in['w_gate'], 'B_w_up': _B_in['w_up'], 'B_w_down': _B_in['w_down'], 'c': _w((lambda *s: torch.randn(*s, dtype=torch.bfloat16) * 0.1)(1, 1024) * 8.0), 'w_mod': _w((lambda *s: torch.randn(*s, dtype=torch.bfloat16) * 0.1)(1024, 6 * 1024) * 1024 ** (-0.5) * 8.0)}

def reference(A_x, A_wqkv, A_wo, B_x, B_w_gate, B_w_up, B_w_down, c, w_mod):

    def _A_ref(x, wqkv, wo):
        B, S, D = x.shape
        H = 32
        Dh = D // H
        W, dil = (8, 2)
        qkv = (lambda x, *d: x.permute(*d))((x @ wqkv).reshape(B, S, 3, H, Dh), 2, 0, 3, 1, 4)
        q, k, v = (qkv[0], qkv[1], qkv[2])
        scale = Dh ** (-0.5)
        pos = torch.arange(S)
        off = torch.arange(W) * dil
        idx = pos[:, None] - off[None, :]
        mask = idx >= 0
        idx_c = torch.where(mask, idx, 0).reshape(-1)
        kg = k[:, :, idx_c, :].reshape(B, H, S, W, Dh)
        vg = v[:, :, idx_c, :].reshape(B, H, S, W, Dh)
        logits = torch.einsum('bhsd,bhswd->bhsw', q, kg) * scale
        logits = torch.where(mask[None, None, :, :], logits, -1000000000.0)
        attn = _softmax(logits, axis=-1)
        o = torch.einsum('bhsw,bhswd->bhsd', attn, vg)
        return (lambda x, *d: x.permute(*d))(o, 0, 2, 1, 3).reshape(B, S, D) @ wo

    def _B_ref(x, w_gate, w_up, w_down):
        g = _silu(x @ w_gate)
        u = x @ w_up
        return g * u @ w_down
    x = A_x
    mod = (_silu(c) @ w_mod).reshape(c.shape[0], 6, 1, -1)
    sa, ca, ga, sb, cb, gb = (mod[:, 0].clone(), mod[:, 1].clone(), mod[:, 2].clone(), mod[:, 3].clone(), mod[:, 4].clone(), mod[:, 5].clone())
    h = _layernorm(x, axis=-1) * (1 + ca) + sa
    x = x + ga * _A_ref(h, A_wqkv, A_wo)
    h = _layernorm(x, axis=-1) * (1 + cb) + sb
    x = x + gb * _B_ref(h, B_w_gate, B_w_up, B_w_down)
    return x
```

```python
class Regs:
    def __init__(self, prefix, start, limit):
        self.prefix, self.next, self.limit = prefix, start, limit
        self.names = {}
    def alloc(self, name, n=1, align=1):
        a = self.next
        a = (a + align - 1) // align * align
        assert a + n <= self.limit, f'out of {self.prefix} regs allocating {name} ({a}+{n})'
        self.next = a + n
        self.names[name] = (a, n)
        return a

AOFF = 1000
def vr(a, n=1):
    c = 'v'
    if a >= AOFF:
        c, a = 'a', a - AOFF
    return f'{c}{a}' if n == 1 else f'{c}[{a}:{a+n-1}]'
def sr(a, n=1):
    return f's{a}' if n == 1 else f's[{a}:{a+n-1}]'

class Prog:
    def __init__(self):
        self.items = []
    def ins(self, text):
        for t in text.split('\n'):
            t = t.strip()
            if t:
                self.items.append(('ins', t))
    def vm(self, text, tag=None):
        self.items.append(('vm', text, tag))
    def lg(self, text, tag=None):
        self.items.append(('lg', text, tag))
    def wait(self, vm=None, lg=None):
        self.items.append(['wait', vm, lg, None, None])
    def check_issued(self, tag):
        self.items.append(('chk', tag))
    def label(self, name):
        self.items.append(('label', name))
    def loop_begin(self, name, n):
        self.items.append(('lb', name, n))
    def loop_end(self, text):
        self.items.append(('le', text))

    @staticmethod
    def _ev(tag, it):
        return tag(it) if callable(tag) else tag

    def resolve(self):
        vmq, lgq = [], []
        vmpos, lgpos = {}, {}
        def need(spec, it, q, pos):
            if spec is None:
                return None
            if spec == 'all':
                return 0
            spec = self._ev(spec, it)
            latest = -1
            for t in spec:
                t = self._ev(t, it)
                if t is None:
                    continue
                assert t in pos, f'wait on never-issued tag {t}'
                latest = max(latest, pos[t])
            if latest < 0:
                return None
            return len(q) - 1 - latest
        def run(items, it):
            for x in items:
                k = x[0]
                if k == 'vm':
                    t = self._ev(x[2], it); vmq.append(t)
                    if t is not None: vmpos[t] = len(vmq) - 1
                elif k == 'lg':
                    t = self._ev(x[2], it); lgq.append(t)
                    if t is not None: lgpos[t] = len(lgq) - 1
                elif k == 'vmark':
                    vmpos[x[1]] = len(vmq) - 1
                elif k == 'chk':
                    assert self._ev(x[1], it) in vmpos, ('not issued yet', self._ev(x[1], it))
                elif k == 'wait':
                    a = need(x[1], it, vmq, vmpos); b = need(x[2], it, lgq, lgpos)
                    if a is not None: x[3] = a if x[3] is None else min(x[3], a)
                    if b is not None: x[4] = b if x[4] is None else min(x[4], b)
                    if hasattr(self, 'trace'):
                        self.trace.append((id(x), it, a, b))
        i = 0
        n = len(self.items)
        while i < n:
            x = self.items[i]
            if x[0] == 'lb':
                j = i + 1
                while self.items[j][0] != 'le':
                    j += 1
                for it in range(x[2]):
                    run(self.items[i+1:j], it)
                i = j + 1
            else:
                run([x], 0)
                i += 1

    def text(self):
        self.resolve()
        out = []
        for x in self.items:
            k = x[0]
            if k == 'ins': out.append('  ' + x[1])
            elif k in ('vm', 'lg'): out.append('  ' + x[1])
            elif k == 'label': out.append(x[1] + ':')
            elif k == 'lb': out.append(x[1] + ':')
            elif k == 'le': out.append('\n'.join('  ' + t.strip() for t in x[1].split('\n') if t.strip()))
            elif k == 'wait':
                parts = []
                if x[3] is not None: parts.append(f'vmcnt({min(x[3], 63)})')
                if x[4] is not None: parts.append(f'lgkmcnt({min(x[4], 15)})')
                if parts: out.append('  s_waitcnt ' + ' '.join(parts))
        return '\n'.join(out) + '\n'

def kdesc(name, nvgpr, nsgpr, accum=None):
    if accum is None:
        accum = (nvgpr + 3) // 4 * 4
    return f'''.p2align 6
.amdhsa_kernel {name}
  .amdhsa_next_free_vgpr {nvgpr}
  .amdhsa_next_free_sgpr {nsgpr}
  .amdhsa_accum_offset {accum}
  .amdhsa_group_segment_fixed_size 0
  .amdhsa_kernarg_size 96
  .amdhsa_user_sgpr_count 2
  .amdhsa_user_sgpr_kernarg_segment_ptr 1
  .amdhsa_system_sgpr_workgroup_id_x 1
  .amdhsa_float_denorm_mode_32 3
.end_amdhsa_kernel
'''
```

```python
from asmlib import *

MFMA = 'v_mfma_f32_16x16x32_bf16'

class Gemm:
    def __init__(self, p, V, S, name, NW, KS, WM, K, BK, NS, D, R, DAS, ldw, RB, segs, tiles, nareg, scheme=1,
                 lds_base=0, P=0, spread=0.75, prio=True, ramp=2, wflags='', aflags='', amode='dir', BM=0,
                 extra=(), alead=3, AG=None, pig=False, spig=0, amod=None):
        self.p, self.V, self.S, self.name = p, V, S, name
        self.NW, self.KS, self.WM, self.K, self.BK, self.NS, self.D, self.R, self.DAS = NW, KS, WM, K, BK, NS, D, R, DAS
        self.ldw, self.RB, self.segs, self.scheme = ldw, RB, segs, scheme
        self.wflags, self.aflags, self.amode, self.extra, self.alead = wflags, aflags, amode, list(extra), alead
        self.tiles, self.nareg = tiles, nareg
        self.KPS = BK // 32 // KS
        self.KB = BK // 32
        self.NT = len(tiles)
        self.F = self.KPS * self.NT
        self.nst = K // BK
        self.rpi = 1024 // RB
        self.nq = BK // self.rpi
        assert self.nq % NW == 0
        self.qpw = self.nq // NW
        self.segbytes = BK * RB
        self.a_off = self.segbytes * len(segs)
        self.a_bytes = (BM // 16) * self.KB * 1024 if amode == 'lds' else 0
        self.x_bytes = self.KB * 1024 if self.extra else 0
        self.stagebytes = self.a_off + self.a_bytes
        self.x_base = lds_base + NS * self.stagebytes
        self.lds_end = self.x_base + NS * self.x_bytes
        self.lds_base = lds_base
        self.U = NS
        self.npre = NS - 1 if scheme == 1 else NS
        assert self.nst % self.U == 0
        assert (self.U * self.F) % R == 0, (self.U, self.F, R)
        assert R >= D + 1
        self.nsets = (lds_base + NS * self.stagebytes + 65535) // 65536
        self.astep = self.KB * 1024
        self.kstep = BK * ldw
        self.dmas = [('W', si, jq) for si in range(len(segs)) for jq in range(self.qpw)]
        if amode == 'lds':
            na = self.a_bytes // 1024
            assert na % NW == 0
            self.apw = na // NW
            assert self.apw == self.KB, 'one m-block per wave'
            self.dmas += [('A', i, 0) for i in range(self.apw)]
            self.DA = 2
        else:
            assert (self.U % DAS) == 0
            self.DA = DAS * self.KPS
        if self.extra:
            assert self.x_bytes % (NW * 256) == 0
            self.dmas += [('X', i, 0) for i in range(self.x_bytes // (NW * 256))]
        self.PD = len(self.dmas)
        self.usesAsrc = amode == 'lds' or bool(self.extra)
        self.acc = V.alloc('acc', self.NT * WM * 4, 4)
        B = AG or V
        self.abuf = B.alloc('abuf', self.DA * WM * 4, 4)
        self.wbuf = B.alloc('wbuf', R * 4, 4)
        self.waddr = V.alloc('waddr', nareg * self.nsets)
        self.vdma = V.alloc('vdma', 1)
        if amode == 'dir':
            self.va = V.alloc('va', WM)
        else:
            self.va = V.alloc('va', 1)
            self.aaddr = V.alloc('aaddr', self.nsets)
        if self.extra:
            self.xacc = V.alloc('xacc', 4 * len(self.extra), 4)
            self.xbuf = V.alloc('xbuf', 8, 4)
            self.vx = V.alloc('vx', 1)
            self.xaddr = V.alloc('xaddr', 1)
            self.sWX = S.alloc('sWX')
        self.sK = S.alloc('sK'); self.sKn = S.alloc('sKn'); self.sWL = S.alloc('sWL')
        if amode == 'dir':
            self.sA = S.alloc('sA'); self.sAc = S.alloc('sAc')
        if self.usesAsrc:
            self.sB = S.alloc('sB'); self.sBn = S.alloc('sBn')
        if amode == 'lds':
            self.sWA = S.alloc('sWA')
        self.sT = S.alloc('sT'); self.sIt = S.alloc('sIt')
        self.P = P
        self.spread, self.prio, self.ramp = spread, prio, ramp
        if P:
            assert self.U % P == 0 and self.nst % P == 0
            self.sLead = S.alloc('sLead')
        self.amod = amod
        if amod:
            self.tab = V.alloc('tab', 16, 4); self.mtmp = V.alloc('mtmp', 4); self.vtab = V.alloc('vtab', 2)
            self.sCh = S.alloc('sCh', 4)
            if amod == 'norm':
                self.vstat = V.alloc('vstat', 2 * WM)
        self.pig = pig
        self.spig_skip = 1
        self.spig = spig
        if spig:
            self.sSB = S.alloc('spb', 2, 2); self.sSO = S.alloc('spo'); self.sSM = S.alloc('spm'); self.sSD = S.alloc('spd')
            self.spig_slots = [int((i + 0.5) * self.F / spig) for i in range(spig)]
        if pig:
            self.sPigSrd = S.alloc('pigsrd', 4, 4); self.sPig = S.alloc('pig'); self.sPig2 = S.alloc('pig2')
            self.vpig = V.alloc('vpig', 2)
        self.make_sched()

    def accr(self, t, m):
        return self.acc + (t * self.WM + m) * 4

    def ldsop(self, op, dst, n, areg0, nper, ai, off, tag):
        st, off = divmod(off, 65536)
        self.p.lg(f'{op} {vr(dst, n)}, {vr(areg0 + st * nper + ai)} offset:{off}', tag)

    def rd(self, u, f, h, tagbase):
        j, t = divmod(f, self.NT)
        ai, imm = self.tiles[t]
        buf = self.wbuf + ((u * self.F + f) % self.R) * 4
        off = self.lds_base + u * self.stagebytes + imm + (j * self.KS * 32 + 16 * h) * self.RB
        self.ldsop('ds_read_b64_tr_b16', buf + 2 * h, 2, self.waddr, self.nareg, ai, off, (lambda it: ('W', tagbase(it), h)))

    def rda(self, u, j, m, tagk):
        ring = (u * self.KPS + j) % self.DA
        buf = self.abuf + (ring * self.WM + m) * 4
        off = self.lds_base + u * self.stagebytes + self.a_off + (m * self.KB + j * self.KS) * 1024
        self.ldsop('ds_read_b128', buf, 4, self.aaddr, 1, 0, off, (lambda it: ('AL', tagk(it), m)))

    def rdx(self, u, j, tagk):
        ring = (u * self.KPS + j) % 2
        off = u * self.x_bytes + j * self.KS * 1024
        self.ldsop('ds_read_b128', self.xbuf + ring * 4, 4, self.xaddr, 1, 0, off, (lambda it: ('XL', tagk(it))))

    def dma(self, ts, n, tagstage):
        p = self.p
        base = self.lds_base + (ts % self.NS) * self.stagebytes
        kind, i, jq = self.dmas[n]
        tag = (lambda it: ('D', tagstage(it), n))
        if self.pig and n == 0 and (ts >= self.P or not self.in_ramp):
            p.ins(f's_cmp_eq_u32 {sr(self.sLead)}, {ts % self.P}')
            p.ins(f's_cselect_b32 {sr(self.sPig2)}, {sr(self.sPig)}, 0x40000000')
            p.ins(f's_cselect_b32 {sr(self.sT)}, {256 * 8192}, 0')
            p.vm(f'buffer_load_dword {vr(self.vpig + 1)}, {vr(self.vpig)}, {sr(self.sPigSrd, 4)}, {sr(self.sPig2)} offen')
            p.ins(f's_add_u32 {sr(self.sPig)}, {sr(self.sPig)}, {sr(self.sT)}')
        if kind == 'W':
            s = self.segs[i]
            goff = s['col'] + jq * self.NW * self.rpi * self.ldw
            p.ins(f's_add_u32 m0, {sr(self.sWL)}, {base + i * self.segbytes + jq * self.NW * 1024}')
            if goff:
                p.ins(f's_add_u32 {sr(self.sT)}, {sr(self.sK)}, {goff}')
                so = self.sT
            else:
                p.ins('s_nop 0')
                so = self.sK
            p.vm(f'buffer_load_dwordx4 {vr(self.vdma)}, {sr(s["srd"], 4)}, {sr(so)} offen {self.wflags} lds', tag)
        elif kind == 'A':
            p.ins(f's_add_u32 m0, {sr(self.sWA)}, {base + self.a_off}')
            p.ins('s_nop 0')
            o = f'offset:{i * 1024} ' if i else ''
            p.vm(f'buffer_load_dwordx4 {vr(self.va)}, {sr(self.srdA, 4)}, {sr(self.sB)} offen {o}{self.aflags} lds', tag)
        else:
            p.ins(f's_add_u32 m0, {sr(self.sWX)}, {self.x_base + (ts % self.NS) * self.x_bytes}')
            p.ins('s_nop 0')
            o = f'offset:{i * self.NW * 256} ' if i else ''
            p.vm(f'buffer_load_dword {vr(self.vx)}, {sr(self.srdA, 4)}, {sr(self.sB)} offen {o}{self.aflags} lds', tag)
        lastW = max(i2 for i2, d in enumerate(self.dmas) if d[0] == 'W')
        if n == lastW:
            self.adv(self.sKn, self.sK, self.kstep, ts + 1)
        if self.usesAsrc and n == self.PD - 1:
            self.adv(self.sBn, self.sB, self.astep, ts + 1)

    def lda(self, ts, j, m, tagstage):
        ring = (ts * self.KPS + j) % self.DA
        buf = self.abuf + (ring * self.WM + m) * 4
        off = j * self.KS * 1024
        o = f' offset:{off}' if off else ''
        if self.amod and j == 0 and m == 0:
            self.p.ins(f's_bfe_u32 {sr(self.sCh + ts % 4)}, {sr(self.sAc)}, 0xd0002')
        self.p.vm(f'buffer_load_dwordx4 {vr(buf, 4)}, {vr(self.va + m)}, {sr(self.srdA, 4)}, {sr(self.sAc)} offen{o} {self.aflags}',
                  (lambda it: ('A', tagstage(it) * self.KPS + j, m)))
        if j == self.KPS - 1 and m == self.WM - 1:
            self.adv(self.sA, self.sAc, self.astep, ts + 1)

    def adv(self, sn, sc, step, t):
        self.p.ins(f's_add_u32 {sr(sn)}, {sr(sn)}, {step}')
        self.cur(sn, sc, step, t)

    def cur(self, sn, sc, step, t):
        p = self.p
        tot = self.nst * step
        if self.P:
            T = self.sT
            p.ins(f's_cmp_eq_u32 {sr(self.sLead)}, {t % self.P}')
            p.ins(f's_cselect_b32 {sr(T)}, {self.P * step}, 0')
            p.ins(f's_add_u32 {sr(sc)}, {sr(sn)}, {sr(T)}')
            p.ins(f's_cmp_ge_u32 {sr(sc)}, {tot}')
            p.ins(f's_cselect_b32 {sr(T)}, {tot}, 0')
            p.ins(f's_sub_u32 {sr(sc)}, {sr(sc)}, {sr(T)}')
            p.ins(f's_cmp_lt_u32 {sr(sn)}, {tot}')
            p.ins(f's_cselect_b32 {sr(sc)}, {sr(sc)}, 0x40000000')
        else:
            p.ins(f's_cmp_lt_u32 {sr(sn)}, {tot}')
            p.ins(f's_cselect_b32 {sr(sc)}, {sr(sn)}, 0x40000000')

    def make_sched(self):
        F, D, NT, WM, KPS, U = self.F, self.D, self.NT, self.WM, self.KPS, self.U
        dirA = self.amode == 'dir'
        b = F - max(D, self.alead if (not dirA or self.extra) else 0)
        self.bslot = b
        nops = self.PD + (KPS * WM if dirA else 0)
        span = max(1.0, self.spread * F)
        pos = [int(i * span / nops) for i in range(nops)]
        def oplist(S):
            o = [(S * F + b + 1, 1, 'D', n, S + self.npre) for n in range(self.PD)]
            if dirA:
                o += [(S * F + (j + 1) * NT, 0, 'A', (j, m), S + self.DAS) for j in range(KPS) for m in range(WM)]
            return o
        NP = U + 4
        pend = sorted(sum((oplist(S) for S in range(NP)), []), key=lambda o: (o[0], o[1]))
        done = {}
        for S in range(-1, NP):
            for r in pos:
                tabs = S * F + b + 1 + r
                av = sorted((o for o in pend if o[0] <= tabs), key=lambda o: (o[1], o[0]))
                if av:
                    pend.remove(av[0]); done[av[0][2:]] = tabs
        self.sched = {}
        items = []
        for o in oplist(2):
            k, idx, ts = o[2:]
            tabs = done[(k, idx, ts)]
            assert done[(k, idx, ts + 1)] == tabs + F, 'schedule not periodic'
            cs, f = divmod(tabs, F)
            items.append((tabs, k, idx, ts - cs, f))
        for tabs, k, idx, dts, f in sorted(items, key=lambda x: (x[0], x[1], x[2])):
            self.sched.setdefault(f, []).append((k, idx, dts))
        st_time = {(k, idx): (f, dts) for f, l in self.sched.items() for (k, idx, dts) in l}
        self.pre_ops = [('D', n, 0) for n in range(self.PD)]
        if dirA:
            self.pre_ops += [('A', (0, m), 0) for m in range(WM)]
            if self.amod:
                a1, b1 = divmod(1, KPS)
                self.pre_ops += [('A', (b1, m), a1) for m in range(WM)]
        todo = []
        for ts in range(0, U + max(self.npre, self.DAS) + 2):
            for n in range(self.PD):
                f, dts = st_time[('D', n)]
                tst = (ts - dts) * F + f
                if tst < U * F and ('D', n, ts) not in self.pre_ops:
                    earliest = 0 if ts < self.npre else tst
                    todo.append(dict(k='D', idx=n, ts=ts, e=earliest, dl=(ts - 1) * F + b, ord=(ts, n)))
            if dirA:
                for j in range(KPS):
                    for m in range(WM):
                        f, dts = st_time[('A', (j, m))]
                        tst = (ts - dts) * F + f
                        if tst < U * F and ('A', (j, m), ts) not in self.pre_ops:
                            earliest = 0 if ts < self.DAS else tst
                            todo.append(dict(k='A', idx=(j, m), ts=ts, e=earliest, dl=ts * F + j * NT - (2 * NT - NT // 2 + 2 if self.amod else 0), ord=(ts, j, m)))
        ramp = self.ramp
        while True:
            qs = {k: sorted((o for o in todo if o['k'] == k), key=lambda o: o['ord']) for k in 'DA'}
            self.rsched = {}
            nextok = 0.0
            ok = True
            for tabs in range(U * F):
                while tabs >= nextok - 1e-9:
                    c = [q[0] for q in qs.values() if q and q[0]['e'] <= tabs]
                    if not c:
                        break
                    o = min(c, key=lambda o: o['dl'])
                    if not (tabs < o['dl'] or (o['k'] == 'D' and tabs <= o['dl'])):
                        ok = False
                    qs[o['k']].pop(0)
                    self.rsched.setdefault(tabs, []).append((o['k'], o['idx'], o['ts']))
                    nextok = max(nextok, tabs - 0.999) + ramp
            if ok and not qs['D'] and not qs['A']:
                break
            ramp *= 0.9
            assert ramp > 0.05
        self.ramp_used = ramp

    def tabrd(self, ts, j, h, tagk):
        ops = []
        if j == 0 and h == 0:
            ops.append(lambda: (self.p.check_issued(lambda it: ('A', tagk(it), 0)),
                                self.p.ins(f'v_add_u32 {vr(self.vtab + 1)}, {sr(self.sCh + ts % 4)}, {vr(self.vtab)}')))
        for q in range(2):
            ops.append(lambda q=q: self.p.lg(f'ds_read_b128 {vr(self.tab + 8 * q + 4 * h, 4)}, {vr(self.vtab + 1)} offset:{j * self.KS * 256 + 32 * q + 16 * h}',
                                             (lambda it: ('T', tagk(it), h, q))))
        return ops

    def mod_half(self, buf, h, m):
        t, c, s_ = self.mtmp, self.tab + 4 * h, self.tab + 8 + 4 * h
        L = []
        for d in range(2):
            L += [f'v_lshlrev_b32 {vr(t + 2 * d)}, 16, {vr(buf + 2 * h + d)}', f'v_and_b32 {vr(t + 2 * d + 1)}, 0xffff0000, {vr(buf + 2 * h + d)}']
        if self.amod == 'norm':
            L += [f'v_fma_f32 {vr(t + e)}, {vr(t + e)}, {vr(self.vstat + 2 * m)}, {vr(self.vstat + 2 * m + 1)}' for e in range(4)]
        L += [f'v_fma_f32 {vr(t + e)}, {vr(t + e)}, {vr(c + e)}, {vr(s_ + e)}' for e in range(4)]
        L += [f'v_cvt_pk_bf16_f32 {vr(buf + 2 * h + d)}, {vr(t + 2 * d)}, {vr(t + 2 * d + 1)}' for d in range(2)]
        return L

    def mod_ops(self, ts, j, tagk, nts, nj, ntagk, xfirst):
        p = self.p
        ks = ts * self.KPS + j
        ops = []
        for h in range(2):
            ops.append(lambda h=h: p.wait(lg=[(lambda it: ('T', tagk(it), h, 0)), (lambda it: ('T', tagk(it), h, 1))],
                                          vm=((lambda it: [('A', tagk(it), m) for m in range(self.WM)]) if h == 0 else None)))
            for m in range(self.WM):
                buf = self.abuf + ((ks % self.DA) * self.WM + m) * 4
                ops += [(lambda i=i: p.ins(i)) for i in self.mod_half(buf, h, m)]
            if not self.extra:
                ops += self.tabrd(nts, nj, h, ntagk)
        if self.extra:
            ops.append('X')
            ops.append(lambda: p.wait(lg=[(lambda it: ('XL', tagk(it)))]))
            for h in range(2):
                ops += [(lambda i=i: p.ins(i)) for i in self.mod_half(self.xbuf + (ks % 2) * 4, h, 0)]
                ops += self.tabrd(nts, nj, h, ntagk)
        return ops

    def spig_op(self):
        p = self.p
        p.ins(f's_load_dword {sr(self.sSD)}, {sr(self.sSB, 2)}, {sr(self.sSO)}')
        p.ins(f's_add_u32 {sr(self.sSO)}, {sr(self.sSO)}, {getattr(self, "spig_stride", 2048 * 128)}')
        p.ins(f's_min_u32 {sr(self.sSO)}, {sr(self.sSO)}, {sr(self.sSM)}')

    def emit_op(self, k, idx, ts, tagstage):
        if k == 'D':
            self.dma(ts, idx, tagstage)
        else:
            self.lda(ts, idx[0], idx[1], tagstage)

    def prologue(self, srdA):
        p = self.p
        self.srdA = srdA
        self.in_ramp = True
        p.ins(f's_mov_b32 {sr(self.sKn)}, 0')
        self.cur(self.sKn, self.sK, self.kstep, 0)
        if self.amode == 'dir':
            p.ins(f's_mov_b32 {sr(self.sA)}, 0')
            self.cur(self.sA, self.sAc, self.astep, 0)
        if self.usesAsrc:
            p.ins(f's_mov_b32 {sr(self.sBn)}, 0')
            self.cur(self.sBn, self.sB, self.astep, 0)
        for k, idx, ts in self.pre_ops:
            self.emit_op(k, idx, ts, (lambda it, ts=ts: ts))

    def first_reads(self, pre_barrier=None):
        p = self.p
        if pre_barrier: pre_barrier()
        p.wait(vm=[('D', 0, n) for n in range(self.PD)], lg='all' if pre_barrier else None)
        p.ins('s_barrier')
        if self.amode == 'lds':
            for m in range(self.WM):
                self.rda(0, 0, m, (lambda it: 0))
        for f in range(self.D):
            for h in range(2):
                self.rd(0, f, h, (lambda it, f=f: f))
        if self.extra:
            self.rdx(0, 0, (lambda it: 0))
        if self.amod:
            for h in range(2):
                for o in self.tabrd(0, 0, h, (lambda it: 0)): o()
            n1 = divmod(1, self.KPS)
            for o in self.mod_ops(0, 0, (lambda it: 0), n1[0], n1[1], (lambda it: 1), True):
                if o != 'X': o()
            self.p.ins('s_nop 1')

    def stage(self, u, SI, peeled=False):
        p = self.p
        F, D, NT, WM, KPS = self.F, self.D, self.NT, self.WM, self.KPS
        bslot = self.bslot
        first = peeled and u == 0
        mods = {}
        if self.amod:
            for j in range(KPS):
                a1, b1 = divmod(j + 1, KPS); a2, b2 = divmod(j + 2, KPS)
                ops = self.mod_ops(u + a1, b1, (lambda it, j=j: SI(it) * KPS + j + 1), u + a2, b2, (lambda it, j=j: SI(it) * KPS + j + 2), False)
                if 'X' in ops:
                    xi = ops.index('X'); p1, p2 = ops[:xi], ops[xi + 1:]
                    x0 = NT - self.alead + 1
                    for i, o in enumerate(p1): mods.setdefault(j * NT + i * x0 // len(p1), []).append(o)
                    for i, o in enumerate(p2): mods.setdefault(j * NT + x0 + i * (NT - x0) // len(p2), []).append(o)
                else:
                    for i, o in enumerate(ops): mods.setdefault(j * NT + i * NT // len(ops), []).append(o)
        for f in range(F):
            j, t = divmod(f, NT)
            nf = f + D
            nu, nff = (u, nf) if nf < F else ((u + 1) % self.NS, nf - F)
            rds = [(lambda h=h, nu=nu, nff=nff, nf=nf: self.rd(nu, nff, h, (lambda it: SI(it) * F + nf))) for h in range(2)]
            nj = j + 1
            xu, xj = (u, nj) if nj < KPS else ((u + 1) % self.NS, 0)
            tagk = (lambda it, nj=nj: SI(it) * KPS + nj)
            lrd = []
            lst = []
            if self.amode == 'lds':
                lst += [(lambda m=m, xu=xu, xj=xj, tagk=tagk: self.rda(xu, xj, m, tagk)) for m in range(WM)]
            if self.extra:
                lst += [(lambda xu=xu, xj=xj, tagk=tagk: self.rdx(xu, xj, tagk))]
            for i, o in enumerate(lst):
                if t == min(NT - self.alead + i, NT - 1):
                    lrd.append(o)
            if peeled:
                ops = [(lambda o=o: self.emit_op(o[0], o[1], o[2], (lambda it: o[2]))) for o in self.rsched.get(u * F + f, [])]
            else:
                ops = [(lambda o=o: self.emit_op(o[0], o[1], u + o[2], (lambda it: SI(it) + o[2]))) for o in self.sched.get(f, [])]
            if self.spig and not (peeled and u < self.spig_skip):
                ops += [self.spig_op] * self.spig_slots.count(f)
            needs_vm = None
            lgn = [(lambda it, f=f: ('W', SI(it) * F + f, 0)), (lambda it, f=f: ('W', SI(it) * F + f, 1))]
            if t == 0:
                if self.amod:
                    pass
                elif self.amode == 'dir':
                    needs_vm = (lambda it, j=j: [('A', SI(it) * KPS + j, m) for m in range(WM)])
                else:
                    lgn += [(lambda it, j=j, m=m: ('AL', SI(it) * KPS + j, m)) for m in range(WM)]
            if t in self.extra and t == self.extra[0] and not self.amod:
                lgn += [(lambda it, j=j: ('XL', SI(it) * KPS + j))]
            p.wait(vm=needs_vm, lg=lgn)
            wb = self.wbuf + ((u * F + f) % self.R) * 4
            ring = (u * KPS + j) % self.DA
            mf = []
            for m in range(WM):
                ab = self.abuf + (ring * WM + m) * 4
                c = self.accr(t, m)
                mf.append((c, ab))
            if t in self.extra:
                mf.append((self.xacc + 4 * self.extra.index(t), self.xbuf + ((u * KPS + j) % 2) * 4))
            nm = len(mf)
            sh = [[] for _ in range(nm)]
            late = []
            lds_ops = rds + lrd
            if f == bslot:
                late = ([] if nf < F else rds) + (lrd if nj >= KPS else [])
                lds_ops = [o for o in lds_ops if o not in late]
            for i, o in enumerate(lds_ops):
                sh[i % nm].append(o)
            for i, o in enumerate(ops):
                sh[(nm - 1 - i) % nm if nm > 2 else i % nm].append(o)
            mo = mods.get(f, [])
            for i, o in enumerate(mo):
                sh[i * nm // len(mo)].append(o)
            if self.amod and t == NT - 1:
                sh[nm - 1].append(lambda: p.ins('s_nop 0'))
            if self.prio:
                rel = (f + 1 - bslot - 1) % F
                q, qp = rel * 4 // F, (rel - 1) * 4 // F
                if rel > 0 and q != qp:
                    sh[nm - 1].append(lambda q=q: p.ins(f's_setprio {3 - q}'))
            for i, (c, ab) in enumerate(mf):
                cin = '0' if (first and j == 0) else vr(c, 4)
                p.ins(f'{MFMA} {vr(c, 4)}, {vr(wb, 4)}, {vr(ab, 4)}, {cin}')
                for o in sh[i]:
                    o()
            if f == bslot:
                p.wait(vm=(lambda it: [('D', SI(it) + 1, n) for n in range(self.PD)]),
                       lg=('all' if self.scheme == 2 else None))
                p.ins('s_barrier')
                if self.prio:
                    p.ins('s_setprio 3')
                for o in late:
                    o()

    def tail_run(self, S0, final, pos_ops, bars, fillers, rate):
        p = self.p
        F, D, NT, WM, KPS = self.F, self.D, self.NT, self.WM, self.KPS
        nat = [(S, j, t) for S in range(S0, self.nst - 2) for j in range(KPS) for t in range(NT)]
        fr = nat + list(final)
        z = len(nat)
        seq0 = S0 * F
        vis = S0
        seenA, seenX = set(), set()
        fillers = list(fillers)
        def rd(i, h):
            S, j, t = fr[i]
            assert S <= vis, ('read before publish', i - z, S, vis)
            ai, imm = self.tiles[t]
            buf = self.wbuf + ((seq0 + i) % self.R) * 4
            off = self.lds_base + (S % self.NS) * self.stagebytes + imm + (j * self.KS * 32 + 16 * h) * self.RB
            self.ldsop('ds_read_b64_tr_b16', buf + 2 * h, 2, self.waddr, self.nareg, ai, off, ('W', seq0 + i, h))
        for i, (S, j, t) in enumerate(fr):
            pos = i - z
            ks = S * KPS + j
            lgn = [('W', seq0 + i, 0), ('W', seq0 + i, 1)]
            vmn = None
            if ks not in seenA:
                seenA.add(ks); vmn = [('A', ks, m) for m in range(WM)]
            if t in self.extra and ks not in seenX:
                seenX.add(ks); lgn.append(('XL', ks))
            p.wait(vm=vmn, lg=lgn)
            wb = self.wbuf + ((seq0 + i) % self.R) * 4
            mf = [(self.accr(t, m), self.abuf + ((ks % self.DA) * WM + m) * 4) for m in range(WM)]
            if t in self.extra:
                mf.append((self.xacc + 4 * self.extra.index(t), self.xbuf + (ks % 2) * 4))
            nm = len(mf)
            sh = [[] for _ in range(nm)]
            if i + D < len(fr):
                sh[0].append(lambda i=i: rd(i + D, 0)); sh[1 % nm].append(lambda i=i: rd(i + D, 1))
            ops = list(pos_ops.get(pos, []))
            Sn, f = divmod(seq0 + i, F)
            for k_, idx, dts in self.sched.get(f, []):
                if Sn + dts < self.nst:
                    ops.append(lambda k_=k_, idx=idx, ts=Sn + dts: self.emit_op(k_, idx, ts, (lambda it: ts)))
            if pos < 0:
                if self.spig:
                    ops += [self.spig_op] * self.spig_slots.count(f)
                if self.extra and t == NT - self.alead:
                    nk = ks + 1
                    assert nk // KPS <= vis
                    ops.append(lambda nk=nk: self.rdx((nk // KPS) % self.NS, nk % KPS, (lambda it: nk)))
                if self.prio:
                    rel = (f + 1 - self.bslot) % F
                    q, qp = rel * 4 // F, (rel - 1) * 4 // F
                    if rel > 0 and q != qp:
                        ops.append(lambda q=q: p.ins(f's_setprio {3 - q}'))
            for n_, o in enumerate(ops):
                sh[n_ % nm].append(o)
            n = 0
            while fillers and fillers[0][0] <= pos and n < (rate if pos >= 0 else 4):
                o = fillers.pop(0)[1]
                sh[n * nm // (rate if pos >= 0 else 4)].append((lambda o=o: p.ins(o)) if isinstance(o, str) else o)
                n += 1
            for n_, (c, ab) in enumerate(mf):
                p.ins(f'{MFMA} {vr(c, 4)}, {vr(wb, 4)}, {vr(ab, 4)}, {vr(c, 4)}')
                for o in sh[n_]:
                    o()
            if pos < 0 and f == self.bslot - 1:
                p.wait(vm=[('D', S + 1, n_) for n_ in range(self.PD)])
                p.ins('s_barrier')
                if self.prio: p.ins('s_setprio 3')
                vis = S + 1
            if pos in bars:
                r = bars[pos]()
                if r is not None: vis = r
        return fillers

    def mainloop(self, stamp=None, tail=None):
        p = self.p
        stamp = stamp or (lambda i: None)
        stamp(1)
        U = self.U
        nit = self.nst // U
        for u in range(U):
            self.stage(u, (lambda it, u=u: u), peeled=True)
        base = U
        nit -= 1
        self.in_ramp = False
        if tail: nit -= 1
        stamp(2)
        if nit > 0:
            p.ins(f's_mov_b32 {sr(self.sIt)}, {nit}')
            p.loop_begin(f'L_{self.name}_loop', nit)
            for u in range(U):
                self.stage(u, (lambda it, u=u: base + it * U + u))
            p.loop_end(f's_sub_u32 {sr(self.sIt)}, {sr(self.sIt)}, 1\ns_cmp_lg_u32 {sr(self.sIt)}, 0\ns_cbranch_scc1 L_{self.name}_loop')
        if tail:
            tail(self.nst - U)
        if self.prio:
            p.ins('s_setprio 0')
```

```python
from asmlib import *
MFMA = 'v_mfma_f32_16x16x32_bf16'

class Gemm2:
    def __init__(self, p, V, S, name, NW, KS, WM, K, BK, NS, D, R, DAS, ldw, RB, segs, tiles, nareg,
                 spread=0.75, ramp=2, extra=(), alead=3, pig_rounds=(), nprio=4, wgrp=2, lead0=True, wflags='', kgrp=1, split0=False, preloaded=0, prew=0, npre=None, aflags='', pre_n=0, small_first=False):
        self.p, self.V, self.S, self.name = p, V, S, name
        self.NW, self.KS, self.WM, self.K, self.BK, self.NS, self.D, self.R, self.DAS = NW, KS, WM, K, BK, NS, D, R, DAS
        self.ldw, self.RB, self.segs, self.tiles, self.nareg = ldw, RB, segs, tiles, nareg
        self.extra, self.alead, self.spread, self.ramp = list(extra), alead, spread, ramp
        self.pig_rounds, self.nprio, self.wgrp, self.lead0, self.wflags = pig_rounds, nprio, wgrp, lead0, wflags
        self.P = 4
        self.kgrp = kgrp
        self.pre_n = pre_n
        self.split0 = split0
        self.KPS = BK // 32 // KS; self.KB = BK // 32
        self.NT = len(tiles); self.F = self.KPS * self.NT; self.nst = K // BK
        self.rpi = 1024 // RB; self.nq = BK // self.rpi
        assert self.nq % NW == 0
        self.qpw = self.nq // NW
        self.segbytes = BK * RB
        self.stagebytes = self.segbytes * len(segs)
        self.x_bytes = self.KB * 1024 if extra else 0
        self.x_base = NS * self.stagebytes
        self.lds_end = self.x_base + NS * self.x_bytes
        self.npre = npre or NS - 1
        if isinstance(preloaded, int): preloaded, prew = set(range(preloaded)), list(range(preloaded, preloaded + prew))
        self.preloaded, self.prew, self.aflags = preloaded, prew, aflags
        assert R >= D + kgrp and (kgrp == 1 or (wgrp == 2 and kgrp == 2 and WM == 2 and self.KPS % 2 == 0))
        self.nsets = (NS * self.stagebytes + 65535) // 65536
        self.astep = self.KB * 1024; self.kstep = BK * ldw
        self.DA = DAS * self.KPS
        self.dmas = [('W', si, jq) for jq in range(self.qpw) for si in range(len(segs))]
        self.goffs = sorted(set(segs[si]['col'] + jq * NW * self.rpi * ldw for _, si, jq in self.dmas))
        if extra:
            assert self.x_bytes % (NW * 256) == 0
            self.dmas += [('X', i, 0) for i in range(self.x_bytes // (NW * 256))]
        self.PD = len(self.dmas)
        def big():
            self.acc = V.alloc('acc', self.NT * WM * 4, 4)
            if small_first: self.wbuf = V.alloc('wbuf', R * 4, 4)
            self.abuf = V.alloc('abuf', self.DA * WM * 4, 4)
            if not small_first: self.wbuf = V.alloc('wbuf', R * 4, 4)
        def small():
            self.waddr = V.alloc('waddr', nareg * self.nsets)
            self.vdma = V.alloc('vdma', len(self.goffs))
            self.va = V.alloc('va', WM)
        self.aoff = 0
        if small_first: small(); big()
        else: big(); small()
        if extra:
            self.xacc = V.alloc('xacc', 4 * len(extra), 4); self.NX = 2; self.xbuf = V.alloc('xbuf', 8, 4)
            self.vx = V.alloc('vx'); self.xaddr = V.alloc('xaddr'); self.sWX = S.alloc('sWX'); self.sB = S.alloc('sB')
        self.sK = S.alloc('sK'); self.sAc = S.alloc('sAc'); self.sWL = S.alloc('sWL'); self.sT = S.alloc('sT')
        self.sLead = S.alloc('sLead'); self.NC = 4 if (NS <= 4 and DAS <= 3) else 16 if (NS > 7 and self.nst > 8) else 8; self.sC = S.alloc('sCh', self.NC, 2)
        if pig_rounds:
            self.sPigSrd = S.alloc('pigsrd', 4, 4); self.sPig = S.alloc('pig'); self.vpig = V.alloc('vpig', 2)
        self.chunk_done = set()
        self.nlab = 0
        self.make_sched()

    def accr(self, t, m):
        return self.acc + (t * self.WM + m) * 4

    def abf(self, ks, m):
        S, j = divmod(ks, self.KPS)
        return self.abuf + ((((S + self.aoff) % self.DAS) * self.KPS + j) * self.WM + m) * 4

    def setup_vdma(self):
        for i, go in enumerate(self.goffs):
            if i:
                self.p.ins(f'v_add_u32 {vr(self.vdma + i)}, {go}, {vr(self.vdma)}')

    def lead_chunk(self, ts):
        P, n = self.P, self.nst
        lf = getattr(self, 'lead_from', 0)
        if lf:
            if ts < lf * P: return ts
            return ts + P if ts + P < n else lf * P + ts % P
        if not self.lead0 and ts % P == 0:
            return ts if ts == 0 else (ts + P if ts + P < n else P)
        return (ts + P) % n

    def chunk(self, ts, pig=False):
        if ts in self.chunk_done:
            return
        self.chunk_done.add(ts)
        p = self.p
        lc = self.lead_chunk(ts)
        c = self.sC + ts % self.NC
        if getattr(self, 'sH8', None) is not None:
            if ts < 8:
                p.ins(f's_add_u32 {sr(c)}, {sr(self.sH8)}, {ts}\ns_and_b32 {sr(c)}, {sr(c)}, 7')
                if ts >= 4:
                    p.ins(f's_cmp_eq_u32 {sr(self.sLead)}, {ts % 4}\ns_cselect_b32 {sr(c)}, {ts + 4}, {sr(c)}')
            elif ts + 4 < self.nst:
                p.ins(f's_cmp_eq_u32 {sr(self.sLead)}, {ts % 4}\ns_cselect_b32 {sr(c)}, {ts + 4}, {ts}')
            else:
                p.ins(f's_cmp_eq_u32 {sr(self.sLead)}, {ts % 4}\ns_cselect_b32 {sr(c)}, {sr(self.sH8 + 1)}, {ts}')
            return
        org = getattr(self, 'sOrg', None)
        def shift():
            if org is None: return
            p.ins(f's_add_u32 {sr(c)}, {sr(c)}, {sr(org)}')
            if self.nst & (self.nst - 1) == 0:
                p.ins(f's_and_b32 {sr(c)}, {sr(c)}, {self.nst - 1}')
            else:
                p.ins(f's_sub_u32 {sr(self.sT)}, {sr(c)}, {self.nst}\ns_cselect_b32 {sr(c)}, {sr(c)}, {sr(self.sT)}')
        if lc == ts:
            p.ins(f's_mov_b32 {sr(c)}, {ts}')
            shift()
            return
        p.ins(f's_cmp_eq_u32 {sr(self.sLead)}, {ts % self.P}')
        p.ins(f's_cselect_b32 {sr(c)}, {lc}, {ts}')
        if org is not None:
            assert not self.pig_rounds
            shift()
        if pig and ts // self.P in self.pig_rounds:
            self.nlab += 1
            L = f'PG{self.nlab}_{self.name}'
            p.ins(f's_cbranch_scc0 {L}')
            p.ins(f'buffer_load_dword {vr(self.vpig + 1)}, {vr(self.vpig)}, {sr(self.sPigSrd, 4)}, {sr(self.sPig)} offen')
            p.ins(f's_add_u32 {sr(self.sPig)}, {sr(self.sPig)}, {getattr(self, "pig_step", 256 * 8192)}')
            if getattr(self, 'pig_extra', None): self.pig_extra(ts // self.P)
            p.label(L)

    def op_parts(self, k, idx, ts):
        p = self.p
        if k == 'D':
            kind, i, jq = self.dmas[idx]
            if kind == 'W':
                s = self.segs[i]
                gi = self.goffs.index(s['col'] + jq * self.NW * self.rpi * self.ldw)
                dst = (ts % self.NS) * self.stagebytes + i * self.segbytes + jq * self.NW * 1024
                def pre():
                    if idx == 0:
                        self.chunk(ts, True)
                        p.ins(f's_mul_i32 {sr(self.sK)}, {sr(self.sC + ts % self.NC)}, {self.kstep}')
                    p.ins(f's_add_u32 m0, {sr(self.sWL)}, {dst}')
                main = lambda: p.vm(f'buffer_load_dwordx4 {vr(self.vdma + gi)}, {sr(s["srd"], 4)}, {sr(self.sK)} offen {self.wflags} lds', ('D', ts, idx))
            else:
                def pre():
                    if i == 0:
                        p.ins(f's_mul_i32 {sr(self.sB)}, {sr(self.sC + ts % self.NC)}, {self.astep}')
                    p.ins(f's_add_u32 m0, {sr(self.sWX)}, {self.x_base + (ts % self.NS) * self.x_bytes}')
                o = f'offset:{i * self.NW * 256} ' if i else ''
                main = lambda: p.vm(f'buffer_load_dword {vr(self.vx)}, {sr(self.srdA, 4)}, {sr(self.sB)} offen {o}{self.aflags} lds', ('D', ts, idx))
            return pre, main
        j, m = idx
        ks = ts * self.KPS + j
        buf = self.abf(ks, m)
        off = j * self.KS * 1024
        o = f' offset:{off}' if off else ''
        def pre():
            if j == 0 and m == 0:
                self.chunk(ts, True)
                p.ins(f's_mul_i32 {sr(self.sAc)}, {sr(self.sC + ts % self.NC)}, {self.astep}')
        main = lambda: p.vm(f'buffer_load_dwordx4 {vr(buf, 4)}, {vr(self.va + m)}, {sr(self.srdA, 4)}, {sr(self.sAc)} offen{o} {self.aflags}', ('A', ks, m))
        return pre, main

    def make_sched(self):
        F, D, NT, WM, KPS, n = self.F, self.D, self.NT, self.WM, self.KPS, self.nst
        b = F - max(D, self.alead if self.extra else 0) - 1
        self.bslot = b
        G = self.kgrp
        nops = self.PD + KPS * WM
        pos = [int(i * max(1.0, self.spread * F) / nops) for i in range(nops)]
        def oplist(S):
            o = [(S * F + b + 1, 1, 'D', i, S + self.npre) for i in range(self.PD)]
            return o + [(S * F + (j // G + 1) * G * NT, 0, 'A', (j, m), S + self.DAS) for j in range(KPS) for m in range(WM)]
        pend = sorted(sum((oplist(S) for S in range(8)), []), key=lambda o: (o[0], o[1]))
        done = {}
        for S in range(-1, 8):
            for r in pos:
                tabs = S * F + b + 1 + r
                av = sorted((o for o in pend if o[0] <= tabs), key=lambda o: (o[1], o[0]))
                if av:
                    pend.remove(av[0]); done[av[0][2:]] = tabs
        rel = {}
        for o in oplist(3):
            k, idx, ts = o[2:]
            assert done[(k, idx, ts + 1)] == done[(k, idx, ts)] + F
            rel[(k, idx)] = done[(k, idx, ts)] - ts * F
        self.pre_ops = [('D', i, 0) for i in range(self.PD)] + [('A', (j, m), 0) for j in range(G) for m in range(WM)]
        if self.split0:
            assert self.qpw == KPS and not self.extra and self.KS == 1
            d0 = [i for i, d in enumerate(self.dmas) if d[2] == 0]
            self.first_d = d0
            self.pre_ops = [('D', i, 0) for i in d0] + [('A', (0, m), 0) for m in range(WM)]
            self.pre2 = [('D', i, 0) for i in range(self.PD) if i not in d0] + [('A', (j, m), 0) for j in range(1, G) for m in range(WM)]
        nw0 = max(1, len(self.preloaded) + len(self.prew))
        if self.preloaded:
            assert set(self.prew) | self.preloaded == set(range(nw0)) and 0 in self.preloaded
            self.pre_w = [('D', i, ts) for ts in self.prew for i in range(self.PD)]
            self.pre_ops = [o for o in self.pre_ops if o[0] == 'A']
        if self.pre_n:
            nw0 = self.pre_n
            self.pre_w = [('D', i, ts) for ts in range(nw0) for i in range(self.PD) if self.dmas[i][0] == 'W']
            X = lambda ts: [('D', i, ts) for i in range(self.PD) if self.dmas[i][0] == 'X']
            self.pre_ops = X(0) + [o for o in self.pre_ops if o[0] == 'A'] + sum((X(ts) for ts in range(1, nw0)), [])
        q = {'D': [], 'A': []}
        for ts in range(n):
            for i in range(self.PD):
                if ts >= nw0: q['D'].append(dict(k='D', idx=i, ts=ts, e=0 if ts < self.npre else ts * F + rel[('D', i)], dl=(ts - 1) * F + b))
            for j in range(KPS):
                for m in range(WM):
                    if ts or j >= G: q['A'].append(dict(k='A', idx=(j, m), ts=ts, e=0 if ts < self.DAS else ts * F + rel[('A', (j, m))], dl=ts * F + (j // G) * G * NT - 1))
        ramp = self.ramp
        while True:
            qq = {k: list(v) for k, v in q.items()}
            vs = {}
            nextok = 0.0
            ok = True
            for t in range(n * F):
                while t >= nextok - 1e-9:
                    c = [x[0] for x in qq.values() if x and x[0]['e'] <= t]
                    if not c: break
                    o = min(c, key=lambda o: o['dl'])
                    if t > o['dl'] or (t >= 5 * F and t > o['e'] + 1): ok = False
                    qq[o['k']].pop(0)
                    vs.setdefault(t, []).append((o['k'], o['idx'], o['ts']))
                    nextok = max(nextok, t - 0.999) + ramp
            if ok and not qq['D'] and not qq['A']: break
            ramp *= 0.9
            assert ramp > 0.02
        self.vs = vs

    def prologue(self, srdA):
        self.srdA = srdA
        for k, idx, ts in self.pre_ops:
            pre, main = self.op_parts(k, idx, ts)
            pre()
            if k == 'D': self.p.ins('s_nop 0')
            main()

    def prologue2(self, ops=None):
        for k, idx, ts in (ops if ops is not None else self.pre2):
            pre, main = self.op_parts(k, idx, ts)
            pre()
            if k == 'D': self.p.ins('s_nop 0')
            main()

    def ldsop(self, op, dst, n, areg0, nper, ai, off, tag):
        st, off = divmod(off, 65536)
        self.p.lg(f'{op} {vr(dst, n)}, {vr(areg0 + st * nper + ai)} offset:{off}', tag)

    def rdx(self, ks):
        S, j = divmod(ks, self.KPS)
        assert S <= self.vis
        self.ldsop('ds_read_b128', self.xbuf + (ks % self.NX) * 4, 4, self.xaddr, 1, 0, (S % self.NS) * self.x_bytes + j * self.KS * 1024, ('XL', ks))

    def run(self, final=None, pos_ops=None, bars=None, fillers=(), rate=10, marks=None, early=None, prate=2, nfin=2, fprio=None):
        p = self.p
        F, D, NT, WM, KPS = self.F, self.D, self.NT, self.WM, self.KPS
        nnat = self.nst - (nfin if final else 0)
        G = self.kgrp
        fr = [(S, jp * G + jj, t) for S in range(nnat) for jp in range(KPS // G) for t in range(NT) for jj in range(G)] + list(final or [])
        if self.split0:
            fr[:G * NT] = [(0, j, t) for j in range(G) for t in range(NT)]
            assert D <= NT - 1
        z = nnat * F
        pos_ops = pos_ops or {}; bars = bars or {}; marks = marks or {}
        fillers = list(fillers)
        vs = {t: list(v) for t, v in self.vs.items()}
        if early:
            late = [o for t in sorted(vs) if t >= z for o in vs.pop(t)]
            for i, o in enumerate(late): vs.setdefault(z + i, []).append(o)
        self.vis = 0
        def rd(i, h):
            S, j, t = fr[i]
            assert S <= self.vis, ('read before publish', i - z, S, self.vis)
            ai, imm = self.tiles[t]
            off = (S % self.NS) * self.stagebytes + imm + (j * self.KS * 32 + 16 * h) * self.RB
            self.ldsop('ds_read_b64_tr_b16', self.wbuf + (i % self.R) * 4 + 2 * h, 2, self.waddr, self.nareg, ai, off, ('W', i, h))
        if self.split0 == 1: self.prologue2()
        if not self.preloaded:
            p.wait(vm=[('D', 0, n) for n in (self.first_d if self.split0 else range(self.PD))])
            p.ins('s_barrier')
        for i in range(D):
            rd(i, 0); rd(i, 1)
        if self.split0 == 2: self.prologue2()
        if self.extra:
            for k_ in range(G): self.rdx(k_)
        seenA, seenX, touched = set(), set(), set()
        carry = []
        for i, (S, j, t) in enumerate(fr):
            pos = i - z
            if i in marks: marks[i]()
            if getattr(self, 'TT', None) and i % F == 0 and i // F in self.TT[1]: self.TT[0].T(f'{self.name}:s{i // F}')
            g0 = i - i % self.wgrp
            if i == g0:
                lgn, vmn = [], []
                for i2 in range(i, min(i + self.wgrp, len(fr))):
                    S2, j2, t2 = fr[i2]; ks2 = S2 * KPS + j2
                    lgn += [('W', i2, 0), ('W', i2, 1)]
                    if ks2 not in seenA:
                        seenA.add(ks2); vmn += [('A', ks2, m) for m in range(WM)]
                    if t2 in self.extra and ks2 not in seenX:
                        seenX.add(ks2); lgn.append(('XL', ks2))
                p.wait(vm=vmn or None, lg=lgn)
            ks = S * KPS + j
            wbf = lambda i_: self.wbuf + (i_ % self.R) * 4
            abf = self.abf
            xbf = lambda ks_: self.xbuf + (ks_ % self.NX) * 4
            io = i ^ 1
            if G == 2 and io < len(fr) and fr[io][2] == t:
                lo, hi = min(i, io), max(i, io)
                kl, kh = fr[lo][0] * KPS + fr[lo][1], fr[hi][0] * KPS + fr[hi][1]
                m0_ = (i // 2) % 2
                if i == lo:
                    mf = [(self.accr(t, m0_), wbf(lo), abf(kl, m0_)), (self.accr(t, m0_), wbf(hi), abf(kh, m0_))]
                else:
                    mf = [(self.accr(t, 1 - m0_), wbf(hi), abf(kh, 1 - m0_)), (self.accr(t, 1 - m0_), wbf(lo), abf(kl, 1 - m0_))]
                    if t in self.extra:
                        xa = self.xacc + 4 * self.extra.index(t)
                        mf = [(xa, wbf(hi), xbf(kh)), (xa, wbf(lo), xbf(kl))][::-1] + mf if False else mf + [(xa, wbf(lo), xbf(kl)), (xa, wbf(hi), xbf(kh))]
            else:
                mf = [(self.accr(t, m), wbf(i), abf(ks, m)) for m in range(WM)]
                if t in self.extra:
                    mf.append((self.xacc + 4 * self.extra.index(t), wbf(i), xbf(ks)))
            nm = len(mf)
            sh = [[] for _ in range(nm)]
            if i + D < len(fr):
                sh[0].append(lambda i=i: rd(i + D, 0)); sh[1 % nm].append(lambda i=i: rd(i + D, 1))
            vo = vs.get(i, [])
            for n_, o in enumerate(vo):
                pre, main = self.op_parts(*o)
                if n_ == 0 and nm > 1:
                    sh[0].append(pre); sh[1].append(main)
                else:
                    sh[nm - 1] += [pre, (lambda: p.ins('s_nop 0')), main] if o[0] == 'D' else [pre, main]
            ops = list(pos_ops.get(pos, []))
            f = i % F
            if pos < 0 or not final:
                if self.extra and G == 1 and t == NT - self.alead and ks + 1 < self.nst * KPS:
                    ops.append(lambda ks=ks: self.rdx(ks + 1))
                if self.extra and G == 2 and t == 1 and i >= F:
                    ops.append(lambda ks=ks: self.rdx(ks))
                if self.nprio:
                    rel = (f - self.bslot) % F
                    q_, qp = rel * self.nprio // F, (rel - 1) * self.nprio // F
                    if rel > 0 and q_ != qp:
                        ops.append(lambda q_=q_: p.ins(f's_setprio {self.nprio - 1 - q_}'))
            if final and fprio and pos in fprio:
                ops.append(lambda v_=fprio[pos]: p.ins(f's_setprio {v_}'))
            for n_, o in enumerate(ops):
                sh[(nm - 1 - n_) % nm].append(o)
            n = 0
            rt = rate if pos >= 0 else prate
            while fillers and fillers[0][0] <= pos and n < rt:
                o = fillers.pop(0)[1]
                sh[n * nm // rt].append((lambda o=o: p.ins(o)) if isinstance(o, str) else o)
                n += 1
            for n_, (c, wb, ab) in enumerate(mf):
                cin = vr(c, 4) if c in touched else '0'
                touched.add(c)
                p.ins(f'{MFMA} {vr(c, 4)}, {vr(wb, 4)}, {vr(ab, 4)}, {cin}')
                for o in sh[n_]:
                    o()
            if (pos < 0 or not final) and f == self.bslot and S + 1 < self.nst:
                if S + 1 not in self.preloaded:
                    p.wait(vm=[('D', S + 1, n_) for n_ in range(self.PD)])
                if S + 1 not in self.preloaded or self.NS <= S + self.npre < self.nst:
                    p.ins('s_barrier')
                if self.nprio: p.ins(f's_setprio {self.nprio - 1}')
                self.vis = S + 1
            if self.split0 and i == NT - D - 1:
                p.wait(vm=[('D', 0, n_) for n_ in range(self.PD)])
                p.ins('s_barrier')
            if pos in bars:
                r = bars[pos]()
                if r is not None: self.vis = r
        if self.nprio: p.ins('s_setprio 0')
        return fillers
```

```python
import sys
from asmlib import *
from gemm import Gemm, MFMA
from gemm2 import Gemm2

A_X, A_WQKV, A_WO, B_X, B_WG, B_WU, B_WD, IN_C, W_MOD, OUT, DBG, WS = [8 * i for i in range(12)]
WS_MODP = 0x0
WS_MODF = 0x20000
WS_H = 0x100000
WS_O = 0x700000
WS_X1 = 0xD00000
WS_H2 = 0x2800000
WS_ACT = 0x1300000
WS_ST = 0x40000
WS_UT = 0x80000
WS_FL = 0xA0000
WS_XC = 0x2800000
WS_Y = 0x2300000
M, DM, FF = 2048, 1024, 3584
LOG2E = 1.4426950408889634

import struct
def f32(x):
    return '0x%08x' % struct.unpack('<I', struct.pack('<f', x))[0]

STAMP = False
TL = False
TLN = {}
FINE = False
WS_STAMP = 0x3000000
class K:
    count = 0
    def __init__(self, name, nwg, nthreads, vlimit=256):
        self.name, self.nwg, self.nthreads = name, nwg, nthreads
        self.p = Prog(); self.V = Regs('v', 1, vlimit); self.S = Regs('s', 4, 100)
        self.lds = 0
        self.srds = []
        p = self.p
        p.label(name)
        p.ins(f's_cmp_ge_u32 s2, {nwg}\ns_cbranch_scc1 X_{name}')
        self.idx = K.count; K.count += 1
        if STAMP:
            p.ins('s_memrealtime s[88:89]\ns_memtime s[90:91]\ns_load_dwordx2 s[96:97], s[0:1], 88\nv_readfirstlane_b32 s98, v0\ns_mov_b32 s99, s2')
            self.S.limit = 80
        if TL:
            self.tn = []; TLN[name] = self.tn
            p.ins('v_mov_b32 v254, 0\nv_mov_b32 v255, 0')
            self.T('start')
    def T(self, nm):
        if not TL: return
        i = len(self.tn); self.tn.append(nm)
        self.p.ins(f's_memrealtime s[96:97]\ns_memtime s[98:99]\ns_waitcnt lgkmcnt(0)\nv_writelane_b32 v254, s96, {i}\nv_writelane_b32 v255, s98, {i}')
    def mark(self, i, fine=False):
        if FINE and not fine:
            if i != 0: return
            i = 2
        if STAMP:
            self.p.ins(f's_memtime s[{80+2*i}:{81+2*i}]')
    def srd(self, name, slot, nbytes, off=0):
        s = self.S.alloc(name, 4, 4)
        self.p.ins(f's_load_dwordx2 {sr(s, 2)}, s[0:1], {slot}')
        self.srds.append((s, nbytes, off))
        return s
    def finish_srds(self):
        p = self.p
        for s, nb, off in self.srds:
            p.ins(f's_mov_b32 {sr(s+2)}, {nb}\ns_mov_b32 {sr(s+3)}, 0x20000')
        if FINE: self.mark(0, True)
        p.ins('s_waitcnt lgkmcnt(0)')
        if FINE: self.mark(1, True)
        for s, nb, off in self.srds:
            if off:
                p.ins(f's_add_u32 {sr(s)}, {sr(s)}, {off}\ns_addc_u32 {sr(s+1)}, {sr(s+1)}, 0')
    def end(self):
        self.p.label(f'E_{self.name}')
        if TL:
            p = self.p
            p.ins('s_mov_b64 exec, -1')
            self.T('preend')
            p.ins('s_waitcnt vmcnt(0) lgkmcnt(0)')
            self.T('end')
            p.ins(f's_load_dwordx2 s[96:97], s[0:1], 88\nv_lshlrev_b32 v1, 3, v0\nv_and_b32 v2, 63, v0\nv_lshlrev_b32 v2, 2, v2\nv_and_b32 v1, 0xe00, v1\nv_add_u32 v1, v1, v2\ns_lshl_b32 s98, s2, 12\ns_add_u32 s98, s98, {WS_STAMP + self.idx * 0x200000}\nv_add_u32 v1, s98, v1\ns_waitcnt lgkmcnt(0)')
            p.ins('global_store_dword v1, v254, s[96:97]\nglobal_store_dword v1, v255, s[96:97] offset:256')
        if STAMP:
            p = self.p
            p.ins('s_memtime s[86:87]\ns_waitcnt vmcnt(0) lgkmcnt(0)')
            p.ins('s_memrealtime s[92:93]\ns_memtime s[94:95]\ns_waitcnt lgkmcnt(0)')
            p.ins(f's_lshr_b32 s98, s98, 6\ns_lshl_b32 s99, s99, 3\ns_add_u32 s99, s99, s98\ns_lshl_b32 s99, s99, 6\ns_add_u32 s99, s99, {WS_STAMP + self.idx * 0x40000}')
            p.ins('s_mov_b64 exec, 1\nv_mov_b32 v0, s99')
            for i, r in enumerate((88, 90, 92, 94, 80, 82, 84, 84, 86)):
                p.ins(f'v_mov_b32 v1, s{r}\nglobal_store_dword v0, v1, s[96:97] offset:{4*i}')
        self.p.label(f'X_{self.name}')
        self.p.ins('s_endpgm')
    def new_phase(self):
        self.done = getattr(self, 'done', []) + [self.p]
        self.maxv = max(getattr(self, 'maxv', 0), self.V.next); self.maxs = max(getattr(self, 'maxs', 0), self.S.next)
        self.lds0 = max(getattr(self, 'lds0', 0), self.lds)
        self.p = Prog(); self.V = Regs('v', 1, self.V.limit); self.S = Regs('s', 4, self.S.limit); self.srds = []
        for a in ('tmp_s', 'tmp_v', 'vdummy'):
            if hasattr(self, a): delattr(self, a)
    def text(self):
        return '.p2align 8\n' + ''.join(q.text() for q in getattr(self, 'done', [])) + self.p.text()
    def desc(self, minv=0):
        nv = max(self.V.next, minv, getattr(self, 'maxv', 0))
        if TL: nv = 256
        self.S.next = max(self.S.next, getattr(self, 'maxs', 0))
        return kdesc(self.name, nv, 102 if (STAMP or TL or TOK[0]) else min(102, self.S.next + 2), min(256, (nv + 3) // 4 * 4))
    def launch(self):
        return f'; @launch kernel={self.name} grid=({self.nwg},1,1) block=({self.nthreads},1,1) lds={max(self.lds, getattr(self, "lds0", 0))}'

def round_bf16(p, d, s, tmp=None):
    p.ins(f'v_cvt_pk_bf16_f32 {vr(d)}, {vr(s)}, {vr(s)}\nv_lshlrev_b32 {vr(d)}, 16, {vr(d)}')

def xrow_reduce(p, op, x, t, steps=(16, 32)):
    for s in steps:
        p.ins(f'v_mov_b32 {vr(t)}, {vr(x)}\ns_nop 1\nv_permlane{s}_swap_b32 {vr(x)}, {vr(t)}\ns_nop 0\n{op} {vr(x)}, {vr(x)}, {vr(t)}')

NPART = 4
TOK = [None]
MBS = [32768, 114688]
MODNT = ['nt', 'nt']
H2_IS_Y = False
def tmps(k):
    if not hasattr(k, 'tmp_s'):
        k.tmp_s = k.S.alloc('tmps', 4, 2); k.tmp_v = k.V.alloc('tmpv', 2, 2)
    if not hasattr(k, 'vdummy'):
        k.vdummy = k.V.alloc('dummy')
    return k.tmp_s, k.tmp_v

def touch(k, srd, voff, soff, imms, flags=''):
    if not hasattr(k, 'vdummy'):
        k.vdummy = k.V.alloc('dummy')
    for im in imms:
        o = f' offset:{im}' if im else ''
        k.p.vm(f'buffer_load_dword {vr(k.vdummy)}, {vr(voff)}, {sr(srd,4)}, {sr(soff)} offen{o} {flags}', 'touch')
        k.touched = True

def gemv_acc(p, n, vw, vs, va, vu, tag):
    for i in range(n):
        p.wait(vm=[tag(i)])
        for d in range(4):
            w = vw + 4 * i + d
            p.ins(f'v_lshlrev_b32 {vr(vu)}, 16, {vr(w)}\nv_and_b32 {vr(vu+1)}, 0xffff0000, {vr(w)}')
            if i == 0:
                p.ins(f'v_mul_f32 {vr(va+2*d)}, {vr(vs)}, {vr(vu)}\nv_mul_f32 {vr(va+2*d+1)}, {vr(vs)}, {vr(vu+1)}')
            else:
                p.ins(f'v_fmac_f32 {vr(va+2*d)}, {vr(vs+i)}, {vr(vu)}\nv_fmac_f32 {vr(va+2*d+1)}, {vr(vs+i)}, {vr(vu+1)}')

def gemv_reduce(p, va):
    p.ins('s_nop 1')
    for i in range(4):
        p.ins(f'v_permlane32_swap_b32 {vr(va+i)}, {vr(va+i+4)}')
    p.ins('s_nop 0')
    for i in range(4):
        p.ins(f'v_add_f32 {vr(va+i)}, {vr(va+i)}, {vr(va+i+4)}')
    p.ins('s_nop 1')
    for i in range(2):
        p.ins(f'v_permlane16_swap_b32 {vr(va+i)}, {vr(va+i+2)}')
    p.ins('s_nop 0')
    for i in range(2):
        p.ins(f'v_add_f32 {vr(va+i)}, {vr(va+i)}, {vr(va+i+2)}')
    p.ins('s_nop 1')
    for i in range(2):
        p.ins(f'v_add_f32_dpp {vr(va+i)}, {vr(va+i)}, {vr(va+i)} row_ror:8 row_mask:0xf bank_mask:0xf')

def mod_body(k, sW, sC, sP, sunit, strip0, sw, vl, after_loads=None, sD=None):
    p, V, S = k.p, k.V, k.S
    s0 = S.alloc('m0'); s1 = S.alloc('m1'); sst = S.alloc('strip'); skh = S.alloc('kh')
    vt = V.alloc('mt', 4); vo = V.alloc('moff'); vc = V.alloc('mc', 4, 4); vs = V.alloc('ms', 8)
    vw = V.alloc('mw', 32, 4); va = V.alloc('macc', 8, 2); vu = V.alloc('mu', 2)
    p.ins(f's_lshr_b32 {sr(sst)}, {sr(sunit)}, 2\ns_add_u32 {sr(sst)}, {sr(sst)}, {strip0}\ns_and_b32 {sr(skh)}, {sr(sunit)}, 3')
    p.ins(f's_lshl_b32 {sr(s0)}, {sr(skh)}, 8\ns_lshl_b32 {sr(s1)}, {sr(sw)}, 6\ns_add_u32 {sr(s0)}, {sr(s0)}, {sr(s1)}')
    p.ins(f'v_and_b32 {vr(vt)}, 0x38, {vr(vl)}\nv_add_u32 {vr(vt)}, {sr(s0)}, {vr(vt)}')
    p.ins(f'v_lshlrev_b32 {vr(vt+1)}, 1, {vr(vt)}')
    p.ins(f'v_mul_u32_u24 {vr(vo)}, 12288, {vr(vt)}\nv_and_b32 {vr(vt+2)}, 7, {vr(vl)}\nv_lshl_add_u32 {vr(vo)}, {vr(vt+2)}, 4, {vr(vo)}')
    p.ins(f's_lshl_b32 {sr(s1)}, {sr(sst)}, 7')
    k.T('m:issue')
    p.vm(f'buffer_load_dwordx4 {vr(vc,4)}, {vr(vt+1)}, {sr(sC,4)}, 0 offen', 'mc')
    for i in range(8):
        p.vm(f'buffer_load_dwordx4 {vr(vw+4*i,4)}, {vr(vo)}, {sr(sW,4)}, {sr(s1)} offen {MODNT[0]}', ('mw', i))
        if i < 7:
            p.ins(f's_add_u32 {sr(s1)}, {sr(s1)}, 12288')
    if after_loads: after_loads()
    k.T('m:issued')
    p.wait(vm=['mc'])
    k.T('m:c')
    for i in range(8):
        src = vc + i // 2
        p.ins(f'v_lshlrev_b32 {vr(vs+i)}, 16, {vr(src)}' if i % 2 == 0 else f'v_and_b32 {vr(vs+i)}, 0xffff0000, {vr(src)}')
    for i in range(8):
        p.ins(f'v_mul_f32 {vr(va+i)}, {f32(-LOG2E)}, {vr(vs+i)}')
    for i in range(8):
        p.ins(f'v_exp_f32 {vr(va+i)}, {vr(va+i)}')
    for i in range(8):
        p.ins(f'v_add_f32 {vr(va+i)}, 1.0, {vr(va+i)}')
    for i in range(8):
        p.ins(f'v_rcp_f32 {vr(va+i)}, {vr(va+i)}')
    for i in range(8):
        p.ins(f'v_mul_f32 {vr(vs+i)}, {vr(vs+i)}, {vr(va+i)}')
    for i in range(0, 8, 2):
        p.ins(f'v_cvt_pk_bf16_f32 {vr(vu)}, {vr(vs+i)}, {vr(vs+i+1)}\nv_lshlrev_b32 {vr(vs+i)}, 16, {vr(vu)}\nv_and_b32 {vr(vs+i+1)}, 0xffff0000, {vr(vu)}')
    p.ins(f'v_and_b32 {vr(vt)}, 7, {vr(vl)}\nv_lshlrev_b32 {vr(vt)}, 5, {vr(vt)}\nv_lshrrev_b32 {vr(vt+1)}, 4, {vr(vl)}\nv_lshl_add_u32 {vr(vt)}, {vr(vt+1)}, 3, {vr(vt)}')
    p.ins(f's_lshl_b32 {sr(s0)}, {sr(sw)}, 8\nv_add_u32 {vr(vt)}, {sr(s0)}, {vr(vt)}\nv_lshlrev_b32 {vr(vt+1)}, 2, {vr(vl)}')
    p.ins(f's_mul_i32 {sr(s0)}, {sr(skh)}, {6144*4}\ns_lshl_b32 {sr(s1)}, {sr(sst)}, 8\ns_add_u32 {sr(s0)}, {sr(s0)}, {sr(s1)}')
    k.T('m:silu')
    gemv_acc(p, 8, vw, vs, va, vu, lambda i: ('mw', i))
    k.T('m:acc')
    gemv_reduce(p, va)
    p.lg(f'ds_write_b64 {vr(vt)}, {vr(va,2)}')
    p.wait(lg='all')
    p.ins('s_barrier')
    p.ins(f's_cmp_lg_u32 {sr(sw)}, 0\ns_cbranch_scc1 E_{k.name}')
    for i in range(4):
        p.lg(f'ds_read_b32 {vr(va+i)}, {vr(vt+1)} offset:{256*i}')
    p.wait(lg='all')
    for a, b in ((0, 1), (2, 3), (0, 2)):
        p.ins(f'v_add_f32 {vr(va+a)}, {vr(va+a)}, {vr(va+b)}')
    if sD is None:
        p.vm(f'buffer_store_dword {vr(va)}, {vr(vt+1)}, {sr(sP,4)}, {sr(s0)} offen')
    else:
        p.vm(f'buffer_store_dword {vr(va)}, {vr(vt+1)}, {sr(sP,4)}, {sr(s0)} offen sc1')
        p.ins(f's_bfe_u32 {sr(s1)}, {sr(sst)}, 0x20002\ns_lshl_b32 {sr(s1)}, {sr(s1)}, 6\nv_mov_b32 {vr(va+1)}, 1\nv_mov_b32 {vr(va+2)}, 0\ns_mov_b64 exec, 1')
        p.ins('s_waitcnt vmcnt(0)')
        p.vm(f'buffer_atomic_add {vr(va+1)}, {vr(va+2)}, {sr(sD,4)}, {sr(s1)} offen sc1')
        p.ins('s_mov_b64 exec, -1')
    p.ins(f's_branch E_{k.name}')

def touch_x(k, sX, swg, sw, vl, flags):
    p = k.p
    s, v = tmps(k)
    p.ins(f'v_lshlrev_b32 {vr(v)}, 7, {vr(vl)}\ns_lshl_b32 {sr(s)}, {sr(swg)}, 1\ns_add_u32 {sr(s)}, {sr(s)}, {sr(sw)}\ns_lshl_b32 {sr(s)}, {sr(s)}, 13')
    p.ins(f's_cmp_lt_u32 {sr(sw)}, 2\ns_cselect_b32 {sr(s)}, {sr(s)}, 0x40000000')
    touch(k, sX, v, s, [0], flags)

def touch_cols(k, srd, ld, swg, sw, vl, nw, colgrp_bits, grp_lines, segs, nrows, split, flags, row0=0):
    p = k.p
    nshare = 8 >> colgrp_bits if split else 1
    rows = nrows // nshare
    nb = rows // 64
    lines = [sg + 128 * j for sg in segs for j in range(grp_lines)]
    nun = 32 * nw
    assert nun >= nb
    s, v = tmps(k); t = s + 1; u = s + 2
    p.ins(f'v_mul_u32_u24 {vr(v)}, {ld}, {vr(vl)}')
    p.ins(f's_lshr_b32 {sr(u)}, {sr(swg)}, 3\ns_and_b32 {sr(u)}, {sr(u)}, 31\ns_mul_i32 {sr(u)}, {sr(u)}, {nw}\ns_add_u32 {sr(u)}, {sr(u)}, {sr(sw)}')
    p.ins(f's_and_b32 {sr(s)}, {sr(swg)}, {(1 << colgrp_bits) - 1}\ns_mul_i32 {sr(s)}, {sr(s)}, {grp_lines * 128}')
    if row0:
        p.ins(f's_add_u32 {sr(s)}, {sr(s)}, {row0 * ld}')
    if nshare > 1:
        p.ins(f's_and_b32 {sr(t)}, {sr(swg)}, 7\ns_lshr_b32 {sr(t)}, {sr(t)}, {colgrp_bits}\ns_mul_i32 {sr(t)}, {sr(t)}, {rows * ld}\ns_add_u32 {sr(s)}, {sr(s)}, {sr(t)}')
    nsub = nun // nb
    per = -(-len(lines) // nsub)
    magic = (1 << 16) // nb + 1
    p.ins(f's_mul_i32 {sr(t)}, {sr(u)}, {magic}\ns_lshr_b32 {sr(t)}, {sr(t)}, 16')
    p.ins(f's_mul_i32 vcc_lo, {sr(t)}, {nb}\ns_sub_u32 {sr(u)}, {sr(u)}, vcc_lo\ns_mul_i32 {sr(u)}, {sr(u)}, {64 * ld}\ns_add_u32 {sr(s)}, {sr(s)}, {sr(u)}')
    segstep = segs[1] - segs[0] if len(segs) > 1 else 0
    m2 = (1 << 16) // grp_lines + 1
    for i in range(per):
        p.ins(f's_mul_i32 {sr(u)}, {sr(t)}, {per}\ns_add_u32 {sr(u)}, {sr(u)}, {i}')
        p.ins(f's_cmp_lt_u32 {sr(u)}, {len(lines)}\ns_cselect_b32 vcc_hi, {sr(s)}, 0x40000000')
        if segstep:
            p.ins(f's_mul_i32 vcc_lo, {sr(u)}, {m2}\ns_lshr_b32 vcc_lo, vcc_lo, 16\ns_mul_i32 vcc_lo, vcc_lo, {segstep - grp_lines * 128}\ns_add_u32 vcc_hi, vcc_hi, vcc_lo')
        p.ins(f's_lshl_b32 {sr(u)}, {sr(u)}, 7\ns_add_u32 {sr(u)}, {sr(u)}, vcc_hi')
        touch(k, srd, v, u, [0], flags)

def zero_flags(k, sF, sw, vl, vz, s1, s2_, wave=0):
    p = k.p
    L = f'F_z{k.name}'
    p.ins(f's_cmp_lg_u32 {sr(sw)}, {wave}\ns_cbranch_scc1 {L}')
    p.ins(f's_lshl_b32 {sr(s1)}, s2, 7\ns_lshr_b32 {sr(s2_)}, s2, 2\ns_lshl_b32 {sr(s2_)}, {sr(s2_)}, 7')
    p.ins(f'v_lshrrev_b32 {vr(vz+4)}, 3, {vr(vl)}\nv_mov_b32 {vr(vz)}, {sr(s1)}\nv_mov_b32 {vr(vz+1)}, {sr(s2_)}\nv_cmp_eq_u32 vcc, 2, {vr(vz+4)}\nv_and_b32 {vr(vz+5)}, 7, {vr(vl)}\nv_lshlrev_b32 {vr(vz+4)}, 15, {vr(vz+4)}')
    p.ins(f'v_cndmask_b32 {vr(vz)}, {vr(vz)}, {vr(vz+1)}, vcc\nv_lshl_add_u32 {vr(vz+4)}, {vr(vz+5)}, 4, {vr(vz+4)}\nv_add_u32 {vr(vz+4)}, {vr(vz+4)}, {vr(vz)}')
    p.ins('\n'.join(f'v_mov_b32 {vr(vz+i)}, 0' for i in range(4)))
    p.ins(f'buffer_store_dwordx4 {vr(vz,4)}, {vr(vz+4)}, {sr(sF,4)}, 0 offen\ns_nop 1')
    p.label(L)

def touch_strip(k, srd, ld, swg, sw, vl, col_expr, segs, nrows, cond_even=False, row0=0, flags=''):
    p = k.p
    s, v = tmps(k); t = s + 1; u = s + 2
    nb = nrows // 64
    nit = nb * len(segs)
    nw = k.nthreads // 64
    p.ins(f'v_mul_u32_u24 {vr(v)}, {ld}, {vr(vl)}')
    col_expr(s, t)
    for rep in range(-(-nit // (32 * nw))):
        p.ins(f's_lshl_b32 {sr(u)}, {sr(sw)}, 5\ns_bfe_u32 {sr(t)}, {sr(swg)}, 0x50003\ns_add_u32 {sr(u)}, {sr(u)}, {sr(t)}')
        if rep: p.ins(f's_add_u32 {sr(u)}, {sr(u)}, {rep * 32 * nw}')
        if len(segs) > 1:
            n = len(segs); mg = (1 << 16) // n + 1
            p.ins(f's_mul_i32 {sr(t)}, {sr(u)}, {mg}\ns_lshr_b32 {sr(t)}, {sr(t)}, 16\ns_mul_i32 vcc_lo, {sr(t)}, {n}\ns_sub_u32 vcc_lo, {sr(u)}, vcc_lo\ns_mul_i32 vcc_lo, vcc_lo, {segs[1] - segs[0]}\ns_mul_i32 {sr(t)}, {sr(t)}, {64 * ld}\ns_add_u32 {sr(t)}, {sr(t)}, vcc_lo')
        else:
            p.ins(f's_mul_i32 {sr(t)}, {sr(u)}, {64 * ld}')
        p.ins(f's_add_u32 {sr(t)}, {sr(t)}, {sr(s)}')
        if row0: p.ins(f's_add_u32 {sr(t)}, {sr(t)}, {row0 * ld}')
        p.ins(f's_cmp_lt_u32 {sr(u)}, {nit}\ns_cselect_b32 {sr(t)}, {sr(t)}, 0x40000000')
        if cond_even:
            p.ins(f's_bitcmp0_b32 {sr(swg)}, 0\ns_cselect_b32 {sr(t)}, {sr(t)}, 0x40000000')
        touch(k, srd, v, t, [0], flags)

def touch_lin(k, srd, swg, sw, vl, nw, off, nbytes, flags, nwg=256):
    p = k.p
    s, v = tmps(k); t = s + 1
    nun = nwg * nw
    npieces = -(-nbytes // 8192)
    p.ins(f'v_lshlrev_b32 {vr(v)}, 7, {vr(vl)}')
    p.ins(f's_mul_i32 {sr(s)}, {sr(sw)}, {nwg}\ns_add_u32 {sr(s)}, {sr(s)}, {sr(swg)}\ns_lshl_b32 {sr(s)}, {sr(s)}, 13')
    for i in range(-(-npieces // nun)):
        p.ins(f's_add_u32 {sr(t)}, {sr(s)}, {i * nun * 8192}\ns_cmp_lt_u32 {sr(t)}, {nbytes}\ns_cselect_b32 {sr(t)}, {sr(t)}, 0x40000000')
        if off:
            p.ins(f's_add_u32 {sr(t)}, {sr(t)}, {off}')
        touch(k, srd, v, t, [0], flags)

def touch_code(k, swg, sw, vl, first_label, last_label, wave):
    p = k.p
    k.ncode = getattr(k, 'ncode', 0) + 1
    k.code_touched = True
    L = f'TC{k.ncode}_{k.name}'
    s, v = tmps(k); t = s + 2
    p.ins(f's_lshr_b32 {sr(t)}, {sr(swg)}, 3\ns_lshl_b32 {sr(t)}, {sr(t)}, 13')
    p.ins(f's_cmp_lg_u32 {sr(sw)}, {wave}\ns_cbranch_scc1 {L}')
    p.ins(f's_cmp_ge_u32 {sr(t)}, {last_label}-{first_label}\ns_cbranch_scc1 {L}')
    p.ins(f's_getpc_b64 {sr(s,2)}')
    p.label(L + 'p')
    p.ins(f's_add_u32 {sr(t)}, {sr(t)}, {first_label}-{L}p')
    p.ins(f's_ashr_i32 vcc_hi, {sr(t)}, 31\ns_add_u32 {sr(s)}, {sr(s)}, {sr(t)}\ns_addc_u32 {sr(s+1)}, {sr(s+1)}, vcc_hi')
    p.ins(f'v_lshlrev_b32 {vr(v)}, 7, {vr(vl)}\nv_mov_b32 {vr(v+1)}, {sr(s+1)}\nv_add_co_u32 {vr(v)}, vcc, {sr(s)}, {vr(v)}\ns_nop 1\nv_addc_co_u32 {vr(v+1)}, vcc, 0, {vr(v+1)}, vcc')
    p.ins(f'global_load_dword {vr(k.vdummy)}, {vr(v,2)}, off')
    p.label(L)

def k_mod(cfg={}):
    nu = cfg.get('units', 128)
    k = K('k1_mod_kernel', max(256, nu), 256, 128); p, V, S = k.p, k.V, k.S
    sW = k.srd('wmod', W_MOD, 1024 * 6144 * 2); sC = k.srd('c', IN_C, 2048); sP = k.srd('modp', WS, NPART * 6144 * 4, WS_MODP)
    sX = k.srd('x', A_X, M * DM * 2); sQ = k.srd('wqkv', A_WQKV, DM * 3072 * 2)
    pre = cfg.get('pre', lambda k: None)(k)
    if cfg.get('zero'): sF = k.srd('fl', WS, cfg.get('nfl', 6) * 32768, WS_FL); sz = S.alloc('sz', 2); vz = V.alloc('vz', 6, 4)
    if cfg.get('sent'): sS = k.srd('sent', WS, 0x100000)
    sw = S.alloc('w'); swg = S.alloc('wg')
    vl = V.alloc('lane'); vt = V.alloc('t')
    p.ins(f'v_lshrrev_b32 {vr(vt)}, 6, v0\nv_and_b32 {vr(vl)}, 63, v0\nv_readfirstlane_b32 {sr(sw)}, {vr(vt)}\ns_mov_b32 {sr(swg)}, s2')
    k.finish_srds()
    late = cfg.get('late')
    def clears(wg, tag):
        t0 = len(p.items)
        if cfg.get('zero'): zero_flags(k, sF, sw, vl, vz, sz, sz + 1, 2)
        if cfg.get('sent'):
            p.ins(f's_cmp_lg_u32 {sr(sw)}, 1\ns_cbranch_scc1 F_sent')
            p.ins('\n'.join(f'v_mov_b32 {vr(vz+i)}, -1' for i in range(4)) + f'\nv_lshlrev_b32 {vr(vz+4)}, 4, {vr(vl)}\nv_lshlrev_b32 {vr(vz+5)}, 2, {vr(vl)}')
            p.ins(f's_lshl_b32 {sr(sz)}, s2, 11\ns_add_u32 {sr(sz)}, {sr(sz)}, {cfg["sent"]}')
            p.ins(f'buffer_store_dwordx4 {vr(vz,4)}, {vr(vz+4)}, {sr(sS,4)}, {sr(sz)} offen\nbuffer_store_dwordx4 {vr(vz,4)}, {vr(vz+4)}, {sr(sS,4)}, {sr(sz)} offen offset:1024')
            p.ins(f's_and_b32 {sr(sz)}, s2, 3\ns_mul_i32 {sr(sz)}, {sr(sz)}, 24576\ns_lshr_b32 {sr(sz+1)}, s2, 2\ns_lshl_b32 {sr(sz+1)}, {sr(sz+1)}, 8\ns_add_u32 {sr(sz)}, {sr(sz)}, {sr(sz+1)}\ns_add_u32 {sr(sz)}, {sr(sz)}, 8192')
            p.ins(f'buffer_store_dword {vr(vz)}, {vr(vz+5)}, {sr(sS,4)}, {sr(sz)} offen\ns_nop 1')
            p.label('F_sent')
        import re
        for i_ in range(t0, len(p.items)):
            it = p.items[i_]
            p.items[i_] = (it[0], re.sub(r'\bs2\b', wg, it[1]).replace('F_z', 'F_z' + tag).replace('F_sent', 'F_sent' + tag)) + tuple(it[2:])
    if not late: clears('s2', '')
    def touches(code=True):
        if cfg.get('code') and code: touch_code(k, slo if late else swg, sw, vl, cfg['code'][0], cfg['code'][1], 3)
        if cfg.get('tx') is not None:
            touch_x(k, sX, swg, sw, vl, cfg['tx'])
        if cfg.get('tq') is not None:
            touch_cols(k, sQ, 6144, swg, sw, vl, 4, 2, 4, [0, 2048, 4096], cfg.get('tq_rows', 1024), cfg.get('tq_split', True), cfg['tq'])
        if cfg.get('lq') is not None:
            touch_lin(k, sQ, swg, sw, vl, 4, 0, cfg.get('tq_rows', 1024) * 6144, cfg['lq'])
        if cfg.get('mid'): cfg['mid'](k, pre, swg, sw, vl)
    p.ins(f's_cmp_ge_u32 s2, {nu}\ns_cbranch_scc1 T_{k.name}')
    slo = S.alloc('lo')
    mod_body(k, sW, sC, sP, swg, 0, sw, vl, (lambda: touches(False)) if late else touches)
    p.label(f'T_{k.name}')
    p.ins(f's_sub_u32 {sr(slo)}, s2, {nu}')
    touches()
    if late: clears('s2', 'a'); clears(sr(slo), 'b')
    if cfg.get('r2'):
        p.ins(f's_sub_u32 {sr(swg)}, {sr(swg)}, {nu}')
        if late: p.ins(f's_cmp_eq_u32 {sr(sw)}, 1\ns_cbranch_scc1 F_w6\ns_cmp_eq_u32 {sr(sw)}, 2\ns_cbranch_scc1 F_w2\ns_waitcnt vmcnt(0)'); p.label('F_w2'); p.ins('s_waitcnt vmcnt(2)'); p.label('F_w6'); p.ins('s_waitcnt vmcnt(6)')
        else: p.ins('s_waitcnt vmcnt(0)')
        touch_lin(k, sQ, swg, sw, vl, 4, cfg['r2'][0] * 6144, cfg['r2'][1] * 6144, '', nwg=256 - nu)
    k.end()
    k.lds = 1024
    return k

X1_AF = True
def k_ln(name, src_slot, src_off, dst_off, chunk_shift, chunk_scale, finalize_mod, af_in=False, cfg={}):
    plain = cfg.get('plain')
    k = K(name, 384 if plain else 256, 256, 256); p, V, S = k.p, k.V, k.S
    if plain:
        sWm = k.srd('wmod', W_MOD, 1024 * 6144 * 2); sC = k.srd('c', IN_C, 2048)
        swg0 = S.alloc('wg0')
        p.ins(f's_mov_b32 {sr(swg0)}, s2\ns_sub_u32 s2, s2, 128')
    if not af_in:
        sQ = k.srd('wqkv', A_WQKV, DM * 3072 * 2); sWo = k.srd('wo', A_WO, DM * DM * 2)
    sX = k.srd('x', src_slot, M * DM * 2, src_off); sP = k.srd('mod', WS, 0x40000, WS_MODP); sH = k.srd('h', WS, 128 * MBS[0], dst_off)
    pre = cfg.get('pre', lambda k: None)(k)
    if cfg.get('zero'): sF = k.srd('fl', WS, 6 * 32768, WS_FL)
    sw = S.alloc('w'); s0 = S.alloc('t0'); s1 = S.alloc('t1'); s2_ = S.alloc('t2'); s3_ = S.alloc('t3')
    vl = V.alloc('lane'); vt = V.alloc('t', 6, 2); vo = V.alloc('off'); vm_ = V.alloc('moff'); vtid16 = V.alloc('tid16')
    vx = V.alloc('x', 16, 4); vf = V.alloc('f', 32, 4)
    vc = V.alloc('c', 32, 4); vs = V.alloc('s', 32, 4)
    p.ins(f'v_lshrrev_b32 {vr(vt)}, 6, v0\nv_and_b32 {vr(vl)}, 63, v0\nv_readfirstlane_b32 {sr(sw)}, {vr(vt)}')
    def af_off(gexpr_swapped):
        if gexpr_swapped:
            p.ins(f'v_bfe_u32 {vr(vt+5)}, {vr(vl)}, 3, 1\nv_lshlrev_b32 {vr(vo)}, 9, {vr(vt+5)}\nv_bfe_u32 {vr(vt+5)}, {vr(vl)}, 4, 1\nv_lshl_add_u32 {vr(vo)}, {vr(vt+5)}, 8, {vr(vo)}')
            p.ins(f'v_lshrrev_b32 {vr(vt+5)}, 5, {vr(vl)}\nv_lshl_add_u32 {vr(vo)}, {vr(vt+5)}, 10, {vr(vo)}\nv_lshl_add_u32 {vr(vo)}, {vr(vt)}, 4, {vr(vo)}')
        else:
            p.ins(f'v_lshlrev_b32 {vr(vo)}, 8, {vr(vt+1)}\nv_lshl_add_u32 {vr(vo)}, {vr(vt)}, 4, {vr(vo)}')
        p.ins(f's_lshr_b32 {sr(s0)}, s2, 1\ns_mul_i32 {sr(s0)}, {sr(s0)}, {MBS[0]}\ns_and_b32 {sr(s1)}, s2, 1\ns_lshl_b32 {sr(s1)}, {sr(s1)}, 7\ns_add_u32 {sr(s0)}, {sr(s0)}, {sr(s1)}')
        p.ins(f's_lshl_b32 {sr(s1)}, {sr(sw)}, 13\ns_add_u32 {sr(s0)}, {sr(s0)}, {sr(s1)}\ns_add_u32 {sr(s3_)}, {sr(s0)}, 4096')
    p.ins(f'v_and_b32 {vr(vt)}, 7, {vr(vl)}\nv_lshrrev_b32 {vr(vt+1)}, 3, {vr(vl)}')
    if af_in:
        af_off(False)
        p.ins(f'v_lshrrev_b32 {vr(vm_)}, 5, {vr(vl)}\nv_lshlrev_b32 {vr(vm_)}, 7, {vr(vm_)}\nv_and_b32 {vr(vt+5)}, 3, {vr(vt+1)}\nv_lshl_add_u32 {vr(vm_)}, {vr(vt+5)}, 4, {vr(vm_)}\ns_lshl_b32 {sr(s1)}, {sr(sw)}, 10\nv_add_u32 {vr(vm_)}, {sr(s1)}, {vr(vm_)}')
    else:
        p.ins(f'v_lshlrev_b32 {vr(vo)}, 11, {vr(vt)}\nv_lshl_add_u32 {vr(vo)}, {vr(vt+1)}, 4, {vr(vo)}')
        p.ins(f's_lshl_b32 {sr(s0)}, s2, 14\ns_lshl_b32 {sr(s1)}, {sr(sw)}, 9\ns_add_u32 {sr(s0)}, {sr(s0)}, {sr(s1)}')
        p.ins(f'v_lshlrev_b32 {vr(vm_)}, 5, {vr(vt+1)}\ns_lshl_b32 {sr(s1)}, {sr(sw)}, 10\nv_add_u32 {vr(vm_)}, {sr(s1)}, {vr(vm_)}')
    hstep = 64 if af_in else 16
    p.ins(f'v_lshlrev_b32 {vr(vtid16)}, 4, v0')
    k.finish_srds()
    if plain:
        p.ins(f's_cmp_ge_u32 {sr(swg0)}, 128\ns_cbranch_scc1 L_{k.name}')
        save = V.next; V.next = vx
        mod_body(k, sWm, sC, sP, swg0, 0, sw, vl, (lambda: touch_code(k, swg0, sw, vl, cfg['code'][0], cfg['code'][1], 3)) if cfg.get('code') else None)
        assert V.next <= save
        V.next = save
        p.label(f'L_{k.name}')
    for i in range(4):
        if af_in:
            p.vm(f'buffer_load_dwordx4 {vr(vx+4*i,4)}, {vr(vo)}, {sr(sX,4)}, {sr(s0 if i < 2 else s3_)} offen offset:{2048*(i&1)}', ('x', i))
        else:
            p.vm(f'buffer_load_dwordx4 {vr(vx+4*i,4)}, {vr(vo)}, {sr(sX,4)}, {sr(s0)} offen offset:{128*i}', ('x', i))
    def ldm(dst, off, tag):
        p.ins(f's_mov_b32 {sr(s1)}, {off}')
        p.vm(f'buffer_load_dwordx4 {vr(dst,4)}, {vr(vtid16)}, {sr(sP,4)}, {sr(s1)} offen', tag)
    if finalize_mod:
        for q in range(0 if plain else NPART):
            ldm(vc + 4 * q, q * 6144 * 4 + chunk_scale * 4096, None)
            ldm(vs + 4 * q, q * 6144 * 4 + chunk_shift * 4096, 's1')
        swg = S.alloc('wg')
        p.ins(f's_mov_b32 {sr(swg)}, s2')
        if cfg.get('tq') is not None:
            touch_cols(k, sQ, 6144, swg, sw, vl, 4, 2, 4, [0, 2048, 4096], cfg.get('tq_rows', 1024), cfg.get('tq_split', True), cfg['tq'], cfg.get('tq_row0', 0))
        if cfg.get('lq') is not None:
            touch_lin(k, sQ, swg, sw, vl, 4, cfg.get('tq_row0', 0) * 6144, cfg.get('tq_rows', 1024) * 6144, cfg['lq'])
        if cfg.get('q3') == 'g4':
            ce = lambda d, t_: p.ins(f's_and_b32 {sr(d)}, {sr(swg)}, 1\ns_lshl_b32 {sr(d)}, {sr(d)}, 10\ns_add_u32 {sr(d)}, {sr(d)}, 384')
            touch_strip(k, sQ, 6144, swg, sw, vl, ce, [0, 2048, 4096], 1024, False)
        elif cfg.get('q3'):
            ce = lambda d, t_: p.ins(f's_and_b32 {sr(d)}, {sr(swg)}, 3\ns_lshl_b32 {sr(d)}, {sr(d)}, 9\ns_add_u32 {sr(d)}, {sr(d)}, 384')
            touch_strip(k, sQ, 6144, swg, sw, vl, ce, [0, 2048, 4096], 1024, True)
        if cfg.get('lo') is not None:
            touch_lin(k, sWo, swg, sw, vl, 4, 0, DM * DM * 2, cfg['lo'])
        if cfg.get('to') is not None:
            touch_cols(k, sWo, 2048, swg, sw, vl, 4, 1, 8, [0], 1024, True, cfg['to'])
        if cfg.get('mid'): cfg['mid'](k, pre, swg, sw, vl)
    else:
        ldm(vc, WS_MODF - WS_MODP + chunk_scale * 4096, 'c0'); ldm(vs, WS_MODF - WS_MODP + chunk_shift * 4096, 's1')
        if cfg.get('mid'):
            swg = S.alloc('wg'); p.ins(f's_mov_b32 {sr(swg)}, s2')
            cfg['mid'](k, pre, swg, sw, vl)
    if cfg.get('zero'):
        zero_flags(k, sF, sw, vl, vf, s1, s2_, 3)
    for i in range(4):
        p.wait(vm=[('x', i)])
        for d in range(4):
            p.ins(f'v_lshlrev_b32 {vr(vf+8*i+2*d)}, 16, {vr(vx+4*i+d)}\nv_and_b32 {vr(vf+8*i+2*d+1)}, 0xffff0000, {vr(vx+4*i+d)}')
    def fold(n):
        while n > 1:
            n //= 2
            for i in range(n):
                p.ins(f'v_add_f32 {vr(vx+i)}, {vr(vx+i)}, {vr(vx+n+i)}')
    def wg_reduce(x, ldsoff, mid=None):
        p.ins(f's_nop 1\nv_add_f32_dpp {vr(x)}, {vr(vx)}, {vr(vx)} row_ror:8 row_mask:0xf bank_mask:0xf')
        xrow_reduce(p, 'v_add_f32', x, vt + 5)
        p.lg(f'ds_write_b32 {vr(vt+2)}, {vr(x)} offset:{ldsoff}')
        if mid: mid()
        p.wait(lg='all')
        p.ins('s_barrier')
        p.lg(f'ds_read_b128 {vr(vx,4)}, {vr(vt+3)} offset:{ldsoff}', ('red', ldsoff))
    def wg_reduce_fin(x, ldsoff):
        p.wait(lg=[('red', ldsoff)])
        p.ins(f'v_add_f32 {vr(vx)}, {vr(vx)}, {vr(vx+1)}\nv_add_f32 {vr(vx+2)}, {vr(vx+2)}, {vr(vx+3)}\nv_add_f32 {vr(x)}, {vr(vx)}, {vr(vx+2)}')
    p.ins(f'v_lshlrev_b32 {vr(vt+3)}, 4, {vr(vt)}\ns_lshl_b32 {sr(s1)}, {sr(sw)}, 2\nv_add_u32 {vr(vt+2)}, {sr(s1)}, {vr(vt+3)}')
    for i in range(16):
        p.ins(f'v_add_f32 {vr(vx+i)}, {vr(vf+i)}, {vr(vf+16+i)}')
    fold(16)
    def rnd2(a):
        p.ins(f'v_cvt_pk_bf16_f32 {vr(vt+5)}, {vr(a)}, {vr(a+1)}\nv_lshlrev_b32 {vr(a)}, 16, {vr(vt+5)}\nv_and_b32 {vr(a+1)}, 0xffff0000, {vr(vt+5)}')
    def modstage():
        p.wait(vm=['s1'])
        if finalize_mod:
            for i in range(8):
                p.ins(f'v_add_f32 {vr(vc+i)}, {vr(vc+i)}, {vr(vc+8+i)}\nv_add_f32 {vr(vs+i)}, {vr(vs+i)}, {vr(vs+8+i)}')
            for i in range(4):
                p.ins(f'v_add_f32 {vr(vc+i)}, {vr(vc+i)}, {vr(vc+4+i)}\nv_add_f32 {vr(vs+i)}, {vr(vs+i)}, {vr(vs+4+i)}')
            for a in (vc, vc + 2, vs, vs + 2):
                rnd2(a)
            for i in range(4):
                p.ins(f'v_add_f32 {vr(vc+i)}, 1.0, {vr(vc+i)}')
            rnd2(vc); rnd2(vc + 2)
        p.lg(f'ds_write_b128 {vr(vtid16)}, {vr(vc,4)}')
        p.lg(f'ds_write_b128 {vr(vtid16)}, {vr(vs,4)} offset:4096')
    wg_reduce(vt + 4, 8192, None if plain else modstage)
    for i in range(0 if plain else 4):
        for h in range(2):
            p.lg(f'ds_read_b128 {vr(vc+8*i+4*h,4)}, {vr(vm_)} offset:{256*i+hstep*h}')
    wg_reduce_fin(vt + 4, 8192)
    p.ins(f'v_mul_f32 {vr(vt+4)}, {f32(1.0/1024)}, {vr(vt+4)}')
    for i in range(0 if plain else 4):
        for h in range(2):
            p.lg(f'ds_read_b128 {vr(vs+8*i+4*h,4)}, {vr(vm_)} offset:{4096+256*i+hstep*h}')
    for i in range(16):
        p.ins(f'v_sub_f32 {vr(vx+i)}, {vr(vf+i)}, {vr(vt+4)}')
    for i in range(16):
        p.ins(f'v_mul_f32 {vr(vx+i)}, {vr(vx+i)}, {vr(vx+i)}')
    for i in range(16):
        p.ins(f'v_sub_f32 {vr(vt+1)}, {vr(vf+16+i)}, {vr(vt+4)}\nv_fmac_f32 {vr(vx+i)}, {vr(vt+1)}, {vr(vt+1)}')
    fold(16)
    wg_reduce(vt + 1, 8192 + 128)
    if not af_in:
        af_off(True)
    round_bf16(p, vt + 4, vt + 4)
    wg_reduce_fin(vt + 1, 8192 + 128)
    p.ins(f'v_mul_f32 {vr(vt+1)}, {f32(1.0/1024)}, {vr(vt+1)}')
    round_bf16(p, vt + 1, vt + 1)
    p.ins(f'v_add_f32 {vr(vt+1)}, {f32(1e-5)}, {vr(vt+1)}')
    round_bf16(p, vt + 1, vt + 1)
    p.ins(f'v_sqrt_f32 {vr(vt+1)}, {vr(vt+1)}\ns_nop 0')
    round_bf16(p, vt + 1, vt + 1)
    p.ins(f'v_rcp_f32 {vr(vt+1)}, {vr(vt+1)}\ns_nop 0')
    p.ins(f'v_mul_f32 {vr(vt+4)}, {vr(vt+4)}, {vr(vt+1)}')
    for i in range(4):
        for e in range(8):
            a = 8 * i + e
            p.ins(f'v_fma_f32 {vr(vf+a)}, {vr(vf+a)}, {vr(vt+1)}, -{vr(vt+4)}')
        for e in range(0 if plain else 8):
            a = 8 * i + e
            p.ins(f'v_fma_f32 {vr(vf+a)}, {vr(vf+a)}, {vr(vc+a)}, {vr(vs+a)}')
        for d in range(4):
            p.ins(f'v_cvt_pk_bf16_f32 {vr(vx+4*i+d)}, {vr(vf+8*i+2*d)}, {vr(vf+8*i+2*d+1)}')
        if not af_in:
            p.ins('s_nop 1')
            p.ins(f'v_permlane16_swap_b32 {vr(vx+4*i)}, {vr(vx+4*i+2)}\nv_permlane16_swap_b32 {vr(vx+4*i+1)}, {vr(vx+4*i+3)}')
        p.vm(f'buffer_store_dwordx4 {vr(vx+4*i,4)}, {vr(vo)}, {sr(sH,4)}, {sr(s0 if i < 2 else s3_)} offen offset:{2048*(i&1)} {cfg.get("sflags", "")}')
    k.end()
    k.lds = 8192 + 256
    return k

def gemm_common(k, g, sw, skg, sn_colbytes, vl, vt):
    p, S = k.p, k.S
    RB, ldw = g.RB, g.ldw
    s0 = g.sT
    p.ins(f's_lshl_b32 {sr(g.sWL)}, {sr(sw)}, 10')
    if RB == 256:
        p.ins(f'v_lshrrev_b32 {vr(vt)}, 4, {vr(vl)}\ns_lshl_b32 {sr(s0)}, {sr(sw)}, 2\nv_add_u32 {vr(vt)}, {sr(s0)}, {vr(vt)}')
        p.ins(f'v_and_b32 {vr(vt+1)}, 7, {vr(vt)}\nv_bfe_u32 {vr(vt+2)}, {vr(vl)}, 1, 3\nv_xor_b32 {vr(vt+1)}, {vr(vt+1)}, {vr(vt+2)}')
    else:
        p.ins(f'v_lshrrev_b32 {vr(vt)}, 3, {vr(vl)}\nv_bfe_u32 {vr(vt+1)}, {vr(vt)}, 1, 2\nv_bfe_u32 {vr(vt+2)}, {vr(vl)}, 1, 2\nv_xor_b32 {vr(vt+1)}, {vr(vt+1)}, {vr(vt+2)}')
        p.ins(f's_lshl_b32 {sr(s0)}, {sr(sw)}, 3\nv_add_u32 {vr(vt)}, {sr(s0)}, {vr(vt)}')
    p.ins(f'v_lshlrev_b32 {vr(vt+1)}, 5, {vr(vt+1)}\nv_and_b32 {vr(vt+2)}, 1, {vr(vl)}\nv_lshl_add_u32 {vr(vt+1)}, {vr(vt+2)}, 4, {vr(vt+1)}')
    p.ins(f'v_mul_u32_u24 {vr(vt)}, {ldw}, {vr(vt)}\nv_add3_u32 {vr(g.vdma)}, {vr(vt)}, {vr(vt+1)}, {sr(sn_colbytes)}')

def gemm_rdbase(k, g, skg, vl, vt):
    p = k.p
    RB = g.RB
    p.ins(f'v_lshrrev_b32 {vr(vt+1)}, 2, {vr(vl)}')
    if RB == 256:
        p.ins(f'v_and_b32 {vr(vt)}, 7, {vr(vt+1)}')
    else:
        p.ins(f'v_bfe_u32 {vr(vt)}, {vr(vt+1)}, 1, 2')
    p.ins(f'v_lshlrev_b32 {vr(vt)}, 5, {vr(vt)}\nv_lshl_add_u32 {vr(vt)}, {vr(vt+1)}, {RB.bit_length()-1}, {vr(vt)}\nv_and_b32 {vr(vt+1)}, 3, {vr(vl)}\nv_lshl_add_u32 {vr(vt)}, {vr(vt+1)}, 3, {vr(vt)}')
    if skg is not None:
        p.ins(f's_mul_i32 {sr(g.sT)}, {sr(skg)}, {32*RB}\nv_add_u32 {vr(vt)}, {sr(g.sT)}, {vr(vt)}')

def gemm_sets(k, g):
    for st in range(1, g.nsets):
        for t in range(g.nareg):
            k.p.ins(f'v_add_u32 {vr(g.waddr+st*g.nareg+t)}, {65536*st}, {vr(g.waddr+t)}')

def tilemap(k, kind, sm, sn, s0, s1):
    p = k.p
    p.ins(f's_and_b32 {sr(s0)}, s2, 7\ns_lshr_b32 {sr(s1)}, s2, 3')
    if kind == 'g3':
        p.ins(f's_and_b32 {sr(sn)}, {sr(s1)}, 3\ns_lshl_b32 {sr(s0)}, {sr(s0)}, 2\ns_add_u32 {sr(sn)}, {sr(sn)}, {sr(s0)}\ns_lshr_b32 {sr(sm)}, {sr(s1)}, 2')
    elif kind == 'g1':
        p.ins(f's_and_b32 {sr(sn)}, {sr(s0)}, 3\ns_lshl_b32 {sr(sn)}, {sr(sn)}, 2\ns_and_b32 {sr(sm)}, {sr(s1)}, 3\ns_add_u32 {sr(sn)}, {sr(sn)}, {sr(sm)}')
        p.ins(f's_lshr_b32 {sr(sm)}, {sr(s0)}, 2\ns_lshl_b32 {sr(sm)}, {sr(sm)}, 3\ns_lshr_b32 {sr(s1)}, {sr(s1)}, 2\ns_add_u32 {sr(sm)}, {sr(sm)}, {sr(s1)}')
    else:
        p.ins(f's_and_b32 {sr(sn)}, {sr(s0)}, 1\ns_lshl_b32 {sr(sn)}, {sr(sn)}, 3\ns_and_b32 {sr(sm)}, {sr(s1)}, 7\ns_add_u32 {sr(sn)}, {sr(sn)}, {sr(sm)}')
        p.ins(f's_lshr_b32 {sr(sm)}, {sr(s0)}, 1\ns_lshl_b32 {sr(sm)}, {sr(sm)}, 2\ns_lshr_b32 {sr(s1)}, {sr(s1)}, 3\ns_add_u32 {sr(sm)}, {sr(sm)}, {sr(s1)}')

PIGTAB = dict(wo=(A_WO, DM * DM * 2), wg=(B_WG, DM * FF * 2), wu=(B_WU, DM * FF * 2), wd=(B_WD, FF * DM * 2), x=(A_X, M * DM * 2), wm=(W_MOD, 1024 * 6144 * 2))
def pig_load(k, plan):
    ptr = {}
    for name, _, _, _ in plan:
        if name not in ptr:
            ptr[name] = k.S.alloc('pp_' + name, 2, 2)
            k.p.ins(f's_load_dwordx2 {sr(ptr[name], 2)}, s[0:1], {PIGTAB[name][0]}')
    return ptr
def pig_setup(k, g, plan, ptr, swg, sw, vl):
    p = k.p
    R = g.sPigSrd
    n0 = plan[0][0]
    p.ins(f's_mov_b64 {sr(R,2)}, {sr(ptr[n0],2)}\ns_mov_b32 {sr(R+2)}, 0\ns_mov_b32 {sr(R+3)}, 0x20000\ns_mov_b32 {sr(g.sPig)}, 0')
    p.ins(f's_mov_b32 {sr(g.sT)}, 0')
    for w, (name, off, nb, slot0) in enumerate(plan):
        assert off + nb <= PIGTAB[name][1]
        p.ins(f's_cmp_eq_u32 {sr(sw)}, {w}')
        if name != n0: p.ins(f's_cselect_b64 {sr(R,2)}, {sr(ptr[name],2)}, {sr(R,2)}')
        p.ins(f's_cselect_b32 {sr(R+2)}, {nb}, {sr(R+2)}')
        if off: p.ins(f's_cselect_b32 {sr(g.sT)}, {off}, {sr(g.sT)}')
        if slot0: p.ins(f's_cselect_b32 {sr(g.sPig)}, {(-slot0 * 256 * 8192) & 0xffffffff}, {sr(g.sPig)}')
    p.ins(f's_add_u32 {sr(R)}, {sr(R)}, {sr(g.sT)}\ns_addc_u32 {sr(R+1)}, {sr(R+1)}, 0')
    p.ins(f's_lshl_b32 {sr(g.sT)}, {sr(swg)}, 13\ns_add_u32 {sr(g.sPig)}, {sr(g.sPig)}, {sr(g.sT)}')
    p.ins(f'v_lshlrev_b32 {vr(g.vpig)}, 7, {vr(vl)}')

def pig_setup_x(k, g, ptr, swg, sw, vl, vt):
    p = k.p
    R = g.sPigSrd
    RS = 9 * 7168; W = 1024 * 7168
    g.pig_step = 32 * RS
    p.ins(f's_mov_b64 {sr(R,2)}, {sr(ptr["wg"],2)}\ns_mov_b32 {sr(R+2)}, 0\ns_mov_b32 {sr(R+3)}, 0x20000\ns_mov_b32 {sr(g.sPig)}, 0\ns_mov_b32 {sr(g.sT)}, 0')
    for w, (name, off, nb, slot0) in enumerate([('wg', 0, 96 * RS, 0), ('wu', 0, 96 * RS, 0), ('wo', 0, 2048 * 1024, 0), ('wg', 96 * RS, W - 96 * RS, 1), ('wu', 96 * RS, W - 96 * RS, 2)]):
        p.ins(f's_cmp_eq_u32 {sr(sw)}, {w}')
        if name != 'wg': p.ins(f's_cselect_b64 {sr(R,2)}, {sr(ptr[name],2)}, {sr(R,2)}')
        p.ins(f's_cselect_b32 {sr(R+2)}, {nb}, {sr(R+2)}')
        if off: p.ins(f's_cselect_b32 {sr(g.sT)}, {off}, {sr(g.sT)}')
        if slot0: p.ins(f's_cselect_b32 {sr(g.sPig)}, {(-slot0 * g.pig_step) & 0xffffffff}, {sr(g.sPig)}')
    p.ins(f's_add_u32 {sr(R)}, {sr(R)}, {sr(g.sT)}\ns_addc_u32 {sr(R+1)}, {sr(R+1)}, 0')
    p.ins(f's_lshr_b32 {sr(g.sT)}, {sr(swg)}, 3\ns_mul_i32 {sr(g.sT)}, {sr(g.sT)}, {RS}\ns_and_b32 vcc_lo, {sr(swg)}, 7\ns_mul_i32 vcc_lo, vcc_lo, 896\ns_add_u32 {sr(g.sT)}, {sr(g.sT)}, vcc_lo\ns_lshl_b32 vcc_lo, {sr(swg)}, 13')
    p.ins(f's_cmp_eq_u32 {sr(sw)}, 2\ns_cselect_b32 {sr(g.sT)}, vcc_lo, {sr(g.sT)}\ns_cselect_b64 vcc, -1, 0\ns_add_u32 {sr(g.sPig)}, {sr(g.sPig)}, {sr(g.sT)}')
    p.ins(f'v_min_u32 {vr(vt)}, 62, {vr(vl)}\nv_mul_u32_u24 {vr(vt+1)}, 37, {vr(vt)}\nv_lshrrev_b32 {vr(vt+1)}, 8, {vr(vt+1)}\nv_mul_u32_u24 {vr(vt+1)}, {7168 - 896}, {vr(vt+1)}\nv_lshl_add_u32 {vr(vt)}, {vr(vt)}, 7, {vr(vt+1)}\nv_lshlrev_b32 {vr(vt+1)}, 7, {vr(vl)}\nv_cndmask_b32 {vr(g.vpig)}, {vr(vt)}, {vr(vt+1)}, vcc')

def spig_setup(k, g, plan, ptr, swg, sw):
    p = k.p
    if len(plan) == 1:
        name, off, nb, _ = plan[0]
        p.ins(f's_mov_b64 {sr(g.sSB,2)}, {sr(ptr[name],2)}')
        p.ins(f's_lshl_b32 {sr(g.sSO)}, {sr(swg)}, 3\ns_add_u32 {sr(g.sSO)}, {sr(g.sSO)}, {sr(sw)}\ns_lshl_b32 {sr(g.sSO)}, {sr(g.sSO)}, 7')
        if off: p.ins(f's_add_u32 {sr(g.sSO)}, {sr(g.sSO)}, {off}')
        p.ins(f's_mov_b32 {sr(g.sSM)}, {off + nb - 128}')
    else:
        (n0, off, nb, _), (n1, off1, nb1, _) = plan
        assert (off, nb) == (off1, nb1)
        g.spig_stride = 1024 * 128
        p.ins(f's_bitcmp1_b32 {sr(sw)}, 0\ns_cselect_b64 {sr(g.sSB,2)}, {sr(ptr[n1],2)}, {sr(ptr[n0],2)}')
        p.ins(f's_lshl_b32 {sr(g.sSO)}, {sr(swg)}, 2\ns_lshr_b32 {sr(g.sT)}, {sr(sw)}, 1\ns_add_u32 {sr(g.sSO)}, {sr(g.sSO)}, {sr(g.sT)}\ns_lshl_b32 {sr(g.sSO)}, {sr(g.sSO)}, 7')
        if off: p.ins(f's_add_u32 {sr(g.sSO)}, {sr(g.sSO)}, {off}')
        p.ins(f's_mov_b32 {sr(g.sSM)}, {off + nb - 128}')

def tab_load(k, g, sP, sq, chunk_scale, chunk_shift, vtmp, s0):
    p = k.p
    p.ins(f'v_and_b32 {vr(vtmp)}, 255, v0\nv_lshlrev_b32 {vr(vtmp)}, 4, {vr(vtmp)}')
    p.ins(f's_cmp_eq_u32 {sr(sq)}, 0\ns_cselect_b32 {sr(s0)}, {chunk_scale}, {chunk_shift}\ns_lshl_b32 {sr(s0)}, {sr(s0)}, 12')
    for q in range(NPART):
        p.vm(f'buffer_load_dwordx4 {vr(g.acc+4*q,4)}, {vr(vtmp)}, {sr(sP,4)}, {sr(s0)} offen', ('tp', q))
        if q < NPART - 1: p.ins(f's_add_u32 {sr(s0)}, {sr(s0)}, {6144*4}')
def tab_build(k, g, sq, TAB, vt, s0):
    p = k.p
    a = g.acc
    p.ins(f'v_bfe_u32 {vr(vt)}, v0, 3, 5\nv_lshlrev_b32 {vr(vt)}, 8, {vr(vt)}\nv_and_b32 {vr(vt+1)}, 3, v0\nv_lshl_add_u32 {vr(vt)}, {vr(vt+1)}, 6, {vr(vt)}\nv_bfe_u32 {vr(vt+1)}, v0, 2, 1\nv_lshl_add_u32 {vr(vt)}, {vr(vt+1)}, 4, {vr(vt)}')
    p.ins(f's_lshl_b32 {sr(s0)}, {sr(sq)}, 5\ns_add_u32 {sr(s0)}, {sr(s0)}, {TAB}\nv_add_u32 {vr(vt)}, {sr(s0)}, {vr(vt)}')
    p.ins(f's_cmp_eq_u32 {sr(sq)}, 0\ns_cselect_b32 {sr(s0)}, 1.0, 0')
    p.wait(vm=[('tp', NPART - 1)])
    for i in range(8): p.ins(f'v_add_f32 {vr(a+i)}, {vr(a+i)}, {vr(a+8+i)}')
    for i in range(4): p.ins(f'v_add_f32 {vr(a+i)}, {vr(a+i)}, {vr(a+4+i)}')
    for rep in range(2):
        for i in (0, 2):
            p.ins(f'v_cvt_pk_bf16_f32 {vr(a+4)}, {vr(a+i)}, {vr(a+i+1)}\nv_lshlrev_b32 {vr(a+i)}, 16, {vr(a+4)}\nv_and_b32 {vr(a+i+1)}, 0xffff0000, {vr(a+4)}')
        if rep == 0:
            for i in range(4): p.ins(f'v_add_f32 {vr(a+i)}, {sr(s0)}, {vr(a+i)}')
    p.lg(f'ds_write_b128 {vr(vt)}, {vr(a,4)}')

def lanemask(f):
    m = 0
    for l in range(64):
        if f(l): m |= 1 << l
    return m
def smov64(p, s, m):
    p.ins(f's_mov_b32 {sr(s)}, 0x{m & 0xffffffff:08x}\ns_mov_b32 {sr(s+1)}, 0x{m >> 32:08x}')

def k_g1(cfg):
    k = K('k3_qkv_kernel', 256, 512); p, V, S = k.p, k.V, k.S
    sW = k.srd('w', A_WQKV, DM * 3072 * 2); sA = k.srd('a', WS, M * DM * 2, WS_H); sWm = k.srd('wmod', W_MOD, 1024 * 6144 * 2); sC = k.srd('c', IN_C, 2048)
    sP = k.srd('mod', WS, NPART * 6144 * 4, WS_MODP); sO = k.srd('o', WS, M * DM * 2, WS_O)
    pre = cfg.get('pre', lambda k: None)(k)
    plan = cfg.get('pig'); splan = cfg.get('spig'); pptr = pig_load(k, (plan or []) + (splan or []))
    sw = S.alloc('w'); sm = S.alloc('mt'); sn = S.alloc('nt'); s0 = S.alloc('t0'); s1 = S.alloc('t1'); skg = S.alloc('kg'); swm = S.alloc('wm'); swg = S.alloc('wg'); sjo = S.alloc('jo')
    vl = V.alloc('lane'); vl16 = V.alloc('lane16'); vt = V.alloc('t', 4)
    p.ins(f's_mov_b32 {sr(swg)}, s2')
    BK, RB = 64, 128
    seg = BK * RB
    segs = [dict(srd=sW, col=0), dict(srd=sW, col=2048), dict(srd=sW, col=4096)]
    tiles = [(t, 0) for t in range(12)]
    c2 = cfg.get('core2')
    if c2:
        g = Gemm2(p, V, S, 'g1', 8, 2, 2, DM, BK, cfg['NS'], cfg['D'], cfg['R'], cfg['DAS'], 6144, RB, segs, tiles, 12,
                  spread=cfg['spread'], ramp=cfg['ramp'], extra=(2, 8), pig_rounds=(cfg.get('pig_rounds', (1, 2, 3)) if plan else ()),
                  nprio=cfg.get('nprio', 4), wgrp=cfg.get('wgrp', 2), lead0=cfg.get('lead0', True), alead=cfg.get('alead', 3))
        g.amod = None
    else:
        g = Gemm(p, V, S, 'g1', 8, 2, 2, DM, BK, cfg['NS'], cfg['D'], cfg['R'], cfg['DAS'], 6144, RB, segs, tiles, 12,
                 P=4, spread=cfg['spread'], ramp=cfg['ramp'], BM=128, extra=(2, 8), wflags=cfg.get('wflags', ''), amod=cfg.get('amod'), alead=cfg.get('alead', 3), pig=bool(plan), spig=(cfg.get('spn', 2) if splan else 0))
    p.ins(f'v_lshrrev_b32 {vr(vt)}, 6, v0\nv_and_b32 {vr(vl)}, 63, v0\nv_readfirstlane_b32 {sr(sw)}, {vr(vt)}')
    tilemap(k, 'g1', sm, sn, s0, s1)
    p.ins(f's_add_u32 {sr(g.sLead)}, {sr(sm)}, {sr(sn)}\ns_and_b32 {sr(g.sLead)}, {sr(g.sLead)}, 3')
    p.ins(f's_and_b32 {sr(swm)}, {sr(sw)}, 3\ns_lshr_b32 {sr(skg)}, {sr(sw)}, 2')
    p.ins(f's_lshl_b32 {sr(s1)}, {sr(sn)}, 7')
    gemm_common(k, g, sw, skg, s1, vl, vt)
    if c2: g.setup_vdma()
    p.ins(f'v_lshlrev_b32 {vr(vl16)}, 4, {vr(vl)}')
    p.ins(f's_lshl_b32 {sr(s0)}, {sr(sm)}, 3\ns_lshl_b32 {sr(s1)}, {sr(swm)}, 1\ns_add_u32 {sr(s0)}, {sr(s0)}, {sr(s1)}\ns_lshl_b32 {sr(s0)}, {sr(s0)}, 5\ns_add_u32 {sr(s0)}, {sr(s0)}, {sr(skg)}\ns_lshl_b32 {sr(s0)}, {sr(s0)}, 10')
    p.ins(f'v_add_u32 {vr(g.va)}, {sr(s0)}, {vr(vl16)}\nv_add_u32 {vr(g.va+1)}, 32768, {vr(g.va)}')
    p.ins(f's_lshl_b32 {sr(g.sWX)}, {sr(sw)}, 8')
    p.ins(f's_lshl_b32 {sr(s0)}, {sr(sm)}, 3\ns_max_u32 {sr(s0)}, {sr(s0)}, 1\ns_sub_u32 {sr(s0)}, {sr(s0)}, 1\ns_lshl_b32 {sr(s0)}, {sr(s0)}, 15\ns_add_u32 {sr(s0)}, {sr(s0)}, {sr(g.sWX)}')
    p.ins(f'v_lshl_add_u32 {vr(g.vx)}, {vr(vl)}, 2, {sr(s0)}')
    k.finish_srds()
    if g.amod: tab_load(k, g, sP, skg, 1, 0, vt, s0)
    g.prologue(sA)
    if plan: pig_setup(k, g, plan, pptr, swg, sw, vl)
    if splan: spig_setup(k, g, splan, pptr, swg, sw)
    gemm_rdbase(k, g, skg, vl, vt)
    p.ins(f's_lshl_b32 {sr(s0)}, {sr(skg)}, 6\nv_xor_b32 {vr(g.waddr)}, {sr(s0)}, {vr(vt)}\nv_xor_b32 {vr(g.waddr+1)}, 32, {vr(g.waddr)}')
    for s_ in range(4):
        p.ins(f's_xor_b32 {sr(s0)}, {sr(swm)}, {s_}\ns_and_b32 {sr(s1)}, {sr(s0)}, 1\ns_lshl_b32 {sr(s1)}, {sr(s1)}, 5\ns_lshr_b32 {sr(s0)}, {sr(s0)}, 1\ns_add_u32 {sr(s0)}, {sr(s0)}, 1\ns_mul_i32 {sr(s0)}, {sr(s0)}, {seg}')
        p.ins(f'v_xor_b32 {vr(g.waddr+2+s_)}, {sr(s1)}, {vr(g.waddr)}\nv_add_u32 {vr(g.waddr+2+s_)}, {sr(s0)}, {vr(g.waddr+2+s_)}')
    for t in range(6):
        p.ins(f'v_xor_b32 {vr(g.waddr+6+t)}, 64, {vr(g.waddr+t)}')
    gemm_sets(k, g)
    p.ins(f's_lshl_b32 {sr(s0)}, {sr(skg)}, 10\ns_add_u32 {sr(s0)}, {sr(s0)}, {g.x_base}\nv_add_u32 {vr(g.xaddr)}, {sr(s0)}, {vr(vl16)}')
    if g.amod:
        TAB = g.lds_end
        p.ins(f's_lshl_b32 {sr(s0)}, {sr(skg)}, 8\ns_add_u32 {sr(s0)}, {sr(s0)}, {TAB}\nv_lshrrev_b32 {vr(vt)}, 4, {vr(vl)}\nv_lshl_add_u32 {vr(g.vtab)}, {vr(vt)}, 6, {sr(s0)}')
        g.first_reads(lambda: tab_build(k, g, skg, TAB, vt, s0))
    elif not c2:
        g.first_reads()
    def hook(i):
        k.mark(i - 1)
        if i == 2 and cfg.get('mid'): cfg['mid'](k, pre, swg, sw, vl)
    if c2: g.run(marks={0: lambda: hook(1), 4 * g.F: lambda: hook(2)})
    else: g.mainloop(stamp=hook)
    k.mark(2)
    R1 = 13 * 1024
    KV = 8 * R1
    k.lds = max(g.lds_end, KV + 36 * 1024)
    va_ = g.waddr
    JL = KV + 36 * 1024
    k.lds = max(k.lds, JL + 2048)
    jw = g.wbuf; jc = g.wbuf + 16; js = g.wbuf + 18; ju = g.wbuf + 22; ja = g.abuf; jt = g.abuf + 8
    p.ins(f's_and_b32 {sr(s0)}, {sr(swg)}, 3\ns_lshl_b32 {sr(s0)}, {sr(s0)}, 8\ns_lshl_b32 {sr(s1)}, {sr(sw)}, 5\ns_add_u32 {sr(s0)}, {sr(s0)}, {sr(s1)}')
    p.ins(f'v_lshrrev_b32 {vr(vt)}, 3, {vr(vl)}\nv_lshl_add_u32 {vr(vt)}, {vr(vt)}, 2, {sr(s0)}\nv_lshlrev_b32 {vr(vt+1)}, 1, {vr(vt)}')
    p.ins(f'v_mul_u32_u24 {vr(vt)}, 12288, {vr(vt)}\nv_and_b32 {vr(vt+2)}, 7, {vr(vl)}\nv_lshl_add_u32 {vr(vt)}, {vr(vt+2)}, 4, {vr(vt)}')
    p.ins(f's_lshr_b32 {sr(sjo)}, {sr(swg)}, 2\ns_add_u32 {sr(sjo)}, {sr(sjo)}, 32\ns_lshl_b32 {sr(s1)}, {sr(sjo)}, 7')
    p.wait(vm='all', lg='all')
    p.vm(f'buffer_load_dwordx2 {vr(jc,2)}, {vr(vt+1)}, {sr(sC,4)}, 0 offen', 'jc')
    for i in range(4):
        p.vm(f'buffer_load_dwordx4 {vr(jw+4*i,4)}, {vr(vt)}, {sr(sWm,4)}, {sr(s1)} offen nt', ('jw', i))
        if i < 3:
            p.ins(f's_add_u32 {sr(s1)}, {sr(s1)}, 12288')
    p.ins(f's_lshl_b32 {sr(sjo)}, {sr(sjo)}, 8\ns_and_b32 {sr(s0)}, {sr(swg)}, 3\ns_mul_i32 {sr(s0)}, {sr(s0)}, {6144*4}\ns_add_u32 {sr(sjo)}, {sr(sjo)}, {sr(s0)}')
    p.ins('s_barrier')
    p.ins(f's_mul_i32 {sr(s0)}, {sr(sw)}, {R1}\nv_add_u32 {vr(va_)}, {sr(s0)}, {vr(vl16)}')
    p.ins(f's_xor_b32 {sr(s0)}, {sr(sw)}, 4\ns_mul_i32 {sr(s0)}, {sr(s0)}, {R1}\nv_add_u32 {vr(va_+1)}, {sr(s0)}, {vr(vl16)}')
    send = [g.accr(t, m) for t in range(6, 12) for m in range(2)] + [g.xacc + 4]
    keep = [g.accr(t, m) for t in range(6) for m in range(2)] + [g.xacc]
    for i, r in enumerate(send):
        p.lg(f'ds_write_b128 {vr(va_)}, {vr(r,4)} offset:{1024*i}')
    if cfg.get('tail'): cfg['tail'](k, pre, swg, sw, vl)
    mA = sW
    assert sC == sW + 12
    q = lambda l: l & 15
    gg = lambda l: l >> 4
    for r in range(4):
        smov64(p, mA + 2 * r, lanemask(lambda l: 4 * gg(l) + r <= q(l)))
    smov64(p, mA + 8, lanemask(lambda l: l & 1))
    smov64(p, mA + 10, lanemask(lambda l: not (4 * gg(l) + (l & 1) <= q(l))))
    smov64(p, mA + 12, lanemask(lambda l: not (4 * gg(l) + 2 + (l & 1) <= q(l))))
    vM = V.alloc('pm', 4)
    vH = vt
    p.ins(f'v_mov_b32 {vr(vH)}, 0xffff\nv_mov_b32 {vr(vH+1)}, 0xffff0000\nv_cndmask_b32 {vr(vH)}, {vr(vH)}, {vr(vH+1)}, {sr(mA+8,2)}')
    p.ins(f'v_cndmask_b32 {vr(vM)}, 0, {vr(vH)}, {sr(mA+10,2)}\nv_cndmask_b32 {vr(vM+1)}, 0, {vr(vH)}, {sr(mA+12,2)}')
    p.ins(f'v_xor_b32 {vr(vM+2)}, {vr(vM)}, {vr(vH)}\nv_xor_b32 {vr(vM+3)}, {vr(vM+1)}, {vr(vH)}')
    p.ins(f's_or_b32 {sr(s0)}, {sr(sm)}, {sr(swm)}\ns_cmp_eq_u32 {sr(s0)}, 0\ns_cselect_b64 {sr(mA+10,2)}, {sr(mA+10,2)}, 0\ns_cselect_b64 {sr(mA+12,2)}, {sr(mA+12,2)}, 0')
    for s_ in range(4):
        p.ins(f's_xor_b32 {sr(s0)}, {sr(swm)}, {s_}\ns_lshr_b32 {sr(s1)}, {sr(s0)}, 1\ns_lshl_b32 {sr(g.sT)}, {sr(skg)}, 1\ns_add_u32 {sr(s1)}, {sr(s1)}, {sr(g.sT)}\ns_mul_i32 {sr(s1)}, {sr(s1)}, 9216')
        p.ins(f's_and_b32 {sr(s0)}, {sr(s0)}, 1\ns_lshl_b32 {sr(s0)}, {sr(s0)}, 3\ns_add_u32 {sr(s1)}, {sr(s1)}, {sr(s0)}\ns_add_u32 {sr(s1)}, {sr(s1)}, {KV}')
        if s_ == 0:
            p.ins(f'v_add_u32 {vr(va_+6)}, {sr(s1)}, {vr(vl16)}')
        p.ins(f's_lshl_b32 {sr(s0)}, {sr(swm)}, 11\ns_add_u32 {sr(s1)}, {sr(s1)}, {sr(s0)}')
        p.ins(f'v_add_u32 {vr(va_+2+s_)}, {sr(s1)}, {vr(vl16)}')
    p.ins(f's_mul_i32 {sr(s1)}, {sr(skg)}, {18*1024}\ns_lshl_b32 {sr(s0)}, {sr(swm)}, 11\ns_add_u32 {sr(s1)}, {sr(s1)}, {sr(s0)}\ns_add_u32 {sr(s1)}, {sr(s1)}, {KV}')
    p.ins(f'v_add_u32 {vr(va_+7)}, {sr(s1)}, {vr(vl16)}')
    p.ins(f'v_lshrrev_b32 {vr(vt+2)}, 2, {vr(vl)}\nv_and_b32 {vr(vt+3)}, 3, {vr(vl)}\nv_lshl_add_u32 {vr(vt+2)}, {vr(vt+3)}, 4, {vr(vt+2)}\ns_add_u32 {sr(s1)}, {sr(s1)}, 9216\nv_lshl_add_u32 {vr(va_+8)}, {vr(vt+2)}, 4, {sr(s1)}')
    p.wait(lg='all')
    p.ins('s_barrier')
    order = [4, 5, 6, 7, 8, 9, 10, 11, 12, 0, 1, 2, 3]
    for i in order:
        p.lg(f'ds_read_b128 {vr(send[i],4)}, {vr(va_+1)} offset:{1024*i}', ('r1', i))
    for i in order:
        p.wait(lg=[('r1', i)])
        r, o = keep[i], send[i]
        for e in range(4):
            p.ins(f'v_add_f32 {vr(r+e)}, {vr(r+e)}, {vr(o+e)}')
        if i >= 4:
            p.ins(f'v_cvt_pk_bf16_f32 {vr(r)}, {vr(r)}, {vr(r+1)}\nv_cvt_pk_bf16_f32 {vr(r+1)}, {vr(r+2)}, {vr(r+3)}')
            if i == 12:
                p.lg(f'ds_write_b64 {vr(va_+6)}, {vr(r,2)}')
            else:
                s_, m = divmod(i - 4, 2)
                p.lg(f'ds_write_b64 {vr(va_+2+s_)}, {vr(r,2)} offset:{1024*(1+m)}')
    vQ = V.alloc('Q', 8, 4)
    for m in range(2):
        for d in range(2):
            r = g.accr(d, m)
            p.ins(f'v_cvt_pk_bf16_f32 {vr(vQ+4*m+2*d)}, {vr(r)}, {vr(r+1)}\nv_cvt_pk_bf16_f32 {vr(vQ+4*m+2*d+1)}, {vr(r+2)}, {vr(r+3)}')
    p.wait(lg='all')
    p.ins('s_barrier')
    vK = g.acc; vVd = g.acc + 12; vS = g.acc + 24; vP = g.acc + 40; vOo = g.acc + 48; vw = g.acc + 64
    for b in range(3):
        p.lg(f'ds_read_b128 {vr(vK+4*b,4)}, {vr(va_+7)} offset:{1024*b}', ('K', b))
    for b in range(3):
        for d in range(2):
            p.lg(f'ds_read_b64_tr_b16 {vr(vVd+6*d+2*b,2)}, {vr(va_+8)} offset:{1024*b+8*d}', ('V', b, d))
    p.ins(f's_lshl_b32 {sr(s0)}, {sr(sm)}, 3\ns_lshl_b32 {sr(s1)}, {sr(swm)}, 1\ns_add_u32 {sr(s0)}, {sr(s0)}, {sr(s1)}\ns_lshl_b32 {sr(s0)}, {sr(s0)}, 5\ns_lshl_b32 {sr(s1)}, {sr(sn)}, 1\ns_add_u32 {sr(s0)}, {sr(s0)}, {sr(s1)}\ns_add_u32 {sr(s0)}, {sr(s0)}, {sr(skg)}\ns_lshl_b32 {sr(s0)}, {sr(s0)}, 10\ns_add_u32 {sr(s1)}, {sr(s0)}, 32768')
    for m in range(2):
        p.wait(lg=[('K', m + 1)])
        for h in range(2):
            p.ins(f'{MFMA} {vr(vS+8*m+4*h,4)}, {vr(vK+4*(m+h),4)}, {vr(vQ+4*m,4)}, 0')
    p.ins('s_nop 7')
    SC = (32 ** -0.5) * LOG2E
    def both(f):
        for m in range(2):
            f(m, vS + 8 * m, vw + 8 * m)
    for r in range(4):
        both(lambda m, s, w: p.ins(f'v_cndmask_b32 {vr(w+r)}, {vr(s+r)}, {vr(s+4+r)}, {sr(mA+2*r,2)}'))
    both(lambda m, s, w: p.ins(f'v_cndmask_b32 {vr(w)}, {vr(w)}, {vr(w+1)}, {sr(mA+8,2)}\nv_cndmask_b32 {vr(w+1)}, {vr(w+2)}, {vr(w+3)}, {sr(mA+8,2)}'))
    both(lambda m, s, w: p.ins(f'v_mul_f32 {vr(w)}, {f32(SC)}, {vr(w)}\nv_mul_f32 {vr(w+1)}, {f32(SC)}, {vr(w+1)}'))
    p.ins(f'v_mov_b32 {vr(vt)}, {f32(-1e9)}')
    p.ins(f'v_cndmask_b32 {vr(vw)}, {vr(vw)}, {vr(vt)}, {sr(mA+10,2)}\nv_cndmask_b32 {vr(vw+1)}, {vr(vw+1)}, {vr(vt)}, {sr(mA+12,2)}')
    both(lambda m, s, w: p.ins(f'v_max_f32 {vr(w+2)}, {vr(w)}, {vr(w+1)}'))
    def xred(op, off):
        for st in (16, 32):
            both(lambda m, s, w: p.ins(f'v_mov_b32 {vr(w+3)}, {vr(w+off)}'))
            p.ins('s_nop 0')
            both(lambda m, s, w: p.ins(f'v_permlane{st}_swap_b32 {vr(w+off)}, {vr(w+3)}'))
            both(lambda m, s, w: p.ins(f'{op} {vr(w+off)}, {vr(w+off)}, {vr(w+3)}'))
    xred('v_max_f32', 2)
    both(lambda m, s, w: p.ins(f'v_sub_f32 {vr(w)}, {vr(w)}, {vr(w+2)}\nv_sub_f32 {vr(w+1)}, {vr(w+1)}, {vr(w+2)}'))
    both(lambda m, s, w: p.ins(f'v_exp_f32 {vr(w)}, {vr(w)}\nv_exp_f32 {vr(w+1)}, {vr(w+1)}'))
    p.ins('s_nop 0')
    both(lambda m, s, w: p.ins(f'v_add_f32 {vr(w+2)}, {vr(w)}, {vr(w+1)}'))
    xred('v_add_f32', 2)
    both(lambda m, s, w: p.ins(f'v_rcp_f32 {vr(w+2)}, {vr(w+2)}'))
    p.ins('s_nop 0')
    both(lambda m, s, w: p.ins(f'v_mul_f32 {vr(w)}, {vr(w)}, {vr(w+2)}\nv_mul_f32 {vr(w+1)}, {vr(w+1)}, {vr(w+2)}'))
    both(lambda m, s, w: p.ins(f'v_cvt_pk_bf16_f32 {vr(w)}, {vr(w)}, {vr(w)}\nv_cvt_pk_bf16_f32 {vr(w+1)}, {vr(w+1)}, {vr(w+1)}'))
    both(lambda m, s, w: p.ins('\n'.join(f'v_and_b32 {vr(vP+4*m+i)}, {vr(vM+i)}, {vr(w+(i&1))}' for i in range(4))))
    p.wait(lg='all')
    p.ins('s_nop 0')
    for m in range(2):
        for d in range(2):
            p.ins(f'{MFMA} {vr(vOo+8*m+4*d,4)}, {vr(vVd+6*d+2*m,4)}, {vr(vP+4*m,4)}, 0')
    p.ins('s_nop 7')
    for m in range(2):
        o = vOo + 8 * m
        for i in range(4):
            p.ins(f'v_cvt_pk_bf16_f32 {vr(vS+4*m+i)}, {vr(o+2*i)}, {vr(o+2*i+1)}')
        p.vm(f'buffer_store_dwordx4 {vr(vS+4*m,4)}, {vr(vl16)}, {sr(sO,4)}, {sr(s0 if m == 0 else s1)} offen {cfg.get("sflags", "")}')
    p.wait(vm=['jc'])
    for i in range(4):
        src = jc + i // 2
        p.ins(f'v_lshlrev_b32 {vr(js+i)}, 16, {vr(src)}' if i % 2 == 0 else f'v_and_b32 {vr(js+i)}, 0xffff0000, {vr(src)}')
    for op in ('mul', 'exp', 'add', 'rcp', 'fin'):
        for i in range(4):
            p.ins({'mul': f'v_mul_f32 {vr(ja+i)}, {f32(-LOG2E)}, {vr(js+i)}', 'exp': f'v_exp_f32 {vr(ja+i)}, {vr(ja+i)}',
                   'add': f'v_add_f32 {vr(ja+i)}, 1.0, {vr(ja+i)}', 'rcp': f'v_rcp_f32 {vr(ja+i)}, {vr(ja+i)}',
                   'fin': f'v_mul_f32 {vr(js+i)}, {vr(js+i)}, {vr(ja+i)}'}[op])
    for i in range(0, 4, 2):
        p.ins(f'v_cvt_pk_bf16_f32 {vr(ju)}, {vr(js+i)}, {vr(js+i+1)}\nv_lshlrev_b32 {vr(js+i)}, 16, {vr(ju)}\nv_and_b32 {vr(js+i+1)}, 0xffff0000, {vr(ju)}')
    p.ins(f'v_and_b32 {vr(jt)}, 7, {vr(vl)}\nv_lshlrev_b32 {vr(jt)}, 5, {vr(jt)}\nv_lshrrev_b32 {vr(jt+1)}, 4, {vr(vl)}\nv_lshl_add_u32 {vr(jt)}, {vr(jt+1)}, 3, {vr(jt)}')
    p.ins(f's_lshl_b32 {sr(s0)}, {sr(sw)}, 8\ns_add_u32 {sr(s0)}, {sr(s0)}, {JL}\nv_add_u32 {vr(jt)}, {sr(s0)}, {vr(jt)}\nv_lshlrev_b32 {vr(jt+1)}, 2, {vr(vl)}\nv_add_u32 {vr(jt+2)}, {JL}, {vr(jt+1)}')
    gemv_acc(p, 4, jw, js, ja, ju, lambda i: ('jw', i))
    gemv_reduce(p, ja)
    p.lg(f'ds_write_b64 {vr(jt)}, {vr(ja,2)}')
    p.wait(lg='all')
    p.ins('s_barrier')
    p.ins(f's_cmp_lg_u32 {sr(sw)}, 0\ns_cbranch_scc1 E_{k.name}')
    for i in range(8):
        p.lg(f'ds_read_b32 {vr(ja+i)}, {vr(jt+2)} offset:{256*i}')
    p.wait(lg='all')
    for a, b in ((0, 1), (2, 3), (4, 5), (6, 7), (0, 2), (4, 6), (0, 4)):
        p.ins(f'v_add_f32 {vr(ja+a)}, {vr(ja+a)}, {vr(ja+b)}')
    p.vm(f'buffer_store_dword {vr(ja)}, {vr(jt+1)}, {sr(sP,4)}, {sr(sjo)} offen')
    k.end()
    return k

def k_gres(name, cfg, KK, wslot, a_off, gchunk, first):
    NW = cfg.get('NW', 8); WM = 8 // NW
    k = K(name, 256, 64 * NW); p, V, S = k.p, k.V, k.S
    fold = first and cfg.get('fold')
    sW = k.srd('w', wslot, KK * DM * 2); sA = k.srd('a', WS, M * KK * 2, a_off)
    sRM = k.srd('rm', A_X if first else OUT, M * DM * 2)
    sAF = k.srd('af', WS, M * DM * 2, WS_X1); sG = k.srd('g', WS, NPART * 6144 * 4, WS_MODP)
    plan = cfg.get('pig'); splan = None; pptr = pig_load(k, plan or [])
    if fold:
        sY = k.srd('y', WS, M * DM * 2 + 32768, WS_Y); sST = k.srd('st', WS, 128 * 2048, WS_ST)
    pre = cfg.get('pre', lambda k: None)(k)
    swg = S.alloc('wg'); p.ins(f's_mov_b32 {sr(swg)}, s2')
    sw = S.alloc('w'); sm = S.alloc('mt'); sn = S.alloc('nt'); s0 = S.alloc('t0'); s1 = S.alloc('t1'); sro = S.alloc('ro', WM); saf = S.alloc('afo', WM); sxl = S.alloc('xl')
    vl = V.alloc('lane'); vl16 = V.alloc('l16'); vt = V.alloc('t', 4); vro = V.alloc('ro', 2); vgo = V.alloc('go'); vxa = V.alloc('xa', 4); vl4 = V.alloc('l4', 2)
    vx = V.alloc('x', 8 * WM, 4); vg = V.alloc('g', 16, 4)
    if fold:
        vc = V.alloc('c', 16, 4); vsb = V.alloc('sb', 16, 4); vy = V.alloc('y', 8 * WM, 4)
    RB = 128
    g = Gemm(p, V, S, name, NW, 1, WM, KK, cfg['BK'], cfg['NS'], cfg['D'], cfg['R'], cfg['DAS'], 2048, RB, [dict(srd=sW, col=0)],
             [(t, 0) for t in range(4)], 4, P=4, spread=cfg['spread'], ramp=cfg['ramp'], wflags=cfg.get('wflags', ''), pig=bool(plan), prio=(NW == 8))
    XL = g.NS * g.stagebytes
    GL = XL + 16384
    k.lds = max(GL + 8192, 82 * 1024)
    p.ins(f'v_lshrrev_b32 {vr(vt)}, 6, v0\nv_and_b32 {vr(vl)}, 63, v0\nv_readfirstlane_b32 {sr(sw)}, {vr(vt)}')
    tilemap(k, 'g4', sm, sn, s0, s1)
    p.ins(f's_add_u32 {sr(g.sLead)}, {sr(sm)}, {sr(sn)}\ns_and_b32 {sr(g.sLead)}, {sr(g.sLead)}, 3')
    p.ins(f's_lshl_b32 {sr(s1)}, {sr(sn)}, 7')
    gemm_common(k, g, sw, None, s1, vl, vt)
    p.ins(f's_lshl_b32 {sr(s0)}, {sr(sm)}, 3\ns_mul_i32 {sr(sro)}, {sr(sw)}, {WM}\ns_add_u32 {sr(s0)}, {sr(s0)}, {sr(sro)}\ns_lshl_b32 {sr(sro)}, {sr(s0)}, 15\ns_mul_i32 {sr(s0)}, {sr(s0)}, {KK//32*1024}')
    p.ins(f'v_lshlrev_b32 {vr(vl16)}, 4, {vr(vl)}\nv_add_u32 {vr(g.va)}, {sr(s0)}, {vr(vl16)}')
    for m in range(1, WM):
        p.ins(f'v_add_u32 {vr(g.va+m)}, {m*KK//32*1024}, {vr(g.va)}')
    k.finish_srds()
    g.prologue(sA)
    if plan: pig_setup(k, g, plan, pptr, swg, sw, vl)
    gemm_rdbase(k, g, None, vl, vt)
    for t in range(4):
        p.ins(f'v_xor_b32 {vr(g.waddr+t)}, {t<<5}, {vr(vt)}')
    gemm_sets(k, g)
    p.ins(f's_lshl_b32 {sr(s1)}, {sr(sn)}, 11\ns_add_u32 {sr(saf)}, {sr(sro)}, {sr(s1)}')
    p.ins(f's_lshl_b32 {sr(s1)}, {sr(sn)}, 7\ns_add_u32 {sr(sro)}, {sr(sro)}, {sr(s1)}\ns_lshl_b32 {sr(s1)}, {sr(sn)}, 8\ns_add_u32 {sr(s1)}, {sr(s1)}, {gchunk*4096}')
    for m in range(1, WM):
        p.ins(f's_add_u32 {sr(saf+m)}, {sr(saf)}, {32768*m}\ns_add_u32 {sr(sro+m)}, {sr(sro)}, {32768*m}')
    p.ins(f's_mul_i32 {sr(sxl)}, {sr(sw)}, {2048*WM}\ns_add_u32 {sr(sxl)}, {sr(sxl)}, {XL}')
    p.ins(f's_lshl_b32 {sr(s0)}, {sr(sw)}, 10\ns_add_u32 {sr(s0)}, {sr(s0)}, {GL}\nv_lshrrev_b32 {vr(vt+1)}, 4, {vr(vl)}\nv_lshl_add_u32 {vr(vgo)}, {vr(vt+1)}, 4, {sr(s0)}\nv_lshlrev_b32 {vr(vl4)}, 2, {vr(vl)}\nv_add_u32 {vr(vl4+1)}, {sr(s0)}, {vr(vl4)}')
    p.ins(f'v_lshrrev_b32 {vr(vt)}, 3, {vr(vl)}\nv_and_b32 {vr(vt+2)}, 7, {vr(vl)}\nv_xor_b32 {vr(vt+2)}, {vr(vt+2)}, {vr(vt+1)}\nv_lshlrev_b32 {vr(vt+2)}, 4, {vr(vt+2)}\nv_lshl_add_u32 {vr(vro)}, {vr(vt)}, 11, {vr(vt+2)}')
    p.ins(f'v_xor_b32 {vr(vro+1)}, 64, {vr(vro)}\nv_add_u32 {vr(vro+1)}, 16384, {vr(vro+1)}')
    p.ins(f'v_and_b32 {vr(vt)}, 15, {vr(vl)}\nv_lshrrev_b32 {vr(vt+2)}, 1, {vr(vt)}\nv_lshrrev_b32 {vr(vt+3)}, 5, {vr(vl)}\nv_xor_b32 {vr(vt+2)}, {vr(vt+2)}, {vr(vt+3)}\nv_lshlrev_b32 {vr(vt+2)}, 4, {vr(vt+2)}\nv_lshl_add_u32 {vr(vt+2)}, {vr(vt)}, 7, {vr(vt+2)}')
    p.ins(f'v_and_b32 {vr(vt+1)}, 1, {vr(vt+1)}\nv_lshl_add_u32 {vr(vt+2)}, {vr(vt+1)}, 3, {vr(vt+2)}')
    for t in range(4):
        p.ins(f'v_xor_b32 {vr(vxa+t)}, {t<<5}, {vr(vt+2)}\nv_add_u32 {vr(vxa+t)}, {sr(sxl)}, {vr(vxa+t)}')
    g.first_reads()
    def hook(i):
        k.mark(i-1)
        if i == 2:
            for m in range(WM):
                for q in range(2):
                    if first:
                        p.ins(f's_add_u32 m0, {sr(sxl)}, {2048*m+1024*q}\ns_nop 0')
                        p.vm(f'buffer_load_dwordx4 {vr(vro+q)}, {sr(sRM,4)}, {sr(sro+m)} offen lds')
                    else:
                        p.vm(f'buffer_load_dwordx4 {vr(vx+8*m+4*q,4)}, {vr(vl16)}, {sr(sAF,4)}, {sr(saf+m)} offen offset:{1024*q}')
            for q in range(NPART):
                if fold:
                    p.ins(f's_add_u32 {sr(s0)}, {sr(s1)}, 4096')
                    p.vm(f'buffer_load_dword {vr(vsb+q)}, {vr(vl4)}, {sr(sG,4)}, {sr(s0)} offen')
                    p.ins(f's_add_u32 {sr(s0)}, {sr(s1)}, 8192')
                    p.vm(f'buffer_load_dword {vr(vc+q)}, {vr(vl4)}, {sr(sG,4)}, {sr(s0)} offen')
                p.vm(f'buffer_load_dword {vr(vg+q)}, {vr(vl4)}, {sr(sG,4)}, {sr(s1)} offen', ('g', q))
                if q < NPART - 1:
                    p.ins(f's_add_u32 {sr(s1)}, {sr(s1)}, {6144*4}')
            if cfg.get('mid'): cfg['mid'](k, pre, swg, sw, vl)
    g.mainloop(stamp=hook)
    k.mark(2)
    if cfg.get('tail'): cfg['tail'](k, pre, swg, sw, vl)
    p.wait(vm=[('g', 3)])
    p.ins(f'v_add_f32 {vr(vg)}, {vr(vg)}, {vr(vg+1)}\nv_add_f32 {vr(vg+2)}, {vr(vg+2)}, {vr(vg+3)}\nv_add_f32 {vr(vg)}, {vr(vg)}, {vr(vg+2)}')
    round_bf16(p, vt, vg)
    p.lg(f'ds_write_b32 {vr(vl4+1)}, {vr(vt)}')
    if fold:
        for i, r in enumerate((vc, vsb)):
            p.ins(f'v_add_f32 {vr(r)}, {vr(r)}, {vr(r+1)}\nv_add_f32 {vr(r+2)}, {vr(r+2)}, {vr(r+3)}\nv_add_f32 {vr(r)}, {vr(r)}, {vr(r+2)}')
            round_bf16(p, vt + 1 + i, r)
            if i == 0:
                p.ins(f'v_add_f32 {vr(vt+1)}, 1.0, {vr(vt+1)}')
                round_bf16(p, vt + 1, vt + 1)
            p.lg(f'ds_write_b32 {vr(vl4+1)}, {vr(vt+1+i)} offset:{256*(i+1)}')
    if first:
        for m in range(WM):
            for t in range(4):
                p.lg(f'ds_read_b64 {vr(vx+8*m+2*t,2)}, {vr(vxa+t)} offset:{2048*m}')
    for t in range(4):
        p.lg(f'ds_read_b128 {vr(vg+4*t,4)}, {vr(vgo)} offset:{64*t}', ('gl', t))
    if fold:
        for t in range(4):
            p.lg(f'ds_read_b128 {vr(vc+4*t,4)}, {vr(vgo)} offset:{256+64*t}', ('cl', t))
        for t in range(4):
            p.lg(f'ds_read_b128 {vr(vsb+4*t,4)}, {vr(vgo)} offset:{512+64*t}', ('sl', t))
    p.wait(lg=[('gl', 3)])
    sf = cfg.get('sflags', '')
    assert g.R * 4 >= 16 * WM
    for m in range(WM):
        vf = g.wbuf + 16 * m; xm = vx + 8 * m
        for t in range(4):
            for d in range(2):
                p.ins(f'v_lshlrev_b32 {vr(vf+4*t+2*d)}, 16, {vr(xm+2*t+d)}\nv_and_b32 {vr(vf+4*t+2*d+1)}, 0xffff0000, {vr(xm+2*t+d)}')
        for t in range(4):
            c = g.accr(t, m)
            for e in range(4):
                p.ins(f'v_fmac_f32 {vr(vf+4*t+e)}, {vr(vg+4*t+e)}, {vr(c+e)}')
            if fold:
                if m == 0 and t == 0: p.wait(lg=[('cl', 3)])
                for e in range(4):
                    p.ins(f'v_mul_f32 {vr(c+e)}, {vr(vf+4*t+e)}, {vr(vc+4*t+e)}')
                ym = vy + 8 * m
                p.ins(f'v_cvt_pk_bf16_f32 {vr(ym+2*t)}, {vr(c)}, {vr(c+1)}\nv_cvt_pk_bf16_f32 {vr(ym+2*t+1)}, {vr(c+2)}, {vr(c+3)}')
                if t % 2:
                    p.vm(f'buffer_store_dwordx4 {vr(ym+2*t-2,4)}, {vr(vl16)}, {sr(sY,4)}, {sr(saf+m)} offen offset:{1024*(t//2)} {sf}')
            p.ins(f'v_cvt_pk_bf16_f32 {vr(xm+2*t)}, {vr(vf+4*t)}, {vr(vf+4*t+1)}\nv_cvt_pk_bf16_f32 {vr(xm+2*t+1)}, {vr(vf+4*t+2)}, {vr(vf+4*t+3)}')
            if first:
                if t % 2:
                    p.vm(f'buffer_store_dwordx4 {vr(xm+2*t-2,4)}, {vr(vl16)}, {sr(sAF,4)}, {sr(saf+m)} offen offset:{1024*(t//2)} {cfg.get("x1flags", sf)}')
            else:
                p.lg(f'ds_write_b64 {vr(vxa+t)}, {vr(xm+2*t,2)} offset:{2048*m}')
        if not first:
            if m == 0: p.ins(f'v_add_u32 {vr(vt)}, {sr(sxl)}, {vr(vl16)}')
            for q in range(2):
                p.lg(f'ds_read_b128 {vr(vf+4*q,4)}, {vr(vt)} offset:{2048*m+1024*q}', ('o', m, q))
    if not first:
        for m in range(WM):
            for q in range(2):
                p.wait(lg=[('o', m, q)])
                p.vm(f'buffer_store_dwordx4 {vr(g.wbuf+16*m+4*q,4)}, {vr(vro+q)}, {sr(sRM,4)}, {sr(sro+m)} offen {sf}')
    if fold:
        for m in range(WM):
            vf = g.wbuf + 16 * m; vq = g.acc + 4 * m
            p.ins(f'v_add_f32 {vr(vq)}, {vr(vf)}, {vr(vf+1)}\nv_mul_f32 {vr(vq+1)}, {vr(vf)}, {vr(vf)}\nv_add_f32 {vr(vq+2)}, {vr(vf+2)}, {vr(vf+3)}\nv_mul_f32 {vr(vq+3)}, {vr(vf+1)}, {vr(vf+1)}')
            for i in range(2, 16):
                p.ins(f'v_fmac_f32 {vr(vq+1+2*(i&1))}, {vr(vf+i)}, {vr(vf+i)}')
                if i >= 4:
                    p.ins(f'v_add_f32 {vr(vq+2*(i&1))}, {vr(vq+2*(i&1))}, {vr(vf+i)}')
            p.ins(f'v_add_f32 {vr(vq)}, {vr(vq)}, {vr(vq+2)}\nv_add_f32 {vr(vq+1)}, {vr(vq+1)}, {vr(vq+3)}')
        for st in (16, 32):
            for m in range(WM):
                vq = g.acc + 4 * m
                p.ins(f'v_mov_b32 {vr(vq+2)}, {vr(vq)}\nv_mov_b32 {vr(vq+3)}, {vr(vq+1)}')
            p.ins('s_nop 0')
            for m in range(WM):
                vq = g.acc + 4 * m
                p.ins(f'v_permlane{st}_swap_b32 {vr(vq)}, {vr(vq+2)}\nv_permlane{st}_swap_b32 {vr(vq+1)}, {vr(vq+3)}')
            for m in range(WM):
                vq = g.acc + 4 * m
                p.ins(f'v_add_f32 {vr(vq)}, {vr(vq)}, {vr(vq+2)}\nv_add_f32 {vr(vq+1)}, {vr(vq+1)}, {vr(vq+3)}')
        sodd = S.alloc('oddm', 2, 2)
        smov64(p, sodd, lanemask(lambda l: l & 1))
        p.ins(f's_lshr_b32 {sr(s0)}, {sr(saf)}, 4')
        p.ins(f'v_lshlrev_b32 {vr(vt)}, 3, {vr(vl)}\ns_mov_b64 exec, 0xffff')
        for m in range(WM):
            p.vm(f'buffer_store_dwordx2 {vr(g.acc+4*m,2)}, {vr(vt)}, {sr(sST,4)}, {sr(s0)} offen offset:{2048*m} {sf}')
        p.ins('s_mov_b64 exec, -1')
        p.ins(f's_or_b32 {sr(s0)}, {sr(sm)}, {sr(sw)}\ns_cmp_lg_u32 {sr(s0)}, 0\ns_cbranch_scc1 E_{k.name}')
        p.wait(lg='all')
        for i in range(16):
            p.ins(f'v_cndmask_b32 {vr(vc+i)}, {vr(vc+i)}, {vr(vsb+i)}, {sr(sodd,2)}')
        for i in range(8):
            p.ins(f'v_cvt_pk_bf16_f32 {vr(vsb+i)}, {vr(vc+2*i)}, {vr(vc+2*i+1)}')
        p.ins(f's_add_u32 {sr(s0)}, {sr(saf)}, {M * DM * 2}')
        for q in range(2):
            p.vm(f'buffer_store_dwordx4 {vr(vsb+4*q,4)}, {vr(vl16)}, {sr(sY,4)}, {sr(s0)} offen offset:{1024*q} {sf}')
    k.end()
    return k

def k_g3(cfg):
    k = K('k6_ffn_kernel', 256, 512); p, V, S = k.p, k.V, k.S
    sW0 = k.srd('wg', B_WG, DM * FF * 2); sW1 = k.srd('wu', B_WU, DM * FF * 2)
    sA = k.srd('a', WS, M * DM * 2, WS_H2); sO = k.srd('o', WS, M * FF * 2, WS_ACT)
    plan = cfg.get('pig'); splan = cfg.get('spig'); pptr = pig_load(k, (plan or []) + (splan or []))
    pre = cfg.get('pre', lambda k: None)(k)
    swg = S.alloc('wg'); p.ins(f's_mov_b32 {sr(swg)}, s2')
    sw = S.alloc('w'); sm = S.alloc('mt'); sn = S.alloc('nt'); s0 = S.alloc('t0'); s1 = S.alloc('t1'); sodd = S.alloc('odd')
    vl = V.alloc('lane'); vl16 = V.alloc('l16'); vt = V.alloc('t', 4)
    BK, RB = 64, 256
    tiles = [(t, s * BK * RB) for s in range(2) for t in range(7)]
    g = Gemm(p, V, S, 'g3', 8, 1, 2, DM, BK, cfg['NS'], cfg['D'], cfg['R'], cfg['DAS'], 7168, RB,
             [dict(srd=sW0, col=0), dict(srd=sW1, col=0)], tiles, 7, P=4, spread=cfg['spread'], ramp=cfg['ramp'], wflags=cfg.get('wflags', ''), pig=bool(plan), spig=(cfg.get('spn', 2) if splan else 0))
    p.ins(f'v_lshrrev_b32 {vr(vt)}, 6, v0\nv_and_b32 {vr(vl)}, 63, v0\nv_readfirstlane_b32 {sr(sw)}, {vr(vt)}')
    tilemap(k, 'g3', sm, sn, s0, s1)
    p.ins(f's_add_u32 {sr(g.sLead)}, {sr(sm)}, {sr(sn)}\ns_and_b32 {sr(g.sLead)}, {sr(g.sLead)}, 3')
    p.ins(f's_and_b32 {sr(sodd)}, {sr(sn)}, 1\ns_mul_i32 {sr(s1)}, {sr(sn)}, 224\ns_lshl_b32 {sr(s0)}, {sr(sodd)}, 5\ns_sub_u32 {sr(s1)}, {sr(s1)}, {sr(s0)}')
    gemm_common(k, g, sw, None, s1, vl, vt)
    p.ins(f'v_lshlrev_b32 {vr(vl16)}, 4, {vr(vl)}')
    p.ins(f's_lshl_b32 {sr(s0)}, {sr(sm)}, 3\ns_add_u32 {sr(s0)}, {sr(s0)}, {sr(sw)}\ns_lshl_b32 {sr(s0)}, {sr(s0)}, 16')
    p.ins(f'v_add_u32 {vr(g.va)}, {sr(s0)}, {vr(vl16)}\nv_add_u32 {vr(g.va+1)}, 32768, {vr(g.va)}')
    k.finish_srds()
    g.prologue(sA)
    if plan: pig_setup(k, g, plan, pptr, swg, sw, vl)
    if splan: spig_setup(k, g, splan, pptr, swg, sw)
    gemm_rdbase(k, g, None, vl, vt)
    for t in range(7):
        p.ins(f's_cmp_eq_u32 {sr(sodd)}, 0\ns_cselect_b32 {sr(s0)}, {t}, {(t+2) if t < 6 else 1}\ns_lshl_b32 {sr(s0)}, {sr(s0)}, 5')
        p.ins(f'v_xor_b32 {vr(g.waddr+t)}, {sr(s0)}, {vr(vt)}')
    gemm_sets(k, g)
    g.first_reads()
    def hook(i):
        k.mark(i - 1)
        if i == 2 and cfg.get('mid'): cfg['mid'](k, pre, swg, sw, vl)
    g.mainloop(stamp=hook)
    k.mark(2)
    k.lds = g.NS * g.stagebytes
    p.ins(f's_lshl_b32 {sr(s0)}, {sr(sm)}, 3\ns_add_u32 {sr(s0)}, {sr(s0)}, {sr(sw)}\ns_mul_i32 {sr(s0)}, {sr(s0)}, 224\ns_mul_i32 {sr(s1)}, {sr(sn)}, 7\ns_add_u32 {sr(s1)}, {sr(s1)}, {sr(sodd)}\ns_lshr_b32 {sr(s1)}, {sr(s1)}, 1\ns_add_u32 {sr(s0)}, {sr(s0)}, {sr(s1)}\ns_lshl_b32 {sr(s0)}, {sr(s0)}, 10')
    p.ins(f's_mul_i32 {sr(s1)}, {sr(sodd)}, 4088\ns_sub_u32 {sr(s1)}, {sr(s0)}, {sr(s1)}\ns_add_u32 {sr(s1)}, {sr(s1)}, 3072')
    tmp = g.wbuf
    pk = g.abuf
    p.wait(lg='all', vm='all')
    if cfg.get('tail'): cfg['tail'](k, pre, swg, sw, vl)
    sf = cfg.get('sflags', '')
    for m in range(2):
        for t in range(7):
            gt, ut = g.accr(t, m), g.accr(7 + t, m)
            w = tmp + 4 * (t % 2)
            for e in range(4):
                p.ins(f'v_mul_f32 {vr(w+e)}, {f32(-LOG2E)}, {vr(gt+e)}')
            for e in range(4):
                p.ins(f'v_exp_f32 {vr(w+e)}, {vr(w+e)}')
            for e in range(4):
                p.ins(f'v_mul_f32 {vr(gt+e)}, {vr(gt+e)}, {vr(ut+e)}')
            for e in range(4):
                p.ins(f'v_add_f32 {vr(w+e)}, 1.0, {vr(w+e)}')
            for e in range(4):
                p.ins(f'v_rcp_f32 {vr(w+e)}, {vr(w+e)}')
            p.ins('s_nop 0')
            for e in range(4):
                p.ins(f'v_mul_f32 {vr(gt+e)}, {vr(gt+e)}, {vr(w+e)}')
            o = pk + 16 * m + 2 * t
            p.ins(f'v_cvt_pk_bf16_f32 {vr(o)}, {vr(gt)}, {vr(gt+1)}\nv_cvt_pk_bf16_f32 {vr(o+1)}, {vr(gt+2)}, {vr(gt+3)}')
            if t % 2 == 1:
                p.vm(f'buffer_store_dwordx4 {vr(o-2,4)}, {vr(vl16)}, {sr(sO,4)}, {sr(s0)} offen offset:{1024*(t//2)} {sf}')
            elif t == 6:
                p.vm(f'buffer_store_dwordx2 {vr(o,2)}, {vr(vl16)}, {sr(sO,4)}, {sr(s1)} offen {sf}')
        if m == 0:
            p.ins(f's_add_u32 {sr(s0)}, {sr(s0)}, {112*1024}\ns_add_u32 {sr(s1)}, {sr(s1)}, {112*1024}')
    k.end()
    return k

def k_g3f(cfg):
    k = K('k6_ffn_kernel', 256, 512); p, V, S = k.p, k.V, k.S
    sW0 = k.srd('wg', B_WG, DM * FF * 2); sW1 = k.srd('wu', B_WU, DM * FF * 2)
    sA = k.srd('a', WS, M * DM * 2 + 32768, WS_Y); sO = k.srd('o', WS, M * FF * 2, WS_ACT); sST = k.srd('st', WS, 128 * 2048, WS_ST)
    plan = cfg.get('pig'); splan = cfg.get('spig'); pptr = pig_load(k, (plan or []) + (splan or []))
    pre = cfg.get('pre', lambda k: None)(k)
    swg = S.alloc('wg'); p.ins(f's_mov_b32 {sr(swg)}, s2')
    sw = S.alloc('w'); sm = S.alloc('mt'); sn = S.alloc('nt'); s0 = S.alloc('t0'); s1 = S.alloc('t1'); sodd = S.alloc('odd')
    sc = S.alloc('cp', 7); so = S.alloc('so', 7); sb0 = S.alloc('b0')
    comb = cfg.get('comb')
    if comb: sm6 = S.alloc('m6', 2, 2); sme = S.alloc('me', 2, 2)
    vl = V.alloc('lane'); vl16 = V.alloc('l16'); vt = V.alloc('t', 3)
    BK, RB = 64, 256
    tiles = [(t, s * BK * RB) for s in range(2) for t in range(7)]
    c2 = cfg.get('core2')
    if c2:
        g = Gemm2(p, V, S, 'g3', 8, 1, 2, DM, BK, cfg['NS'], cfg['D'], cfg['R'], cfg['DAS'], 7168, RB,
                  [dict(srd=sW0, col=0), dict(srd=sW1, col=0)], tiles, 7, spread=cfg['spread'], ramp=cfg['ramp'], extra=(6, 13),
                  pig_rounds=(cfg.get('pig_rounds', (1, 2, 3)) if plan else ()), nprio=cfg.get('nprio', 4), wgrp=cfg.get('wgrp', 2),
                  lead0=cfg.get('lead0', True), alead=cfg.get('alead', 4), kgrp=cfg.get('kgrp', 1))
    else:
        g = Gemm(p, V, S, 'g3', 8, 1, 2, DM, BK, cfg['NS'], cfg['D'], cfg['R'], cfg['DAS'], 7168, RB,
                 [dict(srd=sW0, col=0), dict(srd=sW1, col=0)], tiles, 7, P=4, spread=cfg['spread'], ramp=cfg['ramp'],
                 wflags=cfg.get('wflags', ''), pig=bool(plan), extra=(6, 13))
    a3 = c2 and cfg['DAS'] == 3
    if a3:
        g.aoff = 1; ut = g.abuf + 32
    else:
        ut = V.alloc('ut', 16, 4)
    ve = V.alloc('e', 8, 4); vs = V.alloc('stat', 6); vub = V.alloc('utb', 2)
    UT = g.lds_end
    k.lds = UT + 2048
    k.tmp_s = sST; k.tmp_v = V.alloc('tmpv', 2, 2)
    p.ins(f'v_lshrrev_b32 {vr(vt)}, 6, v0\nv_and_b32 {vr(vl)}, 63, v0\nv_readfirstlane_b32 {sr(sw)}, {vr(vt)}')
    tilemap(k, 'g3', sm, sn, s0, s1)
    p.ins(f's_add_u32 {sr(g.sLead)}, {sr(sm)}, {sr(sn)}\ns_and_b32 {sr(g.sLead)}, {sr(g.sLead)}, 3')
    p.ins(f's_and_b32 {sr(sodd)}, {sr(sn)}, 1\ns_mul_i32 {sr(s1)}, {sr(sn)}, 224\ns_lshl_b32 {sr(s0)}, {sr(sodd)}, 5\ns_sub_u32 {sr(s1)}, {sr(s1)}, {sr(s0)}')
    gemm_common(k, g, sw, None, s1, vl, vt)
    if c2: g.setup_vdma()
    p.ins(f'v_lshlrev_b32 {vr(vl16)}, 4, {vr(vl)}')
    p.ins(f's_lshl_b32 {sr(sb0)}, {sr(sm)}, 3\ns_add_u32 {sr(sb0)}, {sr(sb0)}, {sr(sw)}\ns_lshl_b32 {sr(s0)}, {sr(sb0)}, 16')
    p.ins(f'v_add_u32 {vr(g.va)}, {sr(s0)}, {vr(vl16)}\nv_add_u32 {vr(g.va+1)}, 32768, {vr(g.va)}')
    p.ins(f's_lshl_b32 {sr(g.sWX)}, {sr(sw)}, 8\ns_add_u32 {sr(s0)}, {sr(g.sWX)}, {M * DM * 2}\nv_lshl_add_u32 {vr(g.vx)}, {vr(vl)}, 2, {sr(s0)}')
    def stat_loads(base):
        p.ins(f's_lshl_b32 {sr(s0)}, {sr(sb0)}, 12')
        for m in range(2):
            for h in range(2):
                p.vm(f'buffer_load_dwordx4 {vr(base+8*m+4*h,4)}, {vr(vl16)}, {sr(sST,4)}, {sr(s0)} offen offset:{2048*m+1024*h}', ('st', m, 2 * h + 1))
    LN2 = 0.6931471805599453
    def stat_ops(base):
        L = [lambda: p.wait(vm=[('st', 1, 3)])]
        for m in range(2):
            b = base + 8 * m
            for a_, c_ in ((0, 2), (1, 3), (4, 6), (5, 7), (0, 4), (1, 5)):
                L.append(f'v_add_f32 {vr(b+a_)}, {vr(b+a_)}, {vr(b+c_)}')
        for st in (16, 32):
            for m in range(2):
                b = base + 8 * m
                L.append(f'v_mov_b32 {vr(b+2)}, {vr(b)}\nv_mov_b32 {vr(b+3)}, {vr(b+1)}')
            L.append('s_nop 0')
            for m in range(2):
                b = base + 8 * m
                L.append(f'v_permlane{st}_swap_b32 {vr(b)}, {vr(b+2)}\nv_permlane{st}_swap_b32 {vr(b+1)}, {vr(b+3)}')
            for m in range(2):
                b = base + 8 * m
                L.append(f'v_add_f32 {vr(b)}, {vr(b)}, {vr(b+2)}\nv_add_f32 {vr(b+1)}, {vr(b+1)}, {vr(b+3)}')
        rb = lambda r: f'v_cvt_pk_bf16_f32 {vr(r)}, {vr(r)}, {vr(r)}\nv_lshlrev_b32 {vr(r)}, 16, {vr(r)}'
        for m in range(2):
            b = base + 8 * m; o = vs + 3 * m
            L += [f'v_mul_f32 {vr(b)}, {f32(1/1024)}, {vr(b)}', f'v_mul_f32 {vr(b+1)}, {f32(1/1024)}, {vr(b+1)}',
                  f'v_fma_f32 {vr(b+1)}, -{vr(b)}, {vr(b)}, {vr(b+1)}', f'v_max_f32 {vr(b+1)}, 0, {vr(b+1)}', rb(b+1),
                  f'v_add_f32 {vr(b+1)}, {f32(1e-5)}, {vr(b+1)}', rb(b+1), f'v_sqrt_f32 {vr(b+1)}, {vr(b+1)}\ns_nop 0', rb(b+1),
                  f'v_rcp_f32 {vr(b+1)}, {vr(b+1)}', rb(b),
                  f'v_mul_f32 {vr(o)}, {f32(-LOG2E)}, {vr(b+1)}', f'v_mul_f32 {vr(o+1)}, {f32(-LN2)}, {vr(b+1)}',
                  f'v_mul_f32 {vr(o+2)}, -{vr(b)}, {vr(b+1)}']
        return L
    late_st = cfg.get('late_st')
    early_st = (a3 or cfg.get('early_st')) and not late_st
    k.finish_srds()
    if early_st: stat_loads(g.acc)
    g.prologue(sA)
    if plan: pig_setup(k, g, plan, pptr, swg, sw, vl)
    if splan: spig_setup(k, g, splan, pptr, swg, sw)
    gemm_rdbase(k, g, None, vl, vt)
    p.ins(f'v_add_u32 {vr(g.xaddr)}, {g.x_base}, {vr(vl16)}')
    e = sc + 6
    p.ins(f's_min_u32 {sr(e)}, {sr(sw)}, 6')
    p.ins(f's_cmp_lt_u32 {sr(e)}, 2\ns_cselect_b32 {sr(sc)}, 2, 0\ns_add_u32 {sr(sc+1)}, {sr(sc)}, 1')
    p.ins(f's_cmp_ge_u32 {sr(e)}, 4\ns_cselect_b32 {sr(sc+2)}, 2, 4\ns_add_u32 {sr(sc+3)}, {sr(sc+2)}, 1')
    p.ins(f's_xor_b32 {sr(s0)}, {sr(e)}, 1\ns_cmp_eq_u32 {sr(e)}, 6\ns_cselect_b32 {sr(sc+4)}, 4, {sr(s0)}\ns_cselect_b32 {sr(sc+5)}, 5, 6')
    p.ins(f's_lshl_b32 {sr(s1)}, {sr(sodd)}, 1')
    for t in range(7):
        p.ins(f's_add_u32 {sr(s0)}, {sr(sc+t)}, {sr(s1)}')
        if t >= 5:
            p.ins(f's_cmp_eq_u32 {sr(s0)}, 8\ns_cselect_b32 {sr(s0)}, 1, {sr(s0)}')
        p.ins(f's_lshl_b32 {sr(s0)}, {sr(s0)}, 5\nv_xor_b32 {vr(g.waddr+t)}, {sr(s0)}, {vr(vt)}')
    gemm_sets(k, g)
    if early_st:
        for o in stat_ops(g.acc): p.ins(o) if isinstance(o, str) else o()
    if not c2: g.first_reads()

    def setup2():
        p.ins(f's_mul_i32 {sr(s0)}, {sr(sb0)}, 224\ns_mul_i32 {sr(s1)}, {sr(sn)}, 7\ns_add_u32 {sr(s1)}, {sr(s1)}, {sr(sodd)}\ns_lshr_b32 {sr(s1)}, {sr(s1)}, 1\ns_add_u32 {sr(s0)}, {sr(s0)}, {sr(s1)}\ns_lshl_b32 {sr(s0)}, {sr(s0)}, 10')
        for t in (0, 2, 4, 5, 6):
            p.ins(f's_lshr_b32 {sr(so+t)}, {sr(sc+t)}, 1\ns_lshl_b32 {sr(so+t)}, {sr(so+t)}, 10\ns_add_u32 {sr(so+t)}, {sr(so+t)}, {sr(s0)}')
            if t >= 4:
                p.ins(f's_and_b32 {sr(s1)}, {sr(sc+t)}, 1\ns_lshl_b32 {sr(s1)}, {sr(s1)}, 3\ns_add_u32 {sr(so+t)}, {sr(so+t)}, {sr(s1)}')
            if t >= 5:
                p.ins(f's_cmp_eq_u32 {sr(sc+t)}, 6\ns_cselect_b32 {sr(s1)}, {sr(sodd)}, 0\ns_mul_i32 {sr(s1)}, {sr(s1)}, 4088\ns_sub_u32 {sr(so+t)}, {sr(so+t)}, {sr(s1)}')
        if comb:
            p.ins(f's_cmp_eq_u32 {sr(sc+6)}, 6\ns_cselect_b64 {sr(sm6,2)}, -1, 0\ns_cselect_b32 {sr(so+5)}, {sr(so+6)}, {sr(so+5)}')
            p.ins(f's_bitcmp1_b32 {sr(sc+4)}, 0\ns_cselect_b64 {sr(sme,2)}, -1, 0\ns_andn2_b32 {sr(so+4)}, {sr(so+4)}, 8')
        for t in range(7):
            p.ins(f's_lshl_b32 {sr(sc+t)}, {sr(sc+t)}, 7')
        if not early_st and not late_st: stat_loads(ut)
        p.ins(f'v_lshrrev_b32 {vr(vub)}, 4, {vr(vl)}\nv_lshlrev_b32 {vr(vub)}, 4, {vr(vub)}\nv_add_u32 {vr(vub)}, {UT}, {vr(vub)}')
    def hook(i):
        k.mark(i - 1)
        if i == 2:
            setup2()
            if cfg.get('mid'): cfg['mid'](k, pre, swg, sw, vl)
    sf = cfg.get('sflags', '')

    def tail(S0):
        n1, n2 = g.nst - 2, g.nst - 1
        ks4 = [(n1, 0), (n1, 1), (n2, 0), (n2, 1)]
        kg2 = c2 and g.kgrp == 2
        def pair(t, kss):
            if kg2: return [(S, j, t + 7 * sgm) for h in range(0, len(kss), 2) for sgm in range(2) for (S, j) in kss[h:h+2]]
            return [(S, j, t + 7 * sgm) for (S, j) in kss for sgm in range(2)]
        order = [6, 4, 5, 0, 1, 2, 3] if comb else [6, 0, 1, 2, 3, 4, 5]
        final = pair(order[1], ks4[:2]) + pair(6, ks4[:2]) + pair(6, ks4[2:]) + pair(order[1], ks4[2:])
        for t in order[2:]: final += pair(t, ks4)
        K0 = n1 * 2
        rx = (lambda ks: (lambda: g.rdx(ks))) if c2 else (lambda ks: (lambda: g.rdx((ks // 2) % g.NS, ks % 2, (lambda it: ks))))
        pos_ops = {0: [rx(K0 + 1)], 6: [rx(K0 + 2)], 8: [rx(K0 + 3)]}
        if kg2:
            final = pair(order[1], ks4[:2]) + pair(6, ks4[:2]) + pair(order[1], ks4[2:]) + pair(6, ks4[2:]) + final[16:]
            pos_ops = {0: [rx(K0)], 1: [rx(K0 + 1)], 8: [rx(K0 + 2)], 9: [rx(K0 + 3)]}
        if cfg.get('fjob'): pos_ops.setdefault(cfg.get('fpos', 3), []).append(lambda: cfg['fjob'](k, pre, swg, sw, vl))
        def bar1():
            p.wait(vm=[('D', n2, n_) for n_ in range(g.PD)])
            p.ins('s_barrier')
            return n2
        def utw():
            for sgm, cst in ((0, -LOG2E), (1, -LN2)):
                for e_ in range(4):
                    p.ins(f'v_mul_f32 {vr(g.xacc+4*sgm+e_)}, {f32(cst)}, {vr(g.xacc+4*sgm+e_)}')
            p.ins(f'v_and_b32 {vr(vt)}, 1, {vr(vl)}\nv_lshl_add_u32 {vr(vt)}, {vr(vt)}, 6, {vr(vub)}\nv_add_u32 {vr(vt)}, {sr(sc+6)}, {vr(vt)}')
            for sgm in range(2):
                p.lg(f'ds_write_b128 {vr(vt)}, {vr(g.xacc+4*sgm,4)} offset:{896*sgm}', ('utw', sgm))
        def bar2():
            p.wait(lg=[('utw', 1)])
            p.ins('s_barrier')
        ub = 4 if kg2 else 0
        bars = {7 - g.D: bar1, 13 + ub: utw, 14 + ub: bar2}
        fl = []
        e0 = -60 if c2 else -40
        if late_st:
            pos_ops.setdefault(0, []).append(lambda: stat_loads(ut)); e0 = late_st
        if not early_st:
            for o in stat_ops(ut): fl.append((e0, o))
        done = {t: (11 if i == 0 else 7 + 8 * i) for i, t in enumerate(order)}
        sf2 = cfg.get('sflags2', sf)
        def utread(t):
            def f():
                p.ins(f'v_add_u32 {vr(vub+1)}, {sr(sc+t)}, {vr(vub)}')
                for i, off in enumerate((0, 64, 896, 960)):
                    p.lg(f'ds_read_b128 {vr(ut+4*i,4)}, {vr(vub+1)} offset:{off}', ('ut', t, i))
            return f
        fl.append((15 + ub, utread(6)))
        for oi, t in enumerate(order):
            e_ = max(done[t] + 2, 16 + ub)
            fl.append((e_, lambda t=t: p.wait(lg=[('ut', t, 3)])))
            for m in range(2):
                st_ = vs + 3 * m
                for sgm in range(2):
                    a = g.accr(t + 7 * sgm, m)
                    for x in range(4):
                        fl.append((e_, f'v_fma_f32 {vr(ve+4*sgm+x)}, {vr(st_+2)}, {vr(ut+8*sgm+x)}, {vr(ut+8*sgm+4+x)}'))
                    for x in range(4):
                        fl.append((e_, f'v_fma_f32 {vr(a+x)}, {vr(a+x)}, {vr(st_+sgm)}, {vr(ve+4*sgm+x)}'))
            if oi + 1 < 7:
                fl.append((e_, utread(order[oi + 1])))
            for m in range(2):
                a = g.accr(t, m)
                for x in range(4):
                    fl.append((e_, f'v_exp_f32 {vr(ve+4*m+x)}, {vr(a+x)}'))
            for m in range(2):
                a, u_ = g.accr(t, m), g.accr(t + 7, m)
                for x in range(4):
                    fl.append((e_, f'v_mul_f32 {vr(u_+x)}, {vr(a+x)}, {vr(u_+x)}'))
                    fl.append((e_, f'v_add_f32 {vr(ve+4*m+x)}, 1.0, {vr(ve+4*m+x)}'))
            for m in range(2):
                for x in range(4):
                    fl.append((e_, f'v_rcp_f32 {vr(ve+4*m+x)}, {vr(ve+4*m+x)}'))
            for m in range(2):
                u_ = g.accr(t + 7, m)
                for x in range(4):
                    fl.append((e_, f'v_mul_f32 {vr(u_+x)}, {vr(u_+x)}, {vr(ve+4*m+x)}'))
            for m in range(2):
                u_ = g.accr(t + 7, m)
                o = g.accr(t & ~1, m) + 2 * (t & 1) if t < 4 else g.accr(t, m)
                fl.append((e_, f'v_cvt_pk_bf16_f32 {vr(o)}, {vr(u_)}, {vr(u_+1)}'))
                fl.append((e_, f'v_cvt_pk_bf16_f32 {vr(o+1)}, {vr(u_+2)}, {vr(u_+3)}'))
                va_ = vl16 if m == 0 else vt + 2
                if t < 4 and t & 1:
                    fl.append((e_, lambda o=o, va_=va_, t=t: p.vm(f'buffer_store_dwordx4 {vr(o-2,4)}, {vr(va_)}, {sr(sO,4)}, {sr(so+t-1)} offen {sf}')))
                elif t >= 4 and not comb:
                    fl.append((e_, lambda o=o, va_=va_, t=t: p.vm(f'buffer_store_dwordx2 {vr(o,2)}, {vr(va_)}, {sr(sO,4)}, {sr(so+t)} offen {sf2}')))
                elif t == 5:
                    P4, P5, P6, Q = g.accr(4, m), g.accr(5, m), g.accr(6, m), g.accr(11, m)
                    for x in range(2):
                        fl.append((e_, f'v_cndmask_b32 {vr(Q+x)}, {vr(P4+x)}, {vr(P6+x)}, {sr(sme,2)}'))
                        fl.append((e_, f'v_cndmask_b32 {vr(Q+2+x)}, {vr(P6+x)}, {vr(P4+x)}, {sr(sme,2)}'))
                        fl.append((e_, f'v_cndmask_b32 {vr(Q+2+x)}, {vr(Q+2+x)}, {vr(P5+x)}, {sr(sm6,2)}'))
                        fl.append((e_, f'v_cndmask_b32 {vr(P5+2+x)}, {vr(P5+x)}, {vr(P6+x)}, {sr(sm6,2)}'))
                    fl.append((e_, lambda Q=Q, va_=va_: p.vm(f'buffer_store_dwordx4 {vr(Q,4)}, {vr(va_)}, {sr(sO,4)}, {sr(so+4)} offen {sf}')))
                    fl.append((e_, lambda P5=P5, va_=va_: p.vm(f'buffer_store_dwordx2 {vr(P5+2,2)}, {vr(va_)}, {sr(sO,4)}, {sr(so+5)} offen {sf2}')))
        p.ins(f'v_add_u32 {vr(vt+2)}, {112*1024}, {vr(vl16)}')
        if cfg.get('fm'):
            k.mark(0); bars[-1] = lambda: k.mark(1)
        if c2:
            left = g.run(final, pos_ops, bars, fl, cfg.get('rate', 10), marks={0: lambda: hook(1), 4 * g.F: lambda: hook(2)}, early=True)
        else:
            left = g.tail_run(S0, final, pos_ops, bars, fl, cfg.get('rate', 10))
        k.mark(2)
        if cfg.get('tail'): cfg['tail'](k, pre, swg, sw, vl)
        p.ins('s_nop 7')
        for _, o in left:
            p.ins(o) if isinstance(o, str) else o()
        k.nleft = len(left)
    if c2: tail(0)
    else: g.mainloop(stamp=hook, tail=tail)
    k.end()
    return k

HEADER = open('adaLN_cond__sliding_local_dilated__swiglu_ffn__prompt.s.ref').read().split('; Override launch')[0]

def build(kernels):
    s = HEADER + '; generated by gen/main.py (python generator in this repository)\n'
    s += '\n'.join(k.launch() for k in kernels) + '\n'
    s += '.amdgcn_target "amdgcn-amd-amdhsa--gfx950"\n.text\n'
    seen = {}
    for k in kernels:
        seen.setdefault(k.name, k)
    for k in seen.values():
        s += f'.globl {k.name}\n.type {k.name},@function\n' + k.text()
    s += 'code_end:\n.fill 2048, 4, 0xBF800000\n.section .rodata,"a"\n'
    for k in seen.values():
        s += k.desc(getattr(k, 'minv', 0))
    return s

def pre_srds(*names):
    tab = dict(wo=(A_WO, DM * DM * 2), wg=(B_WG, DM * FF * 2), wu=(B_WU, DM * FF * 2), wd=(B_WD, FF * DM * 2), x=(A_X, M * DM * 2), h=(WS, M * DM * 2, WS_H))
    return lambda k: {n: k.srd('pf_' + n, *tab[n]) for n in names}
def job(*items):
    def f(k, pre, swg, sw, vl):
        nw = k.nthreads // 64
        for name, row0, nrows, split, flags in items:
            if name == 'code':
                touch_code(k, swg, sw, vl, row0, nrows, split)
                continue
            if split == 'x3':
                ce = lambda d, t_: k.p.ins(f's_and_b32 {sr(d)}, {sr(swg)}, 1\ns_lshl_b32 {sr(d)}, {sr(d)}, 10\ns_add_u32 {sr(d)}, {sr(d)}, 384\ns_bfe_u32 {sr(t_)}, {sr(swg)}, 0x20001\ns_lshl_b32 {sr(t_)}, {sr(t_)}, 20\ns_add_u32 {sr(d)}, {sr(d)}, {sr(t_)}')
                touch_strip(k, pre[name], 2048, swg, sw, vl, ce, [0], 512, False, 0, flags)
            elif split == 's3':
                ce = lambda d, t_: k.p.ins(f's_and_b32 {sr(d)}, {sr(swg)}, 1\ns_lshl_b32 {sr(d)}, {sr(d)}, 10\ns_add_u32 {sr(d)}, {sr(d)}, 384')
                touch_strip(k, pre[name], 2048, swg, sw, vl, ce, [0], nrows, False, row0, flags)
            elif split == 'lin':
                ld = 2048 if name in ('wo', 'wd', 'h') else 7168
                touch_lin(k, pre[name], swg, sw, vl, nw, row0 * ld, nrows * ld, flags)
            elif name in ('wo', 'wd'):
                touch_cols(k, pre[name], 2048, swg, sw, vl, nw, 1, 8, [0], nrows, split, flags, row0)
            else:
                touch_cols(k, pre[name], 7168, swg, sw, vl, nw, 3, 7, [0], nrows, False, flags, row0)
    return f
```

```python
from sched import *

class Core:
    def __init__(self, p, sc, NS, WM, wbuf, R, lead, abuf, DAS, accr, wrd, ard=None, rpat=None, zig=True, bmargin=8, extra=None, swap=(), KG=2, name='g'):
        self.p, self.sc, self.NS, self.WM, self.name = p, sc, NS, WM, name
        self.wbuf, self.R, self.lead, self.abuf, self.DAS = wbuf, R, lead, abuf, DAS
        if not callable(ard): ard = (lambda k_, v=ard: v)
        self.accr, self.wrd, self.ard, self.rpat, self.zig, self.bmargin = accr, wrd, ard, rpat, zig, bmargin
        self.touched = set()
        self.extra = extra or {}
        self.NA = WM + (1 if extra else 0)
        self.swap = swap; self.KG = KG
        self.base = len(sc.mf)
        self.rq = []; self.bar2 = {}; self.rtime = None
    def abf(self, s, j, m): return self.abuf + (((s % self.DAS) * self.KG + j) * self.NA + m) * 4
    def wbf(self, i): return self.wbuf + (i % self.R) * 4
    def atag(self, s, j, m): return ('A', self.name, s, j, m)
    def build(self, groups, wait_w=True, wait_a=True, wg=1, ins=None, fine0=False):
        p, sc = self.p, self.sc
        self.groups = groups
        self.gpos = []; self.gend = []
        self.afirst = {}; self.alast = {}; self.sfirst = {}; self.slast = {}; self.cdone = {}
        for g, (s, t) in enumerate(groups):
            if ins and g in ins: ins[g](len(sc.mf))
            pos = len(sc.mf); self.gpos.append(pos)
            ms = list(range(self.WM)) + self.extra.get(t, [])
            if self.zig and g % 2: ms = ms[::-1]
            for n_, m in enumerate(ms):
                for j in (range(self.KG) if (not self.zig or n_ % 2 == 0) else range(self.KG - 1, -1, -1)):
                    c = self.accr(t, m)
                    a, b = vr(self.wbf(self.KG * g + j), 4), vr(self.abf(s, j, m), 4)
                    if t in self.swap: a, b = b, a
                    self.afirst.setdefault((s, j, m), len(sc.mf)); self.alast[(s, j, m)] = len(sc.mf)
                    self.cdone[(t, m)] = len(sc.mf)
                    sc.mf.append(f'{MFMA} {vr(c,4)}, {a}, {b}, {vr(c,4) if c in self.touched else 0}')
                    self.touched.add(c)
            self.gend.append(len(sc.mf) - 1)
            self.sfirst.setdefault(s, pos); self.slast[s] = pos
        self.end = len(sc.mf)
        seen = set()
        self.wdl = []; self.await_ = {}
        for g, (s, t) in enumerate(groups):
            g0 = g - g % wg
            self.wdl.append(self.gpos[g0])
            if g % wg: continue
            gl = list(range(g, min(g + wg, len(groups))))
            lg = [('W', self.name, self.KG * gl[-1] + self.KG - 1, 1)] if wait_w else []
            vm = []
            for k_, f in self.afirst.items():
                if f <= self.gend[gl[-1]] and k_ not in seen:
                    seen.add(k_)
                    if fine0 and g == 0 and f > self.gpos[g]:
                        self.await_[k_] = f
                        sc.before(f, lambda k_=k_: p.wait(vm=[self.atag(*k_)]))
                        continue
                    self.await_[k_] = self.gpos[g]
                    if wait_a: (lg if self.ard(k_) else vm).append(self.atag(*k_))
            if lg or vm: sc.before(self.gpos[g], lambda lg=lg, vm=vm: p.wait(vm=vm or None, lg=lg or None))
    def barriers(self, dtag, have=(0,), alead=0, more=None):
        self.bar = {}; self.bars = []
        for s in sorted(self.sfirst, key=lambda s: self.sfirst[s]):
            if s in have: self.bar[s] = self.base - 1; continue
            b = max(self.sfirst[s] - max(self.lead, alead) - self.bmargin, self.base + 1)
            self.bar[s] = b
            self.addbar(b, vm=dtag(s), more=(lambda s=s: more(s)) if more else None)
    def addbar(self, b, vm=None, lg=None, more=None):
        def f():
            if more: more()
            if vm or lg: self.p.wait(vm=vm or None, lg=lg or None)
            self.p.ins('s_barrier')
        self.sc.before(b, f, 1 if b in self.gpos or not (vm or lg) else 2)
        self.bars.append(b)
    def nextbar(self, pos):
        return min(b for b in self.bars if b > pos)
    def free_after(self, o):
        return self.nextbar(max([self.slast[o]] + [v for k_, v in self.await_.items() if k_[0] == o and self.ard(k_)]))
    def slotfree(self, s):
        return self.base - 1 if s < self.NS else self.free_after(s - self.NS)
    def wreads(self):
        p, KG = self.p, self.KG
        for g, (s, t) in enumerate(self.groups):
            n = self.gend[g] - self.gpos[g] + 1
            rp = self.rpat or [k * n // (2 * KG) for k in range(2 * KG)]
            for j in range(KG):
                i = KG * g + j
                e = max(self.bar2.get((s, t), self.bar[s]), self.gend[(i - self.R) // KG] if i >= self.R else self.base - 1)
                for h in range(2):
                    def f(i=i, h=h, s=s, t=t, j=j):
                        areg, off = self.wrd(s, t, j, h)
                        assert 0 <= off < 65536
                        p.lg(f'ds_read_b64_tr_b16 {vr(self.wbf(i)+2*h,2)}, {vr(areg)} offset:{off}', ('W', self.name, i, h))
                    tt = self.gpos[g] - self.lead + rp[2 * j + h]
                    if self.rtime: tt = min(tt, self.rtime(2 * i + h))
                    self.rq.append((max(e, tt), self.wdl[g] if max(e, tt) >= 0 else 0, f))
    def flush_reads(self, st='w'):
        for e, d, f in sorted(self.rq, key=lambda x: (max(x[0], self.base - 1), x[1])):
            self.sc.add(st, e, d, f)
        self.rq = []

def lead_chunk(ts, n, P=4):
    if ts % P == 0:
        return ts if ts == 0 else (ts + P if ts + P < n else P)
    return (ts + P) % n
```

```python
import sys
sys.path.insert(0, 'gen3'); sys.path.insert(0, 'gen')
from core3 import *
import kernels as KO
from kernels import f32, lanemask, LOG2E, A_X, A_WQKV, A_WO, B_WG, B_WU, B_WD, IN_C, W_MOD, OUT, WS

M, DM, FF = 2048, 1024, 3584
WS_MODP, WS_ST, WS_UT, WS_H, WS_FL, WS_AUX, WS_O, WS_ACT, WS_Y, WS_XC = 0x0, 0x40000, 0x80000, 0x100000, 0x500000, 0x580000, 0x700000, 0x1300000, 0x2300000, 0x2800000
WS_SIZE = 0x3000000
WS_STAMP = 0x3000000
OOB = 0x40000000
FL_H, FL_O, FL_JOB, FL_Y, FL_UT, FL_AE, FL_AL, FL_XC = [WS_FL + 32768 * i for i in range(8)]
sX, sWQ, sWO, sWG, sWU, sWD, sWM, sOUT, sWS, sCC = [4 + 4 * i for i in range(10)]
sw = 44
sTok = 3
WS_SEED = WS_FL + 8 * 32768
KNAME = 'adaLN_cond__sliding_local_dilated__swiglu_ffn__prompt_kernel'
INF = 1 << 30
TL = False
LN2 = 0.6931471805599453

def A(n): return AOFF + n
def rb(d, s=None):
    s = d if s is None else s
    return f'v_cvt_pk_bf16_f32 {vr(d)}, {vr(s)}, {vr(s)}\nv_lshlrev_b32 {vr(d)}, 16, {vr(d)}'
def rb2(a, t):
    return f'v_cvt_pk_bf16_f32 {vr(t)}, {vr(a)}, {vr(a+1)}\nv_lshlrev_b32 {vr(a)}, 16, {vr(t)}\nv_and_b32 {vr(a+1)}, 0xffff0000, {vr(t)}'
def unpack(d, s):
    return f'v_lshlrev_b32 {vr(d)}, 16, {vr(s)}\nv_and_b32 {vr(d+1)}, 0xffff0000, {vr(s)}'
def pk(d, a): return f'v_cvt_pk_bf16_f32 {vr(d)}, {vr(a)}, {vr(a+1)}'
def smov64(s, m): return f's_mov_b32 {sr(s)}, 0x{m & 0xffffffff:08x}\ns_mov_b32 {sr(s+1)}, 0x{m >> 32:08x}'

class Pool:
    def __init__(self, regs): self.free_ = set(regs)
    def alloc(self, n=1, align=1):
        for a in sorted(self.free_):
            if a % align == 0 and all(a + i in self.free_ for i in range(n)):
                self.free_ -= set(range(a, a + n)); return a
        raise AssertionError('out of registers')
    def free(self, a, n=1):
        assert not (set(range(a, a + n)) & self.free_)
        self.free_ |= set(range(a, a + n))

def g3_orders(aux=(6, 9), leads=None):
    O = [{aux[0]: r, aux[1]: 8 + r} for r in range(8)]
    r = 0
    for s in sorted(leads or {}):
        for c in leads[s]:
            while s in O[r] or c in O[r].values(): r = (r + 1) % 8
            O[r][s] = c; r = (r + 1) % 8
    T = []
    for o in O:
        rest = [c for c in range(16) if c not in o.values()]
        T.append([o[s] if s in o else rest.pop(0) for s in range(16)])
    return T

class K3:
    def __init__(self, name, cfg):
        self.name, self.cfg = name, cfg
        self.p = Prog(); self.tn = []; self.nl = 0
        self.nthreads, self.nwg = 256, 256
    def T(self, nm):
        if not TL: return
        i = len(self.tn); self.tn.append(nm)
        self.p.ins(f's_memrealtime s[96:97]\ns_memtime s[98:99]\nv_accvgpr_write_b32 a253, v0\nv_accvgpr_read_b32 v0, a254\ns_waitcnt lgkmcnt(0)\nv_writelane_b32 v0, s96, {i}\nv_accvgpr_write_b32 a254, v0\n'
                   f'v_accvgpr_read_b32 v0, a255\ns_nop 0\nv_writelane_b32 v0, s98, {i}\nv_accvgpr_write_b32 a255, v0\nv_accvgpr_read_b32 v0, a253')
    def lab(self, s):
        self.nl += 1
        return f'{s}{self.nl}'
    def text(self): return '.p2align 12\n.p2align 8\n' + self.p.text().replace('  .p2align', '.p2align').replace('  ; HOPS', '; HOPS')
    def desc(self, minv=0): return kdesc(self.name, 512, 102, 256)
    def launch(self): return f'; @launch kernel={self.name} grid=(256,1,1) block=(256,1,1) lds=163840' if self.cfg.get('list', True) else '; @launch grid=(256,1,1) block=(256,1,1) lds=163840'

    def flag_off(self, d, region, wave=0):
        return f's_lshl_b32 {sr(d)}, s2, 7\ns_add_u32 {sr(d)}, {sr(d)}, {region}\ns_cmp_eq_u32 {sr(sw)}, {wave}\ns_cselect_b32 {sr(d)}, {sr(d)}, {OOB}'
    def flag_store(self, sd, v1):
        self.p.ins('s_mov_b64 exec, 1')
        self.p.vm(f'buffer_store_dword {vr(v1)}, v0, {sr(sWS,4)}, {sr(sd)} offen sc1')
        self.p.ins('s_mov_b64 exec, -1')
    def publish(self, nm, sd, v1, vm='all'):
        p = self.p
        self.T(nm + ':pre')
        p.ins(f'v_mov_b32 {vr(v1)}, {sr(sTok)}')
        p.wait(vm=vm, lg='all')
        p.ins('s_barrier')
        self.flag_store(sd, v1)
        self.T(nm + ':pub')
    def poll(self, nm, voff, region, vd, sc_, wave=0, pre=None, n=1, join=None):
        p = self.p
        L = self.lab('SM')
        self.T(nm + ':btw')
        p.ins(f's_cmp_lg_u32 {sr(sw)}, {wave}\ns_cbranch_scc1 {L}x\ns_mov_b32 {sr(sc_)}, 60000\ns_mov_b32 {sr(sc_+1)}, {region}')
        p.label(L)
        p.ins(f'buffer_load_dword{"x4" if n == 4 else ""} {vr(vd,n)}, {vr(voff)}, {sr(sWS,4)}, {sr(sc_+1)} offen sc1')
        p.ins(f's_sub_u32 {sr(sc_)}, {sr(sc_)}, 1\ns_cmp_eq_u32 {sr(sc_)}, 0\ns_waitcnt vmcnt(0)\ns_cbranch_scc1 {L}x')
        if n == 4: p.ins(f'v_and_b32 {vr(vd)}, {vr(vd)}, {vr(vd+1)}\nv_and_b32 {vr(vd+2)}, {vr(vd+2)}, {vr(vd+3)}\nv_and_b32 {vr(vd)}, {vr(vd)}, {vr(vd+2)}')
        p.ins(f'v_cmp_ne_u32 vcc, {sr(sTok)}, {vr(vd)}\ns_nop 4\ns_cbranch_vccnz {L}')
        p.label(L + 'x')
        if pre: pre()
        if join: p.label(join)
        p.ins('s_barrier')
        self.T(nm + ':rel')
    def check(self, voff, soff, vd, sc_, tag, n=1):
        p = self.p
        L = self.lab('CK')
        tst = ''
        if n == 4: tst = f'v_and_b32 {vr(vd)}, {vr(vd)}, {vr(vd+1)}\nv_and_b32 {vr(vd+2)}, {vr(vd+2)}, {vr(vd+3)}\nv_and_b32 {vr(vd)}, {vr(vd)}, {vr(vd+2)}\n'
        tst += f'v_cmp_ne_u32 vcc, {sr(sTok)}, {vr(vd)}\ns_nop 4'
        if self.cfg.get('ckm'): self.T(f'{tag}:a')
        p.wait(vm=[tag])
        if self.cfg.get('ckm'): self.T(f'{tag}:b')
        p.ins(tst + f'\ns_cbranch_vccnz {L}s')
        p.label(L + 'x')
        if self.cfg.get('ckm'): self.T(f'{tag}:c')
        self.cold.append(f'{L}s:\n  s_mov_b32 {sr(sc_)}, 60000\n{L}:\n  buffer_load_dword{"x4" if n == 4 else ""} {vr(vd,n)}, {vr(voff)}, {sr(sWS,4)}, {sr(soff)} offen sc1\n'
                         f'  s_sub_u32 {sr(sc_)}, {sr(sc_)}, 1\n  s_cmp_eq_u32 {sr(sc_)}, 0\n  s_waitcnt vmcnt(0)\n  s_cbranch_scc1 {L}x\n  ' + tst.replace('\n', '\n  ') + f'\n  s_cbranch_vccnz {L}\n  s_branch {L}x\n')
    def dcheck(self, nm, loads, test, vt_, sc_, op='v_cmp_eq_u32 vcc, -1'):
        p = self.p
        L = self.lab('CK')
        cmp_ = f'{op}, {vr(vt_)}\ns_nop 4'
        if self.cfg.get('ckm'): self.T(f'{nm}:b')
        p.ins(cmp_ + f'\ns_cbranch_vccnz {L}s')
        p.label(L + 'x')
        if self.cfg.get('ckm'): self.T(f'{nm}:c')
        body = loads + f'\ns_sub_u32 {sr(sc_)}, {sr(sc_)}, 1\ns_waitcnt vmcnt(0)\n' + test + f'\ns_cmp_eq_u32 {sr(sc_)}, 0\ns_cbranch_scc1 {L}x\n' + cmp_ + f'\ns_cbranch_vccnz {L}\ns_branch {L}x'
        self.cold.append(f'{L}s:\n  s_mov_b32 {sr(sc_)}, 30000\n{L}:\n  ' + body.replace('\n', '\n  ') + '\n')
    def hop(self, nm, lo, hi, waves):
        if not self.cfg.get('hop', True): return
        p = self.p
        p.ins(f'; HOPS {nm} {lo} {hi} {len(waves)}\ns_mov_b64 exec, 0')
        for c, w in enumerate(waves): p.ins(f's_cmp_eq_u32 {sr(sw)}, {w}\ns_cbranch_scc1 H{nm}{c}')
        p.label(f'R{nm}')
        p.ins('s_mov_b64 exec, -1')
    def ctouch_now(self, n, lead):
        if not self.cfg.get('ct', True): return []
        L = self.lab('CT')
        self.p.label(L)
        def f(i):
            self.p.ins(f's_add_u32 s94, s92, {L}-{self.name}+{lead + 4096 * i}\ns_addc_u32 s95, s93, 0')
            self.p.vm('global_load_dword a252, v0, s[94:95]')
        return [(lambda i=i: f(i)) for i in range(n)]
    def ctouch(self, sc, lo, hi, step, lead=3072):
        if not self.cfg.get('ct', True): return
        for pos in range(lo, hi, step):
            def f():
                L = self.lab('CT')
                self.p.label(L)
                self.p.ins(f's_add_u32 s94, s92, {L}-{self.name}+{lead}\ns_addc_u32 s95, s93, 0')
            o = sc.add('y', pos, INF, f, cost=2); o.wscc = True
            sc.add('y', pos, INF, VM(self.p, 'global_load_dword a252, v0, s[94:95]'))

def xa_setup(vxa, u, sxl, vl):
    t_ = f'v_and_b32 {vr(u)}, 15, {vr(vl)}\nv_lshrrev_b32 {vr(u+2)}, 1, {vr(u)}\nv_lshrrev_b32 {vr(u+1)}, 5, {vr(vl)}\nv_xor_b32 {vr(u+2)}, {vr(u+2)}, {vr(u+1)}\nv_lshlrev_b32 {vr(u+2)}, 4, {vr(u+2)}\nv_lshl_add_u32 {vr(u+2)}, {vr(u)}, 7, {vr(u+2)}\n'
    t_ += f'v_bfe_u32 {vr(u+1)}, {vr(vl)}, 4, 1\nv_lshl_add_u32 {vr(u+2)}, {vr(u+1)}, 3, {vr(u+2)}\nv_add_u32 {vr(vxa)}, {sr(sxl)}, {vr(u+2)}\n'
    return t_ + '\n'.join(f'v_xor_b32 {vr(vxa+t)}, {t<<5}, {vr(vxa)}' for t in range(1, 4))

def weave(p, code, ops, step, first=0):
    ops = list(ops); n = -first
    for c in code:
        for t in (c.split('\n') if isinstance(c, str) else [c]):
            p.ins(t) if isinstance(t, str) else t()
            n += 1
            if ops and n >= step and isinstance(t, str) and t.startswith('v_') and not t.startswith('v_mfma'):
                ops.pop(0)(); n = 0
    return ops

def build_k3(cfg):
    k = K3(KNAME, cfg); p = k.p
    k.cold = []
    stop = cfg.get('stop', 9)
    p.label(k.name)
    p.ins(f's_cmp_ge_u32 s2, 256\ns_cbranch_scc1 XEND')
    srds = ((sWS, WS, WS_SIZE), (sCC, IN_C, 2048), (sWM, W_MOD, 1024*6144*2), (sX, A_X, M*DM*2), (sWQ, A_WQKV, DM*3072*2), (sWO, A_WO, DM*DM*2),
            (sWG, B_WG, DM*FF*2), (sWU, B_WU, DM*FF*2), (sWD, B_WD, FF*DM*2), (sOUT, OUT, M*DM*2))
    if TL:
        p.ins('v_accvgpr_write_b32 a254, 0\nv_accvgpr_write_b32 a255, 0')
        k.T('start')
    for s_, slot, nb in srds: p.ins(f's_load_dwordx2 {sr(s_,2)}, s[0:1], {slot}')
    S = Pool(list(range(45, 92)) + [100, 101]); V = Regs('v', 10, 256)
    sfl = S.alloc(); spc = S.alloc(2, 2); s0 = S.alloc(); s1 = S.alloc()
    vl = V.alloc('lane'); vt = V.alloc('t', 8, 2)
    p.ins(f'v_lshrrev_b32 v1, 6, v0\nv_and_b32 {vr(vl)}, 63, v0\nv_readfirstlane_b32 {sr(sw)}, v1\nv_lshlrev_b32 v0, 4, {vr(vl)}')
    for s_, slot, nb in srds: p.ins(f's_mov_b32 {sr(s_+2)}, {nb}\ns_mov_b32 {sr(s_+3)}, 0x20000')
    def now(f, sep):
        if sep: p.ins('s_nop 0')
        f()

    SP = 150528
    EX, JL, XL, GL = SP, SP + 12288, 131072, 147456
    g1 = cfg['g1']
    NS1, SB1, WB1 = 7, 21504, 12288
    acc1 = V.alloc('acc1', 104, 4)
    vx, vf, vc, vs = acc1, acc1 + 16, acc1 + 48, acc1 + 80
    vov = V.alloc('lnov', 8, 4)
    assert vov == acc1 + 104
    vo = V.alloc('lno'); so = S.alloc(); sP = S.alloc(4, 4)
    jw = V.alloc('jw', 32, 4); js = V.alloc('js', 8); jad = V.alloc('jad', 3); Wv = V.alloc('Wv', 16, 4)
    ja, jc, ju, vsd = Wv, Wv + 8, Wv + 12, Wv + 15
    sjw = S.alloc(); sjo = S.alloc()
    p.ins(f's_and_b32 {sr(s0)}, s2, 3\ns_lshl2_add_u32 {sr(s0)}, {sr(s0)}, {sr(sw)}\ns_lshl_b32 {sr(s0)}, {sr(s0)}, 6')
    p.ins(f'v_and_b32 {vr(jad)}, 0x38, {vr(vl)}\nv_add_u32 {vr(jad)}, {sr(s0)}, {vr(jad)}\nv_lshlrev_b32 {vr(jad+1)}, 1, {vr(jad)}\nv_mul_u32_u24 {vr(jad)}, 12288, {vr(jad)}')
    p.ins(f'v_and_b32 {vr(vt)}, 7, {vr(vl)}\nv_lshl_add_u32 {vr(jad)}, {vr(vt)}, 4, {vr(jad)}\nv_mov_b32 {vr(jad+2)}, 0')
    p.ins(f's_lshr_b32 {sr(sjw)}, s2, 2\ns_lshl_b32 {sr(sjw)}, {sr(sjw)}, 7\ns_cmp_lt_u32 s2, 128\ns_cselect_b32 {sr(s1)}, {sr(sjw)}, {OOB}\ns_mov_b32 {sr(so)}, {WS_SEED}')
    p.ins(f'v_lshrrev_b32 {vr(vt+1)}, 3, {vr(vl)}\nv_lshlrev_b32 {vr(vo)}, 11, {vr(vt)}\nv_lshl_add_u32 {vr(vo)}, {vr(vt+1)}, 4, {vr(vo)}')
    p.ins(f's_lshl_b32 {sr(s0)}, s2, 5\ns_add_u32 {sr(s0)}, {sr(s0)}, {sr(sw)}\ns_lshl_b32 {sr(s0)}, {sr(s0)}, 9')
    p.ins('s_waitcnt lgkmcnt(0)')
    p.vm(f'buffer_load_dwordx4 {vr(jc,4)}, {vr(jad+1)}, {sr(sCC,4)}, 0 offen', 'jc')
    for i in range(8):
        p.vm(f'buffer_load_dwordx4 {vr(jw+4*i,4)}, {vr(jad)}, {sr(sWM,4)}, {sr(s1)} offen nt', ('mw', i))
        if i < 7: p.ins(f's_add_u32 {sr(s1)}, {sr(s1)}, 12288')
    p.vm(f'buffer_load_dword {vr(vsd)}, {vr(jad+2)}, {sr(sWS,4)}, {sr(so)} offen sc1', 'seed')
    p.ins(f's_mov_b32 {sr(so)}, {sr(s0)}')
    xld = [VM(p, f'buffer_load_dwordx4 {vr(vx+4*i,4)}, {vr(vo)}, {sr(sX,4)}, {sr(so)} offen offset:{128*i}', ('x', i)) for i in range(4)]
    p.ins('s_getpc_b64 s[92:93]')
    p.label('PC0')
    p.ins(f's_sub_u32 s92, s92, PC0-{k.name}\ns_subb_u32 s93, s93, 0')
    p.ins(f's_lshl_b32 {sr(s0)}, {sr(sw)}, 8\ns_add_u32 {sr(s0)}, {sr(s0)}, s2\ns_sub_u32 {sr(s0)}, {sr(s0)}, {3*256+128}\ns_lshr_b32 {sr(s0)}, {sr(s0)}, 3\ns_cmp_lt_u32 {sr(s0)}, (code_end-{k.name})/8192+1\ns_cbranch_scc0 F_ct')
    p.ins(f's_lshl_b32 {sr(s0)}, {sr(s0)}, 13\nv_lshl_add_u32 {vr(vt+7)}, v0, 3, {sr(s0)}\nglobal_load_dword a252, {vr(vt+7)}, s[92:93]')
    p.label('F_ct')
    stc = S.alloc(2)
    p.ins(f's_lshl_b32 {sr(s0)}, {sr(sw)}, 7\ns_and_b32 {sr(s1)}, s2, 127\ns_add_u32 {sr(s0)}, {sr(s0)}, {sr(s1)}\ns_cmp_lt_u32 s2, 128\ns_cselect_b32 {sr(s1)}, 512, 0\ns_add_u32 {sr(s0)}, {sr(s0)}, {sr(s1)}\ns_mov_b32 {sr(sP+3)}, 0x20000')
    p.ins(f's_cmp_ge_u32 {sr(s0)}, 768\ns_cselect_b64 {sr(sP,2)}, {sr(sWO,2)}, {sr(sWQ,2)}\ns_cselect_b32 {sr(sP+2)}, {sr(sWO+2)}, {sr(sWQ+2)}\ns_cselect_b32 {sr(s1)}, 768, 0\ns_sub_u32 {sr(s1)}, {sr(s0)}, {sr(s1)}\ns_lshl_b32 {sr(s1)}, {sr(s1)}, 13')
    p.ins(f's_cmp_lt_u32 {sr(s0)}, {128 * g1.get("tearly", 4)}\ns_cselect_b32 {sr(stc)}, {sr(s1)}, {OOB}\ns_cselect_b32 {sr(stc+1)}, {OOB}, {sr(s1)}')
    vtc = V.alloc('vtc')
    p.ins(f'v_lshlrev_b32 {vr(vtc)}, 3, v0')
    touch = [VM(p, f'buffer_load_dword a252, {vr(vtc)}, {sr(sP,4)}, {sr(stc+i)} offen') for i in range(2)]

    sm = S.alloc(); sn = S.alloc(); swm = S.alloc(); shd = S.alloc()
    sK = S.alloc(); sXc = S.alloc(); sWL = S.alloc(3); sC = S.alloc(4, 2)
    waddr = V.alloc('waddr', 6); vdma = V.alloc('vdma', 3); va = V.alloc('va'); vxh = V.alloc('vxh'); aaddr = V.alloc('aaddr', 3); xaddr = V.alloc('xaddr', 3)
    u = vt + 2
    p.ins(f's_and_b32 {sr(s0)}, s2, 7\ns_lshr_b32 {sr(s1)}, s2, 3')
    p.ins(f's_and_b32 {sr(sn)}, {sr(s0)}, 3\ns_lshl_b32 {sr(sn)}, {sr(sn)}, 2\ns_and_b32 {sr(sm)}, {sr(s1)}, 3\ns_add_u32 {sr(sn)}, {sr(sn)}, {sr(sm)}')
    p.ins(f's_lshr_b32 {sr(sm)}, {sr(s0)}, 2\ns_lshl_b32 {sr(sm)}, {sr(sm)}, 3\ns_lshr_b32 {sr(s1)}, {sr(s1)}, 2\ns_add_u32 {sr(sm)}, {sr(sm)}, {sr(s1)}')
    p.ins(f's_lshr_b32 {sr(swm)}, {sr(sw)}, 1\ns_and_b32 {sr(shd)}, {sr(sw)}, 1')
    p.ins(f's_mul_i32 {sr(sWL)}, {sr(sw)}, 3072\ns_lshl_b32 {sr(sWL+1)}, {sr(sw)}, 11\ns_lshl_b32 {sr(sWL+2)}, {sr(sw)}, 8')
    vswz = V.alloc('swz')
    p.ins(f'v_bfe_u32 {vr(u)}, {vr(vl)}, 4, 2\nv_bfe_u32 {vr(u+1)}, {vr(vl)}, 1, 2\nv_xor_b32 {vr(u)}, {vr(u)}, {vr(u+1)}\nv_lshlrev_b32 {vr(u)}, 5, {vr(u)}\nv_and_b32 {vr(u+1)}, 1, {vr(vl)}\nv_lshl_add_u32 {vr(vswz)}, {vr(u+1)}, 4, {vr(u)}')
    p.ins(f's_lshl_b32 {sr(s0)}, {sr(sn)}, 7\ns_mul_i32 {sr(s1)}, {sr(sw)}, {8*6144}\ns_add_u32 {sr(s0)}, {sr(s0)}, {sr(s1)}\nv_mul_u32_u24 {vr(u)}, 6144, {vr(vt+1)}\nv_add3_u32 {vr(vdma)}, {vr(u)}, {vr(vswz)}, {sr(s0)}')
    p.ins(f'v_add_u32 {vr(vdma+1)}, 1024, {vr(vdma)}\nv_add_u32 {vr(vdma+2)}, 2048, {vr(vdma)}')
    vrd = V.alloc('rd')
    p.ins(f'v_bfe_u32 {vr(u)}, {vr(vl)}, 3, 2\nv_lshlrev_b32 {vr(u)}, 5, {vr(u)}\nv_and_b32 {vr(u+1)}, 3, {vr(vl)}\nv_lshl_add_u32 {vr(vrd)}, {vr(u+1)}, 3, {vr(u)}')
    p.ins(f'v_bfe_u32 {vr(u)}, {vr(vl)}, 2, 3\nv_lshrrev_b32 {vr(u+1)}, 5, {vr(vl)}\nv_mul_u32_u24 {vr(u+1)}, 24, {vr(u+1)}\nv_add_lshl_u32 {vr(u)}, {vr(u)}, {vr(u+1)}, 7')
    p.ins(f's_lshl_b32 {sr(s0)}, {sr(shd)}, 1\ns_add_u32 {sr(s0)}, {sr(s0)}, {sr(swm)}\ns_lshl_b32 {sr(s0)}, {sr(s0)}, 5\nv_xor_b32 {vr(u+1)}, {sr(s0)}, {vr(vrd)}\nv_add_u32 {vr(waddr)}, {vr(u)}, {vr(u+1)}\nv_xor_b32 {vr(waddr+1)}, 32, {vr(waddr)}')
    for st in (1, 2):
        p.ins(f'v_add_u32 {vr(waddr+2*st)}, {st*3*SB1}, {vr(waddr)}\nv_add_u32 {vr(waddr+2*st+1)}, {st*3*SB1}, {vr(waddr+1)}')
    p.ins(f's_lshl_b32 {sr(s0)}, {sr(sm)}, 2\ns_add_u32 {sr(s1)}, {sr(s0)}, {sr(sw)}\ns_lshl_b32 {sr(s1)}, {sr(s1)}, 16\ns_add_u32 {sr(s1)}, {sr(s1)}, {WS_H}\nv_add_u32 {vr(va)}, {sr(s1)}, v0')
    p.ins(f's_max_u32 {sr(s0)}, {sr(s0)}, 1\ns_lshl_b32 {sr(s0)}, {sr(s0)}, 16\ns_add_u32 {sr(s0)}, {sr(s0)}, {WS_H - 65536 + 1024}\ns_add_u32 {sr(s0)}, {sr(s0)}, {sr(sWL+2)}\nv_lshl_add_u32 {vr(vxh)}, {vr(vl)}, 2, {sr(s0)}')
    p.ins(f's_lshl_b32 {sr(s0)}, {sr(swm)}, 12')
    for st in range(3):
        p.ins(f'v_add_u32 {vr(xaddr+st)}, {st*3*SB1}, v0\nv_add_u32 {vr(aaddr+st)}, {sr(s0)}, {vr(xaddr+st)}')
    vph = V.alloc('pollh')
    p.ins(f's_lshl_b32 {sr(s0)}, {sr(sm)}, 4\ns_sub_u32 {sr(s0)}, {sr(s0)}, 2\nv_min_u32 {vr(vph)}, 17, {vr(vl)}\nv_add_u32 {vr(vph)}, {sr(s0)}, {vr(vph)}\nv_max_i32 {vr(vph)}, 0, {vr(vph)}\nv_lshlrev_b32 {vr(vph)}, 7, {vr(vph)}')
    slot1 = lambda s: (s + 3) % NS1
    def dma1(s, n, E, EV):
        base = slot1(s) * SB1
        if n == 0: E(f's_mov_b32 {sr(sK)}, {s*32*6144}\ns_add_u32 m0, {sr(sWL)}, {base}')
        if n == 3: E(f's_mov_b32 {sr(sXc)}, {s*2048}\ns_add_u32 m0, {sr(sWL+1)}, {base + WB1}')
        if n == 5: E(f's_add_u32 m0, {sr(sWL+2)}, {base + SB1 - 1024}')
        if n < 3: t_ = f'buffer_load_dwordx4 {vr(vdma+n)}, {sr(sWQ,4)}, {sr(sK)} offen offset:{1024*n} lds'
        elif n < 5: t_ = f'buffer_load_dwordx4 {vr(va)}, {sr(sWS,4)}, {sr(sXc)} offen offset:{1024*(n-3)} sc1 lds'
        else: t_ = f'buffer_load_dword {vr(vxh)}, {sr(sWS,4)}, {sr(sXc)} offen sc1 lds'
        EV(VM(p, t_, ('D1', s, n)), n in (0, 3, 5))
    npre = 6; npw = g1.get('npw', 5); wln = g1.get('wln', 2)
    wops = [(lambda s=s, n=n: dma1(s, n, p.ins, now)) for s in range(npw) for n in range(3)]
    p.ins(f'v_lshlrev_b32 {vr(vt+6)}, 5, {vr(vt)}\nv_lshrrev_b32 {vr(vt+7)}, 4, {vr(vl)}\nv_lshl_add_u32 {vr(vt+6)}, {vr(vt+7)}, 3, {vr(vt+6)}\ns_add_u32 {sr(s0)}, {sr(sWL+2)}, {JL}\nv_add_u32 {vr(jad+1)}, {sr(s0)}, {vr(vt+6)}\nv_lshlrev_b32 {vr(jad+2)}, 2, {vr(vl)}')
    p.ins(f's_and_b32 {sr(s1)}, s2, 3\ns_mul_i32 {sr(sjo)}, {sr(s1)}, 24576\ns_lshl1_add_u32 {sr(sjo)}, {sr(sjw)}, {sr(sjo)}\ns_add_u32 {sr(sjw)}, {sr(sjw)}, 4096')
    k.T('f:setup')
    def gemv(tag, ja, ju, mid={}):
        C = []
        for i in range(8):
            if tag: C.append(WT(p, vm=[(tag, i)]))
            C += mid.get(i, [])
            for d in range(4):
                C.append(unpack(ju + 2 * (d & 1), jw + 4 * i + d))
                if d & 1:
                    for x in (0, 2):
                        if i == 0: C.append(f'v_pk_mul_f32 {vr(ja+2*(d-1)+x,2)}, {vr(ju+x,2)}, {vr(js,2)} op_sel_hi:[1,0]')
                        else: C.append(f'v_pk_fma_f32 {vr(ja+2*(d-1)+x,2)}, {vr(ju+x,2)}, {vr(js+(i&~1),2)}, {vr(ja+2*(d-1)+x,2)} op_sel:[0,{i&1},0] op_sel_hi:[1,{i&1},1]')
        C.append('s_nop 0')
        C += [f'v_permlane32_swap_b32 {vr(ja+i)}, {vr(ja+i+4)}' for i in range(4)]
        C += [f'v_add_f32 {vr(ja+i)}, {vr(ja+i)}, {vr(ja+i+4)}' for i in range(4)]
        C.append('s_nop 0')
        C += [f'v_permlane16_swap_b32 {vr(ja+i)}, {vr(ja+i+2)}' for i in range(2)]
        C += [f'v_add_f32 {vr(ja+i)}, {vr(ja+i)}, {vr(ja+i+2)}' for i in range(2)]
        C.append(f'v_add_u32 {vr(ju)}, {JL}, {vr(jad+2)}')
        C += [f'v_add_f32_dpp {vr(ja+i)}, {vr(ja+i)}, {vr(ja+i)} row_ror:8 row_mask:0xf bank_mask:0xf' for i in range(2)]
        C.append(LG(p, f'ds_write_b64 {vr(jad+1)}, {vr(ja,2)}'))
        return C
    assert js % 2 == 0
    p.wait(vm=['jc'])
    k.T('f:c')
    for i in range(4): p.ins(unpack(js + 2 * i, jc + i))
    for op in ('mul', 'exp', 'add', 'rcp', 'fin'):
        for i in range(8):
            p.ins({'mul': f'v_mul_f32 {vr(ja+i)}, {f32(-LOG2E)}, {vr(js+i)}', 'exp': f'v_exp_f32 {vr(ja+i)}, {vr(ja+i)}', 'add': f'v_add_f32 {vr(ja+i)}, 1.0, {vr(ja+i)}',
                   'rcp': f'v_rcp_f32 {vr(ja+i)}, {vr(ja+i)}', 'fin': f'v_mul_f32 {vr(js+i)}, {vr(js+i)}, {vr(ja+i)}'}[op])
    for i in range(0, 8, 2): p.ins(rb2(js + i, ju))
    weave(p, gemv('mw', ja, jc, {g1.get('xpos', 4): xld + touch[:1]}), [], 1)
    p.wait(vm=['seed'])
    p.ins(f'v_readfirstlane_b32 {sr(sTok)}, {vr(vsd)}\nv_and_b32 {vr(ja+4)}, 3, {vr(vl)}\nv_lshlrev_b32 {vr(ja+4)}, 3, {vr(ja+4)}\ns_lshl_b32 {sr(s0)}, {sr(sw)}, 7\ns_add_u32 {sr(s0)}, {sr(s0)}, s2\ns_cmp_lt_u32 {sr(s0)}, 128\ns_cselect_b32 {sr(s0)}, {sr(sjo)}, {OOB}')
    p.ins(f's_mul_i32 {sr(sTok)}, {sr(sTok)}, 0x9e3779b1\ns_add_u32 {sr(sTok)}, {sr(sTok)}, 0x7f4a7c15\ns_add_u32 {sr(sjo)}, {sr(sjo)}, 8192')
    p.wait(lg='all')
    k.T('f:acc')
    p.ins('s_barrier')
    for i in range(4): p.lg(f'ds_read_b32 {vr(ja+i)}, {vr(jc)} offset:{256*i}', 'jr0')
    p.ins(f'v_bfe_u32 {vr(ja+4)}, {sr(sTok)}, {vr(ja+4)}, 8\nv_mov_b32 {vr(ja+5)}, 0xffffff00')
    p.wait(lg=['jr0'])
    p.ins(f'v_add_f32 {vr(ja)}, {vr(ja)}, {vr(ja+1)}\nv_add_f32 {vr(ja+2)}, {vr(ja+2)}, {vr(ja+3)}\nv_add_f32 {vr(ja)}, {vr(ja)}, {vr(ja+2)}\nv_add_u32 {vr(ja)}, 0x80, {vr(ja)}\nv_and_or_b32 {vr(ja)}, {vr(ja)}, {vr(ja+5)}, {vr(ja+4)}')
    p.vm(f'buffer_store_dword {vr(ja)}, {vr(jad+2)}, {sr(sWS,4)}, {sr(s0)} offen sc1')
    k.T('f:part')
    p.ins('s_branch AL\n.p2align 12')
    p.label('AL')
    vpw, vpr, vsw, vsr = vt + 2, vt + 3, vt + 4, vt + 5
    p.ins(f's_add_u32 {sr(s0)}, {sr(sWL+1)}, {SP}\nv_add_u32 {vr(vpw)}, {sr(s0)}, v0\nv_lshl_add_u32 {vr(vpr)}, {vr(vt+1)}, 5, {sr(s0)}')
    p.ins(f'v_lshlrev_b32 {vr(vsr)}, 5, {vr(vt)}\nv_add_u32 {vr(vsr)}, {SP+8192}, {vr(vsr)}\ns_lshl_b32 {sr(s0)}, {sr(sw)}, 3\nv_add_u32 {vr(vsw)}, {sr(s0)}, {vr(vsr)}')
    p.ins(f'v_bfe_u32 {vr(vt+6)}, {vr(vl)}, 3, 1\nv_lshlrev_b32 {vr(vo)}, 9, {vr(vt+6)}\nv_bfe_u32 {vr(vt+6)}, {vr(vl)}, 4, 1\nv_lshl_add_u32 {vr(vo)}, {vr(vt+6)}, 8, {vr(vo)}')
    p.ins(f'v_lshrrev_b32 {vr(vt+6)}, 5, {vr(vl)}\nv_lshl_add_u32 {vr(vo)}, {vr(vt+6)}, 11, {vr(vo)}\nv_lshl_add_u32 {vr(vo)}, {vr(vt)}, 4, {vr(vo)}')
    p.ins(f's_lshr_b32 {sr(so)}, s2, 2\ns_lshl_b32 {sr(so)}, {sr(so)}, 16\ns_bfe_u32 {sr(s0)}, s2, 0x10001\ns_lshl_b32 {sr(s0)}, {sr(s0)}, 10\ns_add_u32 {sr(so)}, {sr(so)}, {sr(s0)}')
    p.ins(f's_and_b32 {sr(s0)}, s2, 1\ns_lshl_b32 {sr(s0)}, {sr(s0)}, 7\ns_add_u32 {sr(so)}, {sr(so)}, {sr(s0)}\ns_lshl_b32 {sr(s0)}, {sr(sw)}, 14\ns_add_u32 {sr(so)}, {sr(so)}, {sr(s0)}\ns_add_u32 {sr(so)}, {sr(so)}, {WS_H}')
    p.ins(k.flag_off(sfl, FL_H))
    smk = S.alloc(2)
    p.ins(f's_and_b32 {sr(s0)}, s2, 7\ns_bfe_u32 {sr(s1)}, s2, 0x20003\ns_lshl2_add_u32 {sr(s0)}, {sr(s0)}, {sr(s1)}\ns_lshr_b32 {sr(s1)}, s2, 5\ns_lshl3_add_u32 {sr(s0)}, {sr(s0)}, {sr(s1)}\ns_lshl1_add_u32 {sr(s0)}, {sr(s0)}, {sr(sw)}\ns_lshl_b32 {sr(s0)}, {sr(s0)}, 10\ns_add_u32 {sr(s0)}, {sr(s0)}, {WS_UT}')
    p.ins(f's_cmp_lt_u32 {sr(sw)}, 2\ns_cselect_b32 {sr(smk)}, {sr(s0)}, {OOB}\ns_cmp_eq_u32 {sr(sw)}, 2\ns_cselect_b32 {sr(smk+1)}, {sr(sjo)}, {OOB}')
    p.ins('\n'.join(f'v_mov_b32 {vr(ja+i)}, -1\ns_bfe_u32 {sr(sC+i)}, {sr(sTok)}, {hex(0x80000 + 8 * i)}' for i in range(4)))
    vh = ja + 4
    p.ins(f'v_and_b32 {vr(vh)}, 3, {vr(vl)}\nv_mul_u32_u24 {vr(vh)}, 96, {vr(vh)}\nv_and_b32 {vr(vh+1)}, 16, {vr(vl)}\nv_bfe_u32 {vr(vh+2)}, {vr(vl)}, 2, 2\nv_add3_u32 {vr(vh)}, {vr(vh)}, {vr(vh+1)}, {vr(vh+2)}\nv_lshlrev_b32 {vr(vh)}, 8, {vr(vh)}')
    q0 = vc
    for i in range(4):
        p.wait(vm=[('x', i)])
        for d in range(4): p.ins(unpack(vf + 8*i + 2*d, vx + 4*i + d))
        for d in range(4):
            r = vf + 8 * i + 2 * d; t_ = q0 + 4 * (d & 1)
            if i == 0 and d < 2: p.ins(f'v_pk_mul_f32 {vr(t_+2,2)}, {vr(r,2)}, {vr(r,2)}')
            else: p.ins(f'v_pk_fma_f32 {vr(t_+2,2)}, {vr(r,2)}, {vr(r,2)}, {vr(t_+2,2)}\nv_pk_add_f32 {vr(t_,2)}, {vr(r,2)}, {vr(r-4 if i == 0 else t_,2)}')
    a, b = vt + 6, vt + 7
    p.ins(f'v_pk_add_f32 {vr(q0,2)}, {vr(q0,2)}, {vr(q0+4,2)}\nv_pk_add_f32 {vr(q0+2,2)}, {vr(q0+2,2)}, {vr(q0+6,2)}\nv_add_f32 {vr(q0)}, {vr(q0)}, {vr(q0+1)}\nv_add_f32 {vr(q0+1)}, {vr(q0+2)}, {vr(q0+3)}\ns_nop 0')
    p.ins(f'v_add_f32_dpp {vr(a)}, {vr(q0)}, {vr(q0)} row_ror:8 row_mask:0xf bank_mask:0xf\nv_add_f32_dpp {vr(b)}, {vr(q0+1)}, {vr(q0+1)} row_ror:8 row_mask:0xf bank_mask:0xf')
    for st in (16, 32):
        p.ins(f'v_mov_b32 {vr(q0)}, {vr(a)}\nv_mov_b32 {vr(q0+1)}, {vr(b)}\ns_nop 0\nv_permlane{st}_swap_b32 {vr(a)}, {vr(q0)}\nv_permlane{st}_swap_b32 {vr(b)}, {vr(q0+1)}\nv_add_f32 {vr(a)}, {vr(a)}, {vr(q0)}\nv_add_f32 {vr(b)}, {vr(b)}, {vr(q0+1)}')
    p.lg(f'ds_write_b64 {vr(vsw)}, {vr(a,2)}')
    p.wait(lg='all')
    p.ins('s_barrier')
    for i in range(2): p.lg(f'ds_read_b128 {vr(vx+4*i,4)}, {vr(vsr)} offset:{16*i}')
    p.wait(lg='all')
    m_, v_ = a, b
    p.ins(f'v_pk_add_f32 {vr(vx,2)}, {vr(vx,2)}, {vr(vx+2,2)}\nv_pk_add_f32 {vr(vx+4,2)}, {vr(vx+4,2)}, {vr(vx+6,2)}\nv_pk_add_f32 {vr(vx,2)}, {vr(vx,2)}, {vr(vx+4,2)}')
    p.ins(f'v_mul_f32 {vr(m_)}, {f32(1/1024)}, {vr(vx)}\nv_mul_f32 {vr(v_)}, {f32(1/1024)}, {vr(vx+1)}\nv_fma_f32 {vr(v_)}, -{vr(m_)}, {vr(m_)}, {vr(v_)}\nv_max_f32 {vr(v_)}, 0, {vr(v_)}')
    p.ins(rb(v_) + f'\nv_add_f32 {vr(v_)}, {f32(1e-5)}, {vr(v_)}\n' + rb(v_) + f'\nv_sqrt_f32 {vr(v_)}, {vr(v_)}\n' + rb(m_) + '\n' + rb(v_))
    p.ins(f'v_rcp_f32 {vr(v_)}, {vr(v_)}\ns_lshl_b32 {sr(s1)}, {sr(sw)}, 10\nv_mul_f32 {vr(m_)}, -{vr(m_)}, {vr(v_)}')
    assert m_ % 2 == 0
    for i in range(0, 32, 2): p.ins(f'v_pk_fma_f32 {vr(vf+i,2)}, {vr(vf+i,2)}, {vr(m_,2)}, {vr(m_,2)} op_sel:[0,1,0] op_sel_hi:[1,1,0]')
    k.T('f:stat')
    if g1.get('hint', True):
        p.ins(f's_mov_b32 {sr(spc)}, 60000')
        p.label('SMh')
        p.ins(f'buffer_load_ubyte {vr(vh+1)}, {vr(vh)}, {sr(sWS,4)}, {sr(s1)} offen offset:252 sc1\ns_sub_u32 {sr(spc)}, {sr(spc)}, 1\ns_cmp_eq_u32 {sr(spc)}, 0\ns_waitcnt vmcnt(0)\ns_cbranch_scc1 SMhx\nv_cmp_ne_u32 vcc, {sr(sC+3)}, {vr(vh+1)}\ns_nop 4\ns_cbranch_vccnz SMh')
        p.label('SMhx')
        k.T('f:hint')
    pl = [f's_lshl_b32 {sr(s1)}, {sr(sw)}, 10']
    for q in range(4):
        pl += [f'buffer_load_dwordx4 {vr(vs+4*q,4)}, v0, {sr(sWS,4)}, {sr(s1)} offen sc1', f's_add_u32 {sr(s1)}, {sr(s1)}, 4096', f'buffer_load_dwordx4 {vr(vc+4*q,4)}, v0, {sr(sWS,4)}, {sr(s1)} offen sc1']
        if q < 3: pl.append(f's_add_u32 {sr(s1)}, {sr(s1)}, {24576-4096}')
    n_ = 0
    for t_ in pl[1:]:
        if t_.startswith('buffer'): p.vm(t_, ('part', n_)); n_ += 1
        else: p.ins(t_)
    p.vm(f'buffer_store_dwordx4 {vr(ja,4)}, v0, {sr(sWS,4)}, {sr(smk)} offen sc1')
    p.vm(f'buffer_store_dword {vr(ja)}, {vr(jad+2)}, {sr(sWS,4)}, {sr(smk+1)} offen sc1')
    if g1.get('tlate', 1) == 0: touch[1]()
    tst = []
    for n in range(8):
        r = (vs, vc)[n & 1] + 4 * (n >> 1)
        t_ = [f'v_xor_b32 {vr(r+i)}, {sr(sC+i)}, {vr(r+i)}' for i in range(4)]
        t_ += [f'v_or3_b32 {vr(vh)}, {vr(vh) if n else 0}, {vr(r)}, {vr(r+1)}', f'v_or3_b32 {vr(vh)}, {vr(vh)}, {vr(r+2)}, {vr(r+3)}']
        if n == 7: t_.append(f'v_and_b32 {vr(vh)}, 0xff, {vr(vh)}')
        p.wait(vm=[('part', n)])
        p.ins('\n'.join(t_)); tst += t_
    k.dcheck('pf', '\n'.join(pl), '\n'.join(tst), vh, spc, op='v_cmp_ne_u32 vcc, 0')
    k.T('f:got')
    S.free(smk, 2)
    q0 = vx
    for i in (0, 2, 4, 6): p.ins(f'v_pk_add_f32 {vr(vc+i,2)}, {vr(vc+i,2)}, {vr(vc+8+i,2)}\nv_pk_add_f32 {vr(vs+i,2)}, {vr(vs+i,2)}, {vr(vs+8+i,2)}')
    for i in (0, 2): p.ins(f'v_pk_add_f32 {vr(vc+i,2)}, {vr(vc+i,2)}, {vr(vc+4+i,2)}\nv_pk_add_f32 {vr(vs+i,2)}, {vr(vs+i,2)}, {vr(vs+4+i,2)}')
    for r in (vs, vs + 2): p.ins(rb2(r, q0))
    p.lg(f'ds_write_b128 {vr(vpw)}, {vr(vs,4)} offset:1024')
    for r in (vc, vc + 2): p.ins(rb2(r, q0) + f'\nv_pk_add_f32 {vr(r,2)}, {vr(r,2)}, 1.0 op_sel_hi:[1,0]\n' + rb2(r, q0))
    p.lg(f'ds_write_b128 {vr(vpw)}, {vr(vc,4)}')
    for i in range(4):
        for h in range(2):
            p.lg(f'ds_read_b128 {vr(vs+8*i+4*h,4)}, {vr(vpr)} offset:{1024+256*i+16*h}')
            p.lg(f'ds_read_b128 {vr(vc+8*i+4*h,4)}, {vr(vpr)} offset:{256*i+16*h}', ('ms', i))
    C = []
    for i in range(4):
        C.append(WT(p, lg=[('ms', i)]))
        for e in range(0, 8, 2): C.append(f'v_pk_fma_f32 {vr(vf+8*i+e,2)}, {vr(vf+8*i+e,2)}, {vr(vc+8*i+e,2)}, {vr(vs+8*i+e,2)}')
        for d in range(4): C.append(pk(vx + 4*i + d, vf + 8*i + 2*d))
        C.append(f's_nop 1\nv_permlane16_swap_b32 {vr(vx+4*i)}, {vr(vx+4*i+2)}\nv_permlane16_swap_b32 {vr(vx+4*i+1)}, {vr(vx+4*i+3)}')
        C.append(VM(p, f'buffer_store_dwordx4 {vr(vx+4*i,4)}, {vr(vo)}, {sr(sWS,4)}, {sr(so)} offen sc1', 'hs'))
        if i < 3: C.append(f's_add_u32 {sr(so)}, {sr(so)}, 4096')
    assert not weave(p, C, wops[:3 * wln], g1.get('wstep', 10), -8)
    if g1.get('tlate', 1) == 1: touch[1]()
    k.publish('h', sfl, vt, vm=['hs'])
    if g1.get('tlate', 1) == 2: touch[1]()
    S.free(stc, 2)
    if stop == 0: return finish(k)
    S.free(sP, 4)

    sc = Sched(p, g1.get('cap', 2))
    R1, DAS1 = g1.get('R', 8), 2
    abuf, wbuf = A(0), A(40)
    SEG = {0: 1, 1: 1, 2: 2, 3: 2, 4: 0, 5: 0}
    def wrd(s, t, j, h):
        st, sl = divmod(slot1(s), 3)
        return waddr + 2 * st + (t & 1), sl * SB1 + h * 6144 + SEG[t] * 1024
    accr = lambda t, m: acc1 + (t * 4 + m) * 4 if m < 4 else acc1 + 96 + 2 * t
    co = Core(p, sc, NS1, 4, wbuf, R1, g1.get('lead', 18), abuf, DAS1, accr, wrd, ard=True, extra={0: [4], 2: [4]}, swap=(2, 3), KG=1, name='g1')
    nst = 32
    co.build([(s, t) for s in range(nst) for t in range(6)], wg=g1.get('wg', 2))
    alead = g1.get('alead', 18)
    co.barriers(lambda s: [('D1', s, n) for n in range(6)], alead=alead)
    MS = 26
    for f in wops[3 * wln:]: f()
    k.hop('a', 'AL', 'G3S', (1, 2, 3))
    k.poll('h', vph, FL_H, vt, spc)
    n0 = g1.get('n0', 3)
    for s in range(n0):
        for n in range(3, 6): dma1(s, n, p.ins, now)
    p.wait(vm=[('D1', 0, 5)])
    p.ins('s_barrier')
    ev = []
    for s in range(n0, npre):
        for n in range(3 if s < npw else 0, 6): ev.append((0, s, n))
    sc.vgap = lambda i: g1.get('vgap', 3)
    sc.mcap = lambda i: g1.get('mcap', 2)
    dsl = [i * MS // 6 for i in range(6)]
    for s in range(npre, nst):
        for n in range(6): ev.append((max(co.slotfree(s), co.bar[s - npre + 1]) + 1 + dsl[n], s, n))
    for e, s, n in ev:
        dma1(s, n, lambda t_: sc.add('v', max(e - 3, 0), co.bar[s], t_), lambda f, sep: sc.add('v', e, co.bar[s], f, sep=sep))
    lastd = e
    co.wreads()
    for s in range(nst):
        st, sl = divmod(slot1(s), 3)
        for i, m in enumerate((0, 1, 2, 3, 4)):
            ar, off = (xaddr + st, sl * SB1 + SB1 - 1024) if m == 4 else (aaddr + st, sl * SB1 + WB1 + m * 1024)
            dl = co.await_[(s, 0, m)]
            e = max(co.bar[s], co.alast[(s - DAS1, 0, m)] if s >= DAS1 else -1, dl - alead + 1 + 2 * i)
            co.rq.append((e, dl, LG(p, f'ds_read_b128 {vr(co.abf(s,0,m),4)}, {vr(ar)} offset:{off}', co.atag(s, 0, m))))
    co.flush_reads()

    sx0, sx1 = s0, s1
    pos = [g1.get('fpos', 100)]
    def F(txt, d=INF, sep=False):
        o = sc.add('x', int(pos[0]), d, txt, sep=sep)
        pos[0] += (txt.count('\n') + 1 if isinstance(txt, str) else 1) * g1.get('fstep', 1.6)
        return o
    u = vt
    sm2 = S.alloc(); sn2 = S.alloc(); sorg = S.alloc(); sro = S.alloc(); sW4 = S.alloc(); soo = S.alloc(2); sk2 = so
    sy = S.alloc(); sst = S.alloc(); sax = S.alloc(); sor2 = S.alloc()
    vw2 = V.alloc('vw2', 4); vro = V.alloc('ro', 2); ea = V.alloc('ea', 5); vM = V.alloc('pm', 4)
    wa2 = V.alloc('wa2', 8); vxa = V.alloc('xa', 4); va2 = V.alloc('va2'); vgo = V.alloc('go', 3); vpo = V.alloc('po', 4)
    F(f's_lshr_b32 {sr(sx1)}, s2, 3\ns_and_b32 {sr(sorg)}, {sr(sx1)}, 7\ns_and_b32 {sr(sx0)}, s2, 1\ns_lshl1_add_u32 {sr(sn2)}, {sr(sorg)}, {sr(sx0)}')
    ob = cfg['g2'].get('ob', 1)
    F(f's_and_b32 {sr(sor2)}, {sr(sorg)}, {(1 << ob) - 1}\ns_lshl_b32 {sr(sor2)}, {sr(sor2)}, {3 - ob}')
    F(f's_bfe_u32 {sr(sm2)}, s2, 0x20001\ns_lshr_b32 {sr(sx1)}, s2, 6\ns_lshl2_add_u32 {sr(sm2)}, {sr(sm2)}, {sr(sx1)}\ns_lshl_b32 {sr(sW4)}, {sr(sw)}, 12')
    F(f's_lshl_b32 {sr(sx0)}, {sr(sn2)}, 7\ns_lshl_b32 {sr(sx1)}, {sr(sw)}, 16\ns_add_u32 {sr(sx0)}, {sr(sx0)}, {sr(sx1)}\nv_lshrrev_b32 {vr(u)}, 3, {vr(vl)}\nv_lshlrev_b32 {vr(u)}, 11, {vr(u)}\nv_add3_u32 {vr(vw2)}, {vr(u)}, {vr(vswz)}, {sr(sx0)}')
    for i in range(1, 4): F(f'v_add_u32 {vr(vw2+i)}, {i*(16384-1024)}, {vr(vw2)}')
    osu2 = F(f's_lshl_b32 {sr(sro)}, {sr(sm2)}, 18\ns_add_u32 {sr(sro)}, {sr(sro)}, {sr(sx0)}')
    F(f'v_and_b32 {vr(u+1)}, 7, {vr(vl)}\nv_lshrrev_b32 {vr(u+2)}, 4, {vr(vl)}\nv_xor_b32 {vr(u+1)}, {vr(u+1)}, {vr(u+2)}\nv_lshl_add_u32 {vr(vro)}, {vr(u+1)}, 4, {vr(u)}\nv_xor_b32 {vr(vro+1)}, 64, {vr(vro)}\nv_add_u32 {vr(vro+1)}, {16384-1024}, {vr(vro+1)}')
    F(f's_lshl_b32 {sr(sx0)}, {sr(sw)}, 10\ns_add_u32 {sr(sx0)}, {sr(sx0)}, {GL}\nv_add_u32 {vr(vgo+2)}, {sr(sx0)}, v0\nv_lshl_add_u32 {vr(vgo)}, {vr(u+2)}, 4, {sr(sx0)}\nv_and_b32 {vr(u)}, 1, {vr(vl)}\nv_lshlrev_b32 {vr(u)}, 8, {vr(u)}\nv_sub_u32 {vr(vgo+1)}, {vr(vgo)}, {vr(u)}')
    F(f's_lshl_b32 {sr(sx0)}, {sr(sn2)}, 7\nv_and_b32 {vr(u+1)}, 0xf0, v0\nv_lshl_add_u32 {vr(u+1)}, {vr(u+2)}, 12, {vr(u+1)}\ns_lshl1_add_u32 {sr(sx0)}, {sr(sx0)}, 8192\nv_add_u32 {vr(vpo+1)}, {sr(sx0)}, {vr(u+1)}')
    F(f'v_lshrrev_b32 {vr(u)}, 2, {vr(vl)}\nv_lshl_add_u32 {vr(wa2)}, {vr(u)}, 7, {vr(vrd)}')
    for t in range(1, 8): F(f'v_xor_b32 {vr(wa2+t)}, {((t & 3) << 5) + ((t >> 2) << 16)}, {vr(wa2)}')
    F(f's_add_u32 {sr(sx0)}, {sr(sW4)}, {XL}\n' + xa_setup(vxa, u, sx0, vl))
    F(f's_lshl2_add_u32 {sr(sx0)}, {sr(sm2)}, {sr(sw)}\ns_lshl_b32 {sr(sx1)}, {sr(sx0)}, 16\ns_add_u32 {sr(sx1)}, {sr(sx1)}, {WS_O}\nv_add_u32 {vr(va2)}, {sr(sx1)}, v0')
    F(f's_lshl4_add_u32 {sr(sst)}, {sr(sx0)}, {sr(sn2)}\ns_lshl_b32 {sr(sst)}, {sr(sst)}, 8\ns_add_u32 {sr(sst)}, {sr(sst)}, {WS_ST}')
    F(f's_lshr_b32 {sr(sy)}, {sr(sx0)}, 1\ns_lshl4_add_u32 {sr(sy)}, {sr(sy)}, {sr(sn2)}\ns_and_b32 {sr(sx1)}, {sr(sx0)}, 1\ns_lshl2_add_u32 {sr(sy)}, {sr(sy)}, {sr(sx1)}\ns_lshl_b32 {sr(sy)}, {sr(sy)}, 11\ns_add_u32 {sr(sy)}, {sr(sy)}, {WS_Y}')
    F(f's_lshl1_add_u32 {sr(sax)}, {sr(sx0)}, {sr(sn2)}\ns_lshl_b32 {sr(sax)}, {sr(sax)}, 11\ns_add_u32 {sr(sax)}, {sr(sax)}, {WS_AUX}\ns_and_b32 {sr(sx0)}, {sr(sx0)}, 7\ns_cselect_b32 {sr(sax)}, {OOB}, {sr(sax)}')
    F(f's_and_b32 {sr(sx0)}, {sr(sm2)}, 7\ns_lshl_b32 {sr(sx0)}, {sr(sx0)}, 5\ns_lshr_b32 {sr(sx1)}, {sr(sm2)}, 3\ns_lshl2_add_u32 {sr(sx0)}, {sr(sx1)}, {sr(sx0)}')
    F(f'v_and_b32 {vr(u)}, 3, {vr(vl)}\nv_bfe_u32 {vr(u+1)}, {vr(vl)}, 2, 2\nv_lshl_add_u32 {vr(u)}, {vr(u+1)}, 3, {vr(u)}\nv_add_lshl_u32 {vr(vpo+2)}, {vr(u)}, {sr(sx0)}, 7')
    F(f'v_add_u32 {vr(vpo+2)}, {FL_O-FL_H}, {vr(vpo+2)}\nv_and_b32 {vr(u)}, 3, {vr(vl)}\nv_lshl_add_u32 {vr(u)}, {vr(u+1)}, 6, {vr(u)}\ns_lshl_b32 {sr(sx0)}, {sr(sn2)}, 2\nv_add_lshl_u32 {vr(u)}, {vr(u)}, {sr(sx0)}, 7\nv_cmp_gt_u32 vcc, 16, {vr(vl)}\ns_nop 1\nv_cndmask_b32 {vr(vpo+2)}, {vr(u)}, {vr(vpo+2)}, vcc')
    F(f's_lshl_b32 {sr(sx0)}, {sr(swm)}, 3\ns_add_u32 {sr(sx0)}, {sr(sx0)}, {EX}\nv_add_u32 {vr(u)}, {sr(sx0)}, v0\nv_add_u32 {vr(ea)}, {sr(sWL+1)}, {vr(u)}\nv_xor_b32 {vr(ea+1)}, 8, {vr(ea)}')
    F(f's_lshl_b32 {sr(sx0)}, {sr(shd)}, 11\ns_add_u32 {sr(sx0)}, {sr(sx0)}, 8192\nv_add_u32 {vr(ea+2)}, {sr(sx0)}, {vr(u)}\ns_lshl_b32 {sr(sx0)}, {sr(swm)}, 13\nv_subrev_u32 {vr(ea+3)}, {sr(sx0)}, {vr(ea+2)}\nv_xor_b32 {vr(ea+4)}, 8, {vr(ea+3)}')
    assert EX % 16 == 0
    q_ = lambda l: l & 15
    gg = lambda l: l >> 4
    mpa = lanemask(lambda l: not (4 * gg(l) + (l & 1) <= q_(l))); mpb = lanemask(lambda l: not (4 * gg(l) + 2 + (l & 1) <= q_(l)))
    mO, mPa, mPb = S.alloc(2, 2), S.alloc(2, 2), S.alloc(2, 2)
    F(smov64(mO, lanemask(lambda l: l & 1)) + '\n' + smov64(mPa, mpa) + '\n' + smov64(mPb, mpb))
    F(f'v_mov_b32 {vr(u)}, 0xffff\nv_mov_b32 {vr(u+1)}, 0xffff0000\nv_cndmask_b32 {vr(u)}, {vr(u)}, {vr(u+1)}, {sr(mO,2)}\nv_cndmask_b32 {vr(vM)}, 0, {vr(u)}, {sr(mPa,2)}\nv_cndmask_b32 {vr(vM+1)}, 0, {vr(u)}, {sr(mPb,2)}')
    F(f'v_xor_b32 {vr(vM+2)}, {vr(vM)}, {vr(u)}\nv_xor_b32 {vr(vM+3)}, {vr(vM+1)}, {vr(u)}')
    F(f's_lshl1_add_u32 {sr(sx0)}, {sr(sm)}, {sr(swm)}\ns_lshl_b32 {sr(soo)}, {sr(sx0)}, 17\ns_lshl1_add_u32 {sr(sx0)}, {sr(sn)}, {sr(shd)}\ns_lshl_b32 {sr(sx0)}, {sr(sx0)}, 11')
    F(f's_add_u32 {sr(soo)}, {sr(soo)}, {sr(sx0)}\ns_add_u32 {sr(soo)}, {sr(soo)}, {WS_O}\ns_add_u32 {sr(soo+1)}, {sr(soo)}, 65536\ns_or_b32 {sr(sm)}, {sr(sm)}, {sr(swm)}')
    F(k.flag_off(sfl, FL_O))
    S.free(sn); S.free(shd)
    sm3 = S.alloc(); sn3 = S.alloc(); sT3 = S.alloc(2); sWL3 = S.alloc(); sAb = S.alloc()
    wa3, vd3, SB3, ldw = 1, 3, 28672, 7168
    F(f's_lshr_b32 {sr(sx1)}, s2, 3\ns_and_b32 {sr(sn3)}, {sr(sx1)}, 3\ns_lshr_b32 {sr(sm3)}, {sr(sx1)}, 2\ns_lshl1_add_u32 {sr(sx1)}, {sr(sn3)}, {sr(sm3)}\ns_and_b32 {sr(sx1)}, {sr(sx1)}, 7\ns_and_b32 {sr(sx0)}, s2, 7\ns_lshl2_add_u32 {sr(sn3)}, {sr(sx0)}, {sr(sn3)}')
    for r, T in enumerate(g3_orders(cfg['g3'].get('aux', (6, 9)), cfg['g3'].get('leads'))):
        lo, hi = (sum(c << (4 * i) for i, c in enumerate(T[8*h:8*h+8])) for h in range(2))
        F(f's_mov_b32 {sr(sT3)}, 0x{lo:x}\ns_mov_b32 {sr(sT3+1)}, 0x{hi:x}' if r == 0 else f's_cmp_eq_u32 {sr(sx1)}, {r}\ns_cselect_b32 {sr(sT3)}, 0x{lo:x}, {sr(sT3)}\ns_cselect_b32 {sr(sT3+1)}, 0x{hi:x}, {sr(sT3+1)}')
    F(f's_mul_i32 {sr(sWL3)}, {sr(sw)}, 7168\ns_lshl2_add_u32 {sr(sAb)}, {sr(sm3)}, {sr(sw)}\ns_lshl_b32 {sr(sAb)}, {sr(sAb)}, 17\ns_add_u32 {sr(sAb)}, {sr(sAb)}, {WS_Y}')
    F(f's_cmp_ge_u32 {sr(sw)}, 2\ns_cselect_b64 {sr(sWG,2)}, {sr(sWU,2)}, {sr(sWG,2)}')
    F(f'v_lshrrev_b32 {vr(u)}, 2, {vr(vl)}\nv_mul_u32_u24 {vr(u)}, 224, {vr(u)}\nv_and_b32 {vr(u+1)}, 3, {vr(vl)}\nv_lshl_add_u32 {vr(wa3)}, {vr(u+1)}, 3, {vr(u)}\nv_add_u32 {vr(wa3+1)}, {2*SB3}, {vr(wa3)}')
    F(f's_mul_i32 {sr(sx0)}, {sr(sn3)}, 224\ns_and_b32 {sr(sx1)}, {sr(sw)}, 1\ns_mul_i32 {sr(sx1)}, {sr(sx1)}, {32*ldw}\ns_add_u32 {sr(sx0)}, {sr(sx0)}, {sr(sx1)}\ns_and_b32 {sr(sx1)}, {sr(sn3)}, 1\ns_lshl_b32 {sr(sx1)}, {sr(sx1)}, 1')
    for i in range(7):
        F(f'v_add_u32 {vr(u)}, {64*i}, {vr(vl)}\nv_mul_u32_u24 {vr(u+1)}, 4682, {vr(u)}\nv_lshrrev_b32 {vr(u+1)}, 16, {vr(u+1)}\nv_mul_i32_i24 {vr(u+2)}, -14, {vr(u+1)}\nv_add3_u32 {vr(u)}, {vr(u)}, {vr(u+2)}, {sr(sx1)}')
        F(f'v_add_u32 {vr(u+2)}, -14, {vr(u)}\nv_min_u32 {vr(u)}, {vr(u)}, {vr(u+2)}\nv_mul_u32_u24 {vr(u+1)}, {ldw}, {vr(u+1)}\nv_lshl_add_u32 {vr(u)}, {vr(u)}, 4, {vr(u+1)}\nv_add_u32 {vr(vd3+i)}, {sr(sx0)}, {vr(u)}')
        F(f's_sub_u32 {sr(sx0)}, {sr(sx0)}, {1024 if i != 3 else -3072}')
    F(f's_and_b32 {sr(sx0)}, {sr(sm3)}, 1\ns_lshl_b32 {sr(sx0)}, {sr(sx0)}, 7\ns_and_b32 {sr(sx1)}, {sr(sm3)}, 6\ns_add_u32 {sr(sx0)}, {sr(sx0)}, {sr(sx1)}')
    F(f'v_bfe_u32 {vr(u)}, {vr(vl)}, 1, 4\nv_and_b32 {vr(u+1)}, 1, {vr(vl)}\nv_lshl_add_u32 {vr(u)}, {vr(u)}, 3, {vr(u+1)}\nv_add_lshl_u32 {vr(vpo+3)}, {vr(u)}, {sr(sx0)}, 7')
    F(f'v_add_u32 {vr(vpo+3)}, {FL_Y-FL_H}, {vr(vpo+3)}\nv_and_b32 {vr(u)}, 7, {vr(vl)}\nv_lshlrev_b32 {vr(u)}, 5, {vr(u)}\ns_and_b32 {sr(sx0)}, s2, 31\nv_add_lshl_u32 {vr(u)}, {vr(u)}, {sr(sx0)}, 7\nv_cmp_gt_u32 vcc, 32, {vr(vl)}\ns_nop 1\nv_cndmask_b32 {vr(vpo+3)}, {vr(u)}, {vr(vpo+3)}, vcc', d=co.end - 30)
    def wo_dma(pc, i, E, EV):
        if i == 0: E(f's_add_u32 {sr(sk2)}, {sr(sor2)}, {pc}\ns_and_b32 {sr(sk2)}, {sr(sk2)}, 7\ns_lshl_b32 {sr(sk2)}, {sr(sk2)}, 18\ns_add_u32 m0, {sr(sW4)}, {pc*16384}')
        EV(VM(p, f'buffer_load_dwordx4 {vr(vw2+i)}, {sr(sWO,4)}, {sr(sk2)} offen offset:{1024*i} lds', ('D2', pc, i)), i == 0)
    e = lastd + 4
    def wo_in_loop(lo, hi, e):
        for pc in range(lo, hi):
            e = max(e, co.free_after(25 + ((pc + 1) * 16384 - 1) // SB1) + 1)
            for i in range(4):
                wo_dma(pc, i, lambda t_: sc.add('v', e - 4, INF, t_), lambda f, sep: sc.add('v', e, INF, f, sep=sep)); e += 4
        return e
    npl0, npl = g1.get('npl0', 0), g1.get('npl', 0)
    sc.add('v', e - 6, INF, 's_nop 0', after=osu2)
    e = wo_in_loop(0, npl0, e)
    for i in range(8):
        sc.add('v', e, INF, VM(p, f'buffer_load_dwordx4 {vr(jw+4*i,4)}, {vr(jad)}, {sr(sWM,4)}, {sr(sjw)} offen nt', ('jw', i)))
        if i < 7: sc.add('v', e, INF, f's_add_u32 {sr(sjw)}, {sr(sjw)}, 12288')
        e += g1.get('jstep', 4)
    e = wo_in_loop(npl0, npl, e + g1.get('jgap', 80))
    assert e < co.end + 4
    sc.bias = dict(x=10000)
    k.ctouch(sc, g1.get('ct0', 40), lastd - 20, 270)
    kf = lambda m: accr(0, m) if m >= 0 else vov
    vd = lambda c, m: accr(2 + c, 0) + 2 * (m + 1)
    def cv(d, r): return pk(d, r) + '\n' + pk(d + 1, r + 2) if d != r + 2 else pk(d + 1, r + 2) + '\n' + pk(d, r)
    def X(e, txt): sc.add('x', e, INF, txt)
    hk, hv = accr(0, 4), accr(2, 4)
    e = co.cdone[(1, 0)] + 1
    X(e, cv(hk, hk) + '\n' + cv(kf(3), kf(3)) + '\n' + cv(kf(3) + 2, accr(1, 3)))
    X(e, LG(p, f'ds_write_b64 {vr(ea+2)}, {vr(hk,2)}'))
    X(e, LG(p, f'ds_write_b64 {vr(ea)}, {vr(kf(3),2)}'))
    X(e, LG(p, f'ds_write_b64 {vr(ea+1)}, {vr(kf(3)+2,2)}'))
    e = co.cdone[(2, 4)] + 2
    for m in range(4): X(e, cv(vd(0, m), accr(2, m)))
    X(e, cv(hv, hv))
    X(e, LG(p, f'ds_write_b64 {vr(ea)}, {vr(vd(0,3),2)} offset:1024'))
    X(e, LG(p, f'ds_write_b64 {vr(ea+2)}, {vr(hv,2)} offset:1024'))
    e = co.cdone[(3, 0)] + 3
    for m in range(4): X(e, cv(vd(1, m), accr(3, m)))
    X(e, LG(p, f'ds_write_b64 {vr(ea+1)}, {vr(vd(1,3),2)} offset:1024'))
    if TL:
        for s in g1.get('marks', (2, 6, 26)): sc.before(co.sfirst[s] + 1, lambda s=s: k.T(f'g1:s{s}'), 0)
    left = sc.run()
    k.T('g1:loopend')
    for st_, o in left: now(o.fn, o.sep)
    k.info = f'g1 over {sc.over} left {len(left)}'
    for m in (2, 1, 0): p.ins(cv(kf(m), kf(m)) + '\n' + cv(kf(m) + 2, accr(1, m)))
    p.wait(lg='all')
    p.ins('s_barrier')
    for c in range(2): p.lg(f'ds_read_b64 {vr(kf(-1)+2*c,2)}, {vr(ea+3+c)}', ('pk', c))
    for c in range(2): p.lg(f'ds_read_b64 {vr(vd(c,-1),2)}, {vr(ea+3+c)} offset:1024', ('pv', c))
    Q = lambda m: accr(4, m)
    Sv = lambda m, h: accr(5 if h else 1, m)
    P_ = lambda m: accr(1, m)
    O_ = lambda m, c: accr(4 if c else 0, m)
    C = []
    mF = sC
    C.append(f's_cmp_eq_u32 {sr(sm)}, 0\ns_cselect_b64 {sr(mF,2)}, {sr(mPa,2)}, 0\ns_cselect_b64 {sr(mF+2,2)}, {sr(mPb,2)}, 0')
    for m in (3, 2, 1, 0): C.append(cv(Q(m), Q(m)) + '\n' + cv(Q(m) + 2, accr(5, m)))
    C.append(f'v_mov_b32 {vr(vt)}, {f32(-1e9)}')
    for m in (3, 2, 1, 0):
        if m == 0: C.append(WT(p, lg=[('pk', 1)]))
        for h in (1, 0): C.append(f'{MFMA} {vr(Sv(m,h),4)}, {vr(kf(m-1+h),4)}, {vr(Q(m),4)}, 0')
    C.append('s_nop 1')
    SCL = (32 ** -0.5) * LOG2E
    def al(f):
        for m in (3, 2, 1, 0): C.append(f(m, Wv + 4 * m))
    al(lambda m, w: '\n'.join(f'v_cndmask_b32 {vr(w+i)}, {vr(Sv(m,i>>1)+2*(i&1))}, {vr(Sv(m,i>>1)+2*(i&1)+1)}, {sr(mO,2)}' for i in (2, 3, 0, 1)))
    al(lambda m, w: f'v_cndmask_b32 {vr(w)}, {vr(w+2)}, {vr(w)}, {sr(mPa,2)}\nv_cndmask_b32 {vr(w+1)}, {vr(w+3)}, {vr(w+1)}, {sr(mPb,2)}')
    al(lambda m, w: f'v_mul_f32 {vr(w)}, {f32(SCL)}, {vr(w)}\nv_mul_f32 {vr(w+1)}, {f32(SCL)}, {vr(w+1)}')
    C.append(f'v_cndmask_b32 {vr(Wv)}, {vr(Wv)}, {vr(vt)}, {sr(mF,2)}\nv_cndmask_b32 {vr(Wv+1)}, {vr(Wv+1)}, {vr(vt)}, {sr(mF+2,2)}')
    al(lambda m, w: f'v_max_f32 {vr(w+2)}, {vr(w)}, {vr(w+1)}')
    def xred(op):
        for st in (16, 32):
            al(lambda m, w: f'v_mov_b32 {vr(w+3)}, {vr(w+2)}')
            al(lambda m, w: f'v_permlane{st}_swap_b32 {vr(w+2)}, {vr(w+3)}')
            al(lambda m, w: f'{op} {vr(w+2)}, {vr(w+2)}, {vr(w+3)}')
    xred('v_max_f32')
    al(lambda m, w: f'v_sub_f32 {vr(w)}, {vr(w)}, {vr(w+2)}\nv_sub_f32 {vr(w+1)}, {vr(w+1)}, {vr(w+2)}')
    al(lambda m, w: f'v_exp_f32 {vr(w)}, {vr(w)}\nv_exp_f32 {vr(w+1)}, {vr(w+1)}')
    al(lambda m, w: f'v_add_f32 {vr(w+2)}, {vr(w)}, {vr(w+1)}')
    xred('v_add_f32')
    al(lambda m, w: f'v_rcp_f32 {vr(w+2)}, {vr(w+2)}')
    al(lambda m, w: f'v_mul_f32 {vr(w)}, {vr(w)}, {vr(w+2)}\nv_mul_f32 {vr(w+1)}, {vr(w+1)}, {vr(w+2)}')
    al(lambda m, w: f'v_cvt_pk_bf16_f32 {vr(w)}, {vr(w)}, {vr(w)}\nv_cvt_pk_bf16_f32 {vr(w+1)}, {vr(w+1)}, {vr(w+1)}')
    al(lambda m, w: '\n'.join(f'v_and_b32 {vr(P_(m)+i)}, {vr(vM+i)}, {vr(w+(i&1))}' for i in range(4)))
    wl = [(lambda pc=pc, i=i: wo_dma(pc, i, p.ins, now)) for pc in range(npl, 8) for i in range(4)]
    nat = g1.get('nat', 12)
    assert not weave(p, C, wl[:nat], g1.get('astep', 13), g1.get('afirst', 0))
    p.wait(lg='all')
    for m in (3, 2, 1, 0):
        for c in range(2): p.ins(f'{MFMA} {vr(O_(m,c),4)}, {vr(vd(c,m-1),4)}, {vr(P_(m),4)}, 0')
    p.ins(f's_cmp_eq_u32 {sr(swm)}, 1\ns_cselect_b64 vcc, -1, 0')
    for m in (3, 2, 1, 0):
        t_ = accr(5, m); w = Wv + 4 * m
        for i in range(4): p.ins(pk(t_ + i, O_(m, i >> 1) + 2 * (i & 1)))
        for i in range(4): p.ins(f'v_cndmask_b32 {vr(w+i)}, {vr(t_+i)}, {vr(t_+(i^2))}, vcc')
        p.vm(f'buffer_store_dwordx4 {vr(w,4)}, v0, {sr(sWS,4)}, {sr(soo+(m>>1))} offen offset:{1024*(m&1)} sc1')
    k.publish('o', sfl, vt)
    if stop == 1: return finish(k)
    def xd(m, q):
        if q == 0: p.ins(f's_add_u32 m0, {sr(sW4)}, {XL+2048*m}\n' + (f's_add_u32 {sr(s0)}, {sr(sro)}, 32768' if m else 's_nop 0'))
        p.vm(f'buffer_load_dwordx4 {vr(vro+q)}, {sr(sX,4)}, {sr(s0 if m else sro)} offen offset:{1024*q} lds', ('xd', m, q))
    def pgt():
        p.ins(f'v_lshrrev_b32 {vr(vt+2)}, 2, {vr(vl)}\nv_min_u32 {vr(vt+2)}, (XEND-G3S)/4096, {vr(vt+2)}\nv_and_b32 {vr(vt+3)}, 3, {vr(vl)}\nv_lshlrev_b32 {vr(vt+3)}, 7, {vr(vt+3)}\nv_lshl_add_u32 {vr(vt+2)}, {vr(vt+2)}, 12, {vr(vt+3)}')
        p.ins(f's_add_u32 s94, s92, AL-{k.name}+((G3S-AL+4095)/4096)*4096\ns_addc_u32 s95, s93, 0')
        p.vm(f'global_load_dword a252, {vr(vt+2)}, s[94:95]')
    wl = k.ctouch_now(g1.get('ctn', 3), 1536) + ([pgt] if cfg.get('hop', True) else []) + wl[nat:] + [(lambda m=m, q=q: xd(m, q)) for m in range(2) for q in range(2)]
    C = gemv(None, acc1, acc1 + 8)
    for f in weave(p, C[:-1], wl, g1.get('sstep', 5), -5): f()
    C[-1]()
    p.ins(k.flag_off(sfl, FL_Y))
    def jobfin(mid):
        p.wait(lg='all')
        p.ins('s_barrier')
        for i in range(4): p.lg(f'ds_read_b32 {vr(Wv+i)}, {vr(acc1+8)} offset:{256*i}', 'jr')
        p.ins(f's_cmp_eq_u32 {sr(sw)}, 1\ns_cselect_b32 {sr(s0)}, {sr(sjo)}, {OOB}')
        p.wait(lg=['jr'])
        p.ins(f'v_add_f32 {vr(Wv)}, {vr(Wv)}, {vr(Wv+1)}\nv_add_f32 {vr(Wv+2)}, {vr(Wv+2)}, {vr(Wv+3)}\nv_add_f32 {vr(Wv)}, {vr(Wv)}, {vr(Wv+2)}')
        p.vm(f'buffer_store_dword {vr(Wv)}, {vr(jad+2)}, {sr(sWS,4)}, {sr(s0)} offen sc1')
        S.free(sjo)
        mid()
    for r_, n_ in ((sm, 1), (swm, 1), (sK, 1), (sXc, 1), (sWL, 3), (sC, 4), (sjw, 1), (soo, 2), (so, 1), (mO, 2), (mPa, 2), (mPb, 2)): S.free(r_, n_)
    env = dict(locals())
    import k3b
    return k3b.rest(k, env)

def finish(k):
    p = k.p
    if TL:
        k.T('preend')
        p.ins('s_waitcnt vmcnt(0) lgkmcnt(0)')
        k.T('end')
        p.ins(f's_load_dwordx2 s[96:97], s[0:1], 88\nv_lshrrev_b32 v1, 2, v0\ns_lshl_b32 s98, s2, 12\ns_lshl_b32 s99, {sr(sw)}, 9\ns_add_u32 s98, s98, s99\ns_add_u32 s98, s98, {WS_STAMP}\nv_add_u32 v1, s98, v1\ns_waitcnt lgkmcnt(0)')
        p.ins('global_store_dword v1, a254, s[96:97]\nglobal_store_dword v1, a255, s[96:97] offset:256')
    p.label('XEND')
    p.ins('s_endpgm')
    t0 = k.text
    k.text = lambda: t0() + ''.join(k.cold)
    return k
```

```python
from k3 import *
import k3

def rest(k, env):
    p, cfg = k.p, k.cfg
    stop = cfg.get('stop', 9)
    TL = k3.TL
    g = lambda n: env[n]
    S, vl, vt, s0, s1, sfl, spc, now = g('S'), g('vl'), g('vt'), g('s0'), g('s1'), g('sfl'), g('spc'), g('now')
    sm2, sn2, sorg, sro, sW4, sy, sst, sax = g('sm2'), g('sn2'), g('sorg'), g('sro'), g('sW4'), g('sy'), g('sst'), g('sax')
    wa2, vxa, va2, vgo, vpo = g('wa2'), g('vxa'), g('va2'), g('vgo'), g('vpo')
    sm3, sn3, sT3, sWL3, sAb, wa3, vd3, SB3, ldw = g('sm3'), g('sn3'), g('sT3'), g('sWL3'), g('sAb'), g('wa3'), g('vd3'), g('SB3'), g('ldw')
    g1, g2, g3, g4 = cfg['g1'], cfg['g2'], cfg['g3'], cfg['g4']
    ST1, GBA = A(232), A(248)

    V = Regs('v', 20, g('vw2'))
    acc = V.alloc('acc', 32, 4); vf = V.alloc('f', 32, 4); vg = V.alloc('g', 16, 4); vc = V.alloc('c', 16, 4); vx = V.alloc('x', 16, 4)
    vy = V.alloc('y', 24, 4); gp = V.alloc('gp', 16, 4)
    sA2 = S.alloc(); sy1 = S.alloc()
    u = vt
    sc = Sched(p, g2.get('cap', 2))
    DAS, R = g2.get('DAS', 5), g2.get('R', 36)
    assert 16 * DAS + 4 * R <= 232
    def wrd(s, t, j, h):
        st, off = divmod((2 * s + j) * 4096 + h * 2048, 65536)
        return wa2 + 4 * st + t, off
    accr = lambda t, m: acc + (t * 2 + m) * 4
    co = Core(p, sc, 16, 2, A(16 * DAS), R, g2.get('lead', 16), A(0), DAS, accr, wrd, ard=False, name='g2')
    co.build([(s, t) for s in range(16) for t in range(4)], wg=g2.get('wg', 1), fine0=True)
    co.barriers(None, have=range(16))
    NP = 2 * R - g2.get('rlate', 16)
    assert NP // 32 < g('npl') + g('nat') // 4
    co.rtime = lambda n: -1 if n < 2 * R else int((n - 2 * R) * 236 / (256 - 2 * R))
    co.wreads()
    g('jobfin')(lambda: [co.rq.pop(0)[2]() for _ in range(NP)])
    k.poll('o', vpo + 2, FL_H, u + 1, spc, pre=lambda: p.wait(vm=[('xd', 1, 1)]))
    a0 = g2.get('a0', 2); last = -2
    p.ins(f's_lshl_b32 {sr(sA2)}, {sr(g("sor2"))}, 13')
    for s in range(16):
        for i in (0, 2, 1, 3) if s == 0 else range(4):
            j, m = divmod(i, 2)
            if s < a0: e, d = -1, 0
            else:
                e = last = max(last + 2, co.alast[(s - DAS, j, m)] if s >= DAS else 0, (s - DAS + 1) * 16 + 4 * i + 1); d = co.await_[(s, j, m)]
            if i == 0 and s: sc.add('v', e - 1, d, f's_add_u32 {sr(sA2)}, {sr(sA2)}, 4096\ns_and_b32 {sr(sA2)}, {sr(sA2)}, 0xffff')
            sc.add('v', e, d, VM(p, f'buffer_load_dwordx4 {vr(co.abf(s,j,m),4)}, {vr(va2)}, {sr(sWS,4)}, {sr(sA2)} offen offset:{1024*i} sc1', co.atag(s, j, m)))
    co.flush_reads()
    for m in range(2):
        for t in range(4): sc.add('x', -1, 0, LG(p, f'ds_read_b64 {vr(vx+8*m+2*t,2)}, {vr(vxa+t)} offset:{2048*m}', 'xl'))
    sc.add('x', -1, 0, f'v_lshrrev_b32 {vr(u+1)}, 4, {vr(vl)}\nv_cmp_eq_u32 vcc, 2, {vr(u+1)}\ns_add_u32 {sr(sy1)}, {sr(sy)}, 4096\ns_nop 0\nv_cndmask_b32 {vr(u+1)}, 0, 1.0, vcc')
    sc.add('x', -1, 0, WT(p, lg=['xl']))
    for i in range(16): sc.add('x', -1, 0, unpack(vf + 2 * i, vx + i))
    pos = [g2.get('jf', 12)]
    def F(t_, d=INF): return sc.add('x', pos[0], d, t_)
    ld = [(f's_mov_b32 {sr(s1)}, {24576*q}', f'buffer_load_dwordx4 {vr(gp+4*q,4)}, {vr(vpo+1)}, {sr(sWS,4)}, {sr(s1)} offen sc1') for q in range(4)]
    for a_, b_ in ld: F(a_); F(VM(p, b_, 'gp'))
    pos[0] += g2.get('jl', 76)
    F(WT(p, vm=['gp']))
    tst = f'v_max_u32 {vr(u+3)}, {vr(gp)}, {vr(gp+1)}\n' + '\n'.join(f'v_max3_u32 {vr(u+3)}, {vr(u+3)}, {vr(gp+i)}, {vr(gp+i+1)}' for i in range(2, 16, 2))
    F(tst)
    o = F(lambda: k.dcheck('jf', '\n'.join(a_ + '\n' + b_ for a_, b_ in ld), tst, u + 3, spc), d=pos[0] + 20); o.cost = 4; o.wscc = True; o.kind = 'V'
    for i in range(8): F(f'v_add_f32 {vr(gp+i)}, {vr(gp+i)}, {vr(gp+8+i)}')
    for i in range(4): F(f'v_add_f32 {vr(gp+i)}, {vr(gp+i)}, {vr(gp+4+i)}')
    F(rb2(gp, gp + 4) + '\n' + rb2(gp + 2, gp + 5))
    for i in range(4): F(f'v_add_f32 {vr(gp+i)}, {vr(u+1)}, {vr(gp+i)}')
    F(rb2(gp, gp + 4) + '\n' + rb2(gp + 2, gp + 5))
    F(LG(p, f'ds_write_b128 {vr(vgo+2)}, {vr(gp,4)}'))
    for t in range(4):
        F(LG(p, f'ds_read_b128 {vr(vg+4*t,4)}, {vr(vgo)} offset:{64*t}'))
        F(LG(p, f'ds_read_b128 {vr(vc+4*t,4)}, {vr(vgo)} offset:{512+64*t}'))
    for t in range(4): F(LG(p, f'ds_read_b128 {vr(vx+4*t,4)}, {vr(vgo+1)} offset:{512+64*t}', 'ax'))
    for i in range(4): F(f'v_accvgpr_write_b32 {vr(GBA+i)}, {vr(gp+i)}')
    F(WT(p, lg=['ax']))
    for i in range(8): F(pk(vy + 16 + i, vx + 2 * i))
    for q in range(2): F(VM(p, f'buffer_store_dwordx4 {vr(vy+16+4*q,4)}, v0, {sr(sWS,4)}, {sr(sax)} offen offset:{1024*q} sc1'))
    sxo = S.alloc(4); so = S.alloc(3); sx = S.alloc(3); sK = S.alloc(); sAc = S.alloc(); sC = S.alloc(); sk4 = S.alloc()
    NS, AUX = 4, g3.get('aux', (6, 9))
    cx = lambda d, s: f's_bfe_u32 {sr(d)}, {sr(sT3 + s // 8)}, {hex(0x40000 + 4 * (s % 8))}'
    def dma3(s, i, E, EV):
        if i == 0: E(cx(sK, s) + f'\ns_mul_i32 {sr(sK)}, {sr(sK)}, {64*ldw}')
        if i % 4 == 0: E(f's_add_u32 m0, {sr(sWL3)}, {(s % NS) * SB3 + 1024 * i}')
        EV(VM(p, f'buffer_load_dwordx4 {vr(vd3+i)}, {sr(sWG,4)}, {sr(sK)} offen offset:{1024*(i%4)} lds', ('D3', s, i)), i % 4 == 0)
    d3pre = g2.get('d3', 1)
    if d3pre:
        db = co.sfirst[(d3pre * SB3 - 1) // 8192 + 1] + 2
        co.addbar(db)
        e = max(db, last) + 3
        for s in range(d3pre):
            for i in range(7):
                dma3(s, i, lambda t_: sc.add('v', e - 2, INF, t_), lambda f, sep: sc.add('v', e, INF, f, sep=sep)); e += g2.get('d3step', 4)
    sc.bias = dict(x=g2.get('bias', 0))
    sc.capf = lambda i: 3 if i >= g2.get('c3', 200) else 2
    if TL:
        for s in g2.get('marks', (1, 4, 10)): sc.before(co.sfirst[s] + 1, lambda s=s: k.T(f'g2:s{s}'), 0)
    left = sc.run()
    k.T('g2:loopend')
    k.info += f' | g2 over {sc.over} left {len(left)}'
    for st_, o in left: now(o.fn, o.sep)
    p.wait(lg='all')
    if len(left) < 4: p.ins('s_nop 2')
    for m in range(2):
        fm = vf + 16 * m; ym = vy + 8 * m
        for t in range(4):
            c = accr(t, m)
            for e in range(4): p.ins(f'v_fmac_f32 {vr(fm+4*t+e)}, {vr(vg+4*t+e)}, {vr(c+e)}')
            for e in range(4): p.ins(f'v_mul_f32 {vr(c+e)}, {vr(fm+4*t+e)}, {vr(vc+4*t+e)}')
            p.ins(pk(ym + 2 * t, c) + '\n' + pk(ym + 2 * t + 1, c + 2))
            if t % 2: p.vm(f'buffer_store_dwordx4 {vr(ym+2*t-2,4)}, v0, {sr(sWS,4)}, {sr(sy1 if t // 2 else sy)} offen offset:{1024*m} sc1')
    for m in range(2):
        fm = vf + 16 * m; vq = [acc + 2 * m, acc + 2 * m + 1, acc + 4 + 2 * m, acc + 5 + 2 * m]
        p.ins(f'v_add_f32 {vr(vq[0])}, {vr(fm)}, {vr(fm+1)}\nv_mul_f32 {vr(vq[1])}, {vr(fm)}, {vr(fm)}\nv_add_f32 {vr(vq[2])}, {vr(fm+2)}, {vr(fm+3)}\nv_mul_f32 {vr(vq[3])}, {vr(fm+1)}, {vr(fm+1)}')
        for i in range(2, 16):
            p.ins(f'v_fmac_f32 {vr(vq[1+2*(i&1)])}, {vr(fm+i)}, {vr(fm+i)}')
            if i >= 4: p.ins(f'v_add_f32 {vr(vq[2*(i&1)])}, {vr(vq[2*(i&1)])}, {vr(fm+i)}')
    for i in range(4): p.ins(f'v_add_f32 {vr(acc+i)}, {vr(acc+i)}, {vr(acc+4+i)}')
    for st in (16, 32):
        for i in range(4): p.ins(f'v_mov_b32 {vr(acc+4+i)}, {vr(acc+i)}')
        for i in range(4): p.ins(f'v_permlane{st}_swap_b32 {vr(acc+i)}, {vr(acc+4+i)}')
        for i in range(4): p.ins(f'v_add_f32 {vr(acc+i)}, {vr(acc+i)}, {vr(acc+4+i)}')
    p.ins('s_mov_b64 exec, 0xffff')
    p.vm(f'buffer_store_dwordx4 {vr(acc,4)}, v0, {sr(sWS,4)}, {sr(sst)} offen sc1')
    p.ins('s_mov_b64 exec, -1')
    for i in range(16): p.ins(pk(vx + i, vf + 2 * i))
    for i in range(16): p.ins(f'v_accvgpr_write_b32 {vr(ST1+i)}, {vr(vx+i)}')
    k.publish('y', sfl, u)
    if stop == 2: return finish(k)
    for r_ in (sA2, sy1, sy, sst, sax, g('sor2')): S.free(r_)

    nst, FS = 16, 3
    DAS, R = 4, g3.get('R', 12)
    abuf, wbuf = A(0), A(128); xw = A(176); xb = A(208); xacc = A(216)
    assert 128 + 4 * R <= 176
    UTL = 159744
    acc = 32; vs = 10; tm = 22
    accr = lambda t, m: acc + (t * 4 + m) * 4
    sc = Sched(p, 2)
    def wrd(s, t, j, h):
        st, sl = divmod(s % 4, 2)
        return wa3 + st, sl * SB3 + (t // 7) * 14336 + (32 * j + 16 * h) * 224 + (t % 7) * 32
    co = Core(p, sc, NS, 4, wbuf, R, g3.get('lead', 32), abuf, DAS, accr, wrd, ard=False, name='g3')
    order = [6, 0, 1, 2, 3, 4, 5]
    groups = [(s, t) for s in range(nst - FS) for t in range(14)] + [(s, t + 7 * sg) for t in order for s in range(nst - FS, nst) for sg in range(2)]
    xpos = {}
    def auxm(n):
        def f(pos):
            xpos[n] = pos
            for i in range(4):
                for j in range(2):
                    c = xacc + 4 * i
                    sc.mf.append(f'{MFMA} {vr(c,4)}, {vr(xw+8*i+4*j,4)}, {vr(xb+4*j,4)}, {vr(c,4) if (n or j) else 0}')
            sc.before(pos, lambda: p.wait(vm=[('xb', n, 1)], lg=[('xw', n)]))
        return f
    ipos = {}
    BI, WI = A(0), A(16)
    def injm(oi):
        def f(pos):
            ipos[oi] = pos
            for sg in range(2):
                for m in range(4):
                    c = accr(order[oi] + 7 * sg, m)
                    sc.mf.append(f'{MFMA} {vr(c,4)}, {vr(WI+8*(oi&1)+4*sg,4)}, {vr(BI+4*m,4)}, {vr(c,4)}')
            sc.before(pos, WT(p, lg=[('wi', oi)]))
        return f
    ins = {14 * s + (4, 2)[n]: auxm(n) for n, s in enumerate(AUX)}
    ins.update({14 * (nst - FS) + 2 * FS * oi + (4 if oi == 0 else 1): injm(oi) for oi in range(7)})
    co.build(groups, wg=g3.get('wg', 2), ins=ins, fine0=True)
    early = range(g3.get('early', 13), nst - FS + 1)
    co.barriers(lambda s: [('D3', s, 6)], have=[0] + list(early))
    for o in range(g3.get('bar0', 1), nst - FS + 1):
        co.addbar(co.sfirst[o] + 2, vm=[('D3', o + 1, 6)] if o + 1 in early else None)
        if o + 1 in early: co.bar[o + 1] = co.sfirst[o] + 2
    z = co.sfirst[nst - FS]
    def al3(s, i, E, EV):
        j, m = divmod(i, 4)
        if i == 0: E(cx(sAc, s) + f'\ns_lshl_b32 {sr(sAc)}, {sr(sAc)}, 13\ns_add_u32 {sr(sAc)}, {sr(sAc)}, {sr(sAb)}')
        if i == 4: E(f's_add_u32 {sr(sAc)}, {sr(sAc)}, 4096')
        EV(VM(p, f'buffer_load_dwordx4 {vr(co.abf(s,j,m),4)}, v0, {sr(sWS,4)}, {sr(sAc)} offen offset:{1024*m} sc1', co.atag(s, j, m)), False)
    npre = g3.get('npre', 2)
    for s in range(d3pre, npre):
        for i in range(7): dma3(s, i, p.ins, now)
    al3(0, 0, p.ins, lambda f, sep: None)
    p.ins(f's_lshl2_add_u32 {sr(s0)}, s2, {sr(sw)}\ns_cmp_eq_u32 {sr(s0)}, 1\ns_cbranch_scc1 CKSs')
    p.label('CKSx')
    sd_ = (f'CKSs:\ns_mov_b32 {sr(spc)}, 30000\nv_lshlrev_b32 {vr(u+2)}, 3, v0\nCKS:\n' + ''.join(f's_mov_b32 {sr(s0)}, {FL_H+8192*i}\nbuffer_load_dword {vr(u+4+i)}, {vr(u+2)}, {sr(sWS,4)}, {sr(s0)} offen sc1\n' for i in range(4))
           + f's_sub_u32 {sr(spc)}, {sr(spc)}, 1\ns_cmp_eq_u32 {sr(spc)}, 0\ns_waitcnt vmcnt(0)\ns_cbranch_scc1 CKSy\nv_xor_b32 {vr(u+3)}, {sr(sTok)}, {vr(u+4)}\n'
           + ''.join(f'v_bitop3_b32 {vr(u+3)}, {vr(u+3)}, {vr(u+4+i)}, {sr(sTok)} bitop3:0xf6\n' for i in range(1, 4))
           + f'v_cmp_ne_u32 vcc, 0, {vr(u+3)}\ns_nop 4\ns_cbranch_vccnz CKS\nCKSy:\ns_mov_b32 {sr(s0)}, {WS_SEED}\ns_mov_b64 exec, 1\nbuffer_store_dword {vr(u)}, v0, {sr(sWS,4)}, {sr(s0)} offen sc1\ns_mov_b64 exec, -1\ns_branch CKSx')
    k.cold.append('\n'.join(l if l.endswith(':') else '  ' + l for l in sd_.split('\n')) + '\n')
    k.hop('b', 'G3S', 'NONE', (1, 2, 3))
    p.label('G3S')
    k.poll('y', vpo + 3, FL_H, u + 1, spc, pre=lambda: p.wait(vm=[('D3', 0, 6)]))
    for i in range(8): al3(0, i, p.ins if i else (lambda t_: None), now)
    ev = []
    at = lambda x: co.sfirst[min(int(x), nst - FS)] + int((x % 1) * 112) if x >= 0 else 0
    c0, c1 = g3.get('catch', (6, 11))
    def warp(x, lag):
        return x + lag * min(1.0, max(0.0, (c1 - x) / (c1 - c0)))
    for s in range(1, nst):
        w = 1.0 if s < nst - 1 else 0.62
        if s >= npre:
            ev += [(max(co.slotfree(s) + 1 + i, at(warp(s - 3 + w * (i + 0.55) / 7.5, g3.get('dlag', 0.6)))), 'D', s, i, co.bar[s]) for i in range(7)]
        ev += [(at(warp(s - 3 + w * (i + 0.05) / 7.5, g3.get('alag', 1.2))), 'A', s, i, co.await_[(s,) + divmod(i, 4)]) for i in range(8)]
    ev.sort(key=lambda x: (x[0], x[4]))
    for kind in 'AD':
        L = [x[2:4] for x in ev if x[1] == kind]
        assert L == sorted(L), (kind, L)
    for e, kind, s, i, d in ev:
        (dma3 if kind == 'D' else al3)(s, i, lambda t_: sc.add('v', max(e - 4, 0), d, t_), lambda f, sep: sc.add('v', e, d, f, sep=sep))
    lastv = ev[-1][0]
    co.wreads(); co.flush_reads()
    pos = [40]
    def F(t_, d=INF): return sc.add('x', pos[0], d, t_)
    def U(t_, d=INF): return sc.add('u', pos[0], d, t_)
    vxa_ = tm + 9
    F(f's_lshr_b32 {sr(sx)}, {sr(sw)}, 1\ns_mul_i32 {sr(sx)}, {sr(sx)}, 14336\ns_and_b32 {sr(sx+1)}, {sr(sw)}, 1\ns_lshl_b32 {sr(sx+1)}, {sr(sx+1)}, 7\ns_add_u32 {sr(sx)}, {sr(sx)}, {sr(sx+1)}\nv_add_u32 {vr(vxa_)}, {sr(sx)}, {vr(wa3)}', d=200)
    U(cx(sC, AUX[0]) + f'\ns_lshl4_add_u32 {sr(sC)}, {sr(sm3)}, {sr(sC)}\ns_lshl_b32 {sr(sC)}, {sr(sC)}, 11\ns_add_u32 {sr(sC)}, {sr(sC)}, {WS_AUX}')
    def auxl(n):
        s = AUX[n]
        pos[0] = xpos[n] - 150
        dlt = (s % 4 - (AUX[0] % 4 if n else 0)) * SB3
        if dlt: F(f'v_add_u32 {vr(vxa_)}, {dlt}, {vr(vxa_)}')
        if n: U(f's_add_u32 {sr(sC)}, {sr(sC)}, 16384')
        for j in range(2): U(VM(p, f'buffer_load_dwordx4 {vr(xb+4*j,4)}, v0, {sr(sWS,4)}, {sr(sC)} offen offset:{1024*j} sc1', ('xb', n, j)), d=xpos[n] - 90)
        pos[0] = max(co.bar[s], xpos[n] - 60)
        for i in range(4):
            for j in range(2):
                for h in range(2):
                    off = (32 * j + 16 * h) * 224 + 32 * i
                    F(LG(p, f'ds_read_b64_tr_b16 {vr(xw+8*i+4*j+2*h,2)}, {vr(vxa_)} offset:{off}', ('xw', n)), d=xpos[n] - 8); pos[0] += 2
    F(f's_lshl_b32 {sr(sxo)}, s2, 15\ns_lshl1_add_u32 {sr(sxo)}, {sr(sW4)}, {sr(sxo)}\ns_xor_b32 {sr(sxo+2)}, {sr(sxo)}, 32768\ns_add_u32 {sr(sxo)}, {sr(sxo)}, {WS_XC}\ns_add_u32 {sr(sxo+1)}, {sr(sxo)}, 4096\ns_add_u32 {sr(sxo+2)}, {sr(sxo+2)}, {WS_XC}\ns_add_u32 {sr(sxo+3)}, {sr(sxo+2)}, 4096')
    auxl(0)
    pos[0] = xpos[0] + 10
    osx = F(f's_lshl2_add_u32 {sr(sx)}, {sr(sm3)}, {sr(sw)}\ns_lshl_b32 {sr(sx)}, {sr(sx)}, 13\ns_add_u32 {sr(sx)}, {sr(sx)}, {WS_ST}\ns_add_u32 {sr(sx+1)}, {sr(sx)}, 4096')
    for h in range(2):
        for q in range(4):
            F(VM(p, f'buffer_load_dwordx4 {vr(xw+16*h+4*q,4)}, v0, {sr(sWS,4)}, {sr(sx+h)} offen offset:{1024*q} sc1', 'st'), d=pos[0] + 30); pos[0] += 9
    pos[0] += 70
    F(WT(p, vm=['st']))
    for m in range(4):
        b = tm + 2 * (m & 1); o = vs + 3 * m
        if m % 2 == 0:
            for i in range(4): F(f'v_accvgpr_read_b32 {vr(tm+i)}, {vr(xw+8*m+i)}')
            for q in range(1, 4):
                for i in range(4): F(f'v_accvgpr_read_b32 {vr(tm+4+i)}, {vr(xw+8*m+4*q+i)}')
                for i in range(4): F(f'v_add_f32 {vr(tm+i)}, {vr(tm+i)}, {vr(tm+4+i)}')
            for st in (16, 32):
                for i in range(4): F(f'v_mov_b32 {vr(tm+4+i)}, {vr(tm+i)}')
                for i in range(4): F(f'v_permlane{st}_swap_b32 {vr(tm+i)}, {vr(tm+4+i)}')
                for i in range(4): F(f'v_add_f32 {vr(tm+i)}, {vr(tm+i)}, {vr(tm+4+i)}')
        F(f'v_mul_f32 {vr(b)}, {f32(1/1024)}, {vr(b)}\nv_mul_f32 {vr(b+1)}, {f32(1/1024)}, {vr(b+1)}\nv_fma_f32 {vr(b+1)}, -{vr(b)}, {vr(b)}, {vr(b+1)}\nv_max_f32 {vr(b+1)}, 0, {vr(b+1)}\n' + rb(b + 1))
        F(f'v_add_f32 {vr(b+1)}, {f32(1e-5)}, {vr(b+1)}\n' + rb(b + 1) + f'\nv_sqrt_f32 {vr(b+1)}, {vr(b+1)}\ns_nop 0\nv_cvt_pk_bf16_f32 {vr(o+2)}, -{vr(b)}, {vr(b+1)}\nv_and_b32 {vr(b+1)}, 0xffff0000, {vr(o+2)}')
        F(f'v_rcp_f32 {vr(o)}, {vr(b+1)}\nv_mul_f32 {vr(o+1)}, {vr(b+1)}, {vr(b+1)}\nv_mul_f32 {vr(o)}, {f32(-LOG2E)}, {vr(o)}')
    auxl(1)
    b = tm
    F(f'v_lshrrev_b32 {vr(b)}, 4, v0\nv_and_b32 {vr(b+1)}, 14, {vr(b)}\nv_lshlrev_b32 {vr(b+1)}, 27, {vr(b+1)}\nv_and_b32 {vr(b+2)}, 1, {vr(b)}\nv_lshl_add_u32 {vr(b+1)}, {vr(b+2)}, 9, {vr(b+1)}\nv_and_b32 {vr(b)}, 0x30, {vr(b)}\nv_add_u32 {vr(b)}, {vr(b)}, {vr(b+1)}')
    F(f's_lshl3_add_u32 {sr(sx)}, {sr(sn3)}, {sr(sm3)}\ns_lshr_b32 {sr(sx+1)}, {sr(sw)}, 1\ns_lshl1_add_u32 {sr(sx)}, {sr(sx)}, {sr(sx+1)}\ns_and_b32 {sr(sx+1)}, {sr(sw)}, 1\ns_lshl2_add_u32 {sr(sx)}, {sr(sx)}, {sr(sx+1)}\ns_lshl_b32 {sr(sx)}, {sr(sx)}, 8\ns_add_u32 {sr(sx)}, {sr(sx)}, {WS_UT}')
    pos[0] = xpos[1] + 8 + 8
    for i in range(4): F(VM(p, f'buffer_store_dwordx4 {vr(xacc+4*i,4)}, {vr(b)}, {sr(sWS,4)}, {sr(sx)} offen offset:{64*i} sc1', 'us'), d=pos[0] + 12 + 4 * i)
    ub = pos[0] + 30
    F(f's_lshl_b32 {sr(sx+1)}, {sr(sn3)}, 14\ns_lshl_b32 {sr(sx+2)}, {sr(sw)}, 9\ns_add_u32 {sr(sx+1)}, {sr(sx+1)}, {sr(sx+2)}\ns_add_u32 {sr(sx+1)}, {sr(sx+1)}, {WS_UT}')
    F(f's_lshr_b32 {sr(sx+2)}, {sr(sw)}, 1\ns_lshl_b32 {sr(sx+2)}, {sr(sx+2)}, 8\ns_and_b32 {sr(so)}, {sr(sw)}, 1\ns_add_u32 {sr(sx+2)}, {sr(sx+2)}, {sr(so)}\ns_lshl3_add_u32 {sr(sx+2)}, {sr(sx+2)}, {UTL}')
    F(f'v_and_b32 {vr(b+2)}, 0x1f0, v0\nv_min_u32 {vr(b+2)}, {27*16}, {vr(b+2)}\nv_and_b32 {vr(b+4)}, 0x200, v0\nv_lshl_add_u32 {vr(b+3)}, {vr(b+4)}, 4, {vr(b+2)}\nv_lshrrev_b32 {vr(b+4)}, 4, {vr(b+4)}\nv_lshl_add_u32 {vr(b+2)}, {vr(b+2)}, 2, {vr(b+4)}\nv_add_u32 {vr(b+2)}, {sr(sx+2)}, {vr(b+2)}')
    F(f's_lshl2_add_u32 {sr(so)}, {sr(sm3)}, {sr(sw)}\ns_lshl_b32 {sr(so)}, {sr(so)}, 19\ns_mul_i32 {sr(so+1)}, {sr(sn3)}, 7\ns_and_b32 {sr(sx+2)}, {sr(sn3)}, 1\ns_add_u32 {sr(so+1)}, {sr(so+1)}, {sr(sx+2)}\ns_lshl_b32 {sr(so+1)}, {sr(so+1)}, 10\ns_add_u32 {sr(so)}, {sr(so)}, {sr(so+1)}\ns_add_u32 {sr(so+2)}, {sr(so)}, {WS_ACT}')
    F(f's_mul_i32 {sr(sx+2)}, {sr(sx+2)}, {8192-8}\ns_sub_u32 {sr(so)}, {sr(so+2)}, {sr(sx+2)}\ns_add_u32 {sr(so)}, {sr(so)}, 6144\ns_add_u32 {sr(so+1)}, {sr(so)}, 262144')
    F(k.flag_off(sfl, FL_AE))
    F(f's_add_u32 {sr(sx)}, {sr(sx+1)}, 4096')
    pos[0] = ub + g3.get('uwait', 200)
    ld = [f'buffer_load_dwordx4 {vr(xb+4*q,4)}, {vr(b+3)}, {sr(sWS,4)}, {sr(sx if q >= 2 else sx+1)} offen offset:{2048*(q&1)} sc1' for q in range(4)]
    for q in range(4): F(VM(p, ld[q], 'up'), d=pos[0] + 8 + 5 * q)
    pos[0] += 95
    F(WT(p, vm=['up']))
    c4 = b + 4; mx = b + 9
    tst = [f'v_accvgpr_read_b32 {vr(c4+i)}, {vr(xb+i)}' for i in range(4)]
    tst += [f'v_max_u32 {vr(mx)}, {vr(c4)}, {vr(c4+1)}', f'v_max3_u32 {vr(mx)}, {vr(mx)}, {vr(c4+2)}, {vr(c4+3)}']
    for q in range(1, 4):
        for h in range(2):
            tst += [f'v_accvgpr_read_b32 {vr(b+i)}, {vr(xb+4*q+2*h+i)}' for i in range(2)]
            tst += [f'v_max3_u32 {vr(mx)}, {vr(mx)}, {vr(b)}, {vr(b+1)}'] + [f'v_add_f32 {vr(c4+2*h+i)}, {vr(c4+2*h+i)}, {vr(b+i)}' for i in range(2)]
    tst = '\n'.join(tst)
    F(tst)
    o = F(lambda: k.dcheck('uf', '\n'.join(ld), tst, mx, spc)); o.cost = 4; o.wscc = True; o.kind = 'V'
    F(f's_nop 0\nv_permlane32_swap_b32 {vr(c4)}, {vr(c4+2)}\nv_permlane32_swap_b32 {vr(c4+1)}, {vr(c4+3)}\nv_add_f32 {vr(c4)}, {vr(c4)}, {vr(c4+2)}\nv_add_f32 {vr(c4+1)}, {vr(c4+1)}, {vr(c4+3)}')
    tb = z + 2
    for i in range(2):
        x_, h_, d_ = c4 + i, b + 3, (b, c4 + 2)[i]
        F(rb(h_, x_) + f'\nv_sub_f32 {vr(b+8)}, {vr(x_)}, {vr(h_)}\nv_cvt_pk_bf16_f32 {vr(d_)}, {vr(x_)}, {vr(b+8)}\nv_and_b32 {vr(h_)}, 0xffff0000, {vr(d_)}\nv_sub_f32 {vr(b+8)}, {vr(b+8)}, {vr(h_)}\nv_cvt_pk_bf16_f32 {vr(d_+1)}, {vr(b+8)}, 0')
        F(LG(p, f'ds_write_b64 {vr(b+2)}, {vr(d_,2)} offset:{16*i}', 'utw'), d=tb - 10)
    F(WT(p, lg=['utw']), d=tb)
    sc.add('z', lastv, INF, f's_lshl_b32 {sr(sk4)}, {sr(sw)}, 8\ns_add_u32 {sr(sk4)}, {sr(sk4)}, s2\ns_mul_i32 {sr(sk4)}, {sr(sk4)}, 7168')
    sc.add('z', z + 3, INF, f'v_min_u32 {vr(vd3)}, {55*16}, v0\nv_lshlrev_b32 {vr(vd3)}, 3, {vr(vd3)}')
    if not g3.get('nowd'): sc.add('z', z + 3, z + 20, VM(p, f'buffer_load_dword a252, {vr(vd3)}, {sr(sWD,4)}, {sr(sk4)} offen'))
    if g3.get('wd3', 0):
        e = z + g3.get('wd3', 0)
        sc.add('z', z + 22, INF, f's_lshr_b32 {sr(sk4)}, s2, 4\ns_and_b32 {sr(sC)}, s2, 1\ns_lshl3_add_u32 {sr(sk4)}, {sr(sC)}, {sr(sk4)}\ns_mul_i32 {sr(sk4)}, {sr(sk4)}, {7*65536}\ns_bfe_u32 {sr(sC)}, s2, 0x10003\ns_lshl_b32 {sr(sC)}, {sr(sC)}, 10\ns_add_u32 {sr(sk4)}, {sr(sk4)}, {sr(sC)}\ns_add_u32 {sr(sk4)}, {sr(sk4)}, {3*65536}'
               f'\ns_lshl_b32 {sr(sC)}, {sr(sw)}, 8\ns_add_u32 {sr(sC)}, {sr(sC)}, s2\ns_cmp_lt_u32 {sr(sC)}, 128\ns_cselect_b32 {sr(sk4)}, {sr(sk4)}, {OOB}\nv_lshlrev_b32 {vr(vd3)}, 7, v0')
        k.owd3 = sc.add('z', e, e + 6, VM(p, f'buffer_load_dword a252, {vr(vd3)}, {sr(sWD,4)}, {sr(sk4)} offen offset:{384+2048}'))
    ve = [22 + i for i in range(8)]; vub = 31
    pos[0] = z
    F(f'v_and_b32 {vr(vub)}, 0xf0, v0\nv_add_u32 {vr(vub)}, {UTL}, {vr(vub)}\nv_cmp_gt_u32 vcc, 0x100, v0\ns_mov_b32 {sr(sx)}, 0x01000100\ns_mov_b32 {sr(sx+1)}, 0x03020302', d=z + 12)
    for m in range(4):
        q_ = vs + 3 * m + 2; t_ = ve[4 * (m & 1):]
        F(f'v_cndmask_b32 {vr(q_)}, 0, {vr(q_)}, vcc\nv_perm_b32 {vr(t_[0])}, {vr(q_)}, {vr(q_)}, {sr(sx)}\nv_and_b32 {vr(t_[1])}, 0xffff, {vr(q_)}\nv_perm_b32 {vr(t_[2])}, {vr(q_)}, {vr(q_)}, {sr(sx+1)}\nv_lshrrev_b32 {vr(t_[3])}, 16, {vr(q_)}')
        F('\n'.join(f'v_accvgpr_write_b32 {vr(BI+4*m+i)}, {vr(t_[i])}' for i in range(4)), d=ipos[0] - 2)
    for oi, t in enumerate(order):
        for sg in range(2):
            sc.add('u', max(tb + 11 + sg, ipos[oi] - 24 + 2 * sg), ipos[oi] - 6, LG(p, f'ds_read_b128 {vr(WI+8*(oi&1)+4*sg,4)}, {vr(vub)} offset:{2048*sg+256*t}', ('wi', oi)))
    edone = {}
    def mix(a_, b_):
        out = []
        for n in range(max(len(a_), len(b_))): out += a_[n:n+1] + b_[n:n+1]
        return out
    for oi, t in enumerate(order):
        ph = []
        for m in range(4):
            st_ = vs + 3 * m; a_, u_ = accr(t, m), accr(t + 7, m); e4 = ve[4 * (m & 1):]
            o = accr(t & ~1, m) + 2 * (t & 1)
            fin = [pk(o, u_), pk(o + 1, u_ + 2)]
            if t & 1: fin.append(VM(p, f'buffer_store_dwordx4 {vr(o-2,4)}, v0, {sr(sWS,4)}, {sr(so+(m>>1))} offen offset:{1024*(m&1)} sc1', ('as', t)))
            elif t == 6: fin.append(VM(p, f'buffer_store_dwordx2 {vr(o,2)}, v0, {sr(sWS,4)}, {sr(so+(m>>1))} offen offset:{1024*(m&1)} sc1', ('as', t)))
            ph.append(dict(A=[f'v_mul_f32 {vr(e4[x])}, {vr(st_)}, {vr(a_+x)}' for x in range(4)], B=[f'v_exp_f32 {vr(e4[x])}, {vr(e4[x])}' for x in range(4)],
                           C=[f'v_mul_f32 {vr(u_+x)}, {vr(a_+x)}, {vr(u_+x)}' for x in range(4)], D=[f'v_fma_f32 {vr(e4[x])}, {vr(e4[x])}, {vr(st_+1)}, {vr(st_+1)}' for x in range(4)],
                           E=[f'v_rcp_f32 {vr(e4[x])}, {vr(e4[x])}' for x in range(4)], G=[f'v_mul_f32 {vr(u_+x)}, {vr(u_+x)}, {vr(e4[x])}' for x in range(4)], H=fin))
        pg = max(co.cdone[(t, m)] for m in range(4)) + 1; pu = max(co.cdone[(t + 7, m)] for m in range(4)) + 4
        pos[0] = pg
        a, b_, c_, d_ = ph
        for x in a['A'] + mix(a['B'], b_['A']) + mix(b_['B'], a['D']) + mix(a['E'], b_['D']): F(x)
        pos[0] = pu
        for x in mix(b_['E'], a['C']) + a['G'] + c_['A'] + mix(c_['B'], b_['C']) + b_['G'] + a['H'] + d_['A'] + mix(d_['B'], c_['D']) + b_['H'] + mix(c_['E'], d_['D']) + mix(d_['E'], c_['C']) + c_['G'] + d_['C'] + c_['H'] + d_['G'] + d_['H']: lo = F(x)
        edone[t] = lo
        if t == 6: F(f's_mov_b32 {sr(so)}, {sr(so+2)}\ns_add_u32 {sr(so+1)}, {sr(so+2)}, 262144')
        elif t & 1 and t < 5: F(f's_add_u32 {sr(so)}, {sr(so)}, 2048\ns_add_u32 {sr(so+1)}, {sr(so+1)}, 2048')
    E3 = co.end; co3 = co; accr3 = accr
    TP = 16 * FS + 8
    for oi, t in enumerate(order[:-1]): edone[t].d = z + (oi + 2) * TP + g3.get('eslack', 10)
    k.ctouch(sc, g3.get('ct0', 20), z, g3.get('cts', 250)); k.ctouch(sc, z, E3, g3.get('cts2', 80))
    if TL:
        for s in g3.get('marks', (1, 3, 11, 13)): sc.before(at(s) + 1, lambda s=s: k.T(f'g3:s{s}'), 0)
        for n in g3.get('fmarks', ()): sc.before(z + n * TP + 1, lambda n=n: k.T(f'g3:f{n}'), 0)

    NS, nst, FS, DAS, R = 9, 28, g4.get('FS', 6), g4.get('DAS', 7), 10
    NC = 10
    sK4 = S.alloc(); sA4 = S.alloc(); sC4 = [S.alloc() for _ in range(NC)]; sLead = S.alloc(); sD7 = S.alloc(); sg0 = S.alloc(); sg1 = S.alloc(); sfp = S.alloc()
    Va = Regs('v', accr3(6, 0), accr3(6, 0) + 16); Vb = Regs('v', accr3(13, 0), accr3(13, 0) + 16)
    vl = Va.alloc('l'); u = Va.alloc('u', 4); vdma = Va.alloc('vdma', 4); va = Va.alloc('va'); vpl = Va.alloc('pl', 2); vxa = Va.alloc('xa', 4)
    waddr = Vb.alloc('waddr', 12); vro = Vb.alloc('ro', 2); one = Vb.alloc('one'); vol = Vb.alloc('ol')
    acc4 = [accr3(0, 0), accr3(7, 0)]
    accr = lambda t, m: acc4[t // 4] + ((t % 4) * 2 + m) * 4
    vf = accr3(2, 0); vg = accr3(9, 0); vx = accr3(10, 0); vp = accr3(4, 0)
    GL = 147456 + 4096
    slot4 = lambda s: (s + 7) % NS
    def wrd(s, t, j, h):
        st, off = divmod(slot4(s) * 16384 + (2 * j + h) * 4096 + (t >> 2) * 2048, 65536)
        return waddr + 4 * st + (t & 3), off
    co = Core(p, sc, NS, 2, A(176), R, g4.get('lead', 16), 0, DAS, accr, wrd, ard=False, name='g4')
    aset = [216, 0, 16, 32, 48, 64, 80, 96, 112, 128]
    co.abf = lambda s, j, m: A(aset[s % DAS] + (2 * j + m) * 4)
    Ss = list(range(nst - FS, nst))
    groups = [(s, t) for s in range(nst - FS) for t in range(8)] + [(s, t) for s in Ss for t in range(4, 8)] + [(s, t) for s in Ss for t in range(4)]
    co.build(groups, wg=g4.get('wg', 1))
    co.base = z
    co.barriers(lambda s: [('D4', s, 3)], have=())
    rf = co3.wdl[-1] + 1
    co.addbar(rf)
    gpos = [z + TP + 20]
    def G(t_, d=INF, after=None): return sc.add('g', gpos[0], d, t_, after=after)
    G(f'v_lshrrev_b32 {vr(vl)}, 4, v0\ns_add_u32 {sr(sLead)}, {sr(sm2)}, {sr(sorg)}\ns_and_b32 {sr(sLead)}, {sr(sLead)}, 3\ns_and_b32 {sr(sg1)}, s2, 1', after=edone[6])
    G(f's_lshl_b32 {sr(sg0)}, {sr(sn2)}, 7\ns_lshl3_add_u32 {sr(sg0)}, {sr(sW4)}, {sr(sg0)}\ns_mul_i32 {sr(sD7)}, {sr(sg1)}, {1792*2048}\ns_add_u32 {sr(sg0)}, {sr(sg0)}, {sr(sD7)}\ns_lshr_b32 {sr(sD7)}, {sr(sw)}, 1\ns_mul_i32 {sr(sD7)}, {sr(sD7)}, {6*65536}')
    G(f'v_bfe_u32 {vr(u)}, {vr(vl)}, 4, 2\nv_bfe_u32 {vr(u+1)}, {vr(vl)}, 1, 2\nv_xor_b32 {vr(u)}, {vr(u)}, {vr(u+1)}\nv_lshlrev_b32 {vr(u)}, 5, {vr(u)}\nv_and_b32 {vr(u+1)}, 1, {vr(vl)}\nv_lshl_add_u32 {vr(u)}, {vr(u+1)}, 4, {vr(u)}\nv_lshrrev_b32 {vr(u+1)}, 3, {vr(vl)}\nv_lshlrev_b32 {vr(u+1)}, 11, {vr(u+1)}')
    G(f's_sub_u32 {sr(sWD)}, {sr(sWD)}, 2048\ns_subb_u32 {sr(sWD+1)}, {sr(sWD+1)}, 0\ns_mov_b32 {sr(sWD+2)}, {FF*DM*2+2048}')
    if g3.get('wd3', 0): k.owd3.after = sc.streams['g'][-1]
    osu = G(f'v_add3_u32 {vr(u)}, {vr(u)}, {vr(u+1)}, {sr(sg0)}\nv_add_u32 {vr(vdma)}, 2048, {vr(u)}\nv_add_u32 {vr(vdma+1)}, {16384+1024}, {vr(u)}\nv_xor_b32 {vr(vdma+2)}, 128, {vr(u)}\nv_add_u32 {vr(vdma+3)}, {16384-1024}, {vr(vdma+2)}')
    G(f'v_and_b32 {vr(u)}, 7, {vr(vl)}\nv_lshrrev_b32 {vr(u+2)}, 4, {vr(vl)}\nv_xor_b32 {vr(u)}, {vr(u)}, {vr(u+2)}\nv_lshl_add_u32 {vr(vro)}, {vr(u)}, 4, {vr(u+1)}\nv_xor_b32 {vr(vro+1)}, 64, {vr(vro)}\nv_add_u32 {vr(vro+1)}, 16384, {vr(vro+1)}')
    G(f's_lshl2_add_u32 {sr(sg0)}, {sr(sm2)}, {sr(sw)}\ns_lshl_b32 {sr(sg0)}, {sr(sg0)}, 18\ns_mul_i32 {sr(sfp)}, {sr(sg1)}, {56*2048}\ns_add_u32 {sr(sg0)}, {sr(sg0)}, {sr(sfp)}\ns_add_u32 {sr(sg0)}, {sr(sg0)}, {WS_ACT}\nv_add_u32 {vr(va)}, {sr(sg0)}, v0')
    G(f'v_bfe_u32 {vr(u)}, {vr(vl)}, 3, 2\nv_lshlrev_b32 {vr(u)}, 5, {vr(u)}\nv_and_b32 {vr(u+1)}, 3, {vr(vl)}\nv_lshl_add_u32 {vr(u)}, {vr(u+1)}, 3, {vr(u)}\nv_lshrrev_b32 {vr(u+1)}, 2, {vr(vl)}\nv_lshl_add_u32 {vr(waddr)}, {vr(u+1)}, 7, {vr(u)}')
    for t in range(1, 12): G(f'v_xor_b32 {vr(waddr+t)}, {((t & 3) << 5) + ((t >> 2) << 16)}, {vr(waddr)}')
    G(f's_lshr_b32 {sr(sg0)}, {sr(sm2)}, 1\ns_lshl_b32 {sr(sg0)}, {sr(sg0)}, 5\ns_lshl2_add_u32 {sr(sg0)}, {sr(sg1)}, {sr(sg0)}\nv_and_b32 {vr(u)}, 3, {vr(vl)}\nv_bfe_u32 {vr(u+1)}, {vr(vl)}, 2, 2\nv_lshl_add_u32 {vr(u)}, {vr(u)}, 3, {vr(u+1)}\nv_add_lshl_u32 {vr(vpl)}, {vr(u)}, {sr(sg0)}, 7\nv_mov_b32 {vr(one)}, {sr(sTok)}\ns_mov_b32 {sr(sfp)}, {FL_AE}', d=z + 4 * TP)
    eb = edone[1].d + g3.get('edrain', 22)
    co.addbar(eb, vm=[('as', 1)])
    gpos[0] = eb
    o = G(lambda: k.flag_store(sfl, one), d=eb + 2); o.cost = 3
    G(k.flag_off(sfl, FL_AL))
    gpos[0] = E3 - g4.get('eck', 62)
    G(VM(p, f'buffer_load_dword {vr(vpl+1)}, {vr(vpl)}, {sr(sWS,4)}, {sr(sfp)} offen sc1', 'ef'), d=gpos[0] + 2)
    gpos[0] += g4.get('ecl', 28)
    ock = G(lambda: k.check(vpl, sfp, vpl + 1, spc, 'ef'), d=gpos[0] + 2); ock.cost = 4; ock.wscc = True
    a_e0 = gpos[0] + 1
    G(f's_mov_b32 {sr(sfp)}, {FL_AL}')
    edone[5].d = E3 + g4.get('ldl', 84)
    lb = co.nextbar(edone[5].d + g4.get('ldrain', 40))
    gpos[0] = lb - 2
    G(WT(p, vm=[('as', 5)]), d=lb)
    gpos[0] = lb
    o = G(lambda: k.flag_store(sfl, one), d=lb + 3); o.cost = 3
    DF = g4.get('DF', FS)
    for s_ in range(nst - DF, nst):
        b_ = co.gpos[groups.index((s_, 0))] - co.lead - 8
        co.addbar(b_, vm=[('D4', s_, 1)])
        for t in range(4): co.bar2[(s_, t)] = b_
    n1 = 200 - 2 * DF
    tl_ = co.bar[nst - 1] - g4.get('margin', 56) - E3
    vt_ = lambda n: E3 + g4.get('v0', -6) + int(n * tl_ / (n1 - 1))
    lck = vt_(8 * 9 + 1) - 3
    gpos[0] = lck - 50
    G(VM(p, f'buffer_load_dword {vr(vpl+1)}, {vr(vpl)}, {sr(sWS,4)}, {sr(sfp)} offen sc1', 'lf'), d=gpos[0] + 4)
    gpos[0] = lck
    olk = G(lambda: k.check(vpl, sfp, vpl + 1, spc, 'lf'), d=lck + 3); olk.cost = 4; olk.wscc = True
    KB = [7 * q + 3 for q in range(8)] + [14 * q for q in range(4)] + [7 * (q // 2) + 1 + 4 * (q % 2) for q in range(16)]
    done = set()
    def chunk(E, s):
        if s in done: return
        done.add(s)
        c = sC4[s % NC]
        if s < g4.get('nat', 0):
            E(f's_mov_b32 {sr(c)}, {KB[s]}')
            return
        if 8 <= s < 12:
            E(f's_add_u32 {sr(c)}, {sr(sLead)}, {s}\ns_and_b32 {sr(c)}, {sr(c)}, 3\ns_mul_i32 {sr(c)}, {sr(c)}, 14')
            return
        lc = lead_chunk(s, 8) if s < 8 else 12 + lead_chunk(s - 12, 16)
        E(f's_mov_b32 {sr(c)}, {KB[s]}' if lc == s else f's_cmp_eq_u32 {sr(sLead)}, {s % 4}\ns_cselect_b32 {sr(c)}, {KB[lc]}, {KB[s]}')
    def dma4(s, i, E, EV):
        fst = i == 0 or (i == 2 and s >= nst - DF)
        if fst:
            chunk(E, s)
            E(f's_lshl_b32 {sr(sK4)}, {sr(sC4[s % NC])}, 16' + (f'\ns_add_u32 {sr(sK4)}, {sr(sK4)}, {sr(sD7)}' if 8 <= s < 12 else ''))
            E(f's_add_u32 m0, {sr(sW4)}, {slot4(s) * 16384}')
        EV(VM(p, f'buffer_load_dwordx4 {vr(vdma+i)}, {sr(sWD,4)}, {sr(sK4)} offen offset:{1024*i} lds', ('D4', s, i)), fst)
    def al4(s, i, E, EV):
        j, m = divmod(i, 2)
        if i == 0: E(f's_lshl_b32 {sr(sA4)}, {sr(sC4[s % NC])}, 11')
        if i == 2 and 8 <= s < 12: E(f's_add_u32 {sr(sA4)}, {sr(sA4)}, {6*2048}')
        EV(VM(p, f'buffer_load_dwordx4 {vr(co.abf(s,j,m),4)}, {vr(va)}, {sr(sWS,4)}, {sr(sA4)} offen offset:{1024*i} sc1', co.atag(s, j, m)), False)
    ev = []
    e = z + 2 * TP + 30
    for s in range(3):
        for i in range(4): ev.append((e, 'D', s, i, co.bar[s])); e += 5
    e = a_e0
    assert a_e0 + 8 > ipos[6] + 8
    for s in range(3):
        for i in range(4): ev.append((e, 'A', s, i, co.await_[(s,) + divmod(i, 2)])); e += 2
    c_ = 0
    for n in range(3, nst):
        for i in range(4):
            if n < nst - DF or i >= 2:
                ev.append((max(rf + 1, co.slotfree(n) + 1, vt_(c_), ev[-1][0]), 'D', n, i, co.bar[n])); c_ += 1
            ev.append((max(E3, co.alast[(n - DAS,) + divmod(i, 2)] + 1 if n >= DAS else 0, vt_(c_), ev[-1][0]), 'A', n, i, co.await_[(n,) + divmod(i, 2)])); c_ += 1
    for n in range(nst - DF, nst):
        for i in range(2): ev.append((ev[-1][0] + 4, 'D', n, i, co.bar2[(n, 0)]))
    for e, kind, s, i, d in ev:
        aft = osu if (kind, s, i) == ('D', 0, 0) else ock if (kind, s, i) == ('A', 0, 0) else olk if (kind, s, i) == ('A', 12, 0) else None
        if kind == 'A' and i == 0: chunk(lambda t_: sc.add('v', e - 4, d, t_), s)
        (dma4 if kind == 'D' else al4)(s, i, lambda t_: sc.add('v', e - 4, d, t_, after=aft), lambda f, sep: sc.add('v', e, d, f, sep=sep))
    co.wreads(); co.flush_reads('w4')
    pos[0] = E3 + 150
    XL = slot4(nst - FS) * 16384
    assert DF >= 2
    F(f's_add_u32 {sr(sx)}, {sr(sW4)}, {XL}\n' + xa_setup(vxa, u, sx, vl) + f'\nv_add_u32 {vr(vol)}, {sr(sx)}, v0')
    F(f's_lshl_b32 {sr(sx)}, {sr(sw)}, 10\ns_add_u32 {sr(sx)}, {sr(sx)}, {GL}\nv_add_u32 {vr(u)}, {sr(sx)}, v0\nv_lshrrev_b32 {vr(u+1)}, 4, {vr(vl)}\nv_lshl_add_u32 {vr(u+1)}, {vr(u+1)}, 4, {sr(sx)}')
    F(LG(p, f'ds_write_b128 {vr(u)}, {vr(GBA,4)}'))
    for t in range(4): F(LG(p, f'ds_read_b128 {vr(vg+4*t,4)}, {vr(u+1)} offset:{768+64*t}'))
    for i in range(16): F(f'v_accvgpr_read_b32 {vr(u+2)}, {vr(ST1+i)}\n' + unpack(vf + 2 * i, u + 2))
    F(f's_add_u32 {sr(s1)}, {sr(sro)}, 32768\ns_lshl_b32 {sr(sx)}, s2, 5\ns_add_u32 {sr(sx)}, {sr(sx)}, {sr(sw)}\ns_lshl2_add_u32 {sr(sx)}, {sr(sx)}, {FL_XC}\ns_xor_b32 {sr(sx+1)}, {sr(sx)}, 128\nv_mov_b32 {vr(u+3)}, 0')
    for t in range(4, 8):
        pos[0] = max(co.cdone[(t, 0)], co.cdone[(t, 1)]) + 4
        for m in range(2):
            i = (t - 4) * 2 + m
            F(VM(p, f'buffer_store_dwordx4 {vr(accr(t, m),4)}, v0, {sr(sWS,4)}, {sr(sxo + i // 4)} offen offset:{1024*(i%4)} sc1', 'xs'), d=pos[0] + 4)
    xl = [f'buffer_load_dwordx4 {vr(vp+4*i,4)}, v0, {sr(sWS,4)}, {sr(sxo + 2 + i // 4)} offen offset:{1024*(i%4)} sc1' for i in range(8)]
    pos[0] = co.end - g4.get('xpub', 56)
    F(WT(p, vm=['xs']), d=pos[0] + 2)
    o = F(lambda: k.flag_store(sx, one), d=pos[0] + 3); o.cost = 3
    pos[0] = co.end - g4.get('xf', 54)
    xfl = f'buffer_load_dword {vr(vpl+1)}, {vr(u+3)}, {sr(sWS,4)}, {sr(sx+1)} offen sc1'
    F(VM(p, xfl, 'xf'), d=pos[0] + 4)
    pos[0] = co.end - g4.get('xpre', 26)
    F(WT(p, vm=['xf']), d=pos[0] + 2)
    F(f'v_readfirstlane_b32 {sr(sx+2)}, {vr(vpl+1)}\ns_nop 0\ns_cmp_eq_u32 {sr(sx+2)}, {sr(sTok)}\ns_cselect_b32 {sr(sg0)}, {sr(sxo+2)}, {OOB}\ns_cselect_b32 {sr(sg1)}, {sr(sxo+3)}, {OOB}', d=pos[0] + 5)
    for i in range(8): F(VM(p, xl[i].replace(sr(sxo + 2 + i // 4) + ' ', sr((sg0, sg1)[i // 4]) + ' '), ('xc', i)), d=pos[0] + 7 + 2 * i)
    sc.bias = dict(x=10000)
    ce, c4_ = g3.get('ecap', 3), g4.get('cap0', 3)
    sc.capf = lambda i: 2 if i < z + TP - 10 else ce + (i % g3.get('emod', 4) == 0) if i < E3 else c4_ if i < edone[5].d else 2
    sc.vgap = lambda i: g3.get('vgap', 5) if i < z else 2 if i < E3 + 60 else g4.get('vgap', 3)
    sc.mcap = lambda i: g3.get('mcap', 2) if i < E3 - 30 else 2
    if g4.get('ct', True): k.ctouch(sc, E3, co.end - 250, 190)
    if TL:
        for s in g4.get('marks', (0, 4, 8, 16, 23)): sc.before(co.sfirst[s] + 1, lambda s=s: k.T(f'g4:s{s}'), 0)
        if cfg.get('ckm'):
            sc.before(co.end - 16 * FS + 1, lambda: k.T('g4:own'), 0)
    left = sc.run()
    k.T('g4:loopend')
    k.info += f' | g34 over {sc.over} left {len(left)} edone ' + ' '.join(str(edone[t].pos - z) for t in order)
    assert not left
    for t in (0, 1): assert edone[t].pos < E3 - 4
    p.ins(f's_cmp_eq_u32 {sr(sx+2)}, {sr(sTok)}\ns_cbranch_scc0 CKXs')
    p.label('CKXx')
    k.cold.append(f'CKXs:\n  s_mov_b32 {sr(spc)}, 60000\nCKX:\n  {xfl}\n  s_sub_u32 {sr(spc)}, {sr(spc)}, 1\n  s_cmp_eq_u32 {sr(spc)}, 0\n  s_waitcnt vmcnt(0)\n  s_cbranch_scc1 CKXy\n'
                  f'  v_cmp_ne_u32 vcc, {sr(sTok)}, {vr(vpl+1)}\n  s_nop 4\n  s_cbranch_vccnz CKX\nCKXy:\n  ' + '\n  '.join(xl) + '\n  s_branch CKXx\n')
    k.T('xc:rel')
    for t in range(4):
        for m in range(2):
            for e in (0, 2): p.ins(f'v_pk_fma_f32 {vr(vf+16*m+4*t+e,2)}, {vr(vg+4*t+e,2)}, {vr(accr(t, m)+e,2)}, {vr(vf+16*m+4*t+e,2)}')
    for i in range(8):
        t, m = divmod(i, 2)
        p.wait(vm=[('xc', i)])
        fm = vf + 16 * m + 4 * t
        for e in (0, 2): p.ins(f'v_pk_fma_f32 {vr(fm+e,2)}, {vr(vg+4*t+e,2)}, {vr(vp+4*i+e,2)}, {vr(fm+e,2)}')
        p.ins(pk(vx + 8 * m + 2 * t, fm) + '\n' + pk(vx + 8 * m + 2 * t + 1, fm + 2))
        p.lg(f'ds_write_b64 {vr(vxa+t)}, {vr(vx+8*m+2*t,2)} offset:{2048*m}')
    for i in range(4): p.lg(f'ds_read_b128 {vr(vf+4*i,4)}, {vr(vol)} offset:{1024*i}', ('o', i))
    for i in range(4):
        p.wait(lg=[('o', i)])
        p.vm(f'buffer_store_dwordx4 {vr(vf+4*i,4)}, {vr(vro+(i&1))}, {sr(sOUT,4)}, {sr(s1 if i >= 2 else sro)} offen {g4.get("oflags", "")}')
    return finish(k)
```

```python
import sys
sys.path.insert(0, 'gen3'); sys.path.insert(0, 'gen')
import kernels as KO
import k3, pads
def make(opts=None):
    o = dict(ct=False, hsplit=380, k1=dict(zero=True, lq='', tq_rows=341, tx='', nfl=8, sent=k3.WS_UT, r2=(341, 683)), g1=dict(wln=0, npw=7, n0=4, vgap=4, prow=0, mcap=1, t1=0, prow2=320, xt=1, whelp=-60, npl0=0, npl=0, jgap=0, nat=14, astep=9, afirst=0, ndr=6, b0=10), g2=dict(ydr=30, AL=5, nin=10, npo=4), g3=dict(alag=1.5, dlag=0.9, j0=6, f2=66, dr6=60, dr1=60, ecap=4, emod=100, bar0=8, mcap=1, cts2=160, catch=(7.5, 12), thin=(0, 0), leads={2: [5], 3: [6], 4: [7], 5: [8, 9, 10], 7: [11, 12, 13], 8: [14]}), g4=dict(cap0=4, ldl=60, FS=8, DAS=10, margin=40, xpub=70, xf1=14, xf2=16, v0=4, be=1, d0=190, c0=262))
    for kk, v in (opts or {}).items():
        if isinstance(v, dict): o[kk].update(v)
        else: o[kk] = v
    ks = [k3.build_k3(o)]
    return ks
def render(ks):
    t = KO.build(ks).replace('gen/main.py', 'gen3/main3.py')
    t, info, size = pads.add_pads(t)
    ks[-1].info += f' | pads {info} bytes {size}'
    return t
if __name__ == '__main__':
    opts = eval(sys.argv[2]) if len(sys.argv) > 2 else {}
    ks = make(opts)
    open(sys.argv[1], 'w').write(render(ks))
    print(ks[-1].info)
```

```python
import sys
sys.path.insert(0, 'gen')
from asmlib import *
MFMA = 'v_mfma_f32_16x16x32_bf16'

_Prog = Prog
class Prog(_Prog):
    def text(self):
        out = []
        for l in _Prog.text(self).split('\n'):
            if l.startswith('  s_waitcnt') and out and out[-1].startswith('  s_waitcnt'):
                c = {}
                for x in (out[-1] + l).replace('s_waitcnt', '').split():
                    k, v = x[:-1].split('(')
                    c[k] = min(c.get(k, 99), int(v))
                out[-1] = '  s_waitcnt ' + ' '.join(f'{k}({c[k]})' for k in ('vmcnt', 'lgkmcnt') if k in c)
            else: out.append(l)
        return '\n'.join(out)

NOSCC = ('s_mov_b', 's_nop', 's_waitcnt', 's_mul_i32', 's_cselect', 's_barrier', 's_setprio', 's_movk', 's_mul_hi', 's_load', 's_memtime', 's_memrealtime', 's_ff1', 's_bitset')
class Op:
    __slots__ = ('e', 'd', 'fn', 'cost', 'sep', 'pos', 'after', 'wscc', 'hold', 'vm', 'kind', 'gap')
    def __init__(self, e, d, fn, cost=1, sep=False, after=None, wscc=False, hold=False, kind=None):
        self.e, self.d, self.fn, self.cost, self.sep, self.pos, self.after, self.wscc, self.hold = e, d, fn, cost, sep, None, after, wscc, hold
        self.vm = getattr(fn, 'vm', False); self.gap = 0
        self.kind = kind or getattr(fn, 'kind', 'M')

class VM:
    vm = True; kind = 'M'
    def __init__(self, p, text, tag=None): self.p, self.text, self.tag = p, text, tag
    def __call__(self): self.p.vm(self.text, self.tag)
class LG:
    kind = 'M'
    def __init__(self, p, text, tag=None): self.p, self.text, self.tag = p, text, tag
    def __call__(self): self.p.lg(self.text, self.tag)
class WT:
    kind = 'S'
    def __init__(self, p, vm=None, lg=None): self.p, self.a = p, (vm, lg)
    def __call__(self): self.p.wait(*self.a)

class Sched:
    def __init__(self, p, cap=2):
        self.p, self.cap = p, cap
        self.mf = []; self.pre = {}; self.streams = {}
        self.over = 0; self.bias = {}; self.vgap = lambda i: 0; self.capf = None; self.vx = 0; self.mcap = lambda i: 2
    def add(self, stream, e, d, fn, cost=1, sep=False, after=None):
        if isinstance(fn, str):
            L = [t.strip() for t in fn.split('\n') if t.strip()]
            for n, t in enumerate(L):
                hold = n + 1 < len(L) and L[n + 1].startswith(('s_cselect', 's_addc', 's_subb', 's_cmov'))
                c = 2 if t.startswith(('v_exp', 'v_rcp', 'v_rsq', 'v_sqrt', 'v_log')) else 1
                o = Op(e, d, (lambda t=t: self.p.ins(t)), c, sep and n == 0, after, t.startswith('s_') and not t.startswith(NOSCC), hold, 'S' if t.startswith('s_') else 'V')
                self.streams.setdefault(stream, []).append(o)
            return o
        o = Op(e, d, fn, cost, sep, after)
        self.streams.setdefault(stream, []).append(o)
        return o
    def before(self, i, fn, cost=1):
        self.pre.setdefault(i, []).append((fn, cost))
    def run(self):
        p = self.p
        heads = {k: 0 for k in self.streams}
        eff = {}
        for k, s in self.streams.items():
            m = 1 << 30
            ee = [0] * len(s)
            for j in range(len(s) - 1, -1, -1):
                m = min(m, s[j].d); ee[j] = m
            eff[k] = ee
        last = [None]; lock = [None]; lastv = [-100]
        self.slots = 0
        def gap(i, budget, sfree, lim):
            valu = False; nm = 0
            while True:
                c = []
                for k, s in self.streams.items():
                    j = heads[k]
                    if j >= len(s): continue
                    o = s[j]
                    if o.e > i or not (o.after is None or (o.after.pos is not None and o.after.pos + o.gap < i)): continue
                    forced = eff[k][j] <= lim
                    if o.wscc and lock[0] not in (None, k):
                        assert not forced
                        continue
                    if not forced:
                        if o.sep and last[0] == k: continue
                        if o.vm and i < lastv[0] + self.vgap(i): continue
                        if o.kind == 'M' and (valu or nm >= self.mcap(i)): continue
                        if not (o.kind == 'S' and sfree) and budget < (min(o.cost, 2) if o.kind == 'V' else max(self.vx, 1) if o.vm else 1): continue
                    rank = 0 if (o.kind == 'S' and sfree) else 2 if o.kind == 'V' else 1
                    c.append((not forced, rank, not (o.vm and self.vx), o.e + self.bias.get(k, 0), k))
                if not c: return
                k = min(c)[-1]
                o = self.streams[k][heads[k]]
                if o.sep and last[0] == k: p.ins('s_nop 0')
                o.fn(); o.pos = i; heads[k] += 1; last[0] = k
                if o.kind == 'S' and sfree: pass
                else:
                    cst = self.vx if o.vm and self.vx else o.cost
                    if budget < cst: self.over += 1
                    budget -= cst
                sfree = False
                if o.kind == 'V': valu = True
                if o.kind == 'M': nm += 1
                if o.vm: lastv[0] = i
                if lock[0] == k: lock[0] = None
                if o.hold: lock[0] = k
        gap(-1, 0, False, 1)
        for fn, _ in self.pre.get(0, []): fn()
        for i, m in enumerate(self.mf):
            p.ins(m); last[0] = None
            for k, s in self.streams.items():
                assert heads[k] >= len(s) or eff[k][heads[k]] > i + 1, ('deadline missed', k, heads[k], i, s[heads[k]].e, eff[k][heads[k]])
            pc = 0
            for fn, c_ in self.pre.get(i + 1, []):
                fn(); pc += c_
            gap(i, (self.capf(i) if self.capf else self.cap) - max(pc - 1, 0), pc == 0, i + 2)
        left = []
        for k, s in self.streams.items():
            left += [(k, o) for o in s[heads[k]:]]
        return left
```

```python
import sys, json, glob, os
sys.path.insert(0, 'gen3'); sys.path.insert(0, 'gen')
import kernels as KO, k3, main3
V = eval(sys.argv[1])
for f in glob.glob('u_*.s') + glob.glob('p_*.s'): os.remove(f)
names = json.load(open('t_names.json'))
for n, o in V.items():
    k3.TL = True
    ks = main3.make(o)
    open(f'u_{n}.s', 'w').write(main3.render(ks))
    names[f'u_{n}.s'] = {k.name: k.tn for k in ks}
    k3.TL = False
    ks = main3.make(o)
    open(f'p_{n}.s', 'w').write(main3.render(ks))
    print(n, ks[-1].info)
    os.system(f'python3 chk.py u_{n}.s | cut -c1-200 | head -4; python3 chk.py p_{n}.s | cut -c1-200 | head -4; python3 lint.py p_{n}.s | tail -3')
json.dump(names, open('t_names.json', 'w'))
```

```python
class Regs:
    def __init__(self, prefix, start, limit):
        self.prefix, self.next, self.limit = prefix, start, limit
        self.names = {}
    def alloc(self, name, n=1, align=1):
        a = self.next
        a = (a + align - 1) // align * align
        assert a + n <= self.limit, f'out of {self.prefix} regs allocating {name} ({a}+{n})'
        self.next = a + n
        self.names[name] = (a, n)
        return a

AOFF = 1000
def vr(a, n=1):
    c = 'v'
    if a >= AOFF:
        c, a = 'a', a - AOFF
    return f'{c}{a}' if n == 1 else f'{c}[{a}:{a+n-1}]'
def sr(a, n=1):
    return f's{a}' if n == 1 else f's[{a}:{a+n-1}]'

class Prog:
    def __init__(self):
        self.items = []
    def ins(self, text):
        for t in text.split('\n'):
            t = t.strip()
            if t:
                self.items.append(('ins', t))
    def vm(self, text, tag=None):
        self.items.append(('vm', text, tag))
    def lg(self, text, tag=None):
        self.items.append(('lg', text, tag))
    def wait(self, vm=None, lg=None):
        self.items.append(['wait', vm, lg, None, None])
    def check_issued(self, tag):
        self.items.append(('chk', tag))
    def label(self, name):
        self.items.append(('label', name))
    def loop_begin(self, name, n):
        self.items.append(('lb', name, n))
    def loop_end(self, text):
        self.items.append(('le', text))

    @staticmethod
    def _ev(tag, it):
        return tag(it) if callable(tag) else tag

    def resolve(self):
        vmq, lgq = [], []
        vmpos, lgpos = {}, {}
        saved = {}
        def need(spec, it, q, pos):
            if spec is None:
                return None
            if spec == 'all':
                return 0
            spec = self._ev(spec, it)
            latest = -1
            for t in spec:
                t = self._ev(t, it)
                if t is None:
                    continue
                assert t in pos, f'wait on never-issued tag {t}'
                latest = max(latest, pos[t])
            if latest < 0:
                return None
            return len(q) - 1 - latest
        def run(items, it):
            for x in items:
                k = x[0]
                if k == 'vm':
                    t = self._ev(x[2], it); vmq.append(t)
                    if t is not None: vmpos[t] = len(vmq) - 1
                elif k == 'lg':
                    t = self._ev(x[2], it); lgq.append(t)
                    if t is not None: lgpos[t] = len(lgq) - 1
                elif k == 'save':
                    saved[x[1]] = (len(vmq), len(lgq))
                elif k == 'restore':
                    del vmq[saved[x[1]][0]:]; del lgq[saved[x[1]][1]:]
                elif k == 'vmark':
                    vmpos[x[1]] = len(vmq) - 1
                elif k == 'chk':
                    assert self._ev(x[1], it) in vmpos, ('not issued yet', self._ev(x[1], it))
                elif k == 'wait':
                    a = need(x[1], it, vmq, vmpos); b = need(x[2], it, lgq, lgpos)
                    if a is not None: x[3] = a if x[3] is None else min(x[3], a)
                    if b is not None: x[4] = b if x[4] is None else min(x[4], b)
                    if hasattr(self, 'trace'):
                        self.trace.append((id(x), it, a, b))
        i = 0
        n = len(self.items)
        while i < n:
            x = self.items[i]
            if x[0] == 'lb':
                j = i + 1
                while self.items[j][0] != 'le':
                    j += 1
                for it in range(x[2]):
                    run(self.items[i+1:j], it)
                i = j + 1
            else:
                run([x], 0)
                i += 1

    def text(self):
        self.resolve()
        out = []
        for x in self.items:
            k = x[0]
            if k == 'ins': out.append('  ' + x[1])
            elif k in ('vm', 'lg'): out.append('  ' + x[1])
            elif k == 'label': out.append(x[1] + ':')
            elif k == 'lb': out.append(x[1] + ':')
            elif k == 'le': out.append('\n'.join('  ' + t.strip() for t in x[1].split('\n') if t.strip()))
            elif k == 'wait':
                parts = []
                if x[3] is not None: parts.append(f'vmcnt({min(x[3], 63)})')
                if x[4] is not None: parts.append(f'lgkmcnt({min(x[4], 15)})')
                if parts: out.append('  s_waitcnt ' + ' '.join(parts))
        return '\n'.join(out) + '\n'

def kdesc(name, nvgpr, nsgpr, accum=None):
    if accum is None:
        accum = (nvgpr + 3) // 4 * 4
    return f'''.p2align 6
.amdhsa_kernel {name}
  .amdhsa_next_free_vgpr {nvgpr}
  .amdhsa_next_free_sgpr {nsgpr}
  .amdhsa_accum_offset {accum}
  .amdhsa_group_segment_fixed_size 0
  .amdhsa_kernarg_size 96
  .amdhsa_user_sgpr_count 2
  .amdhsa_user_sgpr_kernarg_segment_ptr 1
  .amdhsa_system_sgpr_workgroup_id_x 1
  .amdhsa_float_denorm_mode_32 3
.end_amdhsa_kernel
'''
```

```python
import sys
sys.path.insert(0, 'gen3'); sys.path.insert(0, 'gen')
from core3 import *
import kernels as KO
from kernels import f32, lanemask, LOG2E, A_X, A_WQKV, A_WO, B_WG, B_WU, B_WD, IN_C, W_MOD, OUT, WS

M, DM, FF = 2048, 1024, 3584
WS_MODP, WS_ST, WS_UT, WS_H, WS_FL, WS_AUX, WS_O, WS_ACT, WS_Y, WS_XC = 0x0, 0x40000, 0x80000, 0x100000, 0x500000, 0x580000, 0x700000, 0x1300000, 0x2300000, 0x2800000
WS_SIZE = 0x3000000
WS_STAMP = 0x3000000
OOB = 0x40000000
FL_H, FL_O, FL_JOB, FL_Y, FL_UT, FL_AE, FL_AL, FL_XC = [WS_FL + 32768 * i for i in range(8)]
sX, sWQ, sWO, sWG, sWU, sWD, sWM, sOUT, sWS, sCC = [4 + 4 * i for i in range(10)]
sw = 44
sTok = 3
WS_SEED = WS_FL + 8 * 32768
KNAME = 'adaLN_cond__sliding_local_dilated__swiglu_ffn__prompt_kernel'
INF = 1 << 30
TL = False
LN2 = 0.6931471805599453

def A(n): return AOFF + n
def rb(d, s=None):
    s = d if s is None else s
    return f'v_cvt_pk_bf16_f32 {vr(d)}, {vr(s)}, {vr(s)}\nv_lshlrev_b32 {vr(d)}, 16, {vr(d)}'
def rb2(a, t):
    return f'v_cvt_pk_bf16_f32 {vr(t)}, {vr(a)}, {vr(a+1)}\nv_lshlrev_b32 {vr(a)}, 16, {vr(t)}\nv_and_b32 {vr(a+1)}, 0xffff0000, {vr(t)}'
def unpack(d, s):
    return f'v_lshlrev_b32 {vr(d)}, 16, {vr(s)}\nv_and_b32 {vr(d+1)}, 0xffff0000, {vr(s)}'
def pk(d, a): return f'v_cvt_pk_bf16_f32 {vr(d)}, {vr(a)}, {vr(a+1)}'
def smov64(s, m): return f's_mov_b32 {sr(s)}, 0x{m & 0xffffffff:08x}\ns_mov_b32 {sr(s+1)}, 0x{m >> 32:08x}'

class Pool:
    def __init__(self, regs): self.free_ = set(regs)
    def alloc(self, n=1, align=1):
        for a in sorted(self.free_):
            if a % align == 0 and all(a + i in self.free_ for i in range(n)):
                self.free_ -= set(range(a, a + n)); return a
        raise AssertionError('out of registers')
    def free(self, a, n=1):
        assert not (set(range(a, a + n)) & self.free_)
        self.free_ |= set(range(a, a + n))

def g3_orders(aux=(6, 9), leads=None):
    O = [{aux[0]: r, aux[1]: 8 + r} for r in range(8)]
    r = 0
    for s in sorted(leads or {}):
        for c in leads[s]:
            while s in O[r] or c in O[r].values(): r = (r + 1) % 8
            O[r][s] = c; r = (r + 1) % 8
    T = []
    for o in O:
        rest = [c for c in range(16) if c not in o.values()]
        T.append([o[s] if s in o else rest.pop(0) for s in range(16)])
    return T

class K3:
    def __init__(self, name, cfg):
        self.name, self.cfg = name, cfg
        self.p = Prog(); self.tn = []; self.nl = 0
        self.nthreads, self.nwg = 256, 256
    def T(self, nm):
        if not TL: return
        i = len(self.tn); self.tn.append(nm)
        self.p.ins(f's_memrealtime s[96:97]\ns_memtime s[98:99]\nv_accvgpr_write_b32 a253, v0\nv_accvgpr_read_b32 v0, a254\ns_waitcnt lgkmcnt(0)\nv_writelane_b32 v0, s96, {i}\nv_accvgpr_write_b32 a254, v0\n'
                   f'v_accvgpr_read_b32 v0, a255\ns_nop 0\nv_writelane_b32 v0, s98, {i}\nv_accvgpr_write_b32 a255, v0\nv_accvgpr_read_b32 v0, a253')
    def lab(self, s):
        self.nl += 1
        return f'{s}{self.nl}'
    def text(self): return '.p2align 12\n.p2align 8\n' + self.p.text().replace('  .p2align', '.p2align').replace('  ; HOPS', '; HOPS')
    def desc(self, minv=0): return kdesc(self.name, 512, 102, 256)
    def launch(self): return f'; @launch kernel={self.name} grid=(256,1,1) block=(256,1,1) lds=163840' if self.cfg.get('list', True) else '; @launch grid=(256,1,1) block=(256,1,1) lds=163840'

    def flag_off(self, d, region, wave=0):
        return f's_lshl_b32 {sr(d)}, s2, 7\ns_add_u32 {sr(d)}, {sr(d)}, {region}\ns_cmp_eq_u32 {sr(sw)}, {wave}\ns_cselect_b32 {sr(d)}, {sr(d)}, {OOB}'
    def flag_store(self, sd, v1):
        self.p.ins('s_mov_b64 exec, 1')
        self.p.vm(f'buffer_store_dword {vr(v1)}, v0, {sr(sWS,4)}, {sr(sd)} offen sc1')
        self.p.ins('s_mov_b64 exec, -1')
    def publish(self, nm, sd, v1, vm='all'):
        p = self.p
        self.T(nm + ':pre')
        p.ins(f'v_mov_b32 {vr(v1)}, {sr(sTok)}')
        p.wait(vm=vm, lg='all')
        p.ins('s_barrier')
        self.flag_store(sd, v1)
        self.T(nm + ':pub')
    def poll(self, nm, voff, region, vd, sc_, wave=0, pre=None, n=1, join=None):
        p = self.p
        L = self.lab('SM')
        self.T(nm + ':btw')
        p.ins(f's_cmp_lg_u32 {sr(sw)}, {wave}\ns_cbranch_scc1 {L}x\ns_mov_b32 {sr(sc_)}, 60000\ns_mov_b32 {sr(sc_+1)}, {region}')
        p.label(L)
        p.ins(f'buffer_load_dword{"x4" if n == 4 else ""} {vr(vd,n)}, {vr(voff)}, {sr(sWS,4)}, {sr(sc_+1)} offen sc1')
        p.ins(f's_sub_u32 {sr(sc_)}, {sr(sc_)}, 1\ns_cmp_eq_u32 {sr(sc_)}, 0\ns_waitcnt vmcnt(0)\ns_cbranch_scc1 {L}x')
        if n == 4: p.ins(f'v_and_b32 {vr(vd)}, {vr(vd)}, {vr(vd+1)}\nv_and_b32 {vr(vd+2)}, {vr(vd+2)}, {vr(vd+3)}\nv_and_b32 {vr(vd)}, {vr(vd)}, {vr(vd+2)}')
        p.ins(f'v_cmp_ne_u32 vcc, {sr(sTok)}, {vr(vd)}\ns_nop 4\ns_cbranch_vccnz {L}')
        p.label(L + 'x')
        if pre: pre()
        if join: p.label(join)
        p.ins('s_barrier')
        self.T(nm + ':rel')
    def check(self, voff, soff, vd, sc_, tag, n=1):
        p = self.p
        L = self.lab('CK')
        tst = ''
        if n == 4: tst = f'v_and_b32 {vr(vd)}, {vr(vd)}, {vr(vd+1)}\nv_and_b32 {vr(vd+2)}, {vr(vd+2)}, {vr(vd+3)}\nv_and_b32 {vr(vd)}, {vr(vd)}, {vr(vd+2)}\n'
        tst += f'v_cmp_ne_u32 vcc, {sr(sTok)}, {vr(vd)}\ns_nop 4'
        if self.cfg.get('ckm'): self.T(f'{tag}:a')
        p.wait(vm=[tag])
        if self.cfg.get('ckm'): self.T(f'{tag}:b')
        p.ins(tst + f'\ns_cbranch_vccnz {L}s')
        p.label(L + 'x')
        if self.cfg.get('ckm'): self.T(f'{tag}:c')
        self.cold.append(f'{L}s:\n  s_mov_b32 {sr(sc_)}, 60000\n{L}:\n  buffer_load_dword{"x4" if n == 4 else ""} {vr(vd,n)}, {vr(voff)}, {sr(sWS,4)}, {sr(soff)} offen sc1\n'
                         f'  s_sub_u32 {sr(sc_)}, {sr(sc_)}, 1\n  s_cmp_eq_u32 {sr(sc_)}, 0\n  s_waitcnt vmcnt(0)\n  s_cbranch_scc1 {L}x\n  ' + tst.replace('\n', '\n  ') + f'\n  s_cbranch_vccnz {L}\n  s_branch {L}x\n')
    def dcheck(self, nm, loads, test, vt_, sc_, op='v_cmp_eq_u32 vcc, -1'):
        p = self.p
        L = self.lab('CK')
        cmp_ = f'{op}, {vr(vt_)}\ns_nop 4'
        if self.cfg.get('ckm'): self.T(f'{nm}:b')
        p.ins(cmp_ + f'\ns_cbranch_vccnz {L}s')
        p.label(L + 'x')
        if self.cfg.get('ckm'): self.T(f'{nm}:c')
        body = loads + f'\ns_sub_u32 {sr(sc_)}, {sr(sc_)}, 1\ns_waitcnt vmcnt(0)\n' + test + f'\ns_cmp_eq_u32 {sr(sc_)}, 0\ns_cbranch_scc1 {L}x\n' + cmp_ + f'\ns_cbranch_vccnz {L}\ns_branch {L}x'
        self.cold.append(f'{L}s:\n  s_mov_b32 {sr(sc_)}, 30000\n{L}:\n  ' + body.replace('\n', '\n  ') + '\n')
    def hop(self, nm, lo, hi, waves):
        if not self.cfg.get('hop', True): return
        p = self.p
        p.ins(f'; HOPS {nm} {lo} {hi} {len(waves)}\ns_mov_b64 exec, 0')
        for c, w in enumerate(waves): p.ins(f's_cmp_eq_u32 {sr(sw)}, {w}\ns_cbranch_scc1 H{nm}{c}')
        p.label(f'R{nm}')
        p.ins('s_mov_b64 exec, -1')
    def ctouch_now(self, n, lead):
        if not self.cfg.get('ct', True): return []
        L = self.lab('CT')
        self.p.label(L)
        def f(i):
            self.p.ins(f's_add_u32 s94, s92, {L}-{self.name}+{lead + 4096 * i}\ns_addc_u32 s95, s93, 0')
            self.p.vm('global_load_dword a252, v0, s[94:95]')
        return [(lambda i=i: f(i)) for i in range(n)]
    def ctouch(self, sc, lo, hi, step, lead=3072):
        if not self.cfg.get('ct', True): return
        for pos in range(lo, hi, step):
            def f():
                L = self.lab('CT')
                self.p.label(L)
                self.p.ins(f's_add_u32 s94, s92, {L}-{self.name}+{lead}\ns_addc_u32 s95, s93, 0')
            o = sc.add('y', pos, INF, f, cost=2); o.wscc = True
            sc.add('y', pos, INF, VM(self.p, 'global_load_dword a252, v0, s[94:95]'))

def xa_setup(vxa, u, sxl, vl):
    t_ = f'v_and_b32 {vr(u)}, 15, {vr(vl)}\nv_lshrrev_b32 {vr(u+2)}, 1, {vr(u)}\nv_lshrrev_b32 {vr(u+1)}, 5, {vr(vl)}\nv_xor_b32 {vr(u+2)}, {vr(u+2)}, {vr(u+1)}\nv_lshlrev_b32 {vr(u+2)}, 4, {vr(u+2)}\nv_lshl_add_u32 {vr(u+2)}, {vr(u)}, 7, {vr(u+2)}\n'
    t_ += f'v_bfe_u32 {vr(u+1)}, {vr(vl)}, 4, 1\nv_lshl_add_u32 {vr(u+2)}, {vr(u+1)}, 3, {vr(u+2)}\nv_add_u32 {vr(vxa)}, {sr(sxl)}, {vr(u+2)}\n'
    return t_ + '\n'.join(f'v_xor_b32 {vr(vxa+t)}, {t<<5}, {vr(vxa)}' for t in range(1, 4))

def weave(p, code, ops, step, first=0):
    ops = list(ops); n = -first
    for c in code:
        for t in (c.split('\n') if isinstance(c, str) else [c]):
            p.ins(t) if isinstance(t, str) else t()
            n += 1
            if ops and n >= step and isinstance(t, str) and t.startswith('v_') and not t.startswith('v_mfma'):
                ops.pop(0)(); n = 0
    return ops

def build_k3(cfg):
    k = K3(KNAME, cfg); p = k.p
    k.cold = []
    stop = cfg.get('stop', 9)
    p.label(k.name)
    p.ins(f's_cmp_ge_u32 s2, 256\ns_cbranch_scc1 XEND')
    srds = ((sWS, WS, WS_SIZE), (sCC, IN_C, 2048), (sWM, W_MOD, 1024*6144*2), (sX, A_X, M*DM*2), (sWQ, A_WQKV, DM*3072*2), (sWO, A_WO, DM*DM*2),
            (sWG, B_WG, DM*FF*2), (sWU, B_WU, DM*FF*2), (sWD, B_WD, FF*DM*2), (sOUT, OUT, M*DM*2))
    if TL:
        p.ins('v_accvgpr_write_b32 a254, 0\nv_accvgpr_write_b32 a255, 0')
        k.T('start')
    for s_, slot, nb in srds: p.ins(f's_load_dwordx2 {sr(s_,2)}, s[0:1], {slot}')
    S = Pool(list(range(45, 92)) + [100, 101]); V = Regs('v', 10, 256)
    sfl = S.alloc(); spc = S.alloc(2, 2); s0 = S.alloc(); s1 = S.alloc()
    vl = V.alloc('lane'); vt = V.alloc('t', 8, 2)
    p.ins(f'v_lshrrev_b32 v1, 6, v0\nv_and_b32 {vr(vl)}, 63, v0\nv_readfirstlane_b32 {sr(sw)}, v1\nv_lshlrev_b32 v0, 4, {vr(vl)}')
    for s_, slot, nb in srds: p.ins(f's_mov_b32 {sr(s_+2)}, {nb}\ns_mov_b32 {sr(s_+3)}, 0x20000')
    def now(f, sep):
        if sep: p.ins('s_nop 0')
        f()

    SP = 150528
    EX, JL, XL, GL = SP, SP + 12288, 131072, 147456
    g1 = cfg['g1']
    NS1, SB1, WB1 = 7, 21504, 12288
    acc1 = V.alloc('acc1', 104, 4)
    vf, vc, vs = acc1, acc1 + 64, 220
    vov = V.alloc('lnov', 8, 4)
    assert vov == acc1 + 104
    vo = V.alloc('lno'); so = S.alloc(); sP = S.alloc(4, 4)
    jw = V.alloc('jw', 32, 4); js = V.alloc('js', 8); jad = V.alloc('jad', 3); Wv = V.alloc('Wv', 16, 4)
    ja, jc, ju, vsd = Wv, Wv + 8, Wv + 12, Wv + 15
    sjw = S.alloc(); sjo = S.alloc()
    p.ins(f's_and_b32 {sr(s0)}, s2, 3\ns_lshl2_add_u32 {sr(s0)}, {sr(s0)}, {sr(sw)}\ns_lshl_b32 {sr(s0)}, {sr(s0)}, 6')
    p.ins(f'v_and_b32 {vr(jad)}, 0x38, {vr(vl)}\nv_add_u32 {vr(jad)}, {sr(s0)}, {vr(jad)}\nv_lshlrev_b32 {vr(jad+1)}, 1, {vr(jad)}\nv_mul_u32_u24 {vr(jad)}, 12288, {vr(jad)}')
    p.ins(f'v_and_b32 {vr(vt)}, 7, {vr(vl)}\nv_lshl_add_u32 {vr(jad)}, {vr(vt)}, 4, {vr(jad)}\nv_mov_b32 {vr(jad+2)}, 0')
    vx = jw
    p.ins(f's_bfe_u32 {sr(sjw)}, s2, 0x40003\ns_and_b32 {sr(s1)}, s2, 4\ns_lshl2_add_u32 {sr(sjw)}, {sr(s1)}, {sr(sjw)}\ns_and_b32 {sr(s1)}, s2, 128\ns_lshl2_add_u32 {sr(sjw)}, {sr(sjw)}, {sr(s1)}\ns_lshl_b32 {sr(sjw)}, {sr(sjw)}, 5\ns_mov_b32 {sr(s1)}, {sr(sjw)}\ns_mov_b32 {sr(so)}, {WS_SEED}')
    p.ins(f'v_lshrrev_b32 {vr(vt+1)}, 3, {vr(vl)}\nv_lshlrev_b32 {vr(vo)}, 11, {vr(vt)}\nv_lshl_add_u32 {vr(vo)}, {vr(vt+1)}, 4, {vr(vo)}')
    p.ins(f's_and_b32 {sr(s0)}, s2, 127\ns_lshl_b32 {sr(s0)}, {sr(s0)}, 6\ns_add_u32 {sr(s0)}, {sr(s0)}, {sr(sw)}\ns_lshl_b32 {sr(s0)}, {sr(s0)}, 9\ns_cmp_lt_u32 s2, 128')
    p.ins('s_waitcnt lgkmcnt(0)')
    p.vm(f'buffer_load_dwordx4 {vr(jc,4)}, {vr(jad+1)}, {sr(sCC,4)}, 0 offen', 'jc')
    p.ins('s_cbranch_scc0 F_x')
    for i in range(8):
        p.vm(f'buffer_load_dwordx4 {vr(jw+4*i,4)}, {vr(jad)}, {sr(sWM,4)}, {sr(s1)} offen {g1.get("mfl", "nt")}', ('mw', i))
        if i < 7: p.ins(f's_add_u32 {sr(s1)}, {sr(s1)}, 12288')
    p.label('F_x')
    p.vm(f'buffer_load_dword {vr(vsd)}, {vr(jad+2)}, {sr(sWS,4)}, {sr(so)} offen sc1', 'seed')
    p.ins(f's_mov_b32 {sr(so)}, {sr(s0)}')
    def xloads():
        L = k.lab('F_xl')
        p.ins(f's_cmp_lt_u32 s2, 128\ns_cbranch_scc1 {L}')
        for i in range(8):
            if i == 4: p.ins(f's_add_u32 {sr(so)}, {sr(so)}, 16384')
            p.ins(f'buffer_load_dwordx4 {vr(vx+4*i,4)}, {vr(vo)}, {sr(sX,4)}, {sr(so)} offen offset:{128*(i&3)}')
        p.label(L)
    p.ins('s_getpc_b64 s[92:93]')
    p.label('PC0')
    p.ins(f's_sub_u32 s92, s92, PC0-{k.name}\ns_subb_u32 s93, s93, 0')
    p.ins('s_cmp_lt_u32 s2, 128\ns_cbranch_scc1 F_ct')
    hw = g1.get('help', 1)
    p.ins(f's_bfe_u32 {sr(s0)}, s2, 0x30004\ns_and_b32 {sr(s1)}, s2, 3\ns_lshl3_add_u32 {sr(s0)}, {sr(s1)}, {sr(s0)}\ns_mul_i32 {sr(s0)}, {sr(s0)}, {32*12288}\ns_and_b32 {sr(s1)}, s2, 4\ns_lshl_b32 {sr(s1)}, {sr(s1)}, 9\ns_add_u32 {sr(s0)}, {sr(s0)}, {sr(s1)}\ns_and_b32 {sr(s1)}, s2, 8\ns_lshl_b32 {sr(s1)}, {sr(s1)}, 7\ns_add_u32 {sr(s0)}, {sr(s0)}, {sr(s1)}')
    p.ins(f's_cmp_lt_u32 {sr(sw)}, {hw}\ns_cselect_b32 {sr(s0)}, {sr(s0)}, {OOB}\nv_and_b32 {vr(vt+7)}, 31, {vr(vl)}\nv_mul_u32_u24 {vr(vt+7)}, 12288, {vr(vt+7)}\nbuffer_load_dword a252, {vr(vt+7)}, {sr(sWM,4)}, {sr(s0)} offen offset:384')
    p.ins(f's_bfe_u32 {sr(s0)}, s2, 0x40003\ns_cmp_lt_u32 {sr(s0)}, (code_end-{k.name})/8192+1\ns_cselect_b32 {sr(s1)}, 3, 4\ns_lshl_b32 {sr(s0)}, {sr(s0)}, 13\nv_lshl_add_u32 {vr(vt+7)}, v0, 3, {sr(s0)}\ns_cmp_eq_u32 {sr(sw)}, {sr(s1)}\ns_cselect_b32 {sr(s1)}, -1, 0\nv_and_b32 {vr(vt+7)}, {sr(s1)}, {vr(vt+7)}\nglobal_load_dword a252, {vr(vt+7)}, s[92:93]')
    p.ins(f's_bfe_u32 {sr(s0)}, s2, 0x20003\ns_mul_i32 {sr(s0)}, {sr(s0)}, 24576\ns_lshr_b32 {sr(s1)}, s2, 5\ns_lshl3_add_u32 {sr(s1)}, {sr(sw)}, {sr(s1)}\ns_cmp_eq_u32 {sr(s1)}, 15\ns_cselect_b32 {sr(s0)}, {sr(s0)}, {OOB}\nv_lshlrev_b32 {vr(vt+7)}, 3, v0\nbuffer_load_dword a252, {vr(vt+7)}, {sr(sWS,4)}, {sr(s0)} offen sc1')
    p.label('F_ct')
    xp = g1.get('xpos', 4)

    sm = S.alloc(); sn = S.alloc(); swm = S.alloc(); shd = S.alloc()
    sK = S.alloc(); sXc = S.alloc(); sWL = S.alloc(3); sC = S.alloc(4, 2)
    waddr = V.alloc('waddr', 6); vdma = V.alloc('vdma', 3); va = V.alloc('va'); vxh = V.alloc('vxh'); aaddr = V.alloc('aaddr', 3); xaddr = V.alloc('xaddr', 3)
    u = vt + 2
    p.ins(f's_and_b32 {sr(s0)}, s2, 7\ns_lshr_b32 {sr(s1)}, s2, 3')
    p.ins(f's_and_b32 {sr(sn)}, {sr(s0)}, 3\ns_lshl_b32 {sr(sn)}, {sr(sn)}, 2\ns_and_b32 {sr(sm)}, {sr(s1)}, 3\ns_add_u32 {sr(sn)}, {sr(sn)}, {sr(sm)}')
    p.ins(f's_lshr_b32 {sr(sm)}, {sr(s0)}, 2\ns_lshl_b32 {sr(sm)}, {sr(sm)}, 3\ns_lshr_b32 {sr(s1)}, {sr(s1)}, 2\ns_add_u32 {sr(sm)}, {sr(sm)}, {sr(s1)}')
    p.ins(f's_lshr_b32 {sr(swm)}, {sr(sw)}, 1\ns_and_b32 {sr(shd)}, {sr(sw)}, 1')
    p.ins(f's_mul_i32 {sr(sWL)}, {sr(sw)}, 3072\ns_lshl_b32 {sr(sWL+1)}, {sr(sw)}, 11\ns_lshl_b32 {sr(sWL+2)}, {sr(sw)}, 8')
    vswz = V.alloc('swz')
    p.ins(f'v_bfe_u32 {vr(u)}, {vr(vl)}, 4, 2\nv_bfe_u32 {vr(u+1)}, {vr(vl)}, 1, 2\nv_xor_b32 {vr(u)}, {vr(u)}, {vr(u+1)}\nv_lshlrev_b32 {vr(u)}, 5, {vr(u)}\nv_and_b32 {vr(u+1)}, 1, {vr(vl)}\nv_lshl_add_u32 {vr(vswz)}, {vr(u+1)}, 4, {vr(u)}')
    p.ins(f's_lshl_b32 {sr(s0)}, {sr(sn)}, 7\ns_mul_i32 {sr(s1)}, {sr(sw)}, {8*6144}\ns_add_u32 {sr(s0)}, {sr(s0)}, {sr(s1)}\nv_mul_u32_u24 {vr(u)}, 6144, {vr(vt+1)}\nv_add3_u32 {vr(vdma)}, {vr(u)}, {vr(vswz)}, {sr(s0)}')
    p.ins(f'v_add_u32 {vr(vdma+1)}, 1024, {vr(vdma)}\nv_add_u32 {vr(vdma+2)}, 2048, {vr(vdma)}')
    vrd = V.alloc('rd')
    p.ins(f'v_bfe_u32 {vr(u)}, {vr(vl)}, 3, 2\nv_lshlrev_b32 {vr(u)}, 5, {vr(u)}\nv_and_b32 {vr(u+1)}, 3, {vr(vl)}\nv_lshl_add_u32 {vr(vrd)}, {vr(u+1)}, 3, {vr(u)}')
    p.ins(f'v_bfe_u32 {vr(u)}, {vr(vl)}, 2, 3\nv_lshrrev_b32 {vr(u+1)}, 5, {vr(vl)}\nv_mul_u32_u24 {vr(u+1)}, 24, {vr(u+1)}\nv_add_lshl_u32 {vr(u)}, {vr(u)}, {vr(u+1)}, 7')
    p.ins(f's_lshl_b32 {sr(s0)}, {sr(shd)}, 1\ns_add_u32 {sr(s0)}, {sr(s0)}, {sr(swm)}\ns_lshl_b32 {sr(s0)}, {sr(s0)}, 5\nv_xor_b32 {vr(u+1)}, {sr(s0)}, {vr(vrd)}\nv_add_u32 {vr(waddr)}, {vr(u)}, {vr(u+1)}\nv_xor_b32 {vr(waddr+1)}, 32, {vr(waddr)}')
    for st in (1, 2):
        p.ins(f'v_add_u32 {vr(waddr+2*st)}, {st*3*SB1}, {vr(waddr)}\nv_add_u32 {vr(waddr+2*st+1)}, {st*3*SB1}, {vr(waddr+1)}')
    p.ins(f's_lshl_b32 {sr(s0)}, {sr(sm)}, 2\ns_add_u32 {sr(s1)}, {sr(s0)}, {sr(sw)}\ns_lshl_b32 {sr(s1)}, {sr(s1)}, 16\ns_add_u32 {sr(s1)}, {sr(s1)}, {WS_H}\nv_add_u32 {vr(va)}, {sr(s1)}, v0')
    p.ins(f's_max_u32 {sr(s0)}, {sr(s0)}, 1\ns_lshl_b32 {sr(s0)}, {sr(s0)}, 16\ns_add_u32 {sr(s0)}, {sr(s0)}, {WS_H - 65536 + 1024}\ns_add_u32 {sr(s0)}, {sr(s0)}, {sr(sWL+2)}\nv_lshl_add_u32 {vr(vxh)}, {vr(vl)}, 2, {sr(s0)}')
    p.ins(f's_lshl_b32 {sr(s0)}, {sr(swm)}, 12')
    for st in range(3):
        p.ins(f'v_add_u32 {vr(xaddr+st)}, {st*3*SB1}, v0\nv_add_u32 {vr(aaddr+st)}, {sr(s0)}, {vr(xaddr+st)}')
    vph = V.alloc('pollh')
    p.ins(f's_lshl3_add_u32 {sr(s0)}, {sr(sm)}, 127\nv_min_u32 {vr(vph)}, 8, {vr(vl)}\nv_add_u32 {vr(vph)}, {sr(s0)}, {vr(vph)}\nv_max_u32 {vr(vph)}, 0x80, {vr(vph)}\nv_lshlrev_b32 {vr(vph)}, 7, {vr(vph)}')
    slot1 = lambda s: (s + 3) % NS1
    def dma1(s, n, E, EV):
        base = slot1(s) * SB1
        if n == 0: E(f's_mov_b32 {sr(sK)}, {s*32*6144}\ns_add_u32 m0, {sr(sWL)}, {base}')
        if n == 3: E(f's_mov_b32 {sr(sXc)}, {s*2048}\ns_add_u32 m0, {sr(sWL+1)}, {base + WB1}')
        if n == 5: E(f's_add_u32 m0, {sr(sWL+2)}, {base + SB1 - 1024}')
        if n < 3: t_ = f'buffer_load_dwordx4 {vr(vdma+n)}, {sr(sWQ,4)}, {sr(sK)} offen offset:{1024*n} lds'
        elif n < 5: t_ = f'buffer_load_dwordx4 {vr(va)}, {sr(sWS,4)}, {sr(sXc)} offen offset:{1024*(n-3)} sc1 lds'
        else: t_ = f'buffer_load_dword {vr(vxh)}, {sr(sWS,4)}, {sr(sXc)} offen sc1 lds'
        EV(VM(p, t_, ('D1', s, n)), n in (0, 3, 5))
    npre = 6; npw = g1.get('npw', 5); wln = g1.get('wln', 2)
    wops = [(lambda s=s, n=n: dma1(s, n, p.ins, now)) for s in range(npw) for n in range(3)]
    p.ins(f'v_lshlrev_b32 {vr(vt+6)}, 5, {vr(vt)}\nv_lshrrev_b32 {vr(vt+7)}, 4, {vr(vl)}\nv_lshl_add_u32 {vr(vt+6)}, {vr(vt+7)}, 3, {vr(vt+6)}\ns_add_u32 {sr(s0)}, {sr(sWL+2)}, {JL}\nv_add_u32 {vr(jad+1)}, {sr(s0)}, {vr(vt+6)}\nv_lshlrev_b32 {vr(jad+2)}, 2, {vr(vl)}')
    p.ins(f's_and_b32 {sr(s1)}, s2, 3\ns_mul_i32 {sr(sjo)}, {sr(s1)}, 24576\ns_lshl1_add_u32 {sr(sjo)}, {sr(sjw)}, {sr(sjo)}\ns_add_u32 {sr(sjw)}, {sr(sjw)}, 4096')
    k.T('f:setup')
    def gemv(tag, ja, ju, mid={}):
        C = []
        for i in range(8):
            if tag: C.append(WT(p, vm=[(tag, i)]))
            C += mid.get(i, [])
            for d in range(4):
                C.append(unpack(ju + 2 * (d & 1), jw + 4 * i + d))
                if d & 1:
                    for x in (0, 2):
                        if i == 0: C.append(f'v_pk_mul_f32 {vr(ja+2*(d-1)+x,2)}, {vr(ju+x,2)}, {vr(js,2)} op_sel_hi:[1,0]')
                        else: C.append(f'v_pk_fma_f32 {vr(ja+2*(d-1)+x,2)}, {vr(ju+x,2)}, {vr(js+(i&~1),2)}, {vr(ja+2*(d-1)+x,2)} op_sel:[0,{i&1},0] op_sel_hi:[1,{i&1},1]')
        C.append('s_nop 0')
        C += [f'v_permlane32_swap_b32 {vr(ja+i)}, {vr(ja+i+4)}' for i in range(4)]
        C += [f'v_add_f32 {vr(ja+i)}, {vr(ja+i)}, {vr(ja+i+4)}' for i in range(4)]
        C.append('s_nop 0')
        C += [f'v_permlane16_swap_b32 {vr(ja+i)}, {vr(ja+i+2)}' for i in range(2)]
        C += [f'v_add_f32 {vr(ja+i)}, {vr(ja+i)}, {vr(ja+i+2)}' for i in range(2)]
        C.append(f'v_add_u32 {vr(ju)}, {JL}, {vr(jad+2)}')
        C += [f'v_add_f32_dpp {vr(ja+i)}, {vr(ja+i)}, {vr(ja+i)} row_ror:8 row_mask:0xf bank_mask:0xf' for i in range(2)]
        C.append(LG(p, f'ds_write_b64 {vr(jad+1)}, {vr(ja,2)}'))
        return C
    assert js % 2 == 0
    if xp >= 3:
        p.ins('s_cmp_lt_u32 s2, 128\ns_cbranch_scc1 F_cw\ns_waitcnt vmcnt(4)')
        p.label('F_cw')
    p.wait(vm=['jc'])
    if xp == 3: xloads()
    k.T('f:c')
    for i in range(4): p.ins(unpack(js + 2 * i, jc + i))
    for op in ('mul', 'exp', 'add', 'rcp', 'fin'):
        for i in range(8):
            p.ins({'mul': f'v_mul_f32 {vr(ja+i)}, {f32(-LOG2E)}, {vr(js+i)}', 'exp': f'v_exp_f32 {vr(ja+i)}, {vr(ja+i)}', 'add': f'v_add_f32 {vr(ja+i)}, 1.0, {vr(ja+i)}',
                   'rcp': f'v_rcp_f32 {vr(ja+i)}, {vr(ja+i)}', 'fin': f'v_mul_f32 {vr(js+i)}, {vr(js+i)}, {vr(ja+i)}'}[op])
    for i in range(0, 8, 2): p.ins(rb2(js + i, ju))
    smk = S.alloc(2)
    if xp == 4: xloads()
    p.ins(f's_cmp_lt_u32 s2, 128\ns_cbranch_scc0 AL')
    p.items.append(('save', 'role'))
    def common():
        p.ins(f'v_readfirstlane_b32 {sr(sTok)}, {vr(vsd)}\n' + k.flag_off(sfl, FL_H) + f'\ns_mul_i32 {sr(sTok)}, {sr(sTok)}, 0x9e3779b1\ns_add_u32 {sr(sTok)}, {sr(sTok)}, 0x7f4a7c15')
        p.ins(f's_and_b32 {sr(smk)}, s2, 7\ns_bfe_u32 {sr(s1)}, s2, 0x20003\ns_lshl2_add_u32 {sr(smk)}, {sr(smk)}, {sr(s1)}\ns_lshr_b32 {sr(s1)}, s2, 5\ns_lshl3_add_u32 {sr(smk)}, {sr(smk)}, {sr(s1)}\ns_lshl1_add_u32 {sr(smk)}, {sr(smk)}, {sr(sw)}\ns_lshl_b32 {sr(smk)}, {sr(smk)}, 10\ns_add_u32 {sr(smk)}, {sr(smk)}, {WS_UT}')
        p.ins(f's_add_u32 {sr(sjo)}, {sr(sjo)}, 8192\ns_cmp_lt_u32 {sr(sw)}, 2\ns_cselect_b32 {sr(smk)}, {sr(smk)}, {OOB}\ns_cmp_eq_u32 {sr(sw)}, 2\ns_cselect_b32 {sr(smk+1)}, {sr(sjo)}, {OOB}')
    def marks(r):
        p.ins('\n'.join(f'v_mov_b32 {vr(r+i)}, -1' for i in range(4)))
        p.vm(f'buffer_store_dwordx4 {vr(r,4)}, v0, {sr(sWS,4)}, {sr(smk)} offen sc1')
        p.vm(f'buffer_store_dword {vr(r)}, {vr(jad+2)}, {sr(sWS,4)}, {sr(smk+1)} offen sc1', 'mk')
    weave(p, gemv('mw', ja, jc), [], 1)
    p.ins(f'v_and_b32 {vr(ja+4)}, 3, {vr(vl)}\nv_lshlrev_b32 {vr(ja+4)}, 3, {vr(ja+4)}\ns_cmp_eq_u32 {sr(sw)}, 0\ns_cselect_b32 {sr(s0)}, {sr(sjo)}, {OOB}')
    p.wait(lg='all')
    k.T('f:acc')
    p.ins('s_barrier')
    for i in range(4): p.lg(f'ds_read_b32 {vr(ja+i)}, {vr(jc)} offset:{256*i}', 'jr0')
    p.wait(vm=['seed'])
    common()
    p.ins(f'v_bfe_u32 {vr(ja+4)}, {sr(sTok)}, {vr(ja+4)}, 8\nv_mov_b32 {vr(ja+5)}, 0xffffff00')
    p.wait(lg=['jr0'])
    p.ins(f'v_add_f32 {vr(ja)}, {vr(ja)}, {vr(ja+1)}\nv_add_f32 {vr(ja+2)}, {vr(ja+2)}, {vr(ja+3)}\nv_add_f32 {vr(ja)}, {vr(ja)}, {vr(ja+2)}\nv_add_u32 {vr(ja)}, 0x80, {vr(ja)}\nv_and_or_b32 {vr(ja)}, {vr(ja)}, {vr(ja+5)}, {vr(ja+4)}')
    p.vm(f'buffer_store_dword {vr(ja)}, {vr(jad+2)}, {sr(sWS,4)}, {sr(s0)} offen sc1')
    k.T('f:part')
    marks(ja + 4)
    p.ins(f's_lshl_b32 {sr(s0)}, {sr(sw)}, 7\ns_add_u32 {sr(s0)}, {sr(s0)}, s2\ns_lshl_b32 {sr(s0)}, {sr(s0)}, 13\nv_lshlrev_b32 {vr(vt+2)}, 3, v0')
    t1 = VM(p, f'buffer_load_dword a252, {vr(vt+2)}, {sr(sWQ,4)}, {sr(so)} offen', 't1')
    p.ins(f's_mov_b32 {sr(so)}, {sr(s0)}')
    if g1.get('t1', 1) == 0: t1()
    p.ins(f's_mov_b32 {sr(sP+3)}, 0x20000\ns_sub_u32 {sr(s1)}, {sr(s0)}, {2<<20}\ns_add_u32 {sr(s0)}, {sr(s0)}, {4<<20}\ns_cmp_ge_u32 {sr(sw)}, 2\ns_cselect_b64 {sr(sP,2)}, {sr(sWO,2)}, {sr(sWQ,2)}\ns_cselect_b32 {sr(sP+2)}, {sr(sWO+2)}, {sr(sWQ+2)}\ns_cselect_b32 {sr(s0)}, {sr(s1)}, {sr(s0)}\nv_mov_b32 {vr(vt)}, {sr(sTok)}')
    p.wait(vm=['mk'])
    p.ins('s_barrier')
    k.flag_store(sfl, vt)
    if g1.get('t1', 1) == 1: t1()
    p.wait(vm=['t1'])
    def q3():
        p.ins(f's_lshr_b32 {sr(s1)}, s2, 3\ns_mul_i32 {sr(s1)}, {sr(s1)}, {64*6144}\ns_add_u32 {sr(s1)}, {sr(s1)}, {sr(sWL+1)}\ns_and_b32 {sr(so)}, s2, 2\ns_lshl_b32 {sr(so)}, {sr(so)}, 9\ns_add_u32 {sr(s1)}, {sr(s1)}, {sr(so)}')
        p.ins(f's_and_b32 {sr(so)}, s2, 1\ns_lshl2_add_u32 {sr(so)}, {sr(so)}, {sr(sw)}\ns_cmp_lt_u32 {sr(so)}, 3\ns_cselect_b32 {sr(s1)}, {sr(s1)}, {OOB}\nv_mul_u32_u24 {vr(vt+3)}, 6144, {vr(vl)}')
        p.vm(f'buffer_load_dword a252, {vr(vt+3)}, {sr(sWQ,4)}, {sr(s1)} offen offset:384')
    if g1.get('q3', 1) == 1: q3()
    p.vm(f'buffer_load_dword a252, {vr(vt+2)}, {sr(sP,4)}, {sr(s0)} offen')
    if g1.get('q3', 1) == 2: q3()
    k.T('f:t2')
    p.ins('s_branch J2\n.p2align 12')
    p.label('AL')
    p.items.append(('restore', 'role'))
    if xp == 5: xloads()
    p.ins('s_waitcnt vmcnt(8)')
    common()
    vpw, vpr, vsw, vsr = vt + 2, vt + 3, vt + 4, vt + 5
    p.ins(f's_add_u32 {sr(s0)}, {sr(sWL+1)}, {SP}\nv_add_u32 {vr(vpw)}, {sr(s0)}, v0\nv_lshl_add_u32 {vr(vpr)}, {vr(vt+1)}, 5, {sr(s0)}')
    p.ins(f'v_lshlrev_b32 {vr(vsr)}, 6, {vr(vt)}\nv_add_u32 {vr(vsr)}, {SP+8192}, {vr(vsr)}\ns_lshl_b32 {sr(s0)}, {sr(sw)}, 4\nv_add_u32 {vr(vsw)}, {sr(s0)}, {vr(vsr)}')
    p.ins(f'v_bfe_u32 {vr(vt+6)}, {vr(vl)}, 3, 1\nv_lshlrev_b32 {vr(vo)}, 9, {vr(vt+6)}\nv_bfe_u32 {vr(vt+6)}, {vr(vl)}, 4, 1\nv_lshl_add_u32 {vr(vo)}, {vr(vt+6)}, 8, {vr(vo)}')
    p.ins(f'v_lshrrev_b32 {vr(vt+6)}, 5, {vr(vl)}\nv_lshl_add_u32 {vr(vo)}, {vr(vt+6)}, 11, {vr(vo)}\nv_lshl_add_u32 {vr(vo)}, {vr(vt)}, 4, {vr(vo)}')
    p.ins(f's_bfe_u32 {sr(so)}, s2, 0x60001\ns_lshl2_add_u32 {sr(so)}, {sr(so)}, {sr(sw)}\ns_lshl_b32 {sr(so)}, {sr(so)}, 4\ns_and_b32 {sr(s0)}, s2, 1\ns_add_u32 {sr(so)}, {sr(so)}, {sr(s0)}\ns_lshl_b32 {sr(so)}, {sr(so)}, 10\ns_add_u32 {sr(so)}, {sr(so)}, {WS_H}')
    p.ins('\n'.join(f's_bfe_u32 {sr(sC+i)}, {sr(sTok)}, {hex(0x80000 + 8 * i)}' for i in range(4)))
    vh = ja + 4
    pe = g1.get('pearly', 2)
    def ploads():
        p.ins(f's_lshl_b32 {sr(s1)}, {sr(sw)}, 10')
        for q in range(4):
            p.vm(f'buffer_load_dwordx4 {vr(vs+4*q,4)}, v0, {sr(sWS,4)}, {sr(s1)} offen sc1', ('part', 2 * q))
            p.ins(f's_add_u32 {sr(s1)}, {sr(s1)}, 4096')
            p.vm(f'buffer_load_dwordx4 {vr(vc+4*q,4)}, v0, {sr(sWS,4)}, {sr(s1)} offen sc1', ('part', 2 * q + 1))
            if q < 3: p.ins(f's_add_u32 {sr(s1)}, {sr(s1)}, {24576-4096}')
    mv = jc
    for hf in range(2):
        q0 = vov
        for i in range(4):
            p.ins(f's_waitcnt vmcnt({7 - 4 * hf - i})')
            for d in range(4): p.ins(unpack(vf + 32*hf + 8*i + 2*d, vx + 16*hf + 4*i + d))
            for d in range(4):
                r = vf + 32 * hf + 8 * i + 2 * d; t_ = q0 + 4 * (d & 1)
                if i == 0 and d < 2: p.ins(f'v_pk_mul_f32 {vr(t_+2,2)}, {vr(r,2)}, {vr(r,2)}')
                else: p.ins(f'v_pk_fma_f32 {vr(t_+2,2)}, {vr(r,2)}, {vr(r,2)}, {vr(t_+2,2)}\nv_pk_add_f32 {vr(t_,2)}, {vr(r,2)}, {vr(r-4 if i == 0 else t_,2)}')
        p.ins(f'v_pk_add_f32 {vr(q0,2)}, {vr(q0,2)}, {vr(q0+4,2)}\nv_pk_add_f32 {vr(q0+2,2)}, {vr(q0+2,2)}, {vr(q0+6,2)}\nv_add_f32 {vr(ja+2*hf)}, {vr(q0)}, {vr(q0+1)}\nv_add_f32 {vr(ja+2*hf+1)}, {vr(q0+2)}, {vr(q0+3)}')
    if pe == 1: ploads()
    p.ins('s_nop 0')
    for i in range(4): p.ins(f'v_add_f32_dpp {vr(mv+i)}, {vr(ja+i)}, {vr(ja+i)} row_ror:8 row_mask:0xf bank_mask:0xf')
    for st in (16, 32):
        for i in range(4): p.ins(f'v_mov_b32 {vr(ja+i)}, {vr(mv+i)}')
        for i in range(4): p.ins(f'v_permlane{st}_swap_b32 {vr(mv+i)}, {vr(ja+i)}')
        for i in (0, 2): p.ins(f'v_pk_add_f32 {vr(mv+i,2)}, {vr(mv+i,2)}, {vr(ja+i,2)}')
    p.lg(f'ds_write_b128 {vr(vsw)}, {vr(mv,4)}')
    p.wait(lg='all')
    p.ins('s_barrier')
    for i in range(4): p.lg(f'ds_read_b128 {vr(vx+4*i,4)}, {vr(vsr)} offset:{16*i}')
    if pe == 2: ploads()
    p.wait(lg='all')
    for i in (0, 2, 4, 6): p.ins(f'v_pk_add_f32 {vr(vx+i,2)}, {vr(vx+i,2)}, {vr(vx+8+i,2)}')
    for i in (0, 2): p.ins(f'v_pk_add_f32 {vr(vx+i,2)}, {vr(vx+i,2)}, {vr(vx+4+i,2)}')
    for i in range(4): p.ins(f'v_mul_f32 {vr(mv+i)}, {f32(1/1024)}, {vr(vx+i)}')
    two = lambda f: p.ins('\n'.join(x for pr in zip(f(mv, mv + 1).split('\n'), f(mv + 2, mv + 3).split('\n')) for x in pr))
    two(lambda m_, v_: f'v_fma_f32 {vr(v_)}, -{vr(m_)}, {vr(m_)}, {vr(v_)}\nv_max_f32 {vr(v_)}, 0, {vr(v_)}\n' + rb(v_) + f'\nv_add_f32 {vr(v_)}, {f32(1e-5)}, {vr(v_)}\n' + rb(v_) + f'\nv_sqrt_f32 {vr(v_)}, {vr(v_)}\n' + rb(m_) + '\n' + rb(v_)
        + f'\nv_rcp_f32 {vr(v_)}, {vr(v_)}\nv_mul_f32 {vr(m_)}, -{vr(m_)}, {vr(v_)}')
    for i in range(0, 64, 2): p.ins(f'v_pk_fma_f32 {vr(vf+i,2)}, {vr(vf+i,2)}, {vr(mv+2*(i//32),2)}, {vr(mv+2*(i//32),2)} op_sel:[0,1,0] op_sel_hi:[1,1,0]')
    k.T('f:stat')
    p.ins(f's_mov_b32 {sr(spc)}, 30000' + ('\ns_branch PLC' if pe else ''))
    p.label('PLP')
    ploads()
    p.label('PLC')
    for n in range(8):
        r = (vs, vc)[n & 1] + 4 * (n >> 1)
        p.wait(vm=[('part', n)])
        for i in range(4): p.ins(f'v_xor_b32 {vr(r+i)}, {sr(sC+i)}, {vr(r+i)}')
        p.ins(f'v_or3_b32 {vr(vh)}, {vr(vh) if n else 0}, {vr(r)}, {vr(r+1)}\nv_or3_b32 {vr(vh)}, {vr(vh)}, {vr(r+2)}, {vr(r+3)}')
    p.ins(f'v_and_b32 {vr(vh)}, 0xff, {vr(vh)}\nv_cmp_ne_u32 vcc, 0, {vr(vh)}\ns_sub_u32 {sr(spc)}, {sr(spc)}, 1\ns_cmp_eq_u32 {sr(spc)}, 0\ns_cbranch_scc1 PLX\ns_nop 1\ns_cbranch_vccnz PLP')
    p.label('PLX')
    k.T('f:got')
    marks(ja)
    S.free(smk, 2)
    q0 = vh
    for i in (0, 2, 4, 6): p.ins(f'v_pk_add_f32 {vr(vc+i,2)}, {vr(vc+i,2)}, {vr(vc+8+i,2)}\nv_pk_add_f32 {vr(vs+i,2)}, {vr(vs+i,2)}, {vr(vs+8+i,2)}')
    for i in (0, 2): p.ins(f'v_pk_add_f32 {vr(vc+i,2)}, {vr(vc+i,2)}, {vr(vc+4+i,2)}\nv_pk_add_f32 {vr(vs+i,2)}, {vr(vs+i,2)}, {vr(vs+4+i,2)}')
    for r in (vs, vs + 2): p.ins(rb2(r, q0))
    p.lg(f'ds_write_b128 {vr(vpw)}, {vr(vs,4)} offset:1024')
    for r in (vc, vc + 2): p.ins(rb2(r, q0) + f'\nv_pk_add_f32 {vr(r,2)}, {vr(r,2)}, 1.0 op_sel_hi:[1,0]\n' + rb2(r, q0))
    p.lg(f'ds_write_b128 {vr(vpw)}, {vr(vc,4)}')
    for i in range(4):
        for h in range(2):
            p.lg(f'ds_read_b128 {vr(vs+8*i+4*h,4)}, {vr(vpr)} offset:{1024+256*i+16*h}')
            p.lg(f'ds_read_b128 {vr(vc+8*i+4*h,4)}, {vr(vpr)} offset:{256*i+16*h}', ('ms', i))
    C = []
    for i in range(4):
        C.append(WT(p, lg=[('ms', i)]))
        for hf in range(2):
            f_ = vf + 32 * hf + 8 * i
            for e in range(0, 8, 2): C.append(f'v_pk_fma_f32 {vr(f_+e,2)}, {vr(f_+e,2)}, {vr(vc+8*i+e,2)}, {vr(vs+8*i+e,2)}')
        for hf in range(2):
            for d in range(4): C.append(pk(vx + 16*hf + 4*i + d, vf + 32*hf + 8*i + 2*d))
        for hf in range(2):
            x_ = vx + 16 * hf + 4 * i
            C.append(f'v_permlane16_swap_b32 {vr(x_)}, {vr(x_+2)}\nv_permlane16_swap_b32 {vr(x_+1)}, {vr(x_+3)}')
        for hf in range(2): C.append(VM(p, f'buffer_store_dwordx4 {vr(vx+16*hf+4*i,4)}, {vr(vo)}, {sr(sWS,4)}, {sr(so)} offen offset:{128*hf} sc1', 'hs'))
        if i < 3: C.append(f's_add_u32 {sr(so)}, {sr(so)}, 4096')
    assert not weave(p, C, wops[:3 * wln], g1.get('wstep', 10), -8)
    k.publish('h', sfl, vt)
    p.label('J2')
    if stop == 0: return finish(k)
    S.free(sP, 4)

    sc = Sched(p, g1.get('cap', 2))
    R1, DAS1 = g1.get('R', 8), 2
    abuf, wbuf = A(0), A(40)
    SEG = {0: 1, 1: 1, 2: 2, 3: 2, 4: 0, 5: 0}
    def wrd(s, t, j, h):
        st, sl = divmod(slot1(s), 3)
        return waddr + 2 * st + (t & 1), sl * SB1 + h * 6144 + SEG[t] * 1024
    accr = lambda t, m: acc1 + (t * 4 + m) * 4 if m < 4 else acc1 + 96 + 2 * t
    co = Core(p, sc, NS1, 4, wbuf, R1, g1.get('lead', 18), abuf, DAS1, accr, wrd, ard=True, extra={0: [4], 2: [4]}, swap=(2, 3), KG=1, name='g1')
    nst = 32
    co.build([(s, t) for s in range(nst) for t in range(6)], wg=g1.get('wg', 2))
    alead = g1.get('alead', 18)
    co.barriers(lambda s: [('D1', s, n) for n in range(6)], alead=alead)
    MS = 26
    for f in wops[3 * wln:]: f()
    k.hop('a', 'AL', 'G3S', (1, 2, 3))
    k.poll('h', vph, FL_H, vt, spc)
    n0 = g1.get('n0', 3)
    for s in range(n0):
        for n in range(3, 6): dma1(s, n, p.ins, now)
    p.wait(vm=[('D1', 0, 5)])
    p.ins('s_barrier')
    ev = []
    for s in range(n0, npre):
        for n in range(3 if s < npw else 0, 6): ev.append((0, s, n))
    sc.vgap = lambda i: g1.get('vgap', 3)
    sc.mcap = lambda i: g1.get('mcap', 2)
    dsl = [i * MS // 6 for i in range(6)]
    for s in range(npre, nst):
        for n in range(6): ev.append((max(co.slotfree(s), co.bar[s - npre + 1]) + 1 + dsl[n], s, n))
    for e, s, n in ev:
        dma1(s, n, lambda t_: sc.add('v', max(e - 3, 0), co.bar[s], t_), lambda f, sep: sc.add('v', e, co.bar[s], f, sep=sep))
    lastd = e
    co.wreads()
    for s in range(nst):
        st, sl = divmod(slot1(s), 3)
        for i, m in enumerate((0, 1, 2, 3, 4)):
            ar, off = (xaddr + st, sl * SB1 + SB1 - 1024) if m == 4 else (aaddr + st, sl * SB1 + WB1 + m * 1024)
            dl = co.await_[(s, 0, m)]
            e = max(co.bar[s], co.alast[(s - DAS1, 0, m)] if s >= DAS1 else -1, dl - alead + 1 + 2 * i)
            co.rq.append((e, dl, LG(p, f'ds_read_b128 {vr(co.abf(s,0,m),4)}, {vr(ar)} offset:{off}', co.atag(s, 0, m))))
    co.flush_reads()

    sx0, sx1 = s0, s1
    pos = [g1.get('fpos', 100)]
    def F(txt, d=INF, sep=False):
        o = sc.add('x', int(pos[0]), d, txt, sep=sep)
        pos[0] += (txt.count('\n') + 1 if isinstance(txt, str) else 1) * g1.get('fstep', 1.6)
        return o
    u = vt
    sm2 = S.alloc(); sn2 = S.alloc(); sorg = S.alloc(); sro = S.alloc(); sW4 = S.alloc(); soo = S.alloc(2); sk2 = so
    sy = S.alloc(); sst = S.alloc(); sax = S.alloc(); sor2 = S.alloc()
    vw2 = V.alloc('vw2', 4); vro = V.alloc('ro', 2); ea = V.alloc('ea', 5); vM = V.alloc('pm', 4)
    wa2 = V.alloc('wa2', 8); vxa = V.alloc('xa', 4); va2 = V.alloc('va2'); vgo = V.alloc('go', 3); vpo = V.alloc('po', 4)
    F(f's_lshr_b32 {sr(sx1)}, s2, 3\ns_and_b32 {sr(sorg)}, {sr(sx1)}, 7\ns_and_b32 {sr(sx0)}, s2, 1\ns_lshl1_add_u32 {sr(sn2)}, {sr(sorg)}, {sr(sx0)}')
    ob = cfg['g2'].get('ob', 1)
    F(f's_and_b32 {sr(sor2)}, {sr(sorg)}, {(1 << ob) - 1}\ns_lshl_b32 {sr(sor2)}, {sr(sor2)}, {3 - ob}')
    F(f's_bfe_u32 {sr(sm2)}, s2, 0x20001\ns_lshr_b32 {sr(sx1)}, s2, 6\ns_lshl2_add_u32 {sr(sm2)}, {sr(sm2)}, {sr(sx1)}\ns_lshl_b32 {sr(sW4)}, {sr(sw)}, 12')
    F(f's_lshl_b32 {sr(sx0)}, {sr(sn2)}, 7\ns_lshl_b32 {sr(sx1)}, {sr(sw)}, 16\ns_add_u32 {sr(sx0)}, {sr(sx0)}, {sr(sx1)}\nv_lshrrev_b32 {vr(u)}, 3, {vr(vl)}\nv_lshlrev_b32 {vr(u)}, 11, {vr(u)}\nv_add3_u32 {vr(vw2)}, {vr(u)}, {vr(vswz)}, {sr(sx0)}')
    for i in range(1, 4): F(f'v_add_u32 {vr(vw2+i)}, {i*(16384-1024)}, {vr(vw2)}')
    osu2 = F(f's_lshl_b32 {sr(sro)}, {sr(sm2)}, 18\ns_add_u32 {sr(sro)}, {sr(sro)}, {sr(sx0)}')
    F(f'v_and_b32 {vr(u+1)}, 7, {vr(vl)}\nv_lshrrev_b32 {vr(u+2)}, 4, {vr(vl)}\nv_xor_b32 {vr(u+1)}, {vr(u+1)}, {vr(u+2)}\nv_lshl_add_u32 {vr(vro)}, {vr(u+1)}, 4, {vr(u)}\nv_xor_b32 {vr(vro+1)}, 64, {vr(vro)}\nv_add_u32 {vr(vro+1)}, {16384-1024}, {vr(vro+1)}')
    F(f's_lshl_b32 {sr(sx0)}, {sr(sw)}, 10\ns_add_u32 {sr(sx0)}, {sr(sx0)}, {GL}\nv_add_u32 {vr(vgo+2)}, {sr(sx0)}, v0\nv_lshl_add_u32 {vr(vgo)}, {vr(u+2)}, 4, {sr(sx0)}\nv_and_b32 {vr(u)}, 1, {vr(vl)}\nv_lshlrev_b32 {vr(u)}, 8, {vr(u)}\nv_sub_u32 {vr(vgo+1)}, {vr(vgo)}, {vr(u)}')
    F(f's_lshl_b32 {sr(sx0)}, {sr(sn2)}, 7\nv_and_b32 {vr(u+1)}, 0xf0, v0\nv_lshl_add_u32 {vr(u+1)}, {vr(u+2)}, 12, {vr(u+1)}\ns_lshl1_add_u32 {sr(sx0)}, {sr(sx0)}, 8192\nv_add_u32 {vr(vpo+1)}, {sr(sx0)}, {vr(u+1)}')
    F(f'v_lshrrev_b32 {vr(u)}, 2, {vr(vl)}\nv_lshl_add_u32 {vr(wa2)}, {vr(u)}, 7, {vr(vrd)}')
    for t in range(1, 8): F(f'v_xor_b32 {vr(wa2+t)}, {((t & 3) << 5) + ((t >> 2) << 16)}, {vr(wa2)}')
    F(f's_add_u32 {sr(sx0)}, {sr(sW4)}, {XL}\n' + xa_setup(vxa, u, sx0, vl))
    F(f's_lshl2_add_u32 {sr(sx0)}, {sr(sm2)}, {sr(sw)}\ns_lshl_b32 {sr(sx1)}, {sr(sx0)}, 16\ns_add_u32 {sr(sx1)}, {sr(sx1)}, {WS_O}\nv_add_u32 {vr(va2)}, {sr(sx1)}, v0')
    F(f's_lshl4_add_u32 {sr(sst)}, {sr(sx0)}, {sr(sn2)}\ns_lshl_b32 {sr(sst)}, {sr(sst)}, 8\ns_add_u32 {sr(sst)}, {sr(sst)}, {WS_ST}')
    F(f's_lshr_b32 {sr(sy)}, {sr(sx0)}, 1\ns_lshl4_add_u32 {sr(sy)}, {sr(sy)}, {sr(sn2)}\ns_and_b32 {sr(sx1)}, {sr(sx0)}, 1\ns_lshl2_add_u32 {sr(sy)}, {sr(sy)}, {sr(sx1)}\ns_lshl_b32 {sr(sy)}, {sr(sy)}, 11\ns_add_u32 {sr(sy)}, {sr(sy)}, {WS_Y}')
    F(f's_lshl1_add_u32 {sr(sax)}, {sr(sx0)}, {sr(sn2)}\ns_lshl_b32 {sr(sax)}, {sr(sax)}, 11\ns_add_u32 {sr(sax)}, {sr(sax)}, {WS_AUX}\ns_and_b32 {sr(sx0)}, {sr(sx0)}, 7\ns_cselect_b32 {sr(sax)}, {OOB}, {sr(sax)}')
    F(f's_and_b32 {sr(sx0)}, {sr(sm2)}, 7\ns_lshl_b32 {sr(sx0)}, {sr(sx0)}, 5\ns_lshr_b32 {sr(sx1)}, {sr(sm2)}, 3\ns_lshl2_add_u32 {sr(sx0)}, {sr(sx1)}, {sr(sx0)}')
    F(f'v_and_b32 {vr(u)}, 3, {vr(vl)}\nv_bfe_u32 {vr(u+1)}, {vr(vl)}, 2, 2\nv_lshl_add_u32 {vr(u)}, {vr(u+1)}, 3, {vr(u)}\nv_add_lshl_u32 {vr(vpo+2)}, {vr(u)}, {sr(sx0)}, 7')
    F(f'v_add_u32 {vr(vpo+2)}, {FL_O-FL_H}, {vr(vpo+2)}\nv_and_b32 {vr(u)}, 7, {vr(vl)}\nv_and_b32 {vr(u+1)}, 8, {vr(vl)}\nv_lshl_add_u32 {vr(u)}, {vr(u+1)}, 4, {vr(u)}\ns_lshl_b32 {sr(sx0)}, {sr(sn2)}, 3\nv_add_lshl_u32 {vr(u)}, {vr(u)}, {sr(sx0)}, 7\nv_cmp_gt_u32 vcc, 16, {vr(vl)}\ns_nop 1\nv_cndmask_b32 {vr(vpo+2)}, {vr(u)}, {vr(vpo+2)}, vcc')
    F(f's_lshl_b32 {sr(sx0)}, {sr(swm)}, 3\ns_add_u32 {sr(sx0)}, {sr(sx0)}, {EX}\nv_add_u32 {vr(u)}, {sr(sx0)}, v0\nv_add_u32 {vr(ea)}, {sr(sWL+1)}, {vr(u)}\nv_xor_b32 {vr(ea+1)}, 8, {vr(ea)}')
    F(f's_lshl_b32 {sr(sx0)}, {sr(shd)}, 11\ns_add_u32 {sr(sx0)}, {sr(sx0)}, 8192\nv_add_u32 {vr(ea+2)}, {sr(sx0)}, {vr(u)}\ns_lshl_b32 {sr(sx0)}, {sr(swm)}, 13\nv_subrev_u32 {vr(ea+3)}, {sr(sx0)}, {vr(ea+2)}\nv_xor_b32 {vr(ea+4)}, 8, {vr(ea+3)}')
    assert EX % 16 == 0
    q_ = lambda l: l & 15
    gg = lambda l: l >> 4
    mpa = lanemask(lambda l: not (4 * gg(l) + (l & 1) <= q_(l))); mpb = lanemask(lambda l: not (4 * gg(l) + 2 + (l & 1) <= q_(l)))
    mO, mPa, mPb = S.alloc(2, 2), S.alloc(2, 2), S.alloc(2, 2)
    F(smov64(mO, lanemask(lambda l: l & 1)) + '\n' + smov64(mPa, mpa) + '\n' + smov64(mPb, mpb))
    F(f'v_mov_b32 {vr(u)}, 0xffff\nv_mov_b32 {vr(u+1)}, 0xffff0000\nv_cndmask_b32 {vr(u)}, {vr(u)}, {vr(u+1)}, {sr(mO,2)}\nv_cndmask_b32 {vr(vM)}, 0, {vr(u)}, {sr(mPa,2)}\nv_cndmask_b32 {vr(vM+1)}, 0, {vr(u)}, {sr(mPb,2)}')
    F(f'v_xor_b32 {vr(vM+2)}, {vr(vM)}, {vr(u)}\nv_xor_b32 {vr(vM+3)}, {vr(vM+1)}, {vr(u)}')
    F(f's_lshl1_add_u32 {sr(sx0)}, {sr(sm)}, {sr(swm)}\ns_lshl_b32 {sr(soo)}, {sr(sx0)}, 17\ns_lshl1_add_u32 {sr(sx0)}, {sr(sn)}, {sr(shd)}\ns_lshl_b32 {sr(sx0)}, {sr(sx0)}, 11')
    F(f's_add_u32 {sr(soo)}, {sr(soo)}, {sr(sx0)}\ns_add_u32 {sr(soo)}, {sr(soo)}, {WS_O}\ns_add_u32 {sr(soo+1)}, {sr(soo)}, 65536\ns_or_b32 {sr(sm)}, {sr(sm)}, {sr(swm)}')
    F(k.flag_off(sfl, FL_O))
    S.free(sn); S.free(shd)
    sm3 = S.alloc(); sn3 = S.alloc(); sT3 = S.alloc(2); sWL3 = S.alloc(); sAb = S.alloc()
    wa3, vd3, SB3, ldw = 1, 3, 28672, 7168
    F(f's_lshr_b32 {sr(sx1)}, s2, 3\ns_and_b32 {sr(sn3)}, {sr(sx1)}, 3\ns_lshr_b32 {sr(sm3)}, {sr(sx1)}, 2\ns_lshl1_add_u32 {sr(sx1)}, {sr(sn3)}, {sr(sm3)}\ns_and_b32 {sr(sx1)}, {sr(sx1)}, 7\ns_and_b32 {sr(sx0)}, s2, 7\ns_lshl2_add_u32 {sr(sn3)}, {sr(sx0)}, {sr(sn3)}')
    for r, T in enumerate(g3_orders(cfg['g3'].get('aux', (6, 9)), cfg['g3'].get('leads'))):
        lo, hi = (sum(c << (4 * i) for i, c in enumerate(T[8*h:8*h+8])) for h in range(2))
        F(f's_mov_b32 {sr(sT3)}, 0x{lo:x}\ns_mov_b32 {sr(sT3+1)}, 0x{hi:x}' if r == 0 else f's_cmp_eq_u32 {sr(sx1)}, {r}\ns_cselect_b32 {sr(sT3)}, 0x{lo:x}, {sr(sT3)}\ns_cselect_b32 {sr(sT3+1)}, 0x{hi:x}, {sr(sT3+1)}')
    F(f's_mul_i32 {sr(sWL3)}, {sr(sw)}, 7168\ns_lshl2_add_u32 {sr(sAb)}, {sr(sm3)}, {sr(sw)}\ns_lshl_b32 {sr(sAb)}, {sr(sAb)}, 17\ns_add_u32 {sr(sAb)}, {sr(sAb)}, {WS_Y}')
    F(f's_cmp_ge_u32 {sr(sw)}, 2\ns_cselect_b64 {sr(sWG,2)}, {sr(sWU,2)}, {sr(sWG,2)}')
    F(f'v_lshrrev_b32 {vr(u)}, 2, {vr(vl)}\nv_mul_u32_u24 {vr(u)}, 224, {vr(u)}\nv_and_b32 {vr(u+1)}, 3, {vr(vl)}\nv_lshl_add_u32 {vr(wa3)}, {vr(u+1)}, 3, {vr(u)}\nv_add_u32 {vr(wa3+1)}, {2*SB3}, {vr(wa3)}')
    F(f's_mul_i32 {sr(sx0)}, {sr(sn3)}, 224\ns_and_b32 {sr(sx1)}, {sr(sw)}, 1\ns_mul_i32 {sr(sx1)}, {sr(sx1)}, {32*ldw}\ns_add_u32 {sr(sx0)}, {sr(sx0)}, {sr(sx1)}\ns_and_b32 {sr(sx1)}, {sr(sn3)}, 1\ns_lshl_b32 {sr(sx1)}, {sr(sx1)}, 1')
    for i in range(7):
        F(f'v_add_u32 {vr(u)}, {64*i}, {vr(vl)}\nv_mul_u32_u24 {vr(u+1)}, 4682, {vr(u)}\nv_lshrrev_b32 {vr(u+1)}, 16, {vr(u+1)}\nv_mul_i32_i24 {vr(u+2)}, -14, {vr(u+1)}\nv_add3_u32 {vr(u)}, {vr(u)}, {vr(u+2)}, {sr(sx1)}')
        F(f'v_add_u32 {vr(u+2)}, -14, {vr(u)}\nv_min_u32 {vr(u)}, {vr(u)}, {vr(u+2)}\nv_mul_u32_u24 {vr(u+1)}, {ldw}, {vr(u+1)}\nv_lshl_add_u32 {vr(u)}, {vr(u)}, 4, {vr(u+1)}\nv_add_u32 {vr(vd3+i)}, {sr(sx0)}, {vr(u)}')
        F(f's_sub_u32 {sr(sx0)}, {sr(sx0)}, {1024 if i != 3 else -3072}')
    F(f's_and_b32 {sr(sx0)}, {sr(sm3)}, 1\ns_lshl_b32 {sr(sx0)}, {sr(sx0)}, 7\ns_and_b32 {sr(sx1)}, {sr(sm3)}, 6\ns_add_u32 {sr(sx0)}, {sr(sx0)}, {sr(sx1)}')
    F(f'v_bfe_u32 {vr(u)}, {vr(vl)}, 1, 4\nv_and_b32 {vr(u+1)}, 1, {vr(vl)}\nv_lshl_add_u32 {vr(u)}, {vr(u)}, 3, {vr(u+1)}\nv_add_lshl_u32 {vr(vpo+3)}, {vr(u)}, {sr(sx0)}, 7')
    F(f'v_add_u32 {vr(vpo+3)}, {FL_Y-FL_H}, {vr(vpo+3)}\nv_and_b32 {vr(u)}, 7, {vr(vl)}\nv_lshlrev_b32 {vr(u)}, 5, {vr(u)}\ns_and_b32 {sr(sx0)}, s2, 31\nv_add_lshl_u32 {vr(u)}, {vr(u)}, {sr(sx0)}, 7\nv_cmp_gt_u32 vcc, 32, {vr(vl)}\ns_nop 1\nv_cndmask_b32 {vr(vpo+3)}, {vr(u)}, {vr(vpo+3)}, vcc', d=co.end - 30)
    def wo_dma(pc, i, E, EV):
        if i == 0: E(f's_add_u32 {sr(sk2)}, {sr(sor2)}, {pc}\ns_and_b32 {sr(sk2)}, {sr(sk2)}, 7\ns_lshl_b32 {sr(sk2)}, {sr(sk2)}, 18\ns_add_u32 m0, {sr(sW4)}, {pc*16384}')
        EV(VM(p, f'buffer_load_dwordx4 {vr(vw2+i)}, {sr(sWO,4)}, {sr(sk2)} offen offset:{1024*i} lds', ('D2', pc, i)), i == 0)
    e = lastd + 4
    def wo_in_loop(lo, hi, e):
        for pc in range(lo, hi):
            e = max(e, co.free_after(25 + ((pc + 1) * 16384 - 1) // SB1) + 1)
            for i in range(4):
                wo_dma(pc, i, lambda t_: sc.add('v', e - 4, INF, t_), lambda f, sep: sc.add('v', e, INF, f, sep=sep)); e += 4
        return e
    npl0, npl = g1.get('npl0', 0), g1.get('npl', 0)
    sc.add('v', e - 6, INF, 's_nop 0', after=osu2)
    e = wo_in_loop(0, npl0, e)
    if g1.get('jhelp', True):
        sc.add('v', e - 20, INF, f's_bfe_u32 {sr(sC)}, s2, 0x30004\ns_and_b32 {sr(sC+1)}, s2, 3\ns_lshl3_add_u32 {sr(sC)}, {sr(sC+1)}, {sr(sC)}\ns_lshl2_add_u32 {sr(sC)}, {sr(sC)}, {sr(sw)}\ns_mul_i32 {sr(sC)}, {sr(sC)}, {8*12288}\ns_and_b32 {sr(sC+1)}, {sr(sjw)}, 0x3800\ns_add_u32 {sr(sC)}, {sr(sC)}, {sr(sC+1)}\ns_and_b32 {sr(sC+1)}, s2, 8\ns_lshl_b32 {sr(sC+1)}, {sr(sC+1)}, 7\ns_add_u32 {sr(sC)}, {sr(sC)}, {sr(sC+1)}'
               f'\nv_and_b32 {vr(vph)}, 7, {vr(vl)}\nv_mul_u32_u24 {vr(vph)}, 12288, {vr(vph)}')
        sc.add('v', e, INF, VM(p, f'buffer_load_dword a252, {vr(vph)}, {sr(sWM,4)}, {sr(sC)} offen offset:384')); e += 4
    for i in range(8):
        sc.add('v', e, INF, VM(p, f'buffer_load_dwordx4 {vr(jw+4*i,4)}, {vr(jad)}, {sr(sWM,4)}, {sr(sjw)} offen nt', ('jw', i)))
        if i < 7: sc.add('v', e, INF, f's_add_u32 {sr(sjw)}, {sr(sjw)}, 12288')
        e += g1.get('jstep', 4)
    e = wo_in_loop(npl0, npl, e + g1.get('jgap', 80))
    assert e < co.end + 4
    sc.bias = dict(x=10000)
    k.ctouch(sc, g1.get('ct0', 40), lastd - 20, 270)
    kf = lambda m: accr(0, m) if m >= 0 else vov
    vd = lambda c, m: accr(2 + c, 0) + 2 * (m + 1)
    def cv(d, r): return pk(d, r) + '\n' + pk(d + 1, r + 2) if d != r + 2 else pk(d + 1, r + 2) + '\n' + pk(d, r)
    def X(e, txt): sc.add('x', e, INF, txt)
    hk, hv = accr(0, 4), accr(2, 4)
    e = co.cdone[(1, 0)] + 1
    X(e, cv(hk, hk) + '\n' + cv(kf(3), kf(3)) + '\n' + cv(kf(3) + 2, accr(1, 3)))
    X(e, LG(p, f'ds_write_b64 {vr(ea+2)}, {vr(hk,2)}'))
    X(e, LG(p, f'ds_write_b64 {vr(ea)}, {vr(kf(3),2)}'))
    X(e, LG(p, f'ds_write_b64 {vr(ea+1)}, {vr(kf(3)+2,2)}'))
    e = co.cdone[(2, 4)] + 2
    for m in range(4): X(e, cv(vd(0, m), accr(2, m)))
    X(e, cv(hv, hv))
    X(e, LG(p, f'ds_write_b64 {vr(ea)}, {vr(vd(0,3),2)} offset:1024'))
    X(e, LG(p, f'ds_write_b64 {vr(ea+2)}, {vr(hv,2)} offset:1024'))
    e = co.cdone[(3, 0)] + 3
    for m in range(4): X(e, cv(vd(1, m), accr(3, m)))
    X(e, LG(p, f'ds_write_b64 {vr(ea+1)}, {vr(vd(1,3),2)} offset:1024'))
    if TL:
        for s in g1.get('marks', (2, 6, 26)): sc.before(co.sfirst[s] + 1, lambda s=s: k.T(f'g1:s{s}'), 0)
    left = sc.run()
    k.T('g1:loopend')
    for st_, o in left: now(o.fn, o.sep)
    k.info = f'g1 over {sc.over} left {len(left)}'
    for m in (2, 1, 0): p.ins(cv(kf(m), kf(m)) + '\n' + cv(kf(m) + 2, accr(1, m)))
    p.wait(lg='all')
    p.ins('s_barrier')
    for c in range(2): p.lg(f'ds_read_b64 {vr(kf(-1)+2*c,2)}, {vr(ea+3+c)}', ('pk', c))
    for c in range(2): p.lg(f'ds_read_b64 {vr(vd(c,-1),2)}, {vr(ea+3+c)} offset:1024', ('pv', c))
    Q = lambda m: accr(4, m)
    Sv = lambda m, h: accr(5 if h else 1, m)
    P_ = lambda m: accr(1, m)
    O_ = lambda m, c: accr(4 if c else 0, m)
    C = []
    mF = sC
    C.append(f's_cmp_eq_u32 {sr(sm)}, 0\ns_cselect_b64 {sr(mF,2)}, {sr(mPa,2)}, 0\ns_cselect_b64 {sr(mF+2,2)}, {sr(mPb,2)}, 0')
    for m in (3, 2, 1, 0): C.append(cv(Q(m), Q(m)) + '\n' + cv(Q(m) + 2, accr(5, m)))
    C.append(f'v_mov_b32 {vr(vt)}, {f32(-1e9)}')
    for m in (3, 2, 1, 0):
        if m == 0: C.append(WT(p, lg=[('pk', 1)]))
        for h in (1, 0): C.append(f'{MFMA} {vr(Sv(m,h),4)}, {vr(kf(m-1+h),4)}, {vr(Q(m),4)}, 0')
    C.append('s_nop 1')
    SCL = (32 ** -0.5) * LOG2E
    def al(f):
        for m in (3, 2, 1, 0): C.append(f(m, Wv + 4 * m))
    al(lambda m, w: '\n'.join(f'v_cndmask_b32 {vr(w+i)}, {vr(Sv(m,i>>1)+2*(i&1))}, {vr(Sv(m,i>>1)+2*(i&1)+1)}, {sr(mO,2)}' for i in (2, 3, 0, 1)))
    al(lambda m, w: f'v_cndmask_b32 {vr(w)}, {vr(w+2)}, {vr(w)}, {sr(mPa,2)}\nv_cndmask_b32 {vr(w+1)}, {vr(w+3)}, {vr(w+1)}, {sr(mPb,2)}')
    al(lambda m, w: f'v_mul_f32 {vr(w)}, {f32(SCL)}, {vr(w)}\nv_mul_f32 {vr(w+1)}, {f32(SCL)}, {vr(w+1)}')
    C.append(f'v_cndmask_b32 {vr(Wv)}, {vr(Wv)}, {vr(vt)}, {sr(mF,2)}\nv_cndmask_b32 {vr(Wv+1)}, {vr(Wv+1)}, {vr(vt)}, {sr(mF+2,2)}')
    al(lambda m, w: f'v_max_f32 {vr(w+2)}, {vr(w)}, {vr(w+1)}')
    def xred(op):
        for st in (16, 32):
            al(lambda m, w: f'v_mov_b32 {vr(w+3)}, {vr(w+2)}')
            al(lambda m, w: f'v_permlane{st}_swap_b32 {vr(w+2)}, {vr(w+3)}')
            al(lambda m, w: f'{op} {vr(w+2)}, {vr(w+2)}, {vr(w+3)}')
    xred('v_max_f32')
    al(lambda m, w: f'v_sub_f32 {vr(w)}, {vr(w)}, {vr(w+2)}\nv_sub_f32 {vr(w+1)}, {vr(w+1)}, {vr(w+2)}')
    al(lambda m, w: f'v_exp_f32 {vr(w)}, {vr(w)}\nv_exp_f32 {vr(w+1)}, {vr(w+1)}')
    al(lambda m, w: f'v_add_f32 {vr(w+2)}, {vr(w)}, {vr(w+1)}')
    xred('v_add_f32')
    al(lambda m, w: f'v_rcp_f32 {vr(w+2)}, {vr(w+2)}')
    al(lambda m, w: f'v_mul_f32 {vr(w)}, {vr(w)}, {vr(w+2)}\nv_mul_f32 {vr(w+1)}, {vr(w+1)}, {vr(w+2)}')
    al(lambda m, w: f'v_cvt_pk_bf16_f32 {vr(w)}, {vr(w)}, {vr(w)}\nv_cvt_pk_bf16_f32 {vr(w+1)}, {vr(w+1)}, {vr(w+1)}')
    al(lambda m, w: '\n'.join(f'v_and_b32 {vr(P_(m)+i)}, {vr(vM+i)}, {vr(w+(i&1))}' for i in range(4)))
    wl = [(lambda pc=pc, i=i: wo_dma(pc, i, p.ins, now)) for pc in range(npl, 8) for i in range(4)]
    nat = g1.get('nat', 12)
    assert not weave(p, C, wl[:nat], g1.get('astep', 13), g1.get('afirst', 0))
    p.wait(lg='all')
    for m in (3, 2, 1, 0):
        for c in range(2): p.ins(f'{MFMA} {vr(O_(m,c),4)}, {vr(vd(c,m-1),4)}, {vr(P_(m),4)}, 0')
    p.ins(f's_cmp_eq_u32 {sr(swm)}, 1\ns_cselect_b64 vcc, -1, 0')
    for m in (3, 2, 1, 0):
        t_ = accr(5, m); w = Wv + 4 * m
        for i in range(4): p.ins(pk(t_ + i, O_(m, i >> 1) + 2 * (i & 1)))
        for i in range(4): p.ins(f'v_cndmask_b32 {vr(w+i)}, {vr(t_+i)}, {vr(t_+(i^2))}, vcc')
        p.vm(f'buffer_store_dwordx4 {vr(w,4)}, v0, {sr(sWS,4)}, {sr(soo+(m>>1))} offen offset:{1024*(m&1)} sc1')
    k.publish('o', sfl, vt)
    if stop == 1: return finish(k)
    def xd(m, q):
        if q == 0: p.ins(f's_add_u32 m0, {sr(sW4)}, {XL+2048*m}\n' + (f's_add_u32 {sr(s0)}, {sr(sro)}, 32768' if m else 's_nop 0'))
        p.vm(f'buffer_load_dwordx4 {vr(vro+q)}, {sr(sX,4)}, {sr(s0 if m else sro)} offen offset:{1024*q} lds', ('xd', m, q))
    def pgt():
        p.ins(f'v_lshrrev_b32 {vr(vt+2)}, 2, {vr(vl)}\nv_min_u32 {vr(vt+2)}, (XEND-G3S)/4096, {vr(vt+2)}\nv_and_b32 {vr(vt+3)}, 3, {vr(vl)}\nv_lshlrev_b32 {vr(vt+3)}, 7, {vr(vt+3)}\nv_lshl_add_u32 {vr(vt+2)}, {vr(vt+2)}, 12, {vr(vt+3)}')
        p.ins(f's_add_u32 s94, s92, AL-{k.name}+((G3S-AL+4095)/4096)*4096\ns_addc_u32 s95, s93, 0')
        p.vm(f'global_load_dword a252, {vr(vt+2)}, s[94:95]')
    wl = k.ctouch_now(g1.get('ctn', 3), 1536) + ([pgt] if cfg.get('hop', True) else []) + wl[nat:] + [(lambda m=m, q=q: xd(m, q)) for m in range(2) for q in range(2)]
    C = gemv(None, acc1, acc1 + 8)
    for f in weave(p, C[:-1], wl, g1.get('sstep', 5), -5): f()
    C[-1]()
    p.ins(k.flag_off(sfl, FL_Y))
    def jobfin(mid):
        p.wait(lg='all')
        p.ins('s_barrier')
        for i in range(4): p.lg(f'ds_read_b32 {vr(Wv+i)}, {vr(acc1+8)} offset:{256*i}', 'jr')
        p.ins(f's_cmp_eq_u32 {sr(sw)}, 1\ns_cselect_b32 {sr(s0)}, {sr(sjo)}, {OOB}')
        p.wait(lg=['jr'])
        p.ins(f'v_add_f32 {vr(Wv)}, {vr(Wv)}, {vr(Wv+1)}\nv_add_f32 {vr(Wv+2)}, {vr(Wv+2)}, {vr(Wv+3)}\nv_add_f32 {vr(Wv)}, {vr(Wv)}, {vr(Wv+2)}')
        p.vm(f'buffer_store_dword {vr(Wv)}, {vr(jad+2)}, {sr(sWS,4)}, {sr(s0)} offen sc1')
        S.free(sjo)
        mid()
    for r_, n_ in ((sm, 1), (swm, 1), (sK, 1), (sXc, 1), (sWL, 3), (sC, 4), (sjw, 1), (soo, 2), (so, 1), (mO, 2), (mPa, 2), (mPb, 2)): S.free(r_, n_)
    env = dict(locals())
    import k3b
    return k3b.rest(k, env)

def finish(k):
    p = k.p
    if TL:
        k.T('preend')
        p.ins('s_waitcnt vmcnt(0) lgkmcnt(0)')
        k.T('end')
        p.ins(f's_load_dwordx2 s[96:97], s[0:1], 88\nv_lshrrev_b32 v1, 2, v0\ns_lshl_b32 s98, s2, 12\ns_lshl_b32 s99, {sr(sw)}, 9\ns_add_u32 s98, s98, s99\ns_add_u32 s98, s98, {WS_STAMP}\nv_add_u32 v1, s98, v1\ns_waitcnt lgkmcnt(0)')
        p.ins('global_store_dword v1, a254, s[96:97]\nglobal_store_dword v1, a255, s[96:97] offset:256')
    p.label('XEND')
    p.ins('s_endpgm')
    t0 = k.text
    k.text = lambda: t0() + ''.join(k.cold)
    return k
```

```python
from sched import *

class Core:
    def __init__(self, p, sc, NS, WM, wbuf, R, lead, abuf, DAS, accr, wrd, ard=None, bmargin=8, extra=None, swap=(), KG=2, name='g'):
        self.p, self.sc, self.NS, self.WM, self.name = p, sc, NS, WM, name
        self.wbuf, self.R, self.lead, self.abuf, self.DAS = wbuf, R, lead, abuf, DAS
        if not callable(ard): ard = (lambda k_, v=ard: v)
        self.accr, self.wrd, self.ard, self.bmargin = accr, wrd, ard, bmargin
        self.touched = set()
        self.extra = extra or {}
        self.NA = WM + (1 if extra else 0)
        self.swap = swap; self.KG = KG
        self.base = len(sc.mf)
        self.rq = []; self.bar2 = {}; self.rtime = None
        self.wst = None
    def abf(self, s, j, m): return self.abuf + (((s % self.DAS) * self.KG + j) * self.NA + m) * 4
    def wbf(self, i): return self.wbuf + (i % self.R) * 4
    def atag(self, s, j, m): return ('A', self.name, s, j, m)
    def build(self, groups, wg=1, ins=None, fine0=False, tail=None):
        p, sc = self.p, self.sc
        groups = [([(ks, j) for j in range(self.KG)] if isinstance(ks, int) else ks, t) for ks, t in groups]
        self.groups = groups
        self.gpos = []; self.gend = []; self.f0 = []; self.fgrp = []
        self.afirst = {}; self.alast = {}; self.sfirst = {}; self.slast = {}; self.cdone = {}
        for g, (ks, t) in enumerate(groups):
            if ins and g in ins: ins[g](len(sc.mf))
            pos = len(sc.mf); self.gpos.append(pos)
            f0 = len(self.fgrp); self.f0.append(f0); self.fgrp += [g] * len(ks)
            ms = list(range(self.WM)) + self.extra.get(t, [])
            if g % 2: ms = ms[::-1]
            for n_, m in enumerate(ms):
                c = self.accr(t, m)
                if tail and g in tail and n_ % 2: sc.mf.append(tail[g](m, c))
                for q in (range(len(ks)) if n_ % 2 == 0 else range(len(ks) - 1, -1, -1)):
                    s, j = ks[q]
                    a, b = vr(self.wbf(f0 + q), 4), vr(self.abf(s, j, m), 4)
                    if t in self.swap: a, b = b, a
                    self.afirst.setdefault((s, j, m), len(sc.mf)); self.alast[(s, j, m)] = len(sc.mf)
                    sc.mf.append(f'{MFMA} {vr(c,4)}, {a}, {b}, {vr(c,4) if c in self.touched else 0}')
                    self.touched.add(c)
                if tail and g in tail and n_ % 2 == 0: sc.mf.append(tail[g](m, c))
                self.cdone[(t, m)] = len(sc.mf) - 1
            self.gend.append(len(sc.mf) - 1)
            for q, (s, j) in enumerate(ks):
                if self.wst: s = self.wst(g, q)[0]
                self.sfirst.setdefault(s, pos); self.slast[s] = pos
        self.end = len(sc.mf)
        seen = set()
        self.wdl = []; self.await_ = {}
        for g, (ks, t) in enumerate(groups):
            g0 = g - g % wg
            self.wdl.append(self.gpos[g0])
            if g % wg: continue
            gl = min(g + wg, len(groups)) - 1
            lg = [('W', self.name, i, 1) for i in range(self.f0[g], self.f0[gl] + len(groups[gl][0]))]
            vm = []
            for k_, f in self.afirst.items():
                if f <= self.gend[gl] and k_ not in seen:
                    seen.add(k_)
                    if fine0 and g == 0 and f > self.gpos[g]:
                        self.await_[k_] = f
                        sc.before(f, lambda k_=k_: p.wait(vm=[self.atag(*k_)]))
                        continue
                    self.await_[k_] = self.gpos[g]
                    (lg if self.ard(k_) else vm).append(self.atag(*k_))
            sc.before(self.gpos[g], lambda lg=lg, vm=vm: p.wait(vm=vm or None, lg=lg))
    def barriers(self, dtag, have=(0,), alead=0, grp=None):
        self.bar = {}; self.bars = []
        at = {}
        for s in sorted(self.sfirst, key=lambda s: self.sfirst[s]):
            if s in have: self.bar[s] = self.base - 1; continue
            b = max(self.sfirst[grp(s) if grp else s] - max(self.lead, alead) - self.bmargin, self.base + 1)
            self.bar[s] = b
            at.setdefault(b, []).extend(dtag(s))
        for b, vm in at.items(): self.addbar(b, vm=vm)
    def addbar(self, b, vm=None, lg=None):
        def f():
            if vm or lg: self.p.wait(vm=vm or None, lg=lg or None)
            self.p.ins('s_barrier')
        self.sc.before(b, f, 1 if b in self.gpos or not (vm or lg) else 2)
        self.bars.append(b)
    def nextbar(self, pos):
        return min(b for b in self.bars if b > pos)
    def free_after(self, o):
        return self.nextbar(max([self.slast[o]] + [v for k_, v in self.await_.items() if k_[0] == o and self.ard(k_)]))
    def slotfree(self, s):
        return self.base - 1 if s < self.NS else self.free_after(s - self.NS)
    def wreads(self):
        p = self.p
        for g, (ks, t) in enumerate(self.groups):
            n = self.gend[g] - self.gpos[g] + 1
            nr = 2 * len(ks)
            span = min(n, self.lead - 6 - (self.gpos[g] - self.wdl[g]))
            for q, (s, j) in enumerate(ks):
                i = self.f0[g] + q
                if self.wst: s, j = self.wst(g, q)
                e = max(self.bar2.get((s, t), self.bar[s]), self.gend[self.fgrp[i - self.R]] if i >= self.R else self.base - 1)
                for h in range(2):
                    areg, off = self.wrd(s, t, j, h)
                    assert 0 <= off < 65536
                    f = LG(p, f'ds_read_b64_tr_b16 {vr(self.wbf(i)+2*h,2)}, {vr(areg)} offset:{off}', ('W', self.name, i, h))
                    tt = self.gpos[g] - self.lead + (2 * q + h) * span // nr
                    if self.rtime: tt = min(tt, self.rtime(2 * i + h))
                    self.rq.append((max(e, tt), self.wdl[g] if max(e, tt) >= 0 else 0, f))
    def flush_reads(self, st='w'):
        for e, d, f in sorted(self.rq, key=lambda x: (max(x[0], self.base - 1), x[1])):
            self.sc.add(st, e, d, f)
        self.rq = []

def lead_chunk(ts, n, P=4):
    if ts % P == 0:
        return ts if ts == 0 else (ts + P if ts + P < n else P)
    return (ts + P) % n
```

```python
import sys
sys.path.insert(0, 'gen3'); sys.path.insert(0, 'gen')
from core3 import *
import kernels as KO
from kernels import f32, lanemask, LOG2E, A_X, A_WQKV, A_WO, B_WG, B_WU, B_WD, IN_C, W_MOD, OUT, WS

M, DM, FF = 2048, 1024, 3584
WS_MODP, WS_ST, WS_UT, WS_H, WS_FL, WS_AUX, WS_O, WS_ACT, WS_Y, WS_XC = 0x0, 0x40000, 0x80000, 0x100000, 0x500000, 0x580000, 0x700000, 0x1300000, 0x2300000, 0x2800000
WS_SIZE = 0x3000000
WS_STAMP = 0x3000000
OOB = 0x40000000
FL_H, FL_O, FL_JOB, FL_Y, FL_UT, FL_AE, FL_AL, FL_XC = [WS_FL + 32768 * i for i in range(8)]
sX, sWQ, sWO, sWG, sWU, sWD, sWM, sOUT, sWS, sCC = [4 + 4 * i for i in range(10)]
sw = 44
sTok = 3
WS_SEED = WS_FL + 8 * 32768
KNAME = 'adaLN_cond__sliding_local_dilated__swiglu_ffn__prompt_kernel'
INF = 1 << 30
TL = False
LN2 = 0.6931471805599453

def A(n): return AOFF + n
def rb(d, s=None):
    s = d if s is None else s
    return f'v_cvt_pk_bf16_f32 {vr(d)}, {vr(s)}, {vr(s)}\nv_lshlrev_b32 {vr(d)}, 16, {vr(d)}'
def rb2(a, t):
    return f'v_cvt_pk_bf16_f32 {vr(t)}, {vr(a)}, {vr(a+1)}\nv_lshlrev_b32 {vr(a)}, 16, {vr(t)}\nv_and_b32 {vr(a+1)}, 0xffff0000, {vr(t)}'
def unpack(d, s):
    return f'v_lshlrev_b32 {vr(d)}, 16, {vr(s)}\nv_and_b32 {vr(d+1)}, 0xffff0000, {vr(s)}'
def pk(d, a): return f'v_cvt_pk_bf16_f32 {vr(d)}, {vr(a)}, {vr(a+1)}'
def smov64(s, m): return f's_mov_b32 {sr(s)}, 0x{m & 0xffffffff:08x}\ns_mov_b32 {sr(s+1)}, 0x{m >> 32:08x}'

class Pool:
    def __init__(self, regs): self.free_ = set(regs)
    def alloc(self, n=1, align=1):
        for a in sorted(self.free_):
            if a % align == 0 and all(a + i in self.free_ for i in range(n)):
                self.free_ -= set(range(a, a + n)); return a
        raise AssertionError('out of registers')
    def free(self, a, n=1):
        assert not (set(range(a, a + n)) & self.free_)
        self.free_ |= set(range(a, a + n))

def g3_orders(aux=(6, 9), leads=None):
    O = [{aux[0]: r, aux[1]: 8 + r} for r in range(8)]
    r = 0
    for s in sorted(leads or {}):
        for c in leads[s]:
            while s in O[r] or c in O[r].values(): r = (r + 1) % 8
            O[r][s] = c; r = (r + 1) % 8
    T = []
    for o in O:
        rest = [c for c in range(16) if c not in o.values()]
        T.append([o[s] if s in o else rest.pop(0) for s in range(16)])
    return T

class K3:
    def __init__(self, name, cfg):
        self.name, self.cfg = name, cfg
        self.p = Prog(); self.tn = []; self.nl = 0
        self.nthreads, self.nwg = 256, 256
    def T(self, nm):
        if not TL: return
        i = len(self.tn); self.tn.append(nm)
        self.p.ins(f's_memrealtime s[96:97]\ns_memtime s[98:99]\nv_accvgpr_write_b32 a253, v0\nv_accvgpr_read_b32 v0, a254\ns_waitcnt lgkmcnt(0)\nv_writelane_b32 v0, s96, {i}\nv_accvgpr_write_b32 a254, v0\n'
                   f'v_accvgpr_read_b32 v0, a255\ns_nop 0\nv_writelane_b32 v0, s98, {i}\nv_accvgpr_write_b32 a255, v0\nv_accvgpr_read_b32 v0, a253')
    def lab(self, s):
        self.nl += 1
        return f'{s}{self.nl}'
    def text(self): return '.p2align 12\n.p2align 8\n' + self.p.text().replace('  .p2align', '.p2align').replace('  ; HOPS', '; HOPS')
    def desc(self, minv=0): return kdesc(self.name, 512, 102, 256)
    def launch(self): return f'; @launch kernel={self.name} grid=(256,1,1) block=(256,1,1) lds=163840' if self.cfg.get('list', False) else '; @launch grid=(256,1,1) block=(256,1,1) lds=163840'

    def flag_off(self, d, region, wave=0):
        return f's_lshl_b32 {sr(d)}, s2, 7\ns_add_u32 {sr(d)}, {sr(d)}, {region}\ns_cmp_eq_u32 {sr(sw)}, {wave}\ns_cselect_b32 {sr(d)}, {sr(d)}, {OOB}'
    def flag_store(self, sd, v1):
        self.p.ins('s_mov_b64 exec, 1')
        self.p.vm(f'buffer_store_dword {vr(v1)}, v0, {sr(sWS,4)}, {sr(sd)} offen sc1')
        self.p.ins('s_mov_b64 exec, -1')
    def publish(self, nm, sd, v1, vm='all'):
        p = self.p
        self.T(nm + ':pre')
        p.ins(f'v_mov_b32 {vr(v1)}, {sr(sTok)}')
        p.wait(vm=vm, lg='all')
        p.ins('s_barrier')
        self.flag_store(sd, v1)
        self.T(nm + ':pub')
    def poll(self, nm, voff, region, vd, sc_, wave=0, pre=None, n=1, join=None):
        p = self.p
        L = self.lab('SM')
        self.T(nm + ':btw')
        p.ins(f's_cmp_lg_u32 {sr(sw)}, {wave}\ns_cbranch_scc1 {L}x\ns_mov_b32 {sr(sc_)}, 60000\ns_mov_b32 {sr(sc_+1)}, {region}')
        p.label(L)
        p.ins(f'buffer_load_dword{"x4" if n == 4 else ""} {vr(vd,n)}, {vr(voff)}, {sr(sWS,4)}, {sr(sc_+1)} offen sc1')
        p.ins(f's_sub_u32 {sr(sc_)}, {sr(sc_)}, 1\ns_cmp_eq_u32 {sr(sc_)}, 0\ns_waitcnt vmcnt(0)\ns_cbranch_scc1 {L}x')
        if n == 4: p.ins(f'v_and_b32 {vr(vd)}, {vr(vd)}, {vr(vd+1)}\nv_and_b32 {vr(vd+2)}, {vr(vd+2)}, {vr(vd+3)}\nv_and_b32 {vr(vd)}, {vr(vd)}, {vr(vd+2)}')
        p.ins(f'v_cmp_ne_u32 vcc, {sr(sTok)}, {vr(vd)}\ns_nop 4\ns_cbranch_vccnz {L}')
        p.label(L + 'x')
        if pre: pre()
        if join: p.label(join)
        p.ins('s_barrier')
        self.T(nm + ':rel')
    def check(self, voff, soff, vd, sc_, tag, n=1):
        p = self.p
        L = self.lab('CK')
        tst = ''
        if n == 4: tst = f'v_and_b32 {vr(vd)}, {vr(vd)}, {vr(vd+1)}\nv_and_b32 {vr(vd+2)}, {vr(vd+2)}, {vr(vd+3)}\nv_and_b32 {vr(vd)}, {vr(vd)}, {vr(vd+2)}\n'
        tst += f'v_cmp_ne_u32 vcc, {sr(sTok)}, {vr(vd)}\ns_nop 4'
        if self.cfg.get('ckm'): self.T(f'{tag}:a')
        p.wait(vm=[tag])
        if self.cfg.get('ckm'): self.T(f'{tag}:b')
        p.ins(tst + f'\ns_cbranch_vccnz {L}s')
        p.label(L + 'x')
        if self.cfg.get('ckm'): self.T(f'{tag}:c')
        self.cold.append(f'{L}s:\n  s_mov_b32 {sr(sc_)}, 60000\n{L}:\n  buffer_load_dword{"x4" if n == 4 else ""} {vr(vd,n)}, {vr(voff)}, {sr(sWS,4)}, {sr(soff)} offen sc1\n'
                         f'  s_sub_u32 {sr(sc_)}, {sr(sc_)}, 1\n  s_cmp_eq_u32 {sr(sc_)}, 0\n  s_waitcnt vmcnt(0)\n  s_cbranch_scc1 {L}x\n  ' + tst.replace('\n', '\n  ') + f'\n  s_cbranch_vccnz {L}\n  s_branch {L}x\n')
    def dcheck(self, nm, loads, test, vt_, sc_, op='v_cmp_eq_u32 vcc, -1'):
        p = self.p
        L = self.lab('CK')
        cmp_ = f'{op}, {vr(vt_)}\ns_nop 4'
        if self.cfg.get('ckm'): self.T(f'{nm}:b')
        p.ins(cmp_ + f'\ns_cbranch_vccnz {L}s')
        p.label(L + 'x')
        if self.cfg.get('ckm'): self.T(f'{nm}:c')
        body = loads + f'\ns_sub_u32 {sr(sc_)}, {sr(sc_)}, 1\ns_waitcnt vmcnt(0)\n' + test + f'\ns_cmp_eq_u32 {sr(sc_)}, 0\ns_cbranch_scc1 {L}x\n' + cmp_ + f'\ns_cbranch_vccnz {L}\ns_branch {L}x'
        self.cold.append(f'{L}s:\n  s_mov_b32 {sr(sc_)}, 30000\n{L}:\n  ' + body.replace('\n', '\n  ') + '\n')
    def hop(self, nm, lo, hi, waves):
        if not self.cfg.get('hop', True): return
        p = self.p
        p.ins(f'; HOPS {nm} {lo} {hi} {len(waves)}\ns_mov_b64 exec, 0')
        for c, w in enumerate(waves): p.ins(f's_cmp_eq_u32 {sr(sw)}, {w}\ns_cbranch_scc1 H{nm}{c}')
        p.label(f'R{nm}')
        p.ins('s_mov_b64 exec, -1')
    def ctouch_now(self, n, lead):
        if not self.cfg.get('ct', True): return []
        L = self.lab('CT')
        self.p.label(L)
        def f(i):
            self.p.ins(f's_add_u32 s94, s92, {L}-{self.name}+{lead + 4096 * i}\ns_addc_u32 s95, s93, 0')
            self.p.vm('global_load_dword a252, v0, s[94:95]')
        return [(lambda i=i: f(i)) for i in range(n)]
    def ctouch(self, sc, lo, hi, step, lead=3072):
        if not self.cfg.get('ct', True): return
        for pos in range(lo, hi, step):
            def f():
                L = self.lab('CT')
                self.p.label(L)
                self.p.ins(f's_add_u32 s94, s92, {L}-{self.name}+{lead}\ns_addc_u32 s95, s93, 0')
            o = sc.add('y', pos, INF, f, cost=2); o.wscc = True
            sc.add('y', pos, INF, VM(self.p, 'global_load_dword a252, v0, s[94:95]'))

def xa_setup(vxa, u, sxl, vl):
    t_ = f'v_and_b32 {vr(u)}, 15, {vr(vl)}\nv_lshrrev_b32 {vr(u+2)}, 1, {vr(u)}\nv_lshrrev_b32 {vr(u+1)}, 5, {vr(vl)}\nv_xor_b32 {vr(u+2)}, {vr(u+2)}, {vr(u+1)}\nv_lshlrev_b32 {vr(u+2)}, 4, {vr(u+2)}\nv_lshl_add_u32 {vr(u+2)}, {vr(u)}, 7, {vr(u+2)}\n'
    t_ += f'v_bfe_u32 {vr(u+1)}, {vr(vl)}, 4, 1\nv_lshl_add_u32 {vr(u+2)}, {vr(u+1)}, 3, {vr(u+2)}\nv_add_u32 {vr(vxa)}, {sr(sxl)}, {vr(u+2)}\n'
    return t_ + '\n'.join(f'v_xor_b32 {vr(vxa+t)}, {t<<5}, {vr(vxa)}' for t in range(1, 4))

def weave(p, code, ops, step, first=0):
    ops = list(ops); n = -first
    for c in code:
        for t in (c.split('\n') if isinstance(c, str) else [c]):
            p.ins(t) if isinstance(t, str) else t()
            n += 1
            if ops and n >= step and isinstance(t, str) and t.startswith('v_') and not t.startswith('v_mfma'):
                ops.pop(0)(); n = 0
    return ops

def build_k3(cfg):
    k = K3(KNAME, cfg); p = k.p
    k.cold = []
    stop = cfg.get('stop', 9)
    p.label(k.name)
    p.ins(f's_cmp_ge_u32 s2, 256\ns_cbranch_scc1 XEND')
    srds = ((sWS, WS, WS_SIZE), (sCC, IN_C, 2048), (sWM, W_MOD, 1024*6144*2), (sX, A_X, M*DM*2), (sWQ, A_WQKV, DM*3072*2), (sWO, A_WO, DM*DM*2),
            (sWG, B_WG, DM*FF*2), (sWU, B_WU, DM*FF*2), (sWD, B_WD, FF*DM*2), (sOUT, OUT, M*DM*2))
    if TL:
        p.ins('v_accvgpr_write_b32 a254, 0\nv_accvgpr_write_b32 a255, 0')
        k.T('start')
    for s_, slot, nb in srds: p.ins(f's_load_dwordx2 {sr(s_,2)}, s[0:1], {slot}')
    S = Pool(list(range(45, 92)) + [100, 101]); V = Regs('v', 10, 256)
    sfl = S.alloc(); spc = S.alloc(2, 2); s0 = S.alloc(); s1 = S.alloc()
    vl = V.alloc('lane'); vt = V.alloc('t', 8, 2)
    p.ins(f'v_lshrrev_b32 v1, 6, v0\nv_and_b32 {vr(vl)}, 63, v0\nv_readfirstlane_b32 {sr(sw)}, v1\nv_lshlrev_b32 v0, 4, {vr(vl)}')
    for s_, slot, nb in srds: p.ins(f's_mov_b32 {sr(s_+2)}, {nb}\ns_mov_b32 {sr(s_+3)}, 0x20000')
    def now(f, sep):
        if sep: p.ins('s_nop 0')
        f()

    SP = 150528
    EX, JL, XL, GL = SP, SP + 12288, 131072, 147456
    g1 = cfg['g1']
    NS1, SB1, WB1 = 7, 21504, 12288
    acc1 = V.alloc('acc1', 104, 4)
    vf, vc, vs = acc1, acc1 + 64, 220
    vov = V.alloc('lnov', 8, 4)
    assert vov == acc1 + 104
    vo = V.alloc('lno'); so = S.alloc(); sP = S.alloc(4, 4)
    jw = V.alloc('jw', 32, 4); js = V.alloc('js', 8); jad = V.alloc('jad', 3); Wv = V.alloc('Wv', 16, 4)
    ja, jc, ju, vsd = Wv, Wv + 8, Wv + 12, Wv + 15
    sjw = S.alloc(); sjo = S.alloc()
    p.ins(f's_and_b32 {sr(s0)}, s2, 3\ns_lshl2_add_u32 {sr(s0)}, {sr(s0)}, {sr(sw)}\ns_lshl_b32 {sr(s0)}, {sr(s0)}, 6')
    p.ins(f'v_and_b32 {vr(jad)}, 0x38, {vr(vl)}\nv_add_u32 {vr(jad)}, {sr(s0)}, {vr(jad)}\nv_lshlrev_b32 {vr(jad+1)}, 1, {vr(jad)}\nv_mul_u32_u24 {vr(jad)}, 12288, {vr(jad)}')
    p.ins(f'v_and_b32 {vr(vt)}, 7, {vr(vl)}\nv_lshl_add_u32 {vr(jad)}, {vr(vt)}, 4, {vr(jad)}\nv_mov_b32 {vr(jad+2)}, 0')
    vx = jw
    p.ins(f's_bfe_u32 {sr(sjw)}, s2, 0x40003\ns_and_b32 {sr(s1)}, s2, 4\ns_lshl2_add_u32 {sr(sjw)}, {sr(s1)}, {sr(sjw)}\ns_and_b32 {sr(s1)}, s2, 128\ns_lshl2_add_u32 {sr(sjw)}, {sr(sjw)}, {sr(s1)}\ns_lshl_b32 {sr(sjw)}, {sr(sjw)}, 5\ns_mov_b32 {sr(s1)}, {sr(sjw)}\ns_mov_b32 {sr(so)}, {WS_SEED}')
    p.ins(f'v_lshrrev_b32 {vr(vt+1)}, 3, {vr(vl)}\nv_lshlrev_b32 {vr(vo)}, 11, {vr(vt)}\nv_lshl_add_u32 {vr(vo)}, {vr(vt+1)}, 4, {vr(vo)}')
    p.ins(f's_and_b32 {sr(s0)}, s2, 127\ns_lshl_b32 {sr(s0)}, {sr(s0)}, 6\ns_add_u32 {sr(s0)}, {sr(s0)}, {sr(sw)}\ns_lshl_b32 {sr(s0)}, {sr(s0)}, 9\ns_cmp_lt_u32 s2, 128')
    p.ins('s_waitcnt lgkmcnt(0)')
    p.vm(f'buffer_load_dwordx4 {vr(jc,4)}, {vr(jad+1)}, {sr(sCC,4)}, 0 offen', 'jc')
    p.ins('s_cbranch_scc0 F_x')
    for i in range(8):
        p.vm(f'buffer_load_dwordx4 {vr(jw+4*i,4)}, {vr(jad)}, {sr(sWM,4)}, {sr(s1)} offen {g1.get("mfl", "nt")}', ('mw', i))
        if i < 7: p.ins(f's_add_u32 {sr(s1)}, {sr(s1)}, 12288')
    p.label('F_x')
    p.vm(f'buffer_load_dword {vr(vsd)}, {vr(jad+2)}, {sr(sWS,4)}, {sr(so)} offen sc1', 'seed')
    p.ins(f's_mov_b32 {sr(so)}, {sr(s0)}')
    def xloads():
        L = k.lab('F_xl')
        p.ins(f's_cmp_lt_u32 s2, 128\ns_cbranch_scc1 {L}')
        for i in range(8):
            if i == 4: p.ins(f's_add_u32 {sr(so)}, {sr(so)}, 16384')
            p.ins(f'buffer_load_dwordx4 {vr(vx+4*i,4)}, {vr(vo)}, {sr(sX,4)}, {sr(so)} offen offset:{128*(i&3)}')
        p.label(L)
    p.ins('s_getpc_b64 s[92:93]')
    p.label('PC0')
    p.ins(f's_sub_u32 s92, s92, PC0-{k.name}\ns_subb_u32 s93, s93, 0')
    p.ins('s_cmp_lt_u32 s2, 128\ns_cbranch_scc1 F_ct')
    hw = g1.get('help', 1)
    p.ins(f's_bfe_u32 {sr(s0)}, s2, 0x30004\ns_and_b32 {sr(s1)}, s2, 3\ns_lshl3_add_u32 {sr(s0)}, {sr(s1)}, {sr(s0)}\ns_mul_i32 {sr(s0)}, {sr(s0)}, {32*12288}\ns_and_b32 {sr(s1)}, s2, 4\ns_lshl_b32 {sr(s1)}, {sr(s1)}, 9\ns_add_u32 {sr(s0)}, {sr(s0)}, {sr(s1)}\ns_and_b32 {sr(s1)}, s2, 8\ns_lshl_b32 {sr(s1)}, {sr(s1)}, 7\ns_add_u32 {sr(s0)}, {sr(s0)}, {sr(s1)}')
    p.ins(f's_cmp_lt_u32 {sr(sw)}, {hw}\ns_cselect_b32 {sr(s0)}, {sr(s0)}, {OOB}\nv_and_b32 {vr(vt+7)}, 31, {vr(vl)}\nv_mul_u32_u24 {vr(vt+7)}, 12288, {vr(vt+7)}\nbuffer_load_dword a252, {vr(vt+7)}, {sr(sWM,4)}, {sr(s0)} offen offset:384')
    p.ins(f's_bfe_u32 {sr(s0)}, s2, 0x40003\ns_cmp_lt_u32 {sr(s0)}, (code_end-{k.name})/8192+1\ns_cselect_b32 {sr(s1)}, 3, 4\ns_lshl_b32 {sr(s0)}, {sr(s0)}, 13\nv_lshl_add_u32 {vr(vt+7)}, v0, 3, {sr(s0)}\ns_cmp_eq_u32 {sr(sw)}, {sr(s1)}\ns_cselect_b32 {sr(s1)}, -1, 0\nv_and_b32 {vr(vt+7)}, {sr(s1)}, {vr(vt+7)}\nglobal_load_dword a252, {vr(vt+7)}, s[92:93]')
    p.ins(f's_bfe_u32 {sr(s0)}, s2, 0x20003\ns_mul_i32 {sr(s0)}, {sr(s0)}, 24576\ns_lshr_b32 {sr(s1)}, s2, 5\ns_lshl3_add_u32 {sr(s1)}, {sr(sw)}, {sr(s1)}\ns_cmp_eq_u32 {sr(s1)}, 15\ns_cselect_b32 {sr(s0)}, {sr(s0)}, {OOB}\nv_lshlrev_b32 {vr(vt+7)}, 3, v0\nbuffer_load_dword a252, {vr(vt+7)}, {sr(sWS,4)}, {sr(s0)} offen sc1')
    p.label('F_ct')
    xp = g1.get('xpos', 4)

    sm = S.alloc(); sn = S.alloc(); swm = S.alloc(); shd = S.alloc()
    sK = S.alloc(); sXc = S.alloc(); sWL = S.alloc(3); sC = S.alloc(4, 2)
    waddr = V.alloc('waddr', 6); vdma = V.alloc('vdma', 3); va = V.alloc('va'); vxh = V.alloc('vxh'); aaddr = V.alloc('aaddr', 3); xaddr = V.alloc('xaddr', 3)
    u = vt + 2
    p.ins(f's_and_b32 {sr(s0)}, s2, 7\ns_lshr_b32 {sr(s1)}, s2, 3')
    p.ins(f's_and_b32 {sr(sn)}, {sr(s0)}, 3\ns_lshl_b32 {sr(sn)}, {sr(sn)}, 2\ns_and_b32 {sr(sm)}, {sr(s1)}, 3\ns_add_u32 {sr(sn)}, {sr(sn)}, {sr(sm)}')
    p.ins(f's_lshr_b32 {sr(sm)}, {sr(s0)}, 2\ns_lshl_b32 {sr(sm)}, {sr(sm)}, 3\ns_lshr_b32 {sr(s1)}, {sr(s1)}, 2\ns_add_u32 {sr(sm)}, {sr(sm)}, {sr(s1)}')
    p.ins(f's_lshr_b32 {sr(swm)}, {sr(sw)}, 1\ns_and_b32 {sr(shd)}, {sr(sw)}, 1')
    p.ins(f's_mul_i32 {sr(sWL)}, {sr(sw)}, 3072\ns_lshl_b32 {sr(sWL+1)}, {sr(sw)}, 11\ns_lshl_b32 {sr(sWL+2)}, {sr(sw)}, 8')
    vswz = V.alloc('swz')
    p.ins(f'v_bfe_u32 {vr(u)}, {vr(vl)}, 4, 2\nv_bfe_u32 {vr(u+1)}, {vr(vl)}, 1, 2\nv_xor_b32 {vr(u)}, {vr(u)}, {vr(u+1)}\nv_lshlrev_b32 {vr(u)}, 5, {vr(u)}\nv_and_b32 {vr(u+1)}, 1, {vr(vl)}\nv_lshl_add_u32 {vr(vswz)}, {vr(u+1)}, 4, {vr(u)}')
    p.ins(f's_lshl_b32 {sr(s0)}, {sr(sn)}, 7\ns_mul_i32 {sr(s1)}, {sr(sw)}, {8*6144}\ns_add_u32 {sr(s0)}, {sr(s0)}, {sr(s1)}\nv_mul_u32_u24 {vr(u)}, 6144, {vr(vt+1)}\nv_add3_u32 {vr(vdma)}, {vr(u)}, {vr(vswz)}, {sr(s0)}')
    p.ins(f'v_add_u32 {vr(vdma+1)}, {32*6144-1024}, {vr(vdma)}\nv_add_u32 {vr(vdma+2)}, {64*6144-2048}, {vr(vdma)}')
    vrd = V.alloc('rd')
    p.ins(f'v_bfe_u32 {vr(u)}, {vr(vl)}, 3, 2\nv_lshlrev_b32 {vr(u)}, 5, {vr(u)}\nv_and_b32 {vr(u+1)}, 3, {vr(vl)}\nv_lshl_add_u32 {vr(vrd)}, {vr(u+1)}, 3, {vr(u)}')
    p.ins(f'v_bfe_u32 {vr(u)}, {vr(vl)}, 2, 3\nv_lshrrev_b32 {vr(u+1)}, 5, {vr(vl)}\nv_mul_u32_u24 {vr(u+1)}, 24, {vr(u+1)}\nv_add_lshl_u32 {vr(u)}, {vr(u)}, {vr(u+1)}, 7')
    p.ins(f's_lshl_b32 {sr(s0)}, {sr(shd)}, 1\ns_add_u32 {sr(s0)}, {sr(s0)}, {sr(swm)}\ns_lshl_b32 {sr(s0)}, {sr(s0)}, 5\nv_xor_b32 {vr(u+1)}, {sr(s0)}, {vr(vrd)}\nv_add_u32 {vr(waddr)}, {vr(u)}, {vr(u+1)}\nv_xor_b32 {vr(waddr+1)}, 32, {vr(waddr)}')
    for st in (1, 2):
        p.ins(f'v_add_u32 {vr(waddr+2*st)}, {st*3*SB1}, {vr(waddr)}\nv_add_u32 {vr(waddr+2*st+1)}, {st*3*SB1}, {vr(waddr+1)}')
    p.ins(f's_lshl_b32 {sr(s0)}, {sr(sm)}, 2\ns_add_u32 {sr(s1)}, {sr(s0)}, {sr(sw)}\ns_lshl_b32 {sr(s1)}, {sr(s1)}, 16\ns_add_u32 {sr(s1)}, {sr(s1)}, {WS_H}\nv_add_u32 {vr(va)}, {sr(s1)}, v0')
    p.ins(f's_max_u32 {sr(s0)}, {sr(s0)}, 1\ns_lshl_b32 {sr(s0)}, {sr(s0)}, 16\ns_add_u32 {sr(s0)}, {sr(s0)}, {WS_H - 65536 + 1024}\ns_add_u32 {sr(s0)}, {sr(s0)}, {sr(sWL+2)}\nv_lshl_add_u32 {vr(vxh)}, {vr(vl)}, 2, {sr(s0)}')
    p.ins(f's_lshl_b32 {sr(s0)}, {sr(swm)}, 12')
    for st in range(3):
        p.ins(f'v_add_u32 {vr(xaddr+st)}, {st*3*SB1}, v0\nv_add_u32 {vr(aaddr+st)}, {sr(s0)}, {vr(xaddr+st)}')
    vph = V.alloc('pollh')
    p.ins(f's_lshl3_add_u32 {sr(s0)}, {sr(sm)}, 127\nv_min_u32 {vr(vph)}, 8, {vr(vl)}\nv_add_u32 {vr(vph)}, {sr(s0)}, {vr(vph)}\nv_max_u32 {vr(vph)}, 0x80, {vr(vph)}\nv_lshlrev_b32 {vr(vph)}, 7, {vr(vph)}')
    slot1 = lambda s: (s + 1) % NS1
    KS1 = lambda s: [x for x in (s - 2, s - 1, s) if 0 <= x < 32]
    DL1 = lambda s: list(range(len(KS1(s)))) + ([3, 4, 5] if s < 32 else [])
    def dma1(s, n, E, EV):
        base = slot1(s) * SB1
        if n == 0: E(f's_mov_b32 {sr(sK)}, {KS1(s)[0]*32*6144 + (s % 3)*2048}\ns_add_u32 m0, {sr(sWL)}, {base}')
        if n == 3: E(f's_mov_b32 {sr(sXc)}, {s*2048}\ns_add_u32 m0, {sr(sWL+1)}, {base + WB1}')
        if n == 5: E(f's_add_u32 m0, {sr(sWL+2)}, {base + SB1 - 1024}')
        if n < 3: t_ = f'buffer_load_dwordx4 {vr(vdma+n)}, {sr(sWQ,4)}, {sr(sK)} offen offset:{1024*n} lds'
        elif n < 5: t_ = f'buffer_load_dwordx4 {vr(va)}, {sr(sWS,4)}, {sr(sXc)} offen offset:{1024*(n-3)} sc1 lds'
        else: t_ = f'buffer_load_dword {vr(vxh)}, {sr(sWS,4)}, {sr(sXc)} offen sc1 lds'
        EV(VM(p, t_, ('D1', s, n)), n in (0, 3, 5))
    npre = 6; npw = g1.get('npw', 5); wln = g1.get('wln', 2)
    wops = [(lambda s=s, n=n: dma1(s, n, p.ins, now)) for s in range(npw) for n in DL1(s) if n < 3]
    p.ins(f'v_lshlrev_b32 {vr(vt+6)}, 5, {vr(vt)}\nv_lshrrev_b32 {vr(vt+7)}, 4, {vr(vl)}\nv_lshl_add_u32 {vr(vt+6)}, {vr(vt+7)}, 3, {vr(vt+6)}\ns_add_u32 {sr(s0)}, {sr(sWL+2)}, {JL}\nv_add_u32 {vr(jad+1)}, {sr(s0)}, {vr(vt+6)}\nv_lshlrev_b32 {vr(jad+2)}, 2, {vr(vl)}')
    p.ins(f's_and_b32 {sr(s1)}, s2, 3\ns_mul_i32 {sr(sjo)}, {sr(s1)}, 24576\ns_lshl1_add_u32 {sr(sjo)}, {sr(sjw)}, {sr(sjo)}\ns_add_u32 {sr(sjw)}, {sr(sjw)}, 4096')
    k.T('f:setup')
    def gemv(tag, ja, ju, mid={}):
        C = []
        for i in range(8):
            if tag: C.append(WT(p, vm=[(tag, i)]))
            C += mid.get(i, [])
            for d in range(4):
                C.append(unpack(ju + 2 * (d & 1), jw + 4 * i + d))
                if d & 1:
                    for x in (0, 2):
                        if i == 0: C.append(f'v_pk_mul_f32 {vr(ja+2*(d-1)+x,2)}, {vr(ju+x,2)}, {vr(js,2)} op_sel_hi:[1,0]')
                        else: C.append(f'v_pk_fma_f32 {vr(ja+2*(d-1)+x,2)}, {vr(ju+x,2)}, {vr(js+(i&~1),2)}, {vr(ja+2*(d-1)+x,2)} op_sel:[0,{i&1},0] op_sel_hi:[1,{i&1},1]')
        C.append('s_nop 0')
        C += [f'v_permlane32_swap_b32 {vr(ja+i)}, {vr(ja+i+4)}' for i in range(4)]
        C += [f'v_add_f32 {vr(ja+i)}, {vr(ja+i)}, {vr(ja+i+4)}' for i in range(4)]
        C.append('s_nop 0')
        C += [f'v_permlane16_swap_b32 {vr(ja+i)}, {vr(ja+i+2)}' for i in range(2)]
        C += [f'v_add_f32 {vr(ja+i)}, {vr(ja+i)}, {vr(ja+i+2)}' for i in range(2)]
        C.append(f'v_add_u32 {vr(ju)}, {JL}, {vr(jad+2)}')
        C += [f'v_add_f32_dpp {vr(ja+i)}, {vr(ja+i)}, {vr(ja+i)} row_ror:8 row_mask:0xf bank_mask:0xf' for i in range(2)]
        C.append(LG(p, f'ds_write_b64 {vr(jad+1)}, {vr(ja,2)}'))
        return C
    assert js % 2 == 0
    if xp >= 3:
        p.ins('s_cmp_lt_u32 s2, 128\ns_cbranch_scc1 F_cw\ns_waitcnt vmcnt(4)')
        p.label('F_cw')
    p.wait(vm=['jc'])
    if xp == 3: xloads()
    k.T('f:c')
    for i in range(4): p.ins(unpack(js + 2 * i, jc + i))
    for op in ('mul', 'exp', 'add', 'rcp', 'fin'):
        for i in range(8):
            p.ins({'mul': f'v_mul_f32 {vr(ja+i)}, {f32(-LOG2E)}, {vr(js+i)}', 'exp': f'v_exp_f32 {vr(ja+i)}, {vr(ja+i)}', 'add': f'v_add_f32 {vr(ja+i)}, 1.0, {vr(ja+i)}',
                   'rcp': f'v_rcp_f32 {vr(ja+i)}, {vr(ja+i)}', 'fin': f'v_mul_f32 {vr(js+i)}, {vr(js+i)}, {vr(ja+i)}'}[op])
    for i in range(0, 8, 2): p.ins(rb2(js + i, ju))
    smk = S.alloc(2)
    if xp == 4: xloads()
    p.ins(f's_cmp_lt_u32 s2, 128\ns_cbranch_scc0 AL')
    p.items.append(('save', 'role'))
    def common():
        p.ins(f'v_readfirstlane_b32 {sr(sTok)}, {vr(vsd)}\n' + k.flag_off(sfl, FL_H) + f'\ns_mul_i32 {sr(sTok)}, {sr(sTok)}, 0x9e3779b1\ns_add_u32 {sr(sTok)}, {sr(sTok)}, 0x7f4a7c15')
        p.ins(f's_and_b32 {sr(smk)}, s2, 7\ns_bfe_u32 {sr(s1)}, s2, 0x20003\ns_lshl2_add_u32 {sr(smk)}, {sr(smk)}, {sr(s1)}\ns_lshr_b32 {sr(s1)}, s2, 5\ns_lshl3_add_u32 {sr(smk)}, {sr(smk)}, {sr(s1)}\ns_lshl1_add_u32 {sr(smk)}, {sr(smk)}, {sr(sw)}\ns_lshl_b32 {sr(smk)}, {sr(smk)}, 10\ns_add_u32 {sr(smk)}, {sr(smk)}, {WS_UT}')
        p.ins(f's_add_u32 {sr(sjo)}, {sr(sjo)}, 8192\ns_cmp_lt_u32 {sr(sw)}, 2\ns_cselect_b32 {sr(smk)}, {sr(smk)}, {OOB}\ns_cmp_eq_u32 {sr(sw)}, 2\ns_cselect_b32 {sr(smk+1)}, {sr(sjo)}, {OOB}')
    def marks(r):
        p.ins('\n'.join(f'v_mov_b32 {vr(r+i)}, -1' for i in range(4)))
        p.vm(f'buffer_store_dwordx4 {vr(r,4)}, v0, {sr(sWS,4)}, {sr(smk)} offen sc1')
        p.vm(f'buffer_store_dword {vr(r)}, {vr(jad+2)}, {sr(sWS,4)}, {sr(smk+1)} offen sc1', 'mk')
    weave(p, gemv('mw', ja, jc), [], 1)
    p.ins(f'v_and_b32 {vr(ja+4)}, 3, {vr(vl)}\nv_lshlrev_b32 {vr(ja+4)}, 3, {vr(ja+4)}\ns_cmp_eq_u32 {sr(sw)}, 0\ns_cselect_b32 {sr(s0)}, {sr(sjo)}, {OOB}')
    p.wait(lg='all')
    k.T('f:acc')
    p.ins('s_barrier')
    for i in range(4): p.lg(f'ds_read_b32 {vr(ja+i)}, {vr(jc)} offset:{256*i}', 'jr0')
    p.wait(vm=['seed'])
    common()
    p.ins(f'v_bfe_u32 {vr(ja+4)}, {sr(sTok)}, {vr(ja+4)}, 8\nv_mov_b32 {vr(ja+5)}, 0xffffff00')
    p.wait(lg=['jr0'])
    p.ins(f'v_add_f32 {vr(ja)}, {vr(ja)}, {vr(ja+1)}\nv_add_f32 {vr(ja+2)}, {vr(ja+2)}, {vr(ja+3)}\nv_add_f32 {vr(ja)}, {vr(ja)}, {vr(ja+2)}\nv_add_u32 {vr(ja)}, 0x80, {vr(ja)}\nv_and_or_b32 {vr(ja)}, {vr(ja)}, {vr(ja+5)}, {vr(ja+4)}')
    p.vm(f'buffer_store_dword {vr(ja)}, {vr(jad+2)}, {sr(sWS,4)}, {sr(s0)} offen sc1')
    k.T('f:part')
    marks(ja + 4)
    p.ins(f's_lshl_b32 {sr(s0)}, {sr(sw)}, 7\ns_add_u32 {sr(s0)}, {sr(s0)}, s2\ns_lshl_b32 {sr(s0)}, {sr(s0)}, 13\nv_lshlrev_b32 {vr(vt+2)}, 3, v0')
    t1 = VM(p, f'buffer_load_dword a252, {vr(vt+2)}, {sr(sWQ,4)}, {sr(so)} offen', 't1')
    p.ins(f's_mov_b32 {sr(so)}, {sr(s0)}')
    if g1.get('t1', 1) == 0: t1()
    p.ins(f's_mov_b32 {sr(sP+3)}, 0x20000\ns_sub_u32 {sr(s1)}, {sr(s0)}, {2<<20}\ns_add_u32 {sr(s0)}, {sr(s0)}, {4<<20}\ns_cmp_ge_u32 {sr(sw)}, 2\ns_cselect_b64 {sr(sP,2)}, {sr(sWO,2)}, {sr(sWQ,2)}\ns_cselect_b32 {sr(sP+2)}, {sr(sWO+2)}, {sr(sWQ+2)}\ns_cselect_b32 {sr(s0)}, {sr(s1)}, {sr(s0)}\nv_mov_b32 {vr(vt)}, {sr(sTok)}')
    p.wait(vm=['mk'])
    p.ins('s_barrier')
    k.flag_store(sfl, vt)
    if g1.get('t1', 1) == 1: t1()
    p.wait(vm=['t1'])
    qn = g1.get('qn', 64)
    def q3():
        p.ins(f's_lshr_b32 {sr(s1)}, s2, 3\ns_mul_i32 {sr(s1)}, {sr(s1)}, {qn*6144}\ns_add_u32 {sr(s1)}, {sr(s1)}, {sr(sWL+1)}\ns_and_b32 {sr(so)}, s2, 2\ns_lshl_b32 {sr(so)}, {sr(so)}, 9\ns_add_u32 {sr(s1)}, {sr(s1)}, {sr(so)}')
        p.ins(f's_and_b32 {sr(so)}, s2, 1\ns_lshl2_add_u32 {sr(so)}, {sr(so)}, {sr(sw)}\ns_cmp_lt_u32 {sr(so)}, 3\ns_cselect_b32 {sr(s1)}, {sr(s1)}, {OOB}\nv_min_u32 {vr(vt+3)}, {qn-1}, {vr(vl)}\nv_mul_u32_u24 {vr(vt+3)}, 6144, {vr(vt+3)}')
        p.vm(f'buffer_load_dword a252, {vr(vt+3)}, {sr(sWQ,4)}, {sr(s1)} offen offset:384')
    if g1.get('q3', 1) == 1: q3()
    p.vm(f'buffer_load_dword a252, {vr(vt+2)}, {sr(sP,4)}, {sr(s0)} offen')
    if g1.get('q3', 1) == 2: q3()
    pr = g1.get('prow', 128)
    if pr:
        p.ins(f's_lshl_b32 {sr(s0)}, {sr(shd)}, 7\ns_add_u32 {sr(s0)}, {sr(s0)}, s2\ns_mul_i32 {sr(s0)}, {sr(s0)}, 7168\ns_cmp_ge_u32 {sr(sw)}, 2\ns_cselect_b64 {sr(sP,2)}, {sr(sWU,2)}, {sr(sWG,2)}\ns_mov_b32 {sr(sP+2)}, {pr*7168}')
        if g1.get('pw', 1): p.ins('s_waitcnt vmcnt(0)')
        p.vm(f'buffer_load_dword a252, {vr(vt+2)}, {sr(sP,4)}, {sr(s0)} offen')
    for f in wops[:3 * wln]: f()
    k.T('f:t2')
    p.ins('s_branch J2\n.p2align 12')
    p.label('AL')
    p.items.append(('restore', 'role'))
    if xp == 5: xloads()
    p.ins('s_waitcnt vmcnt(8)')
    common()
    vpw, vpr, vsw, vsr = vt + 2, vt + 3, vt + 4, vt + 5
    p.ins(f's_add_u32 {sr(s0)}, {sr(sWL+1)}, {SP}\nv_add_u32 {vr(vpw)}, {sr(s0)}, v0\nv_lshl_add_u32 {vr(vpr)}, {vr(vt+1)}, 5, {sr(s0)}')
    p.ins(f'v_lshlrev_b32 {vr(vsr)}, 6, {vr(vt)}\nv_add_u32 {vr(vsr)}, {SP+8192}, {vr(vsr)}\ns_lshl_b32 {sr(s0)}, {sr(sw)}, 4\nv_add_u32 {vr(vsw)}, {sr(s0)}, {vr(vsr)}')
    p.ins(f'v_bfe_u32 {vr(vt+6)}, {vr(vl)}, 3, 1\nv_lshlrev_b32 {vr(vo)}, 9, {vr(vt+6)}\nv_bfe_u32 {vr(vt+6)}, {vr(vl)}, 4, 1\nv_lshl_add_u32 {vr(vo)}, {vr(vt+6)}, 8, {vr(vo)}')
    p.ins(f'v_lshrrev_b32 {vr(vt+6)}, 5, {vr(vl)}\nv_lshl_add_u32 {vr(vo)}, {vr(vt+6)}, 11, {vr(vo)}\nv_lshl_add_u32 {vr(vo)}, {vr(vt)}, 4, {vr(vo)}')
    p.ins(f's_bfe_u32 {sr(so)}, s2, 0x60001\ns_lshl2_add_u32 {sr(so)}, {sr(so)}, {sr(sw)}\ns_lshl_b32 {sr(so)}, {sr(so)}, 4\ns_and_b32 {sr(s0)}, s2, 1\ns_add_u32 {sr(so)}, {sr(so)}, {sr(s0)}\ns_lshl_b32 {sr(so)}, {sr(so)}, 10\ns_add_u32 {sr(so)}, {sr(so)}, {WS_H}')
    p.ins('\n'.join(f's_bfe_u32 {sr(sC+i)}, {sr(sTok)}, {hex(0x80000 + 8 * i)}' for i in range(4)))
    vh = ja + 4
    pe = g1.get('pearly', 2)
    def ploads():
        p.ins(f's_lshl_b32 {sr(s1)}, {sr(sw)}, 10')
        for q in range(4):
            p.vm(f'buffer_load_dwordx4 {vr(vs+4*q,4)}, v0, {sr(sWS,4)}, {sr(s1)} offen sc1', ('part', 2 * q))
            p.ins(f's_add_u32 {sr(s1)}, {sr(s1)}, 4096')
            p.vm(f'buffer_load_dwordx4 {vr(vc+4*q,4)}, v0, {sr(sWS,4)}, {sr(s1)} offen sc1', ('part', 2 * q + 1))
            if q < 3: p.ins(f's_add_u32 {sr(s1)}, {sr(s1)}, {24576-4096}')
    mv = jc
    for hf in range(2):
        q0 = vov
        for i in range(4):
            p.ins(f's_waitcnt vmcnt({7 - 4 * hf - i})')
            for d in range(4): p.ins(unpack(vf + 32*hf + 8*i + 2*d, vx + 16*hf + 4*i + d))
            for d in range(4):
                r = vf + 32 * hf + 8 * i + 2 * d; t_ = q0 + 4 * (d & 1)
                if i == 0 and d < 2: p.ins(f'v_pk_mul_f32 {vr(t_+2,2)}, {vr(r,2)}, {vr(r,2)}')
                else: p.ins(f'v_pk_fma_f32 {vr(t_+2,2)}, {vr(r,2)}, {vr(r,2)}, {vr(t_+2,2)}\nv_pk_add_f32 {vr(t_,2)}, {vr(r,2)}, {vr(r-4 if i == 0 else t_,2)}')
        p.ins(f'v_pk_add_f32 {vr(q0,2)}, {vr(q0,2)}, {vr(q0+4,2)}\nv_pk_add_f32 {vr(q0+2,2)}, {vr(q0+2,2)}, {vr(q0+6,2)}\nv_add_f32 {vr(ja+2*hf)}, {vr(q0)}, {vr(q0+1)}\nv_add_f32 {vr(ja+2*hf+1)}, {vr(q0+2)}, {vr(q0+3)}')
    if pe == 1: ploads()
    p.ins('s_nop 0')
    for i in range(4): p.ins(f'v_add_f32_dpp {vr(mv+i)}, {vr(ja+i)}, {vr(ja+i)} row_ror:8 row_mask:0xf bank_mask:0xf')
    for st in (16, 32):
        for i in range(4): p.ins(f'v_mov_b32 {vr(ja+i)}, {vr(mv+i)}')
        for i in range(4): p.ins(f'v_permlane{st}_swap_b32 {vr(mv+i)}, {vr(ja+i)}')
        for i in (0, 2): p.ins(f'v_pk_add_f32 {vr(mv+i,2)}, {vr(mv+i,2)}, {vr(ja+i,2)}')
    p.lg(f'ds_write_b128 {vr(vsw)}, {vr(mv,4)}')
    p.wait(lg='all')
    p.ins('s_barrier')
    for i in range(4): p.lg(f'ds_read_b128 {vr(vx+4*i,4)}, {vr(vsr)} offset:{16*i}')
    if pe == 2: ploads()
    p.wait(lg='all')
    for i in (0, 2, 4, 6): p.ins(f'v_pk_add_f32 {vr(vx+i,2)}, {vr(vx+i,2)}, {vr(vx+8+i,2)}')
    for i in (0, 2): p.ins(f'v_pk_add_f32 {vr(vx+i,2)}, {vr(vx+i,2)}, {vr(vx+4+i,2)}')
    for i in range(4): p.ins(f'v_mul_f32 {vr(mv+i)}, {f32(1/1024)}, {vr(vx+i)}')
    two = lambda f: p.ins('\n'.join(x for pr in zip(f(mv, mv + 1).split('\n'), f(mv + 2, mv + 3).split('\n')) for x in pr))
    two(lambda m_, v_: f'v_fma_f32 {vr(v_)}, -{vr(m_)}, {vr(m_)}, {vr(v_)}\nv_max_f32 {vr(v_)}, 0, {vr(v_)}\n' + rb(v_) + f'\nv_add_f32 {vr(v_)}, {f32(1e-5)}, {vr(v_)}\n' + rb(v_) + f'\nv_sqrt_f32 {vr(v_)}, {vr(v_)}\n' + rb(m_) + '\n' + rb(v_)
        + f'\nv_rcp_f32 {vr(v_)}, {vr(v_)}\nv_mul_f32 {vr(m_)}, -{vr(m_)}, {vr(v_)}')
    for i in range(0, 64, 2): p.ins(f'v_pk_fma_f32 {vr(vf+i,2)}, {vr(vf+i,2)}, {vr(mv+2*(i//32),2)}, {vr(mv+2*(i//32),2)} op_sel:[0,1,0] op_sel_hi:[1,1,0]')
    k.T('f:stat')
    p.ins(f's_mov_b32 {sr(spc)}, 30000' + ('\ns_branch PLC' if pe else ''))
    p.label('PLP')
    ploads()
    p.label('PLC')
    for n in range(8):
        r = (vs, vc)[n & 1] + 4 * (n >> 1)
        p.wait(vm=[('part', n)])
        for i in range(4): p.ins(f'v_xor_b32 {vr(r+i)}, {sr(sC+i)}, {vr(r+i)}')
        p.ins(f'v_or3_b32 {vr(vh)}, {vr(vh) if n else 0}, {vr(r)}, {vr(r+1)}\nv_or3_b32 {vr(vh)}, {vr(vh)}, {vr(r+2)}, {vr(r+3)}')
    p.ins(f'v_and_b32 {vr(vh)}, 0xff, {vr(vh)}\nv_cmp_ne_u32 vcc, 0, {vr(vh)}\ns_sub_u32 {sr(spc)}, {sr(spc)}, 1\ns_cmp_eq_u32 {sr(spc)}, 0\ns_cbranch_scc1 PLX\ns_nop 1\ns_cbranch_vccnz PLP')
    p.label('PLX')
    k.T('f:got')
    marks(ja)
    S.free(smk, 2)
    q0 = vh
    for i in (0, 2, 4, 6): p.ins(f'v_pk_add_f32 {vr(vc+i,2)}, {vr(vc+i,2)}, {vr(vc+8+i,2)}\nv_pk_add_f32 {vr(vs+i,2)}, {vr(vs+i,2)}, {vr(vs+8+i,2)}')
    for i in (0, 2): p.ins(f'v_pk_add_f32 {vr(vc+i,2)}, {vr(vc+i,2)}, {vr(vc+4+i,2)}\nv_pk_add_f32 {vr(vs+i,2)}, {vr(vs+i,2)}, {vr(vs+4+i,2)}')
    for r in (vs, vs + 2): p.ins(rb2(r, q0))
    p.lg(f'ds_write_b128 {vr(vpw)}, {vr(vs,4)} offset:1024')
    for r in (vc, vc + 2): p.ins(rb2(r, q0) + f'\nv_pk_add_f32 {vr(r,2)}, {vr(r,2)}, 1.0 op_sel_hi:[1,0]\n' + rb2(r, q0))
    p.lg(f'ds_write_b128 {vr(vpw)}, {vr(vc,4)}')
    for i in range(4):
        for h in range(2):
            p.lg(f'ds_read_b128 {vr(vs+8*i+4*h,4)}, {vr(vpr)} offset:{1024+256*i+16*h}')
            p.lg(f'ds_read_b128 {vr(vc+8*i+4*h,4)}, {vr(vpr)} offset:{256*i+16*h}', ('ms', i))
    C = []
    for i in range(4):
        C.append(WT(p, lg=[('ms', i)]))
        for hf in range(2):
            f_ = vf + 32 * hf + 8 * i
            for e in range(0, 8, 2): C.append(f'v_pk_fma_f32 {vr(f_+e,2)}, {vr(f_+e,2)}, {vr(vc+8*i+e,2)}, {vr(vs+8*i+e,2)}')
        for hf in range(2):
            for d in range(4): C.append(pk(vx + 16*hf + 4*i + d, vf + 32*hf + 8*i + 2*d))
        for hf in range(2):
            x_ = vx + 16 * hf + 4 * i
            C.append(f'v_permlane16_swap_b32 {vr(x_)}, {vr(x_+2)}\nv_permlane16_swap_b32 {vr(x_+1)}, {vr(x_+3)}')
        for hf in range(2): C.append(VM(p, f'buffer_store_dwordx4 {vr(vx+16*hf+4*i,4)}, {vr(vo)}, {sr(sWS,4)}, {sr(so)} offen offset:{128*hf} sc1', 'hs'))
        if i < 3: C.append(f's_add_u32 {sr(so)}, {sr(so)}, 4096')
    assert not weave(p, C, wops[:3 * wln], g1.get('wstep', 10), -8)
    k.publish('h', sfl, vt)
    p.label('J2')
    if stop == 0: return finish(k)
    S.free(sP, 4)

    sc = Sched(p, g1.get('cap', 2))
    R1, DAS1 = g1.get('R', 9), 4
    abuf, wbuf = A(0), A(80)
    def wrd(s, t, j, h):
        st, sl = divmod(slot1(s), 3)
        return waddr + 2 * st + (t & 1), sl * SB1 + h * 6144 + j * 1024
    accr = lambda t, m: acc1 + (t * 4 + m) * 4 if m < 4 else acc1 + 96 + 2 * t
    co = Core(p, sc, NS1, 4, wbuf, R1, g1.get('lead', 20), abuf, DAS1, accr, wrd, ard=True, extra={0: [4], 2: [4]}, swap=(2, 3), KG=1, name='g1', bmargin=g1.get('bm', 1))
    nst = 34
    co.wst = lambda g_, q: (g_ // 2, q)
    co.build([([(x, 0) for x in KS1(s)], (4, 0, 2)[s % 3] + c) for s in range(nst) for c in range(2)])
    for s in range(0, 32, 3):
        co.await_[(s, 0, 4)] = co.sfirst[s]
        sc.before(co.sfirst[s], WT(p, lg=[co.atag(s, 0, 4)]), 0)
    alead = g1.get('alead', 23); be, b0 = g1.get('be', 2), g1.get('b0', 6)
    co.barriers(lambda s: [('D1', s, n) for n in DL1(s)], alead=alead, have=range(g1.get('have', 2)), grp=lambda s: s if s < b0 else s - (s - b0) % be)
    MS = 26
    for f in wops[3 * wln:]: f()
    k.hop('a', 'AL', 'G3S', (1, 2, 3))
    k.poll('h', vph, FL_H, vt, spc)
    n0 = g1.get('n0', 3)
    for s in range(n0):
        for n in range(3, 6): dma1(s, n, p.ins, now)
    p.wait(vm=[('D1', g1.get('have', 2) - 1, 5)])
    p.ins('s_barrier')
    ev = []
    for s in range(n0, npre):
        for n in range(3 if s < npw else 0, 6): ev.append((4 * len(ev), s, n))
    sc.vgap = lambda i: g1.get('vgap', 3)
    sc.mcap = lambda i: g1.get('mcap', 2)
    dsl = [i * MS // 6 for i in range(6)]
    for s in range(npre, nst):
        for n in DL1(s): ev.append((max(co.slotfree(s) + 1, ev[-1][0] + g1.get('dsp', 4)), s, n))
    for e, s, n in ev:
        dma1(s, n, lambda t_: sc.add('v', max(e - 3, 0), co.bar[s], t_), lambda f, sep: sc.add('v', e, co.bar[s], f, sep=sep))
    lastd = e
    co.wreads()
    for s in range(32):
        st, sl = divmod(slot1(s), 3)
        for i, m in enumerate((0, 1, 2, 3, 4)):
            ar, off = (xaddr + st, sl * SB1 + SB1 - 1024) if m == 4 else (aaddr + st, sl * SB1 + WB1 + m * 1024)
            dl = co.await_[(s, 0, m)]
            e = max(co.bar[s], co.alast[(s - DAS1, 0, m)] if s >= DAS1 else -1, dl - alead + 1 + 2 * i)
            co.rq.append((e, dl, LG(p, f'ds_read_b128 {vr(co.abf(s,0,m),4)}, {vr(ar)} offset:{off}', co.atag(s, 0, m))))
    co.flush_reads()

    sx0, sx1 = s0, s1
    pos = [g1.get('fpos', 100)]
    def F(txt, d=INF, sep=False):
        o = sc.add('x', int(pos[0]), d, txt, sep=sep)
        pos[0] += (txt.count('\n') + 1 if isinstance(txt, str) else 1) * g1.get('fstep', 1.6)
        return o
    u = vt
    sm2 = S.alloc(); sn2 = S.alloc(); sorg = S.alloc(); sro = S.alloc(); sW4 = S.alloc(); soo = S.alloc(2); sk2 = so
    sy = S.alloc(); sst = S.alloc(); sax = S.alloc()
    vw2 = V.alloc('vw2', 4); vro = V.alloc('ro', 2); ea = V.alloc('ea', 6); vM = V.alloc('pm', 4)
    wa2 = V.alloc('wa2', 8); vxa = V.alloc('xa', 4); va2 = V.alloc('va2'); vgo = V.alloc('go', 3); vpo = V.alloc('po', 4)
    F(f's_bfe_u32 {sr(sorg)}, s2, 0x30003\ns_xor_b32 {sr(sorg)}, {sr(sorg)}, {cfg["g4"].get("wx", 1)}\ns_and_b32 {sr(sx0)}, s2, 1\ns_lshl1_add_u32 {sr(sn2)}, {sr(sorg)}, {sr(sx0)}')
    F(f's_bfe_u32 {sr(sm2)}, s2, 0x20001\ns_lshr_b32 {sr(sx1)}, s2, 6\ns_lshl2_add_u32 {sr(sm2)}, {sr(sm2)}, {sr(sx1)}\ns_lshl_b32 {sr(sW4)}, {sr(sw)}, 12')
    F(f's_lshl_b32 {sr(sx0)}, {sr(sn2)}, 7\ns_lshl_b32 {sr(sx1)}, {sr(sw)}, 16\ns_add_u32 {sr(sx0)}, {sr(sx0)}, {sr(sx1)}\nv_lshrrev_b32 {vr(u)}, 3, {vr(vl)}\nv_lshlrev_b32 {vr(u)}, 11, {vr(u)}\nv_add3_u32 {vr(vw2)}, {vr(u)}, {vr(vswz)}, {sr(sx0)}')
    for i in range(1, 4): F(f'v_add_u32 {vr(vw2+i)}, {i*(16384-1024)}, {vr(vw2)}')
    F(f's_lshl_b32 {sr(sro)}, {sr(sm2)}, 18\ns_add_u32 {sr(sro)}, {sr(sro)}, {sr(sx0)}')
    osu2 = F(f'v_and_b32 {vr(u+1)}, 7, {vr(vl)}\nv_lshrrev_b32 {vr(u+2)}, 4, {vr(vl)}\nv_xor_b32 {vr(u+1)}, {vr(u+1)}, {vr(u+2)}\nv_lshl_add_u32 {vr(vro)}, {vr(u+1)}, 4, {vr(u)}\nv_xor_b32 {vr(vro+1)}, 64, {vr(vro)}\nv_add_u32 {vr(vro+1)}, {16384-1024}, {vr(vro+1)}')
    F(f's_lshl_b32 {sr(sx0)}, {sr(sw)}, 10\ns_add_u32 {sr(sx0)}, {sr(sx0)}, {GL}\nv_add_u32 {vr(vgo+2)}, {sr(sx0)}, v0\nv_lshl_add_u32 {vr(vgo)}, {vr(u+2)}, 4, {sr(sx0)}\nv_and_b32 {vr(u)}, 1, {vr(vl)}\nv_lshlrev_b32 {vr(u)}, 8, {vr(u)}\nv_sub_u32 {vr(vgo+1)}, {vr(vgo)}, {vr(u)}')
    F(f's_lshl_b32 {sr(sx0)}, {sr(sn2)}, 7\nv_and_b32 {vr(u+1)}, 0xf0, v0\nv_lshl_add_u32 {vr(u+1)}, {vr(u+2)}, 12, {vr(u+1)}\ns_lshl1_add_u32 {sr(sx0)}, {sr(sx0)}, 8192\nv_add_u32 {vr(vpo+1)}, {sr(sx0)}, {vr(u+1)}')
    owa2 = F(f'v_lshrrev_b32 {vr(u)}, 2, {vr(vl)}\nv_lshl_add_u32 {vr(wa2)}, {vr(u)}, 7, {vr(vrd)}')
    for t in range(1, 8): F(f'v_xor_b32 {vr(wa2+t)}, {((t & 3) << 5) + ((t >> 2) << 16)}, {vr(wa2)}')
    F(f's_add_u32 {sr(sx0)}, {sr(sW4)}, {XL}\n' + xa_setup(vxa, u, sx0, vl))
    F(f's_lshl2_add_u32 {sr(sx0)}, {sr(sm2)}, {sr(sw)}\ns_lshl_b32 {sr(sx1)}, {sr(sx0)}, 16\ns_add_u32 {sr(sx1)}, {sr(sx1)}, {WS_O}\nv_add_u32 {vr(va2)}, {sr(sx1)}, v0')
    F(f's_lshl4_add_u32 {sr(sst)}, {sr(sx0)}, {sr(sn2)}\ns_lshl_b32 {sr(sst)}, {sr(sst)}, 8\ns_add_u32 {sr(sst)}, {sr(sst)}, {WS_ST}')
    F(f's_lshr_b32 {sr(sy)}, {sr(sx0)}, 1\ns_lshl4_add_u32 {sr(sy)}, {sr(sy)}, {sr(sn2)}\ns_and_b32 {sr(sx1)}, {sr(sx0)}, 1\ns_lshl2_add_u32 {sr(sy)}, {sr(sy)}, {sr(sx1)}\ns_lshl_b32 {sr(sy)}, {sr(sy)}, 11\ns_add_u32 {sr(sy)}, {sr(sy)}, {WS_Y}')
    F(f's_lshl1_add_u32 {sr(sax)}, {sr(sx0)}, {sr(sn2)}\ns_lshl_b32 {sr(sax)}, {sr(sax)}, 11\ns_add_u32 {sr(sax)}, {sr(sax)}, {WS_AUX}\ns_and_b32 {sr(sx0)}, {sr(sx0)}, 7\ns_cselect_b32 {sr(sax)}, {OOB}, {sr(sax)}')
    F(f's_and_b32 {sr(sx0)}, {sr(sm2)}, 7\ns_lshl_b32 {sr(sx0)}, {sr(sx0)}, 5\ns_lshr_b32 {sr(sx1)}, {sr(sm2)}, 3\ns_lshl2_add_u32 {sr(sx0)}, {sr(sx1)}, {sr(sx0)}')
    F(f'v_and_b32 {vr(u)}, 3, {vr(vl)}\nv_bfe_u32 {vr(u+1)}, {vr(vl)}, 2, 2\nv_lshl_add_u32 {vr(u)}, {vr(u)}, 3, {vr(u+1)}\nv_add_lshl_u32 {vr(vpo+2)}, {vr(u)}, {sr(sx0)}, 7')
    F(f'v_add_u32 {vr(vpo+2)}, {FL_O-FL_H}, {vr(vpo+2)}\nv_and_b32 {vr(u)}, 7, {vr(vl)}\nv_and_b32 {vr(u+1)}, 8, {vr(vl)}\nv_lshl_add_u32 {vr(u)}, {vr(u+1)}, 4, {vr(u)}\ns_lshl_b32 {sr(sx0)}, {sr(sn2)}, 3\nv_add_lshl_u32 {vr(u)}, {vr(u)}, {sr(sx0)}, 7\nv_cmp_gt_u32 vcc, 16, {vr(vl)}\ns_nop 1\nv_cndmask_b32 {vr(vpo+2)}, {vr(u)}, {vr(vpo+2)}, vcc')
    F(f's_lshl_b32 {sr(sx0)}, {sr(swm)}, 3\ns_add_u32 {sr(sx0)}, {sr(sx0)}, {EX}\nv_add_u32 {vr(u)}, {sr(sx0)}, v0\nv_add_u32 {vr(ea)}, {sr(sWL+1)}, {vr(u)}\nv_xor_b32 {vr(ea+1)}, 8, {vr(ea)}')
    F(f's_lshl_b32 {sr(sx0)}, {sr(shd)}, 11\ns_add_u32 {sr(sx0)}, {sr(sx0)}, 8192\nv_add_u32 {vr(ea+2)}, {sr(sx0)}, {vr(u)}\ns_lshl_b32 {sr(sx0)}, {sr(swm)}, 13\nv_subrev_u32 {vr(ea+3)}, {sr(sx0)}, {vr(ea+2)}\nv_xor_b32 {vr(ea+4)}, 8, {vr(ea+3)}\nv_and_b32 {vr(ea+5)}, -9, {vr(ea+3)}')
    assert EX % 16 == 0
    q_ = lambda l: l & 15
    gg = lambda l: l >> 4
    mpa = lanemask(lambda l: not (4 * gg(l) + (l & 1) <= q_(l))); mpb = lanemask(lambda l: not (4 * gg(l) + 2 + (l & 1) <= q_(l)))
    mO, mPa, mPb = S.alloc(2, 2), S.alloc(2, 2), S.alloc(2, 2)
    F(smov64(mO, lanemask(lambda l: l & 1)) + '\n' + smov64(mPa, mpa) + '\n' + smov64(mPb, mpb))
    F(f'v_mov_b32 {vr(u)}, 0x0c0c0100\nv_mov_b32 {vr(u+1)}, 0x01000c0c\nv_cndmask_b32 {vr(u)}, {vr(u)}, {vr(u+1)}, {sr(mO,2)}\nv_mov_b32 {vr(u+2)}, 0x0c0c0c0c\nv_cndmask_b32 {vr(vM)}, {vr(u+2)}, {vr(u)}, {sr(mPa,2)}\nv_cndmask_b32 {vr(vM+2)}, {vr(u)}, {vr(u+2)}, {sr(mPa,2)}')
    F(f'v_mov_b32 {vr(u)}, 0x0c0c0302\nv_mov_b32 {vr(u+1)}, 0x03020c0c\nv_cndmask_b32 {vr(u)}, {vr(u)}, {vr(u+1)}, {sr(mO,2)}\nv_cndmask_b32 {vr(vM+1)}, {vr(u+2)}, {vr(u)}, {sr(mPb,2)}\nv_cndmask_b32 {vr(vM+3)}, {vr(u)}, {vr(u+2)}, {sr(mPb,2)}')
    F(f's_lshl1_add_u32 {sr(sx0)}, {sr(sm)}, {sr(swm)}\ns_lshl_b32 {sr(soo)}, {sr(sx0)}, 17\ns_lshl1_add_u32 {sr(sx0)}, {sr(sn)}, {sr(shd)}\ns_lshl_b32 {sr(sx0)}, {sr(sx0)}, 11')
    F(f's_add_u32 {sr(soo)}, {sr(soo)}, {sr(sx0)}\ns_add_u32 {sr(soo)}, {sr(soo)}, {WS_O}\ns_add_u32 {sr(soo+1)}, {sr(soo)}, 65536\ns_or_b32 {sr(sm)}, {sr(sm)}, {sr(swm)}')
    F(k.flag_off(sfl, FL_O))
    S.free(sn); S.free(shd)
    sm3 = S.alloc(); sn3 = S.alloc(); sT3 = S.alloc(2); sWL3 = S.alloc(); sAb = S.alloc()
    wa3, vd3, SB3, ldw = 1, 3, 28672, 7168
    F(f's_lshr_b32 {sr(sx1)}, s2, 3\ns_and_b32 {sr(sn3)}, {sr(sx1)}, 3\ns_lshr_b32 {sr(sm3)}, {sr(sx1)}, 2\ns_lshl1_add_u32 {sr(sx1)}, {sr(sn3)}, {sr(sm3)}\ns_and_b32 {sr(sx1)}, {sr(sx1)}, 7\ns_and_b32 {sr(sx0)}, s2, 7\ns_lshl2_add_u32 {sr(sn3)}, {sr(sx0)}, {sr(sn3)}')
    for r, T in enumerate(g3_orders(cfg['g3'].get('aux', (6, 9)), cfg['g3'].get('leads'))):
        lo, hi = (sum(c << (4 * i) for i, c in enumerate(T[8*h:8*h+8])) for h in range(2))
        F(f's_mov_b32 {sr(sT3)}, 0x{lo:x}\ns_mov_b32 {sr(sT3+1)}, 0x{hi:x}' if r == 0 else f's_cmp_eq_u32 {sr(sx1)}, {r}\ns_cselect_b32 {sr(sT3)}, 0x{lo:x}, {sr(sT3)}\ns_cselect_b32 {sr(sT3+1)}, 0x{hi:x}, {sr(sT3+1)}')
    F(f's_mul_i32 {sr(sWL3)}, {sr(sw)}, 7168\ns_lshl2_add_u32 {sr(sAb)}, {sr(sm3)}, {sr(sw)}\ns_lshl_b32 {sr(sAb)}, {sr(sAb)}, 17\ns_add_u32 {sr(sAb)}, {sr(sAb)}, {WS_Y}')
    osel = F(f's_cmp_ge_u32 {sr(sw)}, 2\ns_cselect_b64 {sr(sWG,2)}, {sr(sWU,2)}, {sr(sWG,2)}')
    F(f'v_lshrrev_b32 {vr(u)}, 2, {vr(vl)}\nv_mul_u32_u24 {vr(u)}, 224, {vr(u)}\nv_and_b32 {vr(u+1)}, 3, {vr(vl)}\nv_lshl_add_u32 {vr(wa3)}, {vr(u+1)}, 3, {vr(u)}\nv_add_u32 {vr(wa3+1)}, {2*SB3}, {vr(wa3)}')
    F(f's_mul_i32 {sr(sx0)}, {sr(sn3)}, 224\ns_and_b32 {sr(sx1)}, {sr(sw)}, 1\ns_mul_i32 {sr(sx1)}, {sr(sx1)}, {32*ldw}\ns_add_u32 {sr(sx0)}, {sr(sx0)}, {sr(sx1)}\ns_and_b32 {sr(sx1)}, {sr(sn3)}, 1\ns_lshl_b32 {sr(sx1)}, {sr(sx1)}, 1')
    for i in range(7):
        F(f'v_add_u32 {vr(u)}, {64*i}, {vr(vl)}\nv_mul_u32_u24 {vr(u+1)}, 4682, {vr(u)}\nv_lshrrev_b32 {vr(u+1)}, 16, {vr(u+1)}\nv_mul_i32_i24 {vr(u+2)}, -14, {vr(u+1)}\nv_add3_u32 {vr(u)}, {vr(u)}, {vr(u+2)}, {sr(sx1)}')
        F(f'v_add_u32 {vr(u+2)}, -14, {vr(u)}\nv_min_u32 {vr(u)}, {vr(u)}, {vr(u+2)}\nv_mul_u32_u24 {vr(u+1)}, {ldw}, {vr(u+1)}\nv_lshl_add_u32 {vr(u)}, {vr(u)}, 4, {vr(u+1)}\nv_add_u32 {vr(vd3+i)}, {sr(sx0)}, {vr(u)}')
        F(f's_sub_u32 {sr(sx0)}, {sr(sx0)}, {1024 if i != 3 else -3072}')
    F(f's_and_b32 {sr(sx0)}, {sr(sm3)}, 1\ns_lshl_b32 {sr(sx0)}, {sr(sx0)}, 7\ns_and_b32 {sr(sx1)}, {sr(sm3)}, 6\ns_add_u32 {sr(sx0)}, {sr(sx0)}, {sr(sx1)}')
    F(f'v_bfe_u32 {vr(u)}, {vr(vl)}, 1, 4\nv_and_b32 {vr(u+1)}, 1, {vr(vl)}\nv_lshl_add_u32 {vr(u)}, {vr(u)}, 3, {vr(u+1)}\nv_add_lshl_u32 {vr(vpo+3)}, {vr(u)}, {sr(sx0)}, 7')
    F(f'v_add_u32 {vr(vpo+3)}, {FL_Y-FL_H}, {vr(vpo+3)}\nv_and_b32 {vr(u)}, 7, {vr(vl)}\nv_lshlrev_b32 {vr(u)}, 5, {vr(u)}\ns_and_b32 {sr(sx0)}, s2, 31\nv_add_lshl_u32 {vr(u)}, {vr(u)}, {sr(sx0)}, 7\nv_cmp_gt_u32 vcc, 32, {vr(vl)}\ns_nop 1\nv_cndmask_b32 {vr(vpo+3)}, {vr(u)}, {vr(vpo+3)}, vcc', d=co.end - 60)
    def wo_dma(pc, i, E, EV):
        if i == 0: E(f's_mov_b32 {sr(sk2)}, {pc << 18}\ns_add_u32 m0, {sr(sW4)}, {pc*16384}')
        EV(VM(p, f'buffer_load_dwordx4 {vr(vw2+i)}, {sr(sWO,4)}, {sr(sk2)} offen offset:{1024*i} lds', ('D2', pc, i)), i == 0)
    e = lastd + 4
    def wo_in_loop(lo, hi, e):
        for pc in range(lo, hi):
            e = max(e, co.free_after(27 + ((pc + 1) * 16384 - 1) // SB1) + 1)
            for i in range(4):
                wo_dma(pc, i, lambda t_: sc.add('v', e - 4, INF, t_), lambda f, sep: sc.add('v', e, INF, f, sep=sep)); e += 4
        return e
    npl0, npl = g1.get('npl0', 1), g1.get('npl', 3)
    sc.add('v', e - 6, INF, 's_nop 0', after=osu2)
    if g1.get('whelp') is not None:
        eh = lastd + g1['whelp']; vhp = vrd
        sc.add('h', eh - 30, INF, f's_lshr_b32 {sr(sC+2)}, s2, 3\ns_lshl2_add_u32 {sr(sC+2)}, {sr(sC+2)}, {sr(sw)}\ns_bfe_u32 {sr(sC+3)}, s2, 0x20001\ns_lshl_b32 {sr(sC+3)}, {sr(sC+3)}, 7\ns_add_u32 {sr(sC+3)}, {sr(sC+3)}, {sr(sC+2)}\ns_lshl_b32 {sr(sC+3)}, {sr(sC+3)}, 13\ns_lshl_b32 {sr(sC+2)}, {sr(sC+2)}, 14'
               f'\ns_bitcmp1_b32 s2, 0\ns_cselect_b32 {sr(sC+2)}, {sr(sC+2)}, {OOB}\ns_cselect_b32 {sr(sC+3)}, {sr(sC+3)}, {OOB}\nv_and_b32 {vr(vhp)}, 15, {vr(vl)}\nv_lshlrev_b32 {vr(vhp)}, 10, {vr(vhp)}', after=owa2)
        sc.add('h', eh, eh + 6, VM(p, f'buffer_load_dword a252, {vr(vhp)}, {sr(sWO,4)}, {sr(sC+2)} offen offset:384'))
        sc.add('h', eh, INF, f'v_and_b32 {vr(vhp)}, 0x1fff, {vr(vhp)}')
        sc.add('h', eh + 4, eh + 12, VM(p, f'buffer_load_dword a252, {vr(vhp)}, {sr(sX,4)}, {sr(sC+3)} offen offset:384'))
    e = wo_in_loop(0, npl0, e)
    def xtouch(e):
        sc.add('v', e - 8, INF, f'v_lshrrev_b32 {vr(vph)}, 2, {vr(vl)}\nv_min_u32 {vr(vph)}, (XEND-G3S)/4096, {vr(vph)}\nv_and_b32 {vr(vswz)}, 3, {vr(vl)}\nv_lshlrev_b32 {vr(vswz)}, 7, {vr(vswz)}\nv_lshl_add_u32 {vr(vph)}, {vr(vph)}, 12, {vr(vswz)}\n'
               f's_add_u32 s94, s92, AL-{k.name}+((G3S-AL+4095)/4096)*4096\ns_addc_u32 s95, s93, 0')
        sc.add('v', e, INF, VM(p, f'global_load_dword a252, {vr(vph)}, s[94:95]'))
        pr = g1.get('prow2', 128)
        if pr:
            nl = pr * 56 // 512
            sc.add('v', e, INF, f's_and_b32 {sr(sC)}, {sr(sw)}, 1\ns_lshl1_add_u32 {sr(sC)}, s2, {sr(sC)}\ns_mul_i32 {sr(sC)}, {sr(sC)}, {nl*128}\nv_min_u32 {vr(vph)}, {nl-1}, {vr(vl)}\nv_lshlrev_b32 {vr(vph)}, 7, {vr(vph)}', after=osel)
            sc.add('v', e + 4, INF, VM(p, f'buffer_load_dword a252, {vr(vph)}, {sr(sWG,4)}, {sr(sC)} offen'))
        return e + 8
    if g1.get('xt', 0) == 0: e = xtouch(e)
    if g1.get('jhelp', True):
        sc.add('v', e - 20, INF, f's_bfe_u32 {sr(sC)}, s2, 0x30004\ns_and_b32 {sr(sC+1)}, s2, 3\ns_lshl3_add_u32 {sr(sC)}, {sr(sC+1)}, {sr(sC)}\ns_lshl2_add_u32 {sr(sC)}, {sr(sC)}, {sr(sw)}\ns_mul_i32 {sr(sC)}, {sr(sC)}, {8*12288}\ns_and_b32 {sr(sC+1)}, {sr(sjw)}, 0x3800\ns_add_u32 {sr(sC)}, {sr(sC)}, {sr(sC+1)}\ns_and_b32 {sr(sC+1)}, s2, 8\ns_lshl_b32 {sr(sC+1)}, {sr(sC+1)}, 7\ns_add_u32 {sr(sC)}, {sr(sC)}, {sr(sC+1)}'
               f'\nv_and_b32 {vr(vph)}, 7, {vr(vl)}\nv_mul_u32_u24 {vr(vph)}, 12288, {vr(vph)}')
        sc.add('v', e, INF, VM(p, f'buffer_load_dword a252, {vr(vph)}, {sr(sWM,4)}, {sr(sC)} offen offset:384')); e += 4
    for i in range(8):
        sc.add('v', e, INF, VM(p, f'buffer_load_dwordx4 {vr(jw+4*i,4)}, {vr(jad)}, {sr(sWM,4)}, {sr(sjw)} offen nt', ('jw', i)))
        if i < 7: sc.add('v', e, INF, f's_add_u32 {sr(sjw)}, {sr(sjw)}, 12288')
        e += g1.get('jstep', 4)
    if g1.get('xt', 0) == 1: e = xtouch(e + g1.get('xgap', 0))
    e = wo_in_loop(npl0, npl, e + g1.get('jgap', 50))
    assert e < co.end + 4
    sc.bias = dict(x=10000)
    k.ctouch(sc, g1.get('ct0', 40), lastd - 20, 270)
    kf = lambda m: accr(0, m) if m >= 0 else vov
    vd = lambda c, m: accr(2 + c, 0) + 2 * (m + 1)
    def cv(d, r): return pk(d, r) + '\n' + pk(d + 1, r + 2) if d != r + 2 else pk(d + 1, r + 2) + '\n' + pk(d, r)
    def X(e, txt): sc.add('x', e, INF, txt)
    hk, hv = accr(0, 4), accr(2, 4)
    e = co.cdone[(0, 4)] + 8
    X(e, cv(hk, hk))
    X(e, LG(p, f'ds_write_b64 {vr(ea+2)}, {vr(hk,2)}'))
    for m in (3, 2, 1, 0):
        e = co.cdone[(1, m)] + 7
        X(e, cv(kf(m), kf(m)) + '\n' + cv(kf(m) + 2, accr(1, m)))
        if m == 3:
            X(e, LG(p, f'ds_write_b64 {vr(ea)}, {vr(kf(3),2)}'))
            X(e, LG(p, f'ds_write_b64 {vr(ea+1)}, {vr(kf(3)+2,2)}'))
    for m in range(4): X(co.cdone[(2, m)] + 7, cv(vd(0, m), accr(2, m)))
    e = co.cdone[(2, 4)] + 7
    X(e, cv(hv, hv))
    X(e, LG(p, f'ds_write_b64 {vr(ea)}, {vr(vd(0,3),2)} offset:1024'))
    X(e, LG(p, f'ds_write_b64 {vr(ea+2)}, {vr(hv,2)} offset:1024'))
    e = co.cdone[(3, 0)] + 7
    for m in range(4): X(e, cv(vd(1, m), accr(3, m)))
    X(e, LG(p, f'ds_write_b64 {vr(ea+1)}, {vr(vd(1,3),2)} offset:1024'))
    if TL:
        for s in g1.get('marks', (2, 6, 26)): sc.before(co.sfirst[s] + 1, lambda s=s: k.T(f'g1:s{s}'), 0)
    left = sc.run()
    k.T('g1:loopend')
    for st_, o in left: now(o.fn, o.sep)
    k.info = f'g1 over {sc.over} left {len(left)}'
    p.wait(lg='all')
    p.ins('s_barrier')
    for c in range(2): p.lg(f'ds_read_b64 {vr(kf(-1)+2*c,2)}, {vr(ea+3+c)}', ('pk', c))
    for c in range(2): p.lg(f'ds_read_b64 {vr(vd(c,-1),2)}, {vr(ea+5)} offset:{1024+8*c}', ('pv', c))
    Q = lambda m: accr(4, m)
    Sv = lambda m, h: accr(5 if h else 1, m)
    P_ = lambda m: accr(1, m)
    O_ = lambda m, c: accr(4 if c else 0, m)
    C = []
    mF = sC
    SCL = (32 ** -0.5) * LOG2E
    for m in (3, 2, 1, 0):
        C.append(cv(Q(m), Q(m)) + '\n' + cv(Q(m) + 2, accr(5, m)))
        if m < 3:
            for h in (1, 0): C.append(f'{MFMA} {vr(Sv(m+1,h),4)}, {vr(kf(m+h),4)}, {vr(Q(m+1),4)}, 0')
    C.append(f's_cmp_eq_u32 {sr(sm)}, 0\ns_cselect_b64 {sr(mF,2)}, {sr(mPa,2)}, 0\ns_cselect_b64 {sr(mF+2,2)}, {sr(mPb,2)}, 0')
    C.append(WT(p, lg=[('pk', 1)]))
    for h in (1, 0): C.append(f'{MFMA} {vr(Sv(0,h),4)}, {vr(kf(h-1),4)}, {vr(Q(0),4)}, 0')
    def vswap():
        p.ins(f's_cmp_eq_u32 {sr(swm)}, 0\ns_cbranch_scc1 F_sw')
        for i in range(8): p.ins(f'v_swap_b32 {vr(vd(0,0)+i)}, {vr(vd(1,0)+i)}')
        p.label('F_sw')
    C.append(vswap)
    C.append(f'v_mov_b32 {vr(vt)}, {f32(-1e9 * 32 ** 0.5)}\nv_mov_b32 {vr(vt+2)}, {f32(SCL)}')
    def al(f):
        for m in (3, 2, 1, 0): C.append(f(m, Wv + 4 * m))
    al(lambda m, w: '\n'.join(f'v_cndmask_b32 {vr(w+i)}, {vr(Sv(m,i>>1)+2*(i&1))}, {vr(Sv(m,i>>1)+2*(i&1)+1)}, {sr(mO,2)}' for i in (2, 3, 0, 1)))
    al(lambda m, w: f'v_cndmask_b32 {vr(w)}, {vr(w+2)}, {vr(w)}, {sr(mPa,2)}\nv_cndmask_b32 {vr(w+1)}, {vr(w+3)}, {vr(w+1)}, {sr(mPb,2)}')
    C.append(f'v_cndmask_b32 {vr(Wv)}, {vr(Wv)}, {vr(vt)}, {sr(mF,2)}\nv_cndmask_b32 {vr(Wv+1)}, {vr(Wv+1)}, {vr(vt)}, {sr(mF+2,2)}')
    def xred(op):
        al(lambda m, w: f'{op} {vr(w+2)}, {vr(w)}, {vr(w+1)}\n{op} {vr(w+3)}, {vr(w)}, {vr(w+1)}')
        al(lambda m, w: f'v_permlane16_swap_b32 {vr(w+2)}, {vr(w+3)}')
        al(lambda m, w: f'{op} {vr(w+2)}, {vr(w+2)}, {vr(w+3)}')
        al(lambda m, w: f'v_mov_b32 {vr(w+3)}, {vr(w+2)}')
        al(lambda m, w: f'v_permlane32_swap_b32 {vr(w+2)}, {vr(w+3)}')
        al(lambda m, w: f'{op} {vr(w+2)}, {vr(w+2)}, {vr(w+3)}')
    xred('v_max_f32')
    al(lambda m, w: f'v_mul_f32 {vr(w+2)}, {f32(-SCL)}, {vr(w+2)}')
    al(lambda m, w: f'v_pk_fma_f32 {vr(w,2)}, {vr(w,2)}, {vr(vt+2,2)}, {vr(w+2,2)} op_sel_hi:[1,0,0]')
    al(lambda m, w: f'v_exp_f32 {vr(w)}, {vr(w)}\nv_exp_f32 {vr(w+1)}, {vr(w+1)}')
    xred('v_add_f32')
    al(lambda m, w: f'v_rcp_f32 {vr(w+2)}, {vr(w+2)}')
    al(lambda m, w: f'v_pk_mul_f32 {vr(w,2)}, {vr(w,2)}, {vr(w+2,2)} op_sel_hi:[1,0]')
    al(lambda m, w: pk(w, w))
    def xd(m, q):
        if q == 0: p.ins(f's_add_u32 m0, {sr(sW4)}, {XL+2048*m}\n' + (f's_add_u32 {sr(s0)}, {sr(sro)}, 32768' if m else 's_nop 0'))
        p.vm(f'buffer_load_dwordx4 {vr(vro+q)}, {sr(sX,4)}, {sr(s0 if m else sro)} offen offset:{1024*q} lds', ('xd', m, q))
    wl = [(lambda pc=pc, i=i: wo_dma(pc, i, p.ins, now)) for pc in range(npl, 8) for i in range(4)] + [(lambda m=m, q=q: xd(m, q)) for m in range(2) for q in range(2)]
    nat, ndr = g1.get('nat', 8), g1.get('ndr', 8)
    assert not weave(p, C, wl[:nat], g1.get('astep', 10), g1.get('afirst', 0))
    p.wait(lg=[('pv', 1)])
    pv = lambda m: '\n'.join(f'{MFMA} {vr(O_(m,c),4)}, {vr(vd(c,m-1),4)}, {vr(P_(m),4)}, 0' for c in range(2))
    for m in (3, 2, 1, 0):
        for i in range(4): p.ins(f'v_perm_b32 {vr(P_(m)+i)}, {vr(Wv+4*m)}, {vr(Wv+4*m)}, {vr(vM+i)}')
        if m < 3: p.ins(pv(m + 1))
    p.ins('s_nop 0\n' + pv(0))
    for m in (3, 2, 1, 0):
        w = Wv + 4 * m
        for i in range(4): p.ins(pk(w + i, O_(m, i >> 1) + 2 * (i & 1)))
        p.vm(f'buffer_store_dwordx4 {vr(w,4)}, v0, {sr(sWS,4)}, {sr(soo+(m>>1))} offen offset:{1024*(m&1)} sc1', 'os')
    k.T('o:st')
    p.wait(vm=[('jw', 7)])
    JA = acc1 + 32
    assert not weave(p, gemv(None, JA, JA + 8), wl[nat:nat + ndr], g1.get('dstep', 12))
    k.publish('o', sfl, vt, vm=['os'])
    if stop == 1: return finish(k)
    for i in range(4): p.lg(f'ds_read_b32 {vr(JA+i)}, {vr(JA+8)} offset:{256*i}', 'jr')
    p.ins(f's_cmp_eq_u32 {sr(sw)}, 1\ns_cselect_b32 {sr(s1)}, {sr(sjo)}, {OOB}\n' + k.flag_off(sfl, FL_Y))
    p.wait(lg=['jr'])
    p.ins(f'v_add_f32 {vr(JA)}, {vr(JA)}, {vr(JA+1)}\nv_add_f32 {vr(JA+2)}, {vr(JA+2)}, {vr(JA+3)}\nv_add_f32 {vr(JA)}, {vr(JA)}, {vr(JA+2)}')
    p.vm(f'buffer_store_dword {vr(JA)}, {vr(jad+2)}, {sr(sWS,4)}, {sr(s1)} offen sc1')
    S.free(sjo)
    wl = wl[nat + ndr:]
    for r_, n_ in ((sm, 1), (swm, 1), (sK, 1), (sXc, 1), (sWL, 3), (sC, 4), (sjw, 1), (soo, 2), (so, 1), (mO, 2), (mPa, 2), (mPb, 2)): S.free(r_, n_)
    env = dict(locals())
    import k3b
    return k3b.rest(k, env)

def finish(k):
    p = k.p
    if TL:
        k.T('preend')
        p.ins('s_waitcnt vmcnt(0) lgkmcnt(0)')
        k.T('end')
        p.ins(f's_load_dwordx2 s[96:97], s[0:1], 88\nv_lshrrev_b32 v1, 2, v0\ns_lshl_b32 s98, s2, 12\ns_lshl_b32 s99, {sr(sw)}, 9\ns_add_u32 s98, s98, s99\ns_add_u32 s98, s98, {WS_STAMP}\nv_add_u32 v1, s98, v1\ns_waitcnt lgkmcnt(0)')
        p.ins('global_store_dword v1, a254, s[96:97]\nglobal_store_dword v1, a255, s[96:97] offset:256')
    p.label('XEND')
    p.ins('s_endpgm')
    t0 = k.text
    k.text = lambda: t0() + ''.join(k.cold)
    return k
```

```python
from k3 import *
import k3

def rest(k, env):
    p, cfg = k.p, k.cfg
    stop = cfg.get('stop', 9)
    TL = k3.TL
    g = lambda n: env[n]
    S, vl, vt, s0, s1, sfl, spc, now = g('S'), g('vl'), g('vt'), g('s0'), g('s1'), g('sfl'), g('spc'), g('now')
    sm2, sn2, sorg, sro, sW4, sy, sst, sax = g('sm2'), g('sn2'), g('sorg'), g('sro'), g('sW4'), g('sy'), g('sst'), g('sax')
    wa2, vxa, va2, vgo, vpo = g('wa2'), g('vxa'), g('va2'), g('vgo'), g('vpo')
    sm3, sn3, sT3, sWL3, sAb, wa3, vd3, SB3, ldw = g('sm3'), g('sn3'), g('sT3'), g('sWL3'), g('sAb'), g('wa3'), g('vd3'), g('SB3'), g('ldw')
    g1, g2, g3, g4 = cfg['g1'], cfg['g2'], cfg['g3'], cfg['g4']
    ST1, GBA = A(232), A(248)

    V = Regs('v', 20, g('vw2'))
    acc = V.alloc('acc', 32, 4); vf = V.alloc('f', 32, 4); vg = V.alloc('g', 16, 4); vc = V.alloc('c', 16, 4); vx = V.alloc('x', 16, 4)
    vy = V.alloc('y', 24, 4); gp = V.alloc('gp', 16, 4)
    sA2 = S.alloc(); sy1 = S.alloc()
    u = vt
    sc = Sched(p, g2.get('cap', 2))
    DAS, R = g2.get('DAS', 5), g2.get('R', 36)
    assert 16 * DAS + 4 * R <= 232
    def wrd(s, t, j, h):
        st, off = divmod((2 * s + j) * 4096 + h * 2048, 65536)
        return wa2 + 4 * st + t, off
    accr = lambda t, m: acc + (t * 2 + m) * 4
    co = Core(p, sc, 16, 2, A(16 * DAS), R, g2.get('lead', 16), A(0), DAS, accr, wrd, ard=False, name='g2')
    co.build([(s, t) for s in range(16) for t in range(4)], wg=g2.get('wg', 1), fine0=True)
    co.barriers(None, have=range(16))
    NP = 2 * R - g2.get('rlate', 40)
    assert NP // 32 < g('npl') + g('nat') // 4
    co.rtime = lambda n: -1 if n < 2 * R else int((n - 2 * R) * 236 / (256 - 2 * R))
    co.wreads()
    for f in g('wl'): f()
    for _ in range(NP): co.rq.pop(0)[2]()
    hs = cfg.get('hsplit')
    if hs: k.hop('c', 'G3S', 'G3M', (1, 2, 3))
    k.poll('o', vpo + 2, FL_H, u + 1, spc, pre=lambda: p.wait(vm=[('xd', 1, 1)]))
    a0 = g2.get('a0', 2); last = -2
    for s in range(16):
        for i in (0, 2, 1, 3) if s == 0 else range(4):
            j, m = divmod(i, 2)
            if s < a0: e, d = -1, 0
            else:
                e = last = max(last + 2, co.alast[(s - DAS, j, m)] if s >= DAS else 0, (s - DAS + 1) * 16 + 4 * i + 1); d = co.await_[(s, j, m)]
            if i == 0 and s: sc.add('v', e - 1, d, f's_mov_b32 {sr(sA2)}, {4096*s}')
            sc.add('v', e, d, VM(p, f'buffer_load_dwordx4 {vr(co.abf(s,j,m),4)}, {vr(va2)}, {sr(sWS,4)}, {sr(sA2) if s else 0} offen offset:{1024*i} sc1', co.atag(s, j, m)))
    co.flush_reads()
    for m in range(2):
        for t in range(4): sc.add('x', -1, 0, LG(p, f'ds_read_b64 {vr(vx+8*m+2*t,2)}, {vr(vxa+t)} offset:{2048*m}', 'xl'))
    sc.add('x', -1, 0, f'v_lshrrev_b32 {vr(u+1)}, 4, {vr(vl)}\nv_cmp_eq_u32 vcc, 2, {vr(u+1)}\ns_add_u32 {sr(sy1)}, {sr(sy)}, 4096\ns_nop 0\nv_cndmask_b32 {vr(u+1)}, 0, 1.0, vcc')
    sc.add('x', -1, 0, WT(p, lg=['xl']))
    for i in range(16): sc.add('x', -1, 0, unpack(vf + 2 * i, vx + i))
    pos = [g2.get('jf', 12)]
    def F(t_, d=INF): return sc.add('x', pos[0], d, t_)
    ld = [(f's_mov_b32 {sr(s1)}, {24576*q}', f'buffer_load_dwordx4 {vr(gp+4*q,4)}, {vr(vpo+1)}, {sr(sWS,4)}, {sr(s1)} offen sc1') for q in range(4)]
    for a_, b_ in ld: F(a_); F(VM(p, b_, 'gp'))
    pos[0] += g2.get('jl', 76)
    F(WT(p, vm=['gp']))
    tst = f'v_max_u32 {vr(u+3)}, {vr(gp)}, {vr(gp+1)}\n' + '\n'.join(f'v_max3_u32 {vr(u+3)}, {vr(u+3)}, {vr(gp+i)}, {vr(gp+i+1)}' for i in range(2, 16, 2))
    F(tst)
    o = F(lambda: k.dcheck('jf', '\n'.join(a_ + '\n' + b_ for a_, b_ in ld), tst, u + 3, spc), d=pos[0] + 20); o.cost = 4; o.wscc = True; o.kind = 'V'
    for i in range(8): F(f'v_add_f32 {vr(gp+i)}, {vr(gp+i)}, {vr(gp+8+i)}')
    for i in range(4): F(f'v_add_f32 {vr(gp+i)}, {vr(gp+i)}, {vr(gp+4+i)}')
    F(rb2(gp, gp + 4) + '\n' + rb2(gp + 2, gp + 5))
    for i in range(4): F(f'v_add_f32 {vr(gp+i)}, {vr(u+1)}, {vr(gp+i)}')
    F(rb2(gp, gp + 4) + '\n' + rb2(gp + 2, gp + 5))
    F(LG(p, f'ds_write_b128 {vr(vgo+2)}, {vr(gp,4)}'))
    for t in range(4):
        F(LG(p, f'ds_read_b128 {vr(vg+4*t,4)}, {vr(vgo)} offset:{64*t}'))
        F(LG(p, f'ds_read_b128 {vr(vc+4*t,4)}, {vr(vgo)} offset:{512+64*t}'))
    for t in range(4): F(LG(p, f'ds_read_b128 {vr(vx+4*t,4)}, {vr(vgo+1)} offset:{512+64*t}', 'ax'))
    for i in range(4): F(f'v_accvgpr_write_b32 {vr(GBA+i)}, {vr(gp+i)}')
    F(WT(p, lg=['ax']))
    for i in range(8): F(pk(vy + 16 + i, vx + 2 * i))
    for q in range(2): F(VM(p, f'buffer_store_dwordx4 {vr(vy+16+4*q,4)}, v0, {sr(sWS,4)}, {sr(sax)} offen offset:{1024*q} sc1'))
    sxo = S.alloc(4); so = S.alloc(3); sx = S.alloc(3); sK = S.alloc(); sAc = S.alloc(); sC = S.alloc(); sk4 = S.alloc()
    NS, AUX = 4, g3.get('aux', (6, 9))
    cx = lambda d, s: f's_bfe_u32 {sr(d)}, {sr(sT3 + s // 8)}, {hex(0x40000 + 4 * (s % 8))}'
    def dma3(s, i, E, EV):
        if i == 0: E(cx(sK, s) + f'\ns_mul_i32 {sr(sK)}, {sr(sK)}, {64*ldw}')
        if i % 4 == 0: E(f's_add_u32 m0, {sr(sWL3)}, {(s % NS) * SB3 + 1024 * i}')
        EV(VM(p, f'buffer_load_dwordx4 {vr(vd3+i)}, {sr(sWG,4)}, {sr(sK)} offen offset:{1024*(i%4)} lds', ('D3', s, i)), i % 4 == 0)
    d3pre = 0
    if d3pre:
        db = co.sfirst[(d3pre * SB3 - 1) // 8192 + 1] + 2
        co.addbar(db)
        e = max(db, last) + 3
        for s in range(d3pre):
            for i in range(7):
                dma3(s, i, lambda t_: sc.add('v', e - 2, INF, t_), lambda f, sep: sc.add('v', e, INF, f, sep=sep)); e += g2.get('d3step', 4)
    sc.bias = dict(x=g2.get('bias', 0))
    sc.capf = lambda i: 3 if i >= g2.get('c3', 200) else 2
    if TL:
        for s in g2.get('marks', (1, 4, 10)): sc.before(co.sfirst[s] + 1, lambda s=s: k.T(f'g2:s{s}'), 0)
    left = sc.run()
    k.T('g2:loopend')
    k.info += f' | g2 over {sc.over} left {len(left)}'
    for st_, o in left: now(o.fn, o.sep)
    p.wait(lg='all')
    yd = g2.get('yd', 0); ye = g2.get('ye', 0)
    if yd or ye: p.ins('s_barrier')
    d3l = [(lambda s=s, i=i: dma3(s, i, p.ins, now)) for s in range(g3.get('npre', 2)) for i in range(7)]
    for f in d3l[:ye]: f()
    if len(left) < 4: p.ins('s_nop 2')
    for tp in (0, 2):
        for m in range(2):
            fm = vf + 16 * m; ym = vy + 8 * m
            for t in (tp, tp + 1):
                c = accr(t, m)
                for e in (0, 2): p.ins(f'v_pk_fma_f32 {vr(fm+4*t+e,2)}, {vr(vg+4*t+e,2)}, {vr(c+e,2)}, {vr(fm+4*t+e,2)}')
            for t in (tp, tp + 1):
                c = accr(t, m)
                for e in (0, 2): p.ins(f'v_pk_mul_f32 {vr(c+e,2)}, {vr(fm+4*t+e,2)}, {vr(vc+4*t+e,2)}')
            for t in (tp, tp + 1): p.ins(pk(ym + 2 * t, accr(t, m)) + '\n' + pk(ym + 2 * t + 1, accr(t, m) + 2))
            p.vm(f'buffer_store_dwordx4 {vr(ym+2*tp,4)}, v0, {sr(sWS,4)}, {sr(sy1 if tp else sy)} offen offset:{1024*m} sc1')
    q_ = acc + 8
    for i in range(0, 16, 2):
        for m in range(2):
            r = vf + 16 * m + i
            if i == 0: p.ins(f'v_pk_mul_f32 {vr(q_+4*m+2,2)}, {vr(r,2)}, {vr(r,2)}')
            else: p.ins(f'v_pk_fma_f32 {vr(q_+4*m+2,2)}, {vr(r,2)}, {vr(r,2)}, {vr(q_+4*m+2,2)}\nv_pk_add_f32 {vr(q_+4*m,2)}, {vr(r,2)}, {vr(r-2 if i == 2 else q_+4*m,2)}')
    for i in range(4): p.ins(f'v_add_f32 {vr(acc+i)}, {vr(q_+2*i)}, {vr(q_+2*i+1)}')
    for st in (16, 32):
        for i in range(4): p.ins(f'v_mov_b32 {vr(acc+4+i)}, {vr(acc+i)}')
        for i in range(4): p.ins(f'v_permlane{st}_swap_b32 {vr(acc+i)}, {vr(acc+4+i)}')
        for i in (0, 2): p.ins(f'v_pk_add_f32 {vr(acc+i,2)}, {vr(acc+i,2)}, {vr(acc+4+i,2)}')
    p.ins('s_mov_b64 exec, 0xffff')
    p.vm(f'buffer_store_dwordx4 {vr(acc,4)}, v0, {sr(sWS,4)}, {sr(sst)} offen sc1', 'ys')
    p.ins('s_mov_b64 exec, -1')
    for f in weave(p, [pk(vx + i, vf + 2 * i) for i in range(16)] + [f'v_accvgpr_write_b32 {vr(ST1+i)}, {vr(vx+i)}' for i in range(16)], d3l[ye:ye + yd], 4, -4): f()
    k.publish('y', sfl, u, vm=['ys'])
    if stop == 2: return finish(k)
    for r_ in (sA2, sy1, sy, sst, sax): S.free(r_)

    nst, FS = 16, 3
    DAS, R = 4, g3.get('R', 12)
    abuf, wbuf = A(0), A(128); xw = A(176); xb = A(208); xacc = A(216)
    assert 128 + 4 * R <= 176
    UTL = 159744
    acc = 32; vs = 10; tm = 22
    accr = lambda t, m: acc + (t * 4 + m) * 4
    sc = Sched(p, 2)
    def wrd(s, t, j, h):
        st, sl = divmod(s % 4, 2)
        return wa3 + st, sl * SB3 + (t // 7) * 14336 + (32 * j + 16 * h) * 224 + (t % 7) * 32
    co = Core(p, sc, NS, 4, wbuf, R, g3.get('lead', 32), abuf, DAS, accr, wrd, ard=False, name='g3')
    order = [6, 0, 1, 2, 3, 4, 5]
    groups = [(s, t) for s in range(nst - FS) for t in range(14)] + [(s, t + 7 * sg) for t in order for s in range(nst - FS, nst) for sg in range(2)]
    xpos = {}
    def auxm(n):
        def f(pos):
            xpos[n] = pos
            for i in range(4):
                for j in range(2):
                    c = xacc + 4 * i
                    sc.mf.append(f'{MFMA} {vr(c,4)}, {vr(xw+8*i+4*j,4)}, {vr(xb+4*j,4)}, {vr(c,4) if (n or j) else 0}')
            sc.before(pos, lambda: p.wait(vm=[('xb', n, 1)], lg=[('xw', n)]))
        return f
    ipos = {}
    BI, WI = A(0), A(16)
    def injm(oi):
        def f(pos):
            ipos[oi] = pos
            for sg in range(2):
                for m in range(4):
                    c = accr(order[oi] + 7 * sg, m)
                    sc.mf.append(f'{MFMA} {vr(c,4)}, {vr(WI+8*(oi&1)+4*sg,4)}, {vr(BI+4*m,4)}, {vr(c,4)}')
            sc.before(pos, WT(p, lg=[('wi', oi)]))
        return f
    ins = {14 * s + (4, 2)[n]: auxm(n) for n, s in enumerate(AUX)}
    ins.update({14 * (nst - FS) + 2 * FS * oi + (4 if oi == 0 else 1): injm(oi) for oi in range(7)})
    co.build(groups, wg=g3.get('wg', 2), ins=ins, fine0=True)
    early = range(g3.get('early', 13), nst - FS + 1)
    co.barriers(lambda s: [('D3', s, 6)], have=[0] + list(early))
    for o in range(g3.get('bar0', 1), nst - FS + 1):
        co.addbar(co.sfirst[o] + 2, vm=[('D3', o + 1, 6)] if o + 1 in early else None)
        if o + 1 in early: co.bar[o + 1] = co.sfirst[o] + 2
    z = co.sfirst[nst - FS]
    def al3(s, i, E, EV):
        j, m = divmod(i, 4)
        if i == 0: E(cx(sAc, s) + f'\ns_lshl_b32 {sr(sAc)}, {sr(sAc)}, 13\ns_add_u32 {sr(sAc)}, {sr(sAc)}, {sr(sAb)}')
        if i == 4: E(f's_add_u32 {sr(sAc)}, {sr(sAc)}, 4096')
        EV(VM(p, f'buffer_load_dwordx4 {vr(co.abf(s,j,m),4)}, v0, {sr(sWS,4)}, {sr(sAc)} offen offset:{1024*m} sc1', co.atag(s, j, m)), False)
    npre = g3.get('npre', 2)
    for f in d3l[ye + yd:]: f()
    al3(0, 0, p.ins, lambda f, sep: None)
    p.ins(f's_lshl2_add_u32 {sr(s0)}, s2, {sr(sw)}\ns_cmp_eq_u32 {sr(s0)}, 1\ns_cbranch_scc1 CKSs')
    p.label('CKSx')
    sd_ = (f'CKSs:\ns_mov_b32 {sr(spc)}, 30000\nv_lshlrev_b32 {vr(u+2)}, 3, v0\nCKS:\n' + ''.join(f's_mov_b32 {sr(s0)}, {FL_H+8192*i}\nbuffer_load_dword {vr(u+4+i)}, {vr(u+2)}, {sr(sWS,4)}, {sr(s0)} offen sc1\n' for i in range(4))
           + f's_sub_u32 {sr(spc)}, {sr(spc)}, 1\ns_cmp_eq_u32 {sr(spc)}, 0\ns_waitcnt vmcnt(0)\ns_cbranch_scc1 CKSy\nv_xor_b32 {vr(u+3)}, {sr(sTok)}, {vr(u+4)}\n'
           + ''.join(f'v_bitop3_b32 {vr(u+3)}, {vr(u+3)}, {vr(u+4+i)}, {sr(sTok)} bitop3:0xf6\n' for i in range(1, 4))
           + f'v_cmp_ne_u32 vcc, 0, {vr(u+3)}\ns_nop 4\ns_cbranch_vccnz CKS\nCKSy:\ns_mov_b32 {sr(s0)}, {WS_SEED}\ns_mov_b64 exec, 1\nbuffer_store_dword {vr(u)}, v0, {sr(sWS,4)}, {sr(s0)} offen sc1\ns_mov_b64 exec, -1\ns_branch CKSx')
    k.cold.append('\n'.join(l if l.endswith(':') else '  ' + l for l in sd_.split('\n')) + '\n')
    if hs != 99: k.hop('b', 'G3M' if hs else 'G3S', 'NONE', (1, 2, 3))
    p.label('G3S')
    k.poll('y', vpo + 3, FL_H, u + 1, spc, pre=lambda: p.wait(vm=[('D3', 0, 6)]))
    for i in range(8): al3(0, i, p.ins if i else (lambda t_: None), now)
    ev = []
    at = lambda x: co.sfirst[min(int(x), nst - FS)] + int((x % 1) * 112) if x >= 0 else 0
    c0, c1 = g3.get('catch', (6, 11))
    def warp(x, lag):
        return x + lag * min(1.0, max(0.0, (c1 - x) / (c1 - c0)))
    for s in range(1, nst):
        w = 1.0 if s < nst - 1 else 0.62
        if s >= npre:
            ev += [(max(co.slotfree(s) + 1 + i, at(warp(s - 3 + w * (i + 0.55) / 7.5, g3.get('dlag', 0.6)))), 'D', s, i, co.bar[s]) for i in range(7)]
        ev += [(at(warp(s - 3 + w * (i + 0.05) / 7.5, g3.get('alag', 1.2))), 'A', s, i, co.await_[(s,) + divmod(i, 4)]) for i in range(8)]
    ev.sort(key=lambda x: (x[0], x[4]))
    for kind in 'AD':
        L = [x[2:4] for x in ev if x[1] == kind]
        assert L == sorted(L), (kind, L)
    for e, kind, s, i, d in ev:
        (dma3 if kind == 'D' else al3)(s, i, lambda t_: sc.add('v', max(e - 4, 0), d, t_), lambda f, sep: sc.add('v', e, d, f, sep=sep))
    lastv = ev[-1][0]
    co.wreads(); co.flush_reads()
    pos = [40]
    def F(t_, d=INF): return sc.add('x', pos[0], d, t_)
    def U(t_, d=INF): return sc.add('u', pos[0], d, t_)
    vxa_ = tm + 9
    F(f's_lshr_b32 {sr(sx)}, {sr(sw)}, 1\ns_mul_i32 {sr(sx)}, {sr(sx)}, 14336\ns_and_b32 {sr(sx+1)}, {sr(sw)}, 1\ns_lshl_b32 {sr(sx+1)}, {sr(sx+1)}, 7\ns_add_u32 {sr(sx)}, {sr(sx)}, {sr(sx+1)}\nv_add_u32 {vr(vxa_)}, {sr(sx)}, {vr(wa3)}', d=200)
    U(cx(sC, AUX[0]) + f'\ns_lshl4_add_u32 {sr(sC)}, {sr(sm3)}, {sr(sC)}\ns_lshl_b32 {sr(sC)}, {sr(sC)}, 11\ns_add_u32 {sr(sC)}, {sr(sC)}, {WS_AUX}')
    def auxl(n):
        s = AUX[n]
        pos[0] = xpos[n] - 150
        dlt = (s % 4 - (AUX[0] % 4 if n else 0)) * SB3
        if dlt: F(f'v_add_u32 {vr(vxa_)}, {dlt}, {vr(vxa_)}')
        if n: U(f's_add_u32 {sr(sC)}, {sr(sC)}, 16384')
        for j in range(2): U(VM(p, f'buffer_load_dwordx4 {vr(xb+4*j,4)}, v0, {sr(sWS,4)}, {sr(sC)} offen offset:{1024*j} sc1', ('xb', n, j)), d=xpos[n] - 90)
        pos[0] = max(co.bar[s], xpos[n] - 60)
        for i in range(4):
            for j in range(2):
                for h in range(2):
                    off = (32 * j + 16 * h) * 224 + 32 * i
                    F(LG(p, f'ds_read_b64_tr_b16 {vr(xw+8*i+4*j+2*h,2)}, {vr(vxa_)} offset:{off}', ('xw', n)), d=xpos[n] - 8); pos[0] += 2
    F(f's_lshl_b32 {sr(sxo)}, s2, 15\ns_lshl1_add_u32 {sr(sxo)}, {sr(sW4)}, {sr(sxo)}\ns_xor_b32 {sr(sxo+2)}, {sr(sxo)}, 32768\ns_add_u32 {sr(sxo)}, {sr(sxo)}, {WS_XC}\ns_add_u32 {sr(sxo+1)}, {sr(sxo)}, 4096\ns_add_u32 {sr(sxo+2)}, {sr(sxo+2)}, {WS_XC}\ns_add_u32 {sr(sxo+3)}, {sr(sxo+2)}, 4096')
    auxl(0)
    pos[0] = xpos[0] + 10
    osx = F(f's_lshl2_add_u32 {sr(sx)}, {sr(sm3)}, {sr(sw)}\ns_lshl_b32 {sr(sx)}, {sr(sx)}, 13\ns_add_u32 {sr(sx)}, {sr(sx)}, {WS_ST}\ns_add_u32 {sr(sx+1)}, {sr(sx)}, 4096')
    for h in range(2):
        for q in range(4):
            F(VM(p, f'buffer_load_dwordx4 {vr(xw+16*h+4*q,4)}, v0, {sr(sWS,4)}, {sr(sx+h)} offen offset:{1024*q} sc1', 'st'), d=pos[0] + 30); pos[0] += 9
    pos[0] += 70
    F(WT(p, vm=['st']))
    for m in range(4):
        b = tm + 2 * (m & 1); o = vs + 3 * m
        if m % 2 == 0:
            for i in range(4): F(f'v_accvgpr_read_b32 {vr(tm+i)}, {vr(xw+8*m+i)}')
            for q in range(1, 4):
                for i in range(4): F(f'v_accvgpr_read_b32 {vr(tm+4+i)}, {vr(xw+8*m+4*q+i)}')
                for i in range(4): F(f'v_add_f32 {vr(tm+i)}, {vr(tm+i)}, {vr(tm+4+i)}')
            for st in (16, 32):
                for i in range(4): F(f'v_mov_b32 {vr(tm+4+i)}, {vr(tm+i)}')
                for i in range(4): F(f'v_permlane{st}_swap_b32 {vr(tm+i)}, {vr(tm+4+i)}')
                for i in range(4): F(f'v_add_f32 {vr(tm+i)}, {vr(tm+i)}, {vr(tm+4+i)}')
        F(f'v_mul_f32 {vr(b)}, {f32(1/1024)}, {vr(b)}\nv_mul_f32 {vr(b+1)}, {f32(1/1024)}, {vr(b+1)}\nv_fma_f32 {vr(b+1)}, -{vr(b)}, {vr(b)}, {vr(b+1)}\nv_max_f32 {vr(b+1)}, 0, {vr(b+1)}\n' + rb(b + 1))
        F(f'v_add_f32 {vr(b+1)}, {f32(1e-5)}, {vr(b+1)}\n' + rb(b + 1) + f'\nv_sqrt_f32 {vr(b+1)}, {vr(b+1)}\ns_nop 0\nv_cvt_pk_bf16_f32 {vr(o+2)}, -{vr(b)}, {vr(b+1)}\nv_and_b32 {vr(b+1)}, 0xffff0000, {vr(o+2)}')
        F(f'v_rcp_f32 {vr(o)}, {vr(b+1)}\nv_mul_f32 {vr(o+1)}, {vr(b+1)}, {vr(b+1)}\nv_mul_f32 {vr(o)}, {f32(-LOG2E)}, {vr(o)}')
    auxl(1)
    b = tm
    F(f'v_lshrrev_b32 {vr(b)}, 4, v0\nv_and_b32 {vr(b+1)}, 14, {vr(b)}\nv_lshlrev_b32 {vr(b+1)}, 27, {vr(b+1)}\nv_and_b32 {vr(b+2)}, 1, {vr(b)}\nv_lshl_add_u32 {vr(b+1)}, {vr(b+2)}, 9, {vr(b+1)}\nv_and_b32 {vr(b)}, 0x30, {vr(b)}\nv_add_u32 {vr(b)}, {vr(b)}, {vr(b+1)}')
    F(f's_lshl3_add_u32 {sr(sx)}, {sr(sn3)}, {sr(sm3)}\ns_lshr_b32 {sr(sx+1)}, {sr(sw)}, 1\ns_lshl1_add_u32 {sr(sx)}, {sr(sx)}, {sr(sx+1)}\ns_and_b32 {sr(sx+1)}, {sr(sw)}, 1\ns_lshl2_add_u32 {sr(sx)}, {sr(sx)}, {sr(sx+1)}\ns_lshl_b32 {sr(sx)}, {sr(sx)}, 8\ns_add_u32 {sr(sx)}, {sr(sx)}, {WS_UT}')
    pos[0] = xpos[1] + 8 + 8
    for i in range(4): F(VM(p, f'buffer_store_dwordx4 {vr(xacc+4*i,4)}, {vr(b)}, {sr(sWS,4)}, {sr(sx)} offen offset:{64*i} sc1', 'us'), d=pos[0] + 12 + 4 * i)
    ub = pos[0] + 30
    F(f's_lshl_b32 {sr(sx+1)}, {sr(sn3)}, 14\ns_lshl_b32 {sr(sx+2)}, {sr(sw)}, 9\ns_add_u32 {sr(sx+1)}, {sr(sx+1)}, {sr(sx+2)}\ns_add_u32 {sr(sx+1)}, {sr(sx+1)}, {WS_UT}')
    F(f's_lshr_b32 {sr(sx+2)}, {sr(sw)}, 1\ns_lshl_b32 {sr(sx+2)}, {sr(sx+2)}, 8\ns_and_b32 {sr(so)}, {sr(sw)}, 1\ns_add_u32 {sr(sx+2)}, {sr(sx+2)}, {sr(so)}\ns_lshl3_add_u32 {sr(sx+2)}, {sr(sx+2)}, {UTL}')
    F(f'v_and_b32 {vr(b+2)}, 0x1f0, v0\nv_min_u32 {vr(b+2)}, {27*16}, {vr(b+2)}\nv_and_b32 {vr(b+4)}, 0x200, v0\nv_lshl_add_u32 {vr(b+3)}, {vr(b+4)}, 4, {vr(b+2)}\nv_lshrrev_b32 {vr(b+4)}, 4, {vr(b+4)}\nv_lshl_add_u32 {vr(b+2)}, {vr(b+2)}, 2, {vr(b+4)}\nv_add_u32 {vr(b+2)}, {sr(sx+2)}, {vr(b+2)}')
    F(f's_lshl2_add_u32 {sr(so)}, {sr(sm3)}, {sr(sw)}\ns_lshl_b32 {sr(so)}, {sr(so)}, 19\ns_mul_i32 {sr(so+1)}, {sr(sn3)}, 7\ns_and_b32 {sr(sx+2)}, {sr(sn3)}, 1\ns_add_u32 {sr(so+1)}, {sr(so+1)}, {sr(sx+2)}\ns_lshl_b32 {sr(so+1)}, {sr(so+1)}, 10\ns_add_u32 {sr(so)}, {sr(so)}, {sr(so+1)}\ns_add_u32 {sr(so+2)}, {sr(so)}, {WS_ACT}')
    F(f's_mul_i32 {sr(sx+2)}, {sr(sx+2)}, {8192-8}\ns_sub_u32 {sr(so)}, {sr(so+2)}, {sr(sx+2)}\ns_add_u32 {sr(so)}, {sr(so)}, 6144\ns_add_u32 {sr(so+1)}, {sr(so)}, 262144')
    F(k.flag_off(sfl, FL_UT))
    F(f's_add_u32 {sr(sx)}, {sr(sx+1)}, 4096')
    pos[0] = ub + g3.get('uwait', 200)
    ld = [f'buffer_load_dwordx4 {vr(xb+4*q,4)}, {vr(b+3)}, {sr(sWS,4)}, {sr(sx if q >= 2 else sx+1)} offen offset:{2048*(q&1)} sc1' for q in range(4)]
    for q in range(4): F(VM(p, ld[q], 'up'), d=pos[0] + 8 + 5 * q)
    pos[0] += 95
    F(WT(p, vm=['up']))
    c4 = b + 4; mx = b + 9
    tst = [f'v_accvgpr_read_b32 {vr(c4+i)}, {vr(xb+i)}' for i in range(4)]
    tst += [f'v_max_u32 {vr(mx)}, {vr(c4)}, {vr(c4+1)}', f'v_max3_u32 {vr(mx)}, {vr(mx)}, {vr(c4+2)}, {vr(c4+3)}']
    for q in range(1, 4):
        for h in range(2):
            tst += [f'v_accvgpr_read_b32 {vr(b+i)}, {vr(xb+4*q+2*h+i)}' for i in range(2)]
            tst += [f'v_max3_u32 {vr(mx)}, {vr(mx)}, {vr(b)}, {vr(b+1)}'] + [f'v_add_f32 {vr(c4+2*h+i)}, {vr(c4+2*h+i)}, {vr(b+i)}' for i in range(2)]
    tst = '\n'.join(tst)
    F(tst)
    o = F(lambda: k.dcheck('uf', '\n'.join(ld), tst, mx, spc)); o.cost = 4; o.wscc = True; o.kind = 'V'
    F(f's_nop 0\nv_permlane32_swap_b32 {vr(c4)}, {vr(c4+2)}\nv_permlane32_swap_b32 {vr(c4+1)}, {vr(c4+3)}\nv_add_f32 {vr(c4)}, {vr(c4)}, {vr(c4+2)}\nv_add_f32 {vr(c4+1)}, {vr(c4+1)}, {vr(c4+3)}')
    tb = z + 2
    for i in range(2):
        x_, h_, d_ = c4 + i, b + 3, (b, c4 + 2)[i]
        F(rb(h_, x_) + f'\nv_sub_f32 {vr(b+8)}, {vr(x_)}, {vr(h_)}\nv_cvt_pk_bf16_f32 {vr(d_)}, {vr(x_)}, {vr(b+8)}\nv_and_b32 {vr(h_)}, 0xffff0000, {vr(d_)}\nv_sub_f32 {vr(b+8)}, {vr(b+8)}, {vr(h_)}\nv_cvt_pk_bf16_f32 {vr(d_+1)}, {vr(b+8)}, 0')
        F(LG(p, f'ds_write_b64 {vr(b+2)}, {vr(d_,2)} offset:{16*i}', 'utw'), d=tb - 10)
    F(WT(p, lg=['utw']), d=tb)
    sc.add('z', lastv, INF, f's_lshl_b32 {sr(sk4)}, {sr(sw)}, 8\ns_add_u32 {sr(sk4)}, {sr(sk4)}, s2\ns_mul_i32 {sr(sk4)}, {sr(sk4)}, 7168')
    sc.add('z', z + 3, INF, f'v_min_u32 {vr(vd3)}, {55*16}, v0\nv_lshlrev_b32 {vr(vd3)}, 3, {vr(vd3)}')
    if not g3.get('nowd'): sc.add('z', z + 3, z + 20, VM(p, f'buffer_load_dword a252, {vr(vd3)}, {sr(sWD,4)}, {sr(sk4)} offen'))
    if g3.get('wd3', 0):
        e = z + g3.get('wd3', 0)
        sc.add('z', z + 22, INF, f's_lshr_b32 {sr(sk4)}, s2, 4\ns_and_b32 {sr(sC)}, s2, 1\ns_lshl3_add_u32 {sr(sk4)}, {sr(sC)}, {sr(sk4)}\ns_mul_i32 {sr(sk4)}, {sr(sk4)}, {7*65536}\ns_bfe_u32 {sr(sC)}, s2, 0x10003\ns_lshl_b32 {sr(sC)}, {sr(sC)}, 10\ns_add_u32 {sr(sk4)}, {sr(sk4)}, {sr(sC)}\ns_add_u32 {sr(sk4)}, {sr(sk4)}, {3*65536}'
               f'\ns_lshl_b32 {sr(sC)}, {sr(sw)}, 8\ns_add_u32 {sr(sC)}, {sr(sC)}, s2\ns_cmp_lt_u32 {sr(sC)}, 128\ns_cselect_b32 {sr(sk4)}, {sr(sk4)}, {OOB}\nv_lshlrev_b32 {vr(vd3)}, 7, v0')
        k.owd3 = sc.add('z', e, e + 6, VM(p, f'buffer_load_dword a252, {vr(vd3)}, {sr(sWD,4)}, {sr(sk4)} offen offset:{384+2048}'))
    ve = [22 + i for i in range(8)]; vub = 31
    pos[0] = z
    F(f'v_and_b32 {vr(vub)}, 0xf0, v0\nv_add_u32 {vr(vub)}, {UTL}, {vr(vub)}\nv_cmp_gt_u32 vcc, 0x100, v0\ns_mov_b32 {sr(sx)}, 0x01000100\ns_mov_b32 {sr(sx+1)}, 0x03020302', d=z + 12)
    for m in range(4):
        q_ = vs + 3 * m + 2; t_ = ve[4 * (m & 1):]
        F(f'v_cndmask_b32 {vr(q_)}, 0, {vr(q_)}, vcc\nv_perm_b32 {vr(t_[0])}, {vr(q_)}, {vr(q_)}, {sr(sx)}\nv_and_b32 {vr(t_[1])}, 0xffff, {vr(q_)}\nv_perm_b32 {vr(t_[2])}, {vr(q_)}, {vr(q_)}, {sr(sx+1)}\nv_lshrrev_b32 {vr(t_[3])}, 16, {vr(q_)}')
        F('\n'.join(f'v_accvgpr_write_b32 {vr(BI+4*m+i)}, {vr(t_[i])}' for i in range(4)), d=ipos[0] - 2)
    for oi, t in enumerate(order):
        for sg in range(2):
            sc.add('u', max(tb + 11 + sg, ipos[oi] - 24 + 2 * sg), ipos[oi] - 6, LG(p, f'ds_read_b128 {vr(WI+8*(oi&1)+4*sg,4)}, {vr(vub)} offset:{2048*sg+256*t}', ('wi', oi)))
    edone = {}
    def mix(a_, b_):
        out = []
        for n in range(max(len(a_), len(b_))): out += a_[n:n+1] + b_[n:n+1]
        return out
    for oi, t in enumerate(order):
        ph = []
        for m in range(4):
            st_ = vs + 3 * m; a_, u_ = accr(t, m), accr(t + 7, m); e4 = ve[4 * (m & 1):]
            o = accr(t & ~1, m) + 2 * (t & 1)
            fin = [pk(o, u_), pk(o + 1, u_ + 2)]
            if t & 1: fin.append(VM(p, f'buffer_store_dwordx4 {vr(o-2,4)}, v0, {sr(sWS,4)}, {sr(so+(m>>1))} offen offset:{1024*(m&1)} sc1', ('as', t)))
            elif t == 6: fin.append(VM(p, f'buffer_store_dwordx2 {vr(o,2)}, v0, {sr(sWS,4)}, {sr(so+(m>>1))} offen offset:{1024*(m&1)} sc1', ('as', t)))
            ph.append(dict(A=[f'v_mul_f32 {vr(e4[x])}, {vr(st_)}, {vr(a_+x)}' for x in range(4)], B=[f'v_exp_f32 {vr(e4[x])}, {vr(e4[x])}' for x in range(4)],
                           C=[f'v_mul_f32 {vr(u_+x)}, {vr(a_+x)}, {vr(u_+x)}' for x in range(4)], D=[f'v_fma_f32 {vr(e4[x])}, {vr(e4[x])}, {vr(st_+1)}, {vr(st_+1)}' for x in range(4)],
                           E=[f'v_rcp_f32 {vr(e4[x])}, {vr(e4[x])}' for x in range(4)], G=[f'v_mul_f32 {vr(u_+x)}, {vr(u_+x)}, {vr(e4[x])}' for x in range(4)], H=fin))
        pg = max(co.cdone[(t, m)] for m in range(4)) + 1; pu = max(co.cdone[(t + 7, m)] for m in range(4)) + 4
        pos[0] = pg
        a, b_, c_, d_ = ph
        for x in a['A'] + mix(a['B'], b_['A']) + mix(b_['B'], a['D']) + mix(a['E'], b_['D']): F(x)
        pos[0] = pu
        for x in mix(b_['E'], a['C']) + a['G'] + c_['A'] + mix(c_['B'], b_['C']) + b_['G'] + a['H'] + d_['A'] + mix(d_['B'], c_['D']) + b_['H'] + mix(c_['E'], d_['D']) + mix(d_['E'], c_['C']) + c_['G'] + d_['C'] + c_['H'] + d_['G'] + d_['H']: lo = F(x)
        edone[t] = lo
        if t == 6: F(f's_mov_b32 {sr(so)}, {sr(so+2)}\ns_add_u32 {sr(so+1)}, {sr(so+2)}, 262144')
        elif t & 1 and t < 5: F(f's_add_u32 {sr(so)}, {sr(so)}, 2048\ns_add_u32 {sr(so+1)}, {sr(so+1)}, 2048')
    if hs and hs != 99: sc.before(z + hs, lambda: p.label('G3M'), 0)
    E3 = co.end; co3 = co; accr3 = accr
    TP = 16 * FS + 8
    for oi, t in enumerate(order[:-1]): edone[t].d = z + (oi + 2) * TP + g3.get('eslack', 10)
    k.ctouch(sc, g3.get('ct0', 20), z, g3.get('cts', 250)); k.ctouch(sc, z, E3, g3.get('cts2', 80))
    if TL:
        for s in g3.get('marks', (1, 3, 11, 13)): sc.before(at(s) + 1, lambda s=s: k.T(f'g3:s{s}'), 0)
        for n in g3.get('fmarks', ()): sc.before(z + n * TP + 1, lambda n=n: k.T(f'g3:f{n}'), 0)

    NS, nst, FS, DAS, R = 9, 28, g4.get('FS', 6), g4.get('DAS', 7), 10
    NC = 10
    sK4 = S.alloc(); sA4 = S.alloc(); sC4 = [S.alloc() for _ in range(NC)]; sLead = S.alloc(); sD7 = S.alloc(); sg0 = S.alloc(); sg1 = S.alloc(); sfp = S.alloc()
    Va = Regs('v', accr3(6, 0), accr3(6, 0) + 16); Vb = Regs('v', accr3(13, 0), accr3(13, 0) + 16)
    vl = Va.alloc('l'); u = Va.alloc('u', 4); vdma = Va.alloc('vdma', 4); va = Va.alloc('va'); vpl = Va.alloc('pl', 2); vxa = Va.alloc('xa', 4)
    waddr = Vb.alloc('waddr', 12); vro = Vb.alloc('ro', 2); vol = Vb.alloc('ol')
    acc4 = [accr3(0, 0), accr3(7, 0)]
    accr = lambda t, m: acc4[t // 4] + ((t % 4) * 2 + m) * 4
    vf = accr3(2, 0); vg = accr3(9, 0); vx = accr3(10, 0); vp = accr3(4, 0)
    GL = 147456 + 4096
    slot4 = lambda s: (s + 7) % NS
    def wrd(s, t, j, h):
        st, off = divmod(slot4(s) * 16384 + (2 * j + h) * 4096 + (t >> 2) * 2048, 65536)
        return waddr + 4 * st + (t & 3), off
    co = Core(p, sc, NS, 2, A(176), R, g4.get('lead', 16), 0, DAS, accr, wrd, ard=False, name='g4')
    aset = [216, 0, 16, 32, 48, 64, 80, 96, 112, 128]
    co.abf = lambda s, j, m: A(aset[s % DAS] + (2 * j + m) * 4)
    Ss = list(range(nst - FS, nst))
    groups = [(s, t) for s in range(nst - FS) for t in range(8)] + [(s, t) for s in Ss for t in range(4, 8)] + [(s, t) for s in Ss for t in range(4)]
    co.build(groups, wg=g4.get('wg', 1))
    co.base = z
    be, b0 = g4.get('be', 2), g4.get('b0', 5)
    co.barriers(lambda s: [('D4', s, 3)], have=(), grp=lambda s: 0 if s < 3 else s if s < b0 else s - (s - b0) % be)
    rf = co3.wdl[-1] + 1
    co.addbar(rf)
    gpos = [z + TP + 20]
    def G(t_, d=INF, after=None): return sc.add('g', gpos[0], d, t_, after=after)
    G(f'v_lshrrev_b32 {vr(vl)}, 4, v0\ns_add_u32 {sr(sLead)}, {sr(sm2)}, {sr(sorg)}\ns_and_b32 {sr(sLead)}, {sr(sLead)}, 3\ns_and_b32 {sr(sg1)}, s2, 1', after=edone[6])
    G(f's_lshl_b32 {sr(sg0)}, {sr(sn2)}, 7\ns_lshl3_add_u32 {sr(sg0)}, {sr(sW4)}, {sr(sg0)}\ns_mul_i32 {sr(sD7)}, {sr(sg1)}, {1792*2048}\ns_add_u32 {sr(sg0)}, {sr(sg0)}, {sr(sD7)}\ns_lshr_b32 {sr(sD7)}, {sr(sw)}, 1\ns_mul_i32 {sr(sD7)}, {sr(sD7)}, {3*65536}')
    G(f'v_bfe_u32 {vr(u)}, {vr(vl)}, 4, 2\nv_bfe_u32 {vr(u+1)}, {vr(vl)}, 1, 2\nv_xor_b32 {vr(u)}, {vr(u)}, {vr(u+1)}\nv_lshlrev_b32 {vr(u)}, 5, {vr(u)}\nv_and_b32 {vr(u+1)}, 1, {vr(vl)}\nv_lshl_add_u32 {vr(u)}, {vr(u+1)}, 4, {vr(u)}\nv_lshrrev_b32 {vr(u+1)}, 3, {vr(vl)}\nv_lshlrev_b32 {vr(u+1)}, 11, {vr(u+1)}')
    G(f's_sub_u32 {sr(sWD)}, {sr(sWD)}, 2048\ns_subb_u32 {sr(sWD+1)}, {sr(sWD+1)}, 0\ns_mov_b32 {sr(sWD+2)}, {FF*DM*2+2048}')
    if g3.get('wd3', 0): k.owd3.after = sc.streams['g'][-1]
    osu = G(f'v_add3_u32 {vr(u)}, {vr(u)}, {vr(u+1)}, {sr(sg0)}\nv_add_u32 {vr(vdma)}, 2048, {vr(u)}\nv_add_u32 {vr(vdma+1)}, {16384+1024}, {vr(u)}\nv_xor_b32 {vr(vdma+2)}, 128, {vr(u)}\nv_add_u32 {vr(vdma+3)}, {16384-1024}, {vr(vdma+2)}')
    G(f'v_and_b32 {vr(u)}, 7, {vr(vl)}\nv_lshrrev_b32 {vr(u+2)}, 4, {vr(vl)}\nv_xor_b32 {vr(u)}, {vr(u)}, {vr(u+2)}\nv_lshl_add_u32 {vr(vro)}, {vr(u)}, 4, {vr(u+1)}\nv_xor_b32 {vr(vro+1)}, 64, {vr(vro)}\nv_add_u32 {vr(vro+1)}, 16384, {vr(vro+1)}')
    G(f's_lshl2_add_u32 {sr(sg0)}, {sr(sm2)}, {sr(sw)}\ns_lshl_b32 {sr(sg0)}, {sr(sg0)}, 18\ns_mul_i32 {sr(sfp)}, {sr(sg1)}, {56*2048}\ns_add_u32 {sr(sg0)}, {sr(sg0)}, {sr(sfp)}\ns_add_u32 {sr(sg0)}, {sr(sg0)}, {WS_ACT}\nv_add_u32 {vr(va)}, {sr(sg0)}, v0')
    G(f'v_bfe_u32 {vr(u)}, {vr(vl)}, 3, 2\nv_lshlrev_b32 {vr(u)}, 5, {vr(u)}\nv_and_b32 {vr(u+1)}, 3, {vr(vl)}\nv_lshl_add_u32 {vr(u)}, {vr(u+1)}, 3, {vr(u)}\nv_lshrrev_b32 {vr(u+1)}, 2, {vr(vl)}\nv_lshl_add_u32 {vr(waddr)}, {vr(u+1)}, 7, {vr(u)}')
    for t in range(1, 12): G(f'v_xor_b32 {vr(waddr+t)}, {((t & 3) << 5) + ((t >> 2) << 16)}, {vr(waddr)}')
    G(f's_lshr_b32 {sr(sg0)}, {sr(sm2)}, 1\ns_lshl_b32 {sr(sg0)}, {sr(sg0)}, 5\ns_lshl2_add_u32 {sr(sg0)}, {sr(sg1)}, {sr(sg0)}\nv_and_b32 {vr(u)}, 3, {vr(vl)}\nv_bfe_u32 {vr(u+1)}, {vr(vl)}, 2, 2\nv_lshl_add_u32 {vr(u)}, {vr(u)}, 3, {vr(u+1)}\nv_add_lshl_u32 {vr(vpl)}, {vr(u)}, {sr(sg0)}, 7\ns_mov_b32 {sr(sfp)}, {FL_UT}', d=z + 4 * TP)
    assert FL_AE - FL_UT == FL_AL - FL_AE == 32768
    one = 9
    sc.add('f', z + 30, z + 60, f'v_mov_b32 {vr(one)}, {sr(sTok)}')
    edone[6].d = z + g3.get('e6', 96); edone[1].d = z + g3.get('e1', 216)
    edone[5].d = E3 + g4.get('ldl', 84)
    for t, dr in ((6, g3.get('dr6', 60)), (1, g3.get('dr1', 50)), (5, None)):
        if dr: eb = edone[t].d + dr; co.addbar(eb, vm=[('as', t)])
        else:
            eb = co.nextbar(edone[5].d + g4.get('ldrain', 40))
            sc.add('f', eb - 2, eb, WT(p, vm=[('as', 5)]))
        o = sc.add('f', eb, eb + 3, lambda: k.flag_store(sfl, one)); o.cost = 3
        sc.add('f', eb, INF, f's_add_u32 {sr(sfl)}, {sr(sfl)}, 32768')
    def chk(tag, pl_, pc_):
        gpos[0] = pl_
        G(VM(p, f'buffer_load_dword {vr(vpl+1)}, {vr(vpl)}, {sr(sWS,4)}, {sr(sfp)} offen sc1', tag), d=pl_ + 4)
        gpos[0] = pc_
        o = G(lambda: k.check(vpl, sfp, vpl + 1, spc, tag), d=pc_ + 3); o.cost = 4; o.wscc = True
        G(f's_add_u32 {sr(sfp)}, {sr(sfp)}, 32768')
        return o
    ock = chk('ef', z + g4.get('c0', 262), z + g4.get('c0', 262) + 32)
    a_e0 = gpos[0] + 1
    DF = g4.get('DF', FS)
    for s_ in range(nst - DF, nst):
        if (s_ - nst + DF) % be == 0:
            b_ = co.gpos[groups.index((s_, 0))] - co.lead - 8
            co.addbar(b_, vm=[('D4', min(s_ + be, nst) - 1, 1)])
        for t in range(4): co.bar2[(s_, t)] = b_
    n1 = 200 - 2 * DF
    tl_ = co.bar[nst - 1] - g4.get('margin', 56) - E3
    vt_ = lambda n: E3 + g4.get('v0', -6) + int(n * tl_ / (n1 - 1))
    omk = chk('mf', E3 - g4.get('c1', 22), vt_(8 + 1) - 3)
    lck = vt_(8 * 9 + 1) - 3
    olk = chk('lf', lck - 50, lck)
    KB = [14 * q + 3 for q in range(4)] + [7 * q for q in range(8)] + [7 * (q // 2) + 1 + 4 * (q % 2) for q in range(16)]
    XS = lambda s: 2 if s < 4 else 1 if s < 12 else 0
    done = set()
    def chunk(E, s):
        if s in done: return
        done.add(s)
        c = sC4[s % NC]
        lc = s if s < max(4, g4.get('nat', 0)) else 4 + lead_chunk(s - 4, 8) if s < 12 else 12 + lead_chunk(s - 12, 16)
        E(f's_mov_b32 {sr(c)}, {KB[s]}' if lc == s else f's_cmp_eq_u32 {sr(sLead)}, {s % 4}\ns_cselect_b32 {sr(c)}, {KB[lc]}, {KB[s]}')
    def dma4(s, i, E, EV):
        fst = i == 0 or (i == 2 and s >= nst - DF)
        if fst:
            chunk(E, s)
            E(f's_lshl_b32 {sr(sK4)}, {sr(sC4[s % NC])}, 16' + ('', f'\ns_add_u32 {sr(sK4)}, {sr(sK4)}, {sr(sD7)}', f'\ns_lshl1_add_u32 {sr(sK4)}, {sr(sD7)}, {sr(sK4)}')[XS(s)])
            E(f's_add_u32 m0, {sr(sW4)}, {slot4(s) * 16384}')
        EV(VM(p, f'buffer_load_dwordx4 {vr(vdma+i)}, {sr(sWD,4)}, {sr(sK4)} offen offset:{1024*i} lds', ('D4', s, i)), fst)
    def al4(s, i, E, EV):
        j, m = divmod(i, 2)
        if i == 0: E(f's_lshl_b32 {sr(sA4)}, {sr(sC4[s % NC])}, 11')
        if i == 2 and XS(s): E(f's_add_u32 {sr(sA4)}, {sr(sA4)}, {3*2048*XS(s)}')
        EV(VM(p, f'buffer_load_dwordx4 {vr(co.abf(s,j,m),4)}, {vr(va)}, {sr(sWS,4)}, {sr(sA4)} offen offset:{1024*i} sc1', co.atag(s, j, m)), False)
    ev = []
    e = z + g4.get('d0', 142)
    for s in range(3):
        for i in range(4): ev.append((e, 'D', s, i, co.bar[s])); e += 5
    e = a_e0
    for s in range(3):
        if s == 1: e = max(e, ipos[6] + 9)
        for i in range(4): ev.append((e, 'A', s, i, co.await_[(s,) + divmod(i, 2)])); e += 3
    c_ = 0
    for n in range(3, nst):
        for i in range(4):
            if n < nst - DF or i >= 2:
                ev.append((max(rf + 1, co.slotfree(n) + 1, vt_(c_), ev[-1][0]), 'D', n, i, co.bar[n])); c_ += 1
            ev.append((max(E3, co.alast[(n - DAS,) + divmod(i, 2)] + 1 if n >= DAS else 0, vt_(c_), ev[-1][0]), 'A', n, i, co.await_[(n,) + divmod(i, 2)])); c_ += 1
    for n in range(nst - DF, nst):
        for i in range(2): ev.append((ev[-1][0] + 4, 'D', n, i, co.bar2[(n, 0)]))
    for e, kind, s, i, d in ev:
        aft = osu if (kind, s, i) == ('D', 0, 0) else ock if (kind, s, i) == ('A', 0, 0) else omk if (kind, s, i) == ('A', 4, 0) else olk if (kind, s, i) == ('A', 12, 0) else None
        if kind == 'A' and i == 0: chunk(lambda t_: sc.add('v', e - 4, d, t_), s)
        (dma4 if kind == 'D' else al4)(s, i, lambda t_: sc.add('v', e - 4, d, t_, after=aft), lambda f, sep: sc.add('v', e, d, f, sep=sep))
    co.wreads(); co.flush_reads('w4')
    pos[0] = E3 + 150
    XL = slot4(nst - FS) * 16384
    assert DF >= 2
    F(f's_add_u32 {sr(sx)}, {sr(sW4)}, {XL}\n' + xa_setup(vxa, u, sx, vl) + f'\nv_add_u32 {vr(vol)}, {sr(sx)}, v0')
    F(f's_lshl_b32 {sr(sx)}, {sr(sw)}, 10\ns_add_u32 {sr(sx)}, {sr(sx)}, {GL}\nv_add_u32 {vr(u)}, {sr(sx)}, v0\nv_lshrrev_b32 {vr(u+1)}, 4, {vr(vl)}\nv_lshl_add_u32 {vr(u+1)}, {vr(u+1)}, 4, {sr(sx)}')
    F(LG(p, f'ds_write_b128 {vr(u)}, {vr(GBA,4)}'))
    for t in range(4): F(LG(p, f'ds_read_b128 {vr(vg+4*t,4)}, {vr(u+1)} offset:{768+64*t}'))
    for i in range(16): F(f'v_accvgpr_read_b32 {vr(u+2)}, {vr(ST1+i)}\n' + unpack(vf + 2 * i, u + 2))
    F(f's_add_u32 {sr(s1)}, {sr(sro)}, 32768\ns_lshl_b32 {sr(sx)}, s2, 5\ns_add_u32 {sr(sx)}, {sr(sx)}, {sr(sw)}\ns_lshl2_add_u32 {sr(sx)}, {sr(sx)}, {FL_XC}\ns_xor_b32 {sr(sx+1)}, {sr(sx)}, 128\nv_mov_b32 {vr(u+3)}, 0')
    for t in range(4, 8):
        pos[0] = max(co.cdone[(t, 0)], co.cdone[(t, 1)]) + 4
        for m in range(2):
            i = (t - 4) * 2 + m
            F(VM(p, f'buffer_store_dwordx4 {vr(accr(t, m),4)}, v0, {sr(sWS,4)}, {sr(sxo + i // 4)} offen offset:{1024*(i%4)} sc1', 'xs'), d=pos[0] + 4)
    xl = [f'buffer_load_dwordx4 {vr(vp+4*i,4)}, v0, {sr(sWS,4)}, {sr(sxo + 2 + i // 4)} offen offset:{1024*(i%4)} sc1' for i in range(8)]
    pos[0] = co.end - g4.get('xpub', 56)
    F(WT(p, vm=['xs']), d=pos[0] + 2)
    xfl = f'buffer_load_dword {vr(vpl+1)}, {vr(u+3)}, {sr(sWS,4)}, {sr(sx+1)} offen sc1'
    F(VM(p, xfl, 'xf'), d=pos[0] + 3)
    o = F(lambda: k.flag_store(sx, one), d=pos[0] + 4); o.cost = 3
    pos[0] = co.end - g4.get('xpre', 26)
    F(WT(p, vm=['xf']), d=pos[0] + 2)
    F(f'v_readfirstlane_b32 {sr(sx+2)}, {vr(vpl+1)}\ns_nop 0\ns_cmp_eq_u32 {sr(sx+2)}, {sr(sTok)}\ns_cselect_b32 {sr(sg0)}, {sr(sxo+2)}, {OOB}\ns_cselect_b32 {sr(sg1)}, {sr(sxo+3)}, {OOB}', d=pos[0] + 5)
    for i in range(8): F(VM(p, xl[i].replace(sr(sxo + 2 + i // 4) + ' ', sr((sg0, sg1)[i // 4]) + ' '), ('xc', i)), d=pos[0] + 7 + 2 * i)
    sc.bias = dict(x=10000)
    ce, c4_ = g3.get('ecap', 3), g4.get('cap0', 3)
    sc.capf = lambda i: 2 if i < z + TP - 10 else ce + (i % g3.get('emod', 4) == 0) if i < E3 else c4_ if i < edone[5].d else 2
    sc.vgap = lambda i: g3.get('vgap', 5) if i < z else 2 if i < E3 + 60 else g4.get('vgap', 3)
    sc.mcap = lambda i: g3.get('mcap', 2) if i < E3 - 30 else 2
    if g4.get('ct', True): k.ctouch(sc, E3, co.end - 250, 190)
    if TL:
        for s in g4.get('marks', (0, 4, 8, 16, 23)): sc.before(co.sfirst[s] + 1, lambda s=s: k.T(f'g4:s{s}'), 0)
        if cfg.get('ckm'):
            for x_ in (16 * FS + 48, 16 * FS, 90, 68, 58, 38, 28): sc.before(co.end - x_, lambda x_=x_: k.T(f'g4:e-{x_}'), 0)
    left = sc.run()
    k.T('g4:loopend')
    k.info += f' | g34 over {sc.over} left {len(left)} edone ' + ' '.join(str(edone[t].pos - z) for t in order)
    assert not left
    for t in (0, 1): assert edone[t].pos < E3 - 4
    p.ins(f's_cmp_eq_u32 {sr(sx+2)}, {sr(sTok)}\ns_cbranch_scc0 CKXs')
    p.label('CKXx')
    k.cold.append(f'CKXs:\n  s_mov_b32 {sr(spc)}, 60000\nCKX:\n  {xfl}\n  s_sub_u32 {sr(spc)}, {sr(spc)}, 1\n  s_cmp_eq_u32 {sr(spc)}, 0\n  s_waitcnt vmcnt(0)\n  s_cbranch_scc1 CKXy\n'
                  f'  v_cmp_ne_u32 vcc, {sr(sTok)}, {vr(vpl+1)}\n  s_nop 4\n  s_cbranch_vccnz CKX\nCKXy:\n  ' + '\n  '.join(xl) + '\n  s_branch CKXx\n')
    k.T('xc:rel')
    for t in range(4):
        for m in range(2):
            for e in (0, 2): p.ins(f'v_pk_fma_f32 {vr(vf+16*m+4*t+e,2)}, {vr(vg+4*t+e,2)}, {vr(accr(t, m)+e,2)}, {vr(vf+16*m+4*t+e,2)}')
    for i in range(8):
        t, m = divmod(i, 2)
        p.wait(vm=[('xc', i)])
        fm = vf + 16 * m + 4 * t
        for e in (0, 2): p.ins(f'v_pk_fma_f32 {vr(fm+e,2)}, {vr(vg+4*t+e,2)}, {vr(vp+4*i+e,2)}, {vr(fm+e,2)}')
        p.ins(pk(vx + 8 * m + 2 * t, fm) + '\n' + pk(vx + 8 * m + 2 * t + 1, fm + 2))
        p.lg(f'ds_write_b64 {vr(vxa+t)}, {vr(vx+8*m+2*t,2)} offset:{2048*m}')
    for i in range(4): p.lg(f'ds_read_b128 {vr(vf+4*i,4)}, {vr(vol)} offset:{1024*i}', ('o', i))
    for i in range(4):
        p.wait(lg=[('o', i)])
        p.vm(f'buffer_store_dwordx4 {vr(vf+4*i,4)}, {vr(vro+(i&1))}, {sr(sOUT,4)}, {sr(s1 if i >= 2 else sro)} offen {g4.get("oflags", "")}')
    return finish(k)
```

```python
import sys
sys.path.insert(0, 'gen3'); sys.path.insert(0, 'gen')
from core3 import *
import kernels as KO
from kernels import f32, lanemask, LOG2E, A_X, A_WQKV, A_WO, B_WG, B_WU, B_WD, IN_C, W_MOD, OUT, WS

M, DM, FF = 2048, 1024, 3584
WS_MODP, WS_ST, WS_UT, WS_H, WS_FL, WS_AUX, WS_O, WS_ACT, WS_Y, WS_XC = 0x0, 0x40000, 0x80000, 0x100000, 0x500000, 0x580000, 0x700000, 0x1300000, 0x2300000, 0x2800000
WS_SIZE = 0x3000000
WS_STAMP = 0x3000000
OOB = 0x40000000
FL_H, FL_O, FL_JOB, FL_Y, FL_UT, FL_AE, FL_AL, FL_XC = [WS_FL + 32768 * i for i in range(8)]
sX, sWQ, sWO, sWG, sWU, sWD, sWM, sOUT, sWS, sCC = [4 + 4 * i for i in range(10)]
sw = 44
sTok = 3
WS_SEED = WS_FL + 8 * 32768
KNAME = 'adaLN_cond__sliding_local_dilated__swiglu_ffn__prompt_kernel'
INF = 1 << 30
WOP = [5, 6, 0, 1, 2, 3, 4, 7]
TL = False
LN2 = 0.6931471805599453

def A(n): return AOFF + n
def rb(d, s=None):
    s = d if s is None else s
    return f'v_cvt_pk_bf16_f32 {vr(d)}, {vr(s)}, {vr(s)}\nv_lshlrev_b32 {vr(d)}, 16, {vr(d)}'
def rb2(a, t):
    return f'v_cvt_pk_bf16_f32 {vr(t)}, {vr(a)}, {vr(a+1)}\nv_lshlrev_b32 {vr(a)}, 16, {vr(t)}\nv_and_b32 {vr(a+1)}, 0xffff0000, {vr(t)}'
def unpack(d, s):
    return f'v_lshlrev_b32 {vr(d)}, 16, {vr(s)}\nv_and_b32 {vr(d+1)}, 0xffff0000, {vr(s)}'
def pk(d, a): return f'v_cvt_pk_bf16_f32 {vr(d)}, {vr(a)}, {vr(a+1)}'
def smov64(s, m): return f's_mov_b32 {sr(s)}, 0x{m & 0xffffffff:08x}\ns_mov_b32 {sr(s+1)}, 0x{m >> 32:08x}'

class Pool:
    def __init__(self, regs): self.free_ = set(regs)
    def alloc(self, n=1, align=1):
        for a in sorted(self.free_):
            if a % align == 0 and all(a + i in self.free_ for i in range(n)):
                self.free_ -= set(range(a, a + n)); return a
        raise AssertionError('out of registers')
    def free(self, a, n=1):
        assert not (set(range(a, a + n)) & self.free_)
        self.free_ |= set(range(a, a + n))

def g3_orders(aux=(6, 9), leads=None):
    O = [{aux[0]: r, aux[1]: 8 + r} for r in range(8)]
    r = 0
    for s in sorted(leads or {}):
        for c in leads[s]:
            while s in O[r] or c in O[r].values(): r = (r + 1) % 8
            O[r][s] = c; r = (r + 1) % 8
    T = []
    for o in O:
        rest = [c for c in range(16) if c not in o.values()]
        T.append([o[s] if s in o else rest.pop(0) for s in range(16)])
    return T

class K3:
    def __init__(self, name, cfg):
        self.name, self.cfg = name, cfg
        self.p = Prog(); self.tn = []; self.nl = 0
        self.nthreads, self.nwg = 256, 256
    def T(self, nm):
        if not TL: return
        i = len(self.tn); self.tn.append(nm)
        self.p.ins(f's_memrealtime s[96:97]\ns_memtime s[98:99]\nv_accvgpr_write_b32 a253, v0\nv_accvgpr_read_b32 v0, a254\ns_waitcnt lgkmcnt(0)\nv_writelane_b32 v0, s96, {i}\nv_accvgpr_write_b32 a254, v0\n'
                   f'v_accvgpr_read_b32 v0, a255\ns_nop 0\nv_writelane_b32 v0, s98, {i}\nv_accvgpr_write_b32 a255, v0\nv_accvgpr_read_b32 v0, a253')
    def lab(self, s):
        self.nl += 1
        return f'{s}{self.nl}'
    def text(self): return '.p2align 12\n.p2align 8\n' + self.p.text().replace('  .p2align', '.p2align').replace('  ; HOPS', '; HOPS')
    def desc(self, minv=0): return kdesc(self.name, 512, 102, 256)
    def launch(self): return f'; @launch kernel={self.name} grid=(256,1,1) block=(256,1,1) lds=163840' if self.cfg.get('list', False) else '; @launch grid=(256,1,1) block=(256,1,1) lds=163840'

    def flag_off(self, d, region, wave=0):
        return f's_lshl_b32 {sr(d)}, s2, 7\ns_add_u32 {sr(d)}, {sr(d)}, {region}\ns_cmp_eq_u32 {sr(sw)}, {wave}\ns_cselect_b32 {sr(d)}, {sr(d)}, {OOB}'
    def flag_store(self, sd, v1):
        self.p.ins('s_mov_b64 exec, 1')
        self.p.vm(f'buffer_store_dword {vr(v1)}, v0, {sr(sWS,4)}, {sr(sd)} offen sc1')
        self.p.ins('s_mov_b64 exec, -1')
    def publish(self, nm, sd, v1, vm='all'):
        p = self.p
        self.T(nm + ':pre')
        p.ins(f'v_mov_b32 {vr(v1)}, {sr(sTok)}')
        p.wait(vm=vm, lg='all')
        p.ins('s_barrier')
        self.flag_store(sd, v1)
        self.T(nm + ':pub')
    def poll(self, nm, voff, region, vd, sc_, wave=0, pre=None, n=1, join=None):
        p = self.p
        L = self.lab('SM')
        self.T(nm + ':btw')
        p.ins(f's_cmp_lg_u32 {sr(sw)}, {wave}\ns_cbranch_scc1 {L}x\ns_mov_b32 {sr(sc_)}, 60000\ns_mov_b32 {sr(sc_+1)}, {region}')
        p.label(L)
        p.ins(f'buffer_load_dword{"x4" if n == 4 else ""} {vr(vd,n)}, {vr(voff)}, {sr(sWS,4)}, {sr(sc_+1)} offen sc1')
        p.ins(f's_sub_u32 {sr(sc_)}, {sr(sc_)}, 1\ns_cmp_eq_u32 {sr(sc_)}, 0\ns_waitcnt vmcnt(0)\ns_cbranch_scc1 {L}x')
        if n == 4: p.ins(f'v_and_b32 {vr(vd)}, {vr(vd)}, {vr(vd+1)}\nv_and_b32 {vr(vd+2)}, {vr(vd+2)}, {vr(vd+3)}\nv_and_b32 {vr(vd)}, {vr(vd)}, {vr(vd+2)}')
        pm, ps = self.cfg.get('pmask', False), self.cfg.get('psleep', 0)
        if pm or ps:
            p.ins(f'v_cmp_ne_u32 vcc, {sr(sTok)}, {vr(vd)}\ns_nop 4\ns_cbranch_vccz {L}x' + ('\ns_mov_b64 exec, vcc' if pm else '') + (f'\ns_sleep {ps}' if ps else '') + f'\ns_branch {L}')
        else: p.ins(f'v_cmp_ne_u32 vcc, {sr(sTok)}, {vr(vd)}\ns_nop 4\ns_cbranch_vccnz {L}')
        p.label(L + 'x')
        if pm: p.ins('s_mov_b64 exec, -1')
        if pre: pre()
        if join: p.label(join)
        p.ins('s_barrier')
        self.T(nm + ':rel')
    def check(self, voff, soff, vd, sc_, tag, n=1):
        p = self.p
        L = self.lab('CK')
        tst = ''
        if n == 4: tst = f'v_and_b32 {vr(vd)}, {vr(vd)}, {vr(vd+1)}\nv_and_b32 {vr(vd+2)}, {vr(vd+2)}, {vr(vd+3)}\nv_and_b32 {vr(vd)}, {vr(vd)}, {vr(vd+2)}\n'
        tst += f'v_cmp_ne_u32 vcc, {sr(sTok)}, {vr(vd)}\ns_nop 4'
        if self.cfg.get('ckm'): self.T(f'{tag}:a')
        p.wait(vm=[tag])
        if self.cfg.get('ckm'): self.T(f'{tag}:b')
        p.ins(tst + f'\ns_cbranch_vccnz {L}s')
        p.label(L + 'x')
        if self.cfg.get('ckm'): self.T(f'{tag}:c')
        self.cold.append(f'{L}s:\n  s_mov_b32 {sr(sc_)}, 60000\n{L}:\n' + ('  s_mov_b64 exec, vcc\n' if self.cfg.get('cmask', False) else '') + (f'  s_sleep {self.cfg["csleep"]}\n' if self.cfg.get('csleep') else '') + f'  buffer_load_dword{"x4" if n == 4 else ""} {vr(vd,n)}, {vr(voff)}, {sr(sWS,4)}, {sr(soff)} offen sc1\n'
                         f'  s_sub_u32 {sr(sc_)}, {sr(sc_)}, 1\n  s_cmp_eq_u32 {sr(sc_)}, 0\n  s_waitcnt vmcnt(0)\n  s_cbranch_scc1 {L}y\n  ' + tst.replace('\n', '\n  ') + f'\n  s_cbranch_vccnz {L}\n{L}y:\n  s_mov_b64 exec, -1\n  s_branch {L}x\n')
    def dcheck(self, nm, loads, test, vt_, sc_, op='v_cmp_eq_u32 vcc, -1'):
        p = self.p
        L = self.lab('CK')
        cmp_ = f'{op}, {vr(vt_)}\ns_nop 4'
        if self.cfg.get('ckm'): self.T(f'{nm}:b')
        p.ins(cmp_ + f'\ns_cbranch_vccnz {L}s')
        p.label(L + 'x')
        if self.cfg.get('ckm'): self.T(f'{nm}:c')
        body = loads + f'\ns_sub_u32 {sr(sc_)}, {sr(sc_)}, 1\ns_waitcnt vmcnt(0)\n' + test + f'\ns_cmp_eq_u32 {sr(sc_)}, 0\ns_cbranch_scc1 {L}x\n' + cmp_ + f'\ns_cbranch_vccnz {L}\ns_branch {L}x'
        self.cold.append(f'{L}s:\n  s_mov_b32 {sr(sc_)}, 30000\n{L}:\n  ' + body.replace('\n', '\n  ') + '\n')
    def hop(self, nm, lo, hi, waves):
        if not self.cfg.get('hop', True): return
        p = self.p
        p.ins(f'; HOPS {nm} {lo} {hi} {len(waves)}\ns_mov_b64 exec, 0')
        for c, w in enumerate(waves): p.ins(f's_cmp_eq_u32 {sr(sw)}, {w}\ns_cbranch_scc1 H{nm}{c}')
        p.label(f'R{nm}')
        p.ins('s_mov_b64 exec, -1')
    def ctouch_now(self, n, lead):
        if not self.cfg.get('ct', True): return []
        L = self.lab('CT')
        self.p.label(L)
        def f(i):
            self.p.ins(f's_add_u32 s94, s92, {L}-{self.name}+{lead + 4096 * i}\ns_addc_u32 s95, s93, 0')
            self.p.vm('global_load_dword a252, v0, s[94:95]')
        return [(lambda i=i: f(i)) for i in range(n)]
    def ctouch(self, sc, lo, hi, step, lead=3072):
        if not self.cfg.get('ct', True): return
        for pos in range(lo, hi, step):
            def f():
                L = self.lab('CT')
                self.p.label(L)
                self.p.ins(f's_add_u32 s94, s92, {L}-{self.name}+{lead}\ns_addc_u32 s95, s93, 0')
            o = sc.add('y', pos, INF, f, cost=2); o.wscc = True
            sc.add('y', pos, INF, VM(self.p, 'global_load_dword a252, v0, s[94:95]'))

def xa_setup(vxa, u, sxl, vl):
    t_ = f'v_and_b32 {vr(u)}, 15, {vr(vl)}\nv_lshrrev_b32 {vr(u+2)}, 1, {vr(u)}\nv_lshrrev_b32 {vr(u+1)}, 5, {vr(vl)}\nv_xor_b32 {vr(u+2)}, {vr(u+2)}, {vr(u+1)}\nv_lshlrev_b32 {vr(u+2)}, 4, {vr(u+2)}\nv_lshl_add_u32 {vr(u+2)}, {vr(u)}, 7, {vr(u+2)}\n'
    t_ += f'v_bfe_u32 {vr(u+1)}, {vr(vl)}, 4, 1\nv_lshl_add_u32 {vr(u+2)}, {vr(u+1)}, 3, {vr(u+2)}\nv_add_u32 {vr(vxa)}, {sr(sxl)}, {vr(u+2)}\n'
    return t_ + '\n'.join(f'v_xor_b32 {vr(vxa+t)}, {t<<5}, {vr(vxa)}' for t in range(1, 4))

def weave(p, code, ops, step, first=0):
    ops = list(ops); n = -first
    for c in code:
        for t in (c.split('\n') if isinstance(c, str) else [c]):
            p.ins(t) if isinstance(t, str) else t()
            n += 1
            if ops and n >= step and isinstance(t, str) and t.startswith('v_') and not t.startswith('v_mfma'):
                ops.pop(0)(); n = 0
    return ops

def build_k3(cfg):
    k = K3(KNAME, cfg); p = k.p
    k.cold = []
    stop = cfg.get('stop', 9)
    p.label(k.name)
    p.ins(f's_cmp_ge_u32 s2, 256\ns_cbranch_scc1 XEND')
    srds = ((sWS, WS, WS_SIZE), (sCC, IN_C, 2048), (sWM, W_MOD, 1024*6144*2), (sX, A_X, M*DM*2), (sWQ, A_WQKV, DM*3072*2), (sWO, A_WO, DM*DM*2),
            (sWG, B_WG, DM*FF*2), (sWU, B_WU, DM*FF*2), (sWD, B_WD, FF*DM*2), (sOUT, OUT, M*DM*2))
    if TL:
        p.ins('v_accvgpr_write_b32 a254, 0\nv_accvgpr_write_b32 a255, 0')
        k.T('start')
    for s_, slot, nb in srds: p.ins(f's_load_dwordx2 {sr(s_,2)}, s[0:1], {slot}')
    S = Pool(list(range(45, 92)) + [100, 101]); V = Regs('v', 10, 256)
    sfl = S.alloc(); spc = S.alloc(2, 2); s0 = S.alloc(); s1 = S.alloc()
    vl = V.alloc('lane'); vt = V.alloc('t', 8, 2)
    p.ins(f'v_lshrrev_b32 v1, 6, v0\nv_and_b32 {vr(vl)}, 63, v0\nv_readfirstlane_b32 {sr(sw)}, v1\nv_lshlrev_b32 v0, 4, {vr(vl)}')
    for s_, slot, nb in srds: p.ins(f's_mov_b32 {sr(s_+2)}, {nb}\ns_mov_b32 {sr(s_+3)}, 0x20000')
    def now(f, sep):
        if sep: p.ins('s_nop 0')
        f()

    SP = 150528
    EX, JL, XL, GL = SP, SP + 12288, 131072, 147456
    g1 = cfg['g1']
    NS1, SB1, WB1 = 7, 21504, 12288
    acc1 = V.alloc('acc1', 104, 4)
    vf, vc, vs = acc1, acc1 + 64, 220
    vov = V.alloc('lnov', 8, 4)
    assert vov == acc1 + 104
    vo = V.alloc('lno'); so = S.alloc(); sP = S.alloc(4, 4)
    jw = V.alloc('jw', 32, 4); js = V.alloc('js', 8); jad = V.alloc('jad', 3); Wv = V.alloc('Wv', 16, 4)
    ja, jc, ju, vsd = Wv, Wv + 8, Wv + 12, Wv + 15
    sjw = S.alloc(); sjo = S.alloc()
    p.ins(f's_and_b32 {sr(s0)}, s2, 3\ns_lshl2_add_u32 {sr(s0)}, {sr(s0)}, {sr(sw)}\ns_lshl_b32 {sr(s0)}, {sr(s0)}, 6')
    p.ins(f'v_and_b32 {vr(jad)}, 0x38, {vr(vl)}\nv_add_u32 {vr(jad)}, {sr(s0)}, {vr(jad)}\nv_lshlrev_b32 {vr(jad+1)}, 1, {vr(jad)}\nv_mul_u32_u24 {vr(jad)}, 12288, {vr(jad)}')
    p.ins(f'v_and_b32 {vr(vt)}, 7, {vr(vl)}\nv_lshl_add_u32 {vr(jad)}, {vr(vt)}, 4, {vr(jad)}\nv_mov_b32 {vr(jad+2)}, 0')
    vx = jw
    p.ins(f's_bfe_u32 {sr(sjw)}, s2, 0x40003\ns_and_b32 {sr(s1)}, s2, 4\ns_lshl2_add_u32 {sr(sjw)}, {sr(s1)}, {sr(sjw)}\ns_and_b32 {sr(s1)}, s2, 128\ns_lshl2_add_u32 {sr(sjw)}, {sr(sjw)}, {sr(s1)}\ns_lshl_b32 {sr(sjw)}, {sr(sjw)}, 5\ns_mov_b32 {sr(s1)}, {sr(sjw)}\ns_mov_b32 {sr(so)}, {WS_SEED}')
    p.ins(f'v_lshrrev_b32 {vr(vt+1)}, 3, {vr(vl)}\nv_lshlrev_b32 {vr(vo)}, 11, {vr(vt)}\nv_lshl_add_u32 {vr(vo)}, {vr(vt+1)}, 4, {vr(vo)}')
    p.ins(f's_and_b32 {sr(s0)}, s2, 127\ns_lshl_b32 {sr(s0)}, {sr(s0)}, 6\ns_add_u32 {sr(s0)}, {sr(s0)}, {sr(sw)}\ns_lshl_b32 {sr(s0)}, {sr(s0)}, 9\ns_cmp_lt_u32 s2, 128')
    p.ins('s_waitcnt lgkmcnt(0)')
    p.vm(f'buffer_load_dwordx4 {vr(jc,4)}, {vr(jad+1)}, {sr(sCC,4)}, 0 offen', 'jc')
    p.ins('s_cbranch_scc0 F_x')
    for i in range(8):
        p.vm(f'buffer_load_dwordx4 {vr(jw+4*i,4)}, {vr(jad)}, {sr(sWM,4)}, {sr(s1)} offen {g1.get("mfl", "nt")}', ('mw', i))
        if i < 7: p.ins(f's_add_u32 {sr(s1)}, {sr(s1)}, 12288')
    p.label('F_x')
    p.vm(f'buffer_load_dword {vr(vsd)}, {vr(jad+2)}, {sr(sWS,4)}, {sr(so)} offen sc1', 'seed')
    p.ins(f's_mov_b32 {sr(so)}, {sr(s0)}')
    def xloads():
        L = k.lab('F_xl')
        p.ins(f's_cmp_lt_u32 s2, 128\ns_cbranch_scc1 {L}')
        for i in range(8):
            if i == 4: p.ins(f's_add_u32 {sr(so)}, {sr(so)}, 16384')
            p.ins(f'buffer_load_dwordx4 {vr(vx+4*i,4)}, {vr(vo)}, {sr(sX,4)}, {sr(so)} offen offset:{128*(i&3)} {g1.get("xfl", "")}')
        p.label(L)
    p.ins('s_getpc_b64 s[92:93]')
    p.label('PC0')
    p.ins(f's_sub_u32 s92, s92, PC0-{k.name}\ns_subb_u32 s93, s93, 0')
    p.ins('s_cmp_lt_u32 s2, 128\ns_cbranch_scc1 F_ct')
    hw = g1.get('help', 1)
    p.ins(f's_bfe_u32 {sr(s0)}, s2, 0x30004\ns_and_b32 {sr(s1)}, s2, 3\ns_lshl3_add_u32 {sr(s0)}, {sr(s1)}, {sr(s0)}\ns_mul_i32 {sr(s0)}, {sr(s0)}, {32*12288}\ns_and_b32 {sr(s1)}, s2, 4\ns_lshl_b32 {sr(s1)}, {sr(s1)}, 9\ns_add_u32 {sr(s0)}, {sr(s0)}, {sr(s1)}\ns_and_b32 {sr(s1)}, s2, 8\ns_lshl_b32 {sr(s1)}, {sr(s1)}, 7\ns_add_u32 {sr(s0)}, {sr(s0)}, {sr(s1)}')
    p.ins(f's_cmp_lt_u32 {sr(sw)}, {hw}\ns_cselect_b32 {sr(s0)}, {sr(s0)}, {OOB}\nv_and_b32 {vr(vt+7)}, 31, {vr(vl)}\nv_mul_u32_u24 {vr(vt+7)}, 12288, {vr(vt+7)}\nbuffer_load_dword a252, {vr(vt+7)}, {sr(sWM,4)}, {sr(s0)} offen offset:384')
    p.ins(f's_bfe_u32 {sr(s0)}, s2, 0x40003\ns_cmp_lt_u32 {sr(s0)}, (code_end-{k.name})/8192+1\ns_cselect_b32 {sr(s1)}, 3, 4\ns_lshl_b32 {sr(s0)}, {sr(s0)}, 13\nv_lshl_add_u32 {vr(vt+7)}, v0, 3, {sr(s0)}\ns_cmp_eq_u32 {sr(sw)}, {sr(s1)}\ns_cselect_b32 {sr(s1)}, -1, 0\nv_and_b32 {vr(vt+7)}, {sr(s1)}, {vr(vt+7)}\nglobal_load_dword a252, {vr(vt+7)}, s[92:93]')
    p.ins(f's_bfe_u32 {sr(s0)}, s2, 0x20003\ns_mul_i32 {sr(s0)}, {sr(s0)}, 24576\ns_lshr_b32 {sr(s1)}, s2, 5\ns_lshl3_add_u32 {sr(s1)}, {sr(sw)}, {sr(s1)}\ns_cmp_eq_u32 {sr(s1)}, 15\ns_cselect_b32 {sr(s0)}, {sr(s0)}, {OOB}\nv_lshlrev_b32 {vr(vt+7)}, 3, v0\nbuffer_load_dword a252, {vr(vt+7)}, {sr(sWS,4)}, {sr(s0)} offen sc1')
    p.label('F_ct')
    xp = g1.get('xpos', 4)
    if xp == 0: xloads()

    sm = S.alloc(); sn = S.alloc(); swm = S.alloc(); shd = S.alloc()
    sK = S.alloc(); sXc = S.alloc(); sWL = S.alloc(3); sC = S.alloc(4, 2)
    waddr = V.alloc('waddr', 6); vdma = V.alloc('vdma', 3); va = V.alloc('va'); vxh = V.alloc('vxh'); aaddr = V.alloc('aaddr', 3); xaddr = V.alloc('xaddr', 3)
    u = vt + 2
    p.ins(f's_and_b32 {sr(s0)}, s2, 7\ns_lshr_b32 {sr(s1)}, s2, 3')
    p.ins(f's_and_b32 {sr(sn)}, {sr(s0)}, 3\ns_lshl_b32 {sr(sn)}, {sr(sn)}, 2\ns_and_b32 {sr(sm)}, {sr(s1)}, 3\ns_add_u32 {sr(sn)}, {sr(sn)}, {sr(sm)}')
    p.ins(f's_lshr_b32 {sr(sm)}, {sr(s0)}, 2\ns_lshl_b32 {sr(sm)}, {sr(sm)}, 3\ns_lshr_b32 {sr(s1)}, {sr(s1)}, 2\ns_add_u32 {sr(sm)}, {sr(sm)}, {sr(s1)}')
    p.ins(f's_lshr_b32 {sr(swm)}, {sr(sw)}, 1\ns_and_b32 {sr(shd)}, {sr(sw)}, 1')
    p.ins(f's_mul_i32 {sr(sWL)}, {sr(sw)}, 3072\ns_lshl_b32 {sr(sWL+1)}, {sr(sw)}, 11\ns_lshl_b32 {sr(sWL+2)}, {sr(sw)}, 8')
    vswz = V.alloc('swz')
    p.ins(f'v_bfe_u32 {vr(u)}, {vr(vl)}, 4, 2\nv_bfe_u32 {vr(u+1)}, {vr(vl)}, 1, 2\nv_xor_b32 {vr(u)}, {vr(u)}, {vr(u+1)}\nv_lshlrev_b32 {vr(u)}, 5, {vr(u)}\nv_and_b32 {vr(u+1)}, 1, {vr(vl)}\nv_lshl_add_u32 {vr(vswz)}, {vr(u+1)}, 4, {vr(u)}')
    p.ins(f's_lshl_b32 {sr(s0)}, {sr(sn)}, 7\ns_mul_i32 {sr(s1)}, {sr(sw)}, {8*6144}\ns_add_u32 {sr(s0)}, {sr(s0)}, {sr(s1)}\nv_mul_u32_u24 {vr(u)}, 6144, {vr(vt+1)}\nv_add3_u32 {vr(vdma)}, {vr(u)}, {vr(vswz)}, {sr(s0)}')
    p.ins(f'v_add_u32 {vr(vdma+1)}, {32*6144-1024}, {vr(vdma)}\nv_add_u32 {vr(vdma+2)}, {64*6144-2048}, {vr(vdma)}')
    vrd = V.alloc('rd')
    p.ins(f'v_bfe_u32 {vr(u)}, {vr(vl)}, 3, 2\nv_lshlrev_b32 {vr(u)}, 5, {vr(u)}\nv_and_b32 {vr(u+1)}, 3, {vr(vl)}\nv_lshl_add_u32 {vr(vrd)}, {vr(u+1)}, 3, {vr(u)}')
    p.ins(f'v_bfe_u32 {vr(u)}, {vr(vl)}, 2, 3\nv_lshrrev_b32 {vr(u+1)}, 5, {vr(vl)}\nv_mul_u32_u24 {vr(u+1)}, 24, {vr(u+1)}\nv_add_lshl_u32 {vr(u)}, {vr(u)}, {vr(u+1)}, 7')
    p.ins(f's_lshl_b32 {sr(s0)}, {sr(shd)}, 1\ns_add_u32 {sr(s0)}, {sr(s0)}, {sr(swm)}\ns_lshl_b32 {sr(s0)}, {sr(s0)}, 5\nv_xor_b32 {vr(u+1)}, {sr(s0)}, {vr(vrd)}\nv_add_u32 {vr(waddr)}, {vr(u)}, {vr(u+1)}\nv_xor_b32 {vr(waddr+1)}, 32, {vr(waddr)}')
    for st in (1, 2):
        p.ins(f'v_add_u32 {vr(waddr+2*st)}, {st*3*SB1}, {vr(waddr)}\nv_add_u32 {vr(waddr+2*st+1)}, {st*3*SB1}, {vr(waddr+1)}')
    p.ins(f's_lshl_b32 {sr(s0)}, {sr(sm)}, 2\ns_add_u32 {sr(s1)}, {sr(s0)}, {sr(sw)}\ns_lshl_b32 {sr(s1)}, {sr(s1)}, 16\ns_add_u32 {sr(s1)}, {sr(s1)}, {WS_H}\nv_add_u32 {vr(va)}, {sr(s1)}, v0')
    p.ins(f's_max_u32 {sr(s0)}, {sr(s0)}, 1\ns_lshl_b32 {sr(s0)}, {sr(s0)}, 16\ns_add_u32 {sr(s0)}, {sr(s0)}, {WS_H - 65536 + 1024}\ns_add_u32 {sr(s0)}, {sr(s0)}, {sr(sWL+2)}\nv_lshl_add_u32 {vr(vxh)}, {vr(vl)}, 2, {sr(s0)}')
    p.ins(f's_lshl_b32 {sr(s0)}, {sr(swm)}, 12')
    for st in range(3):
        p.ins(f'v_add_u32 {vr(xaddr+st)}, {st*3*SB1}, v0\nv_add_u32 {vr(aaddr+st)}, {sr(s0)}, {vr(xaddr+st)}')
    vph = V.alloc('pollh')
    p.ins(f's_lshl3_add_u32 {sr(s0)}, {sr(sm)}, 127\nv_min_u32 {vr(vph)}, 8, {vr(vl)}\nv_add_u32 {vr(vph)}, {sr(s0)}, {vr(vph)}\nv_max_u32 {vr(vph)}, 0x80, {vr(vph)}\nv_lshlrev_b32 {vr(vph)}, 7, {vr(vph)}')
    slot1 = lambda s: (s + 1) % NS1
    KS1 = lambda s: [x for x in (s - 2, s - 1, s) if 0 <= x < 32]
    DL1 = lambda s: list(range(len(KS1(s)))) + ([3, 4, 5] if s < 32 else [])
    def dma1(s, n, E, EV):
        base = slot1(s) * SB1
        if n == 0: E(f's_mov_b32 {sr(sK)}, {KS1(s)[0]*32*6144 + (s % 3)*2048}\ns_add_u32 m0, {sr(sWL)}, {base}')
        if n == 3: E(f's_mov_b32 {sr(sXc)}, {s*2048}\ns_add_u32 m0, {sr(sWL+1)}, {base + WB1}')
        if n == 5: E(f's_add_u32 m0, {sr(sWL+2)}, {base + SB1 - 1024}')
        if n < 3: t_ = f'buffer_load_dwordx4 {vr(vdma+n)}, {sr(sWQ,4)}, {sr(sK)} offen offset:{1024*n} lds'
        elif n < 5: t_ = f'buffer_load_dwordx4 {vr(va)}, {sr(sWS,4)}, {sr(sXc)} offen offset:{1024*(n-3)} sc1 lds'
        else: t_ = f'buffer_load_dword {vr(vxh)}, {sr(sWS,4)}, {sr(sXc)} offen sc1 lds'
        EV(VM(p, t_, ('D1', s, n)), n in (0, 3, 5))
    npre = 7; npw = g1.get('npw', 5); wln = g1.get('wln', 2)
    wops = [(lambda s=s, n=n: dma1(s, n, p.ins, now)) for s in range(npw) for n in DL1(s) if n < 3]
    p.ins(f'v_lshlrev_b32 {vr(vt+6)}, 5, {vr(vt)}\nv_lshrrev_b32 {vr(vt+7)}, 4, {vr(vl)}\nv_lshl_add_u32 {vr(vt+6)}, {vr(vt+7)}, 3, {vr(vt+6)}\ns_add_u32 {sr(s0)}, {sr(sWL+2)}, {JL}\nv_add_u32 {vr(jad+1)}, {sr(s0)}, {vr(vt+6)}\nv_lshlrev_b32 {vr(jad+2)}, 2, {vr(vl)}')
    p.ins(f's_and_b32 {sr(s1)}, s2, 3\ns_mul_i32 {sr(sjo)}, {sr(s1)}, 24576\ns_lshl1_add_u32 {sr(sjo)}, {sr(sjw)}, {sr(sjo)}\ns_add_u32 {sr(sjw)}, {sr(sjw)}, 4096')
    if xp == 2: xloads()
    k.T('f:setup')
    def gemv(tag, ja, ju, mid={}):
        C = []
        for i in range(8):
            if tag: C.append(WT(p, vm=[(tag, i)]))
            C += mid.get(i, [])
            for d in range(4):
                C.append(unpack(ju + 2 * (d & 1), jw + 4 * i + d))
                if d & 1:
                    for x in (0, 2):
                        if i == 0: C.append(f'v_pk_mul_f32 {vr(ja+2*(d-1)+x,2)}, {vr(ju+x,2)}, {vr(js,2)} op_sel_hi:[1,0]')
                        else: C.append(f'v_pk_fma_f32 {vr(ja+2*(d-1)+x,2)}, {vr(ju+x,2)}, {vr(js+(i&~1),2)}, {vr(ja+2*(d-1)+x,2)} op_sel:[0,{i&1},0] op_sel_hi:[1,{i&1},1]')
        C.append('s_nop 0')
        C += [f'v_permlane32_swap_b32 {vr(ja+i)}, {vr(ja+i+4)}' for i in range(4)]
        C += [f'v_add_f32 {vr(ja+i)}, {vr(ja+i)}, {vr(ja+i+4)}' for i in range(4)]
        C.append('s_nop 0')
        C += [f'v_permlane16_swap_b32 {vr(ja+i)}, {vr(ja+i+2)}' for i in range(2)]
        C += [f'v_add_f32 {vr(ja+i)}, {vr(ja+i)}, {vr(ja+i+2)}' for i in range(2)]
        C.append(f'v_add_u32 {vr(ju)}, {JL}, {vr(jad+2)}')
        C += [f'v_add_f32_dpp {vr(ja+i)}, {vr(ja+i)}, {vr(ja+i)} row_ror:8 row_mask:0xf bank_mask:0xf' for i in range(2)]
        C.append(LG(p, f'ds_write_b64 {vr(jad+1)}, {vr(ja,2)}'))
        return C
    assert js % 2 == 0
    if xp >= 3:
        p.ins('s_cmp_lt_u32 s2, 128\ns_cbranch_scc1 F_cw\ns_waitcnt vmcnt(4)')
        p.label('F_cw')
        p.wait(vm=['jc'])
    else:
        p.ins('s_cmp_lt_u32 s2, 128\ns_waitcnt vmcnt(12)\ns_cbranch_scc0 F_cw')
        p.wait(vm=['jc'])
        p.label('F_cw')
    if xp == 3: xloads()
    k.T('f:c')
    for i in range(4): p.ins(unpack(js + 2 * i, jc + i))
    for op in ('mul', 'exp', 'add', 'rcp', 'fin'):
        for i in range(8):
            p.ins({'mul': f'v_mul_f32 {vr(ja+i)}, {f32(-LOG2E)}, {vr(js+i)}', 'exp': f'v_exp_f32 {vr(ja+i)}, {vr(ja+i)}', 'add': f'v_add_f32 {vr(ja+i)}, 1.0, {vr(ja+i)}',
                   'rcp': f'v_rcp_f32 {vr(ja+i)}, {vr(ja+i)}', 'fin': f'v_mul_f32 {vr(js+i)}, {vr(js+i)}, {vr(ja+i)}'}[op])
    for i in range(0, 8, 2): p.ins(rb2(js + i, ju))
    smk = S.alloc(2)
    if xp == 4: xloads()
    p.ins(f's_cmp_lt_u32 s2, 128\ns_cbranch_scc0 AL')
    p.items.append(('save', 'role'))
    def common():
        p.ins(f'v_readfirstlane_b32 {sr(sTok)}, {vr(vsd)}\n' + k.flag_off(sfl, FL_H) + f'\ns_mul_i32 {sr(sTok)}, {sr(sTok)}, 0x9e3779b1\ns_add_u32 {sr(sTok)}, {sr(sTok)}, 0x7f4a7c15')
        p.ins(f's_and_b32 {sr(smk)}, s2, 7\ns_bfe_u32 {sr(s1)}, s2, 0x20003\ns_lshl2_add_u32 {sr(smk)}, {sr(smk)}, {sr(s1)}\ns_lshr_b32 {sr(s1)}, s2, 5\ns_lshl3_add_u32 {sr(smk)}, {sr(smk)}, {sr(s1)}\ns_lshl1_add_u32 {sr(smk)}, {sr(smk)}, {sr(sw)}\ns_lshl_b32 {sr(smk)}, {sr(smk)}, 10\ns_add_u32 {sr(smk)}, {sr(smk)}, {WS_UT}')
        p.ins(f's_add_u32 {sr(sjo)}, {sr(sjo)}, 8192\ns_cmp_lt_u32 {sr(sw)}, 2\ns_cselect_b32 {sr(smk)}, {sr(smk)}, {OOB}\ns_cmp_eq_u32 {sr(sw)}, 2\ns_cselect_b32 {sr(smk+1)}, {sr(sjo)}, {OOB}')
    def marks(r):
        p.ins('\n'.join(f'v_mov_b32 {vr(r+i)}, -1' for i in range(4)))
        p.vm(f'buffer_store_dwordx4 {vr(r,4)}, v0, {sr(sWS,4)}, {sr(smk)} offen sc1')
        p.vm(f'buffer_store_dword {vr(r)}, {vr(jad+2)}, {sr(sWS,4)}, {sr(smk+1)} offen sc1', 'mk')
    weave(p, gemv('mw', ja, jc), [], 1)
    p.ins(f'v_and_b32 {vr(ja+4)}, 3, {vr(vl)}\nv_lshlrev_b32 {vr(ja+4)}, 3, {vr(ja+4)}\ns_cmp_eq_u32 {sr(sw)}, 0\ns_cselect_b32 {sr(s0)}, {sr(sjo)}, {OOB}')
    p.wait(lg='all')
    k.T('f:acc')
    p.ins('s_barrier')
    for i in range(4): p.lg(f'ds_read_b32 {vr(ja+i)}, {vr(jc)} offset:{256*i}', 'jr0')
    p.wait(vm=['seed'])
    common()
    p.ins(f'v_bfe_u32 {vr(ja+4)}, {sr(sTok)}, {vr(ja+4)}, 8\nv_mov_b32 {vr(ja+5)}, 0xffffff00')
    p.wait(lg=['jr0'])
    p.ins(f'v_add_f32 {vr(ja)}, {vr(ja)}, {vr(ja+1)}\nv_add_f32 {vr(ja+2)}, {vr(ja+2)}, {vr(ja+3)}\nv_add_f32 {vr(ja)}, {vr(ja)}, {vr(ja+2)}\nv_add_u32 {vr(ja)}, 0x80, {vr(ja)}\nv_and_or_b32 {vr(ja)}, {vr(ja)}, {vr(ja+5)}, {vr(ja+4)}')
    p.vm(f'buffer_store_dword {vr(ja)}, {vr(jad+2)}, {sr(sWS,4)}, {sr(s0)} offen sc1')
    k.T('f:part')
    marks(ja + 4)
    p.ins(f's_lshl_b32 {sr(s0)}, {sr(sw)}, 7\ns_add_u32 {sr(s0)}, {sr(s0)}, s2\ns_lshl_b32 {sr(s0)}, {sr(s0)}, 13\nv_lshlrev_b32 {vr(vt+2)}, 3, v0')
    t1 = VM(p, f'buffer_load_dword a252, {vr(vt+2)}, {sr(sWQ,4)}, {sr(so)} offen {g1.get("tfl", "")}', 't1')
    p.ins(f's_mov_b32 {sr(so)}, {sr(s0)}')
    if g1.get('t1', 1) == 0: t1()
    p.ins(f's_mov_b32 {sr(sP+3)}, 0x20000\ns_sub_u32 {sr(s1)}, {sr(s0)}, {2<<20}\ns_add_u32 {sr(s0)}, {sr(s0)}, {4<<20}\ns_cmp_ge_u32 {sr(sw)}, 2\ns_cselect_b64 {sr(sP,2)}, {sr(sWO,2)}, {sr(sWQ,2)}\ns_cselect_b32 {sr(sP+2)}, {sr(sWO+2)}, {sr(sWQ+2)}\ns_cselect_b32 {sr(s0)}, {sr(s1)}, {sr(s0)}\nv_mov_b32 {vr(vt)}, {sr(sTok)}')
    p.wait(vm=['mk'])
    p.ins('s_barrier')
    k.flag_store(sfl, vt)
    if g1.get('t1', 1) == 1: t1()
    p.wait(vm=['t1'])
    qn = g1.get('qn', 64)
    def q3():
        p.ins(f's_lshr_b32 {sr(s1)}, s2, 3\ns_mul_i32 {sr(s1)}, {sr(s1)}, {qn*6144}\ns_add_u32 {sr(s1)}, {sr(s1)}, {sr(sWL+1)}\ns_and_b32 {sr(so)}, s2, 2\ns_lshl_b32 {sr(so)}, {sr(so)}, 9\ns_add_u32 {sr(s1)}, {sr(s1)}, {sr(so)}')
        p.ins(f's_and_b32 {sr(so)}, s2, 1\ns_lshl2_add_u32 {sr(so)}, {sr(so)}, {sr(sw)}\ns_cmp_lt_u32 {sr(so)}, 3\ns_cselect_b32 {sr(s1)}, {sr(s1)}, {OOB}\nv_min_u32 {vr(vt+3)}, {qn-1}, {vr(vl)}\nv_mul_u32_u24 {vr(vt+3)}, 6144, {vr(vt+3)}')
        p.vm(f'buffer_load_dword a252, {vr(vt+3)}, {sr(sWQ,4)}, {sr(s1)} offen offset:384')
    if g1.get('q3', 1) == 1: q3()
    p.vm(f'buffer_load_dword a252, {vr(vt+2)}, {sr(sP,4)}, {sr(s0)} offen')
    if g1.get('q3', 1) == 2: q3()
    pr = g1.get('prow', 128)
    if pr:
        p.ins(f's_lshl_b32 {sr(s0)}, {sr(shd)}, 7\ns_add_u32 {sr(s0)}, {sr(s0)}, s2\ns_mul_i32 {sr(s0)}, {sr(s0)}, 7168\ns_cmp_ge_u32 {sr(sw)}, 2\ns_cselect_b64 {sr(sP,2)}, {sr(sWU,2)}, {sr(sWG,2)}\ns_mov_b32 {sr(sP+2)}, {pr*7168}')
        if g1.get('pw', 1): p.ins('s_waitcnt vmcnt(0)')
        p.vm(f'buffer_load_dword a252, {vr(vt+2)}, {sr(sP,4)}, {sr(s0)} offen')
    for f in wops[:3 * wln]: f()
    k.T('f:t2')
    p.ins('s_branch J2\n.p2align 12')
    p.label('AL')
    p.items.append(('restore', 'role'))
    if xp == 5: xloads()
    k.T('l:al')
    p.ins('s_waitcnt vmcnt(8)')
    common()
    vpw, vpr, vsw, vsr = vt + 2, vt + 3, vt + 4, vt + 5
    p.ins(f's_add_u32 {sr(s0)}, {sr(sWL+1)}, {SP}\nv_add_u32 {vr(vpw)}, {sr(s0)}, v0\nv_lshl_add_u32 {vr(vpr)}, {vr(vt+1)}, 5, {sr(s0)}')
    p.ins(f'v_lshlrev_b32 {vr(vsr)}, 6, {vr(vt)}\nv_add_u32 {vr(vsr)}, {SP+8192}, {vr(vsr)}\ns_lshl_b32 {sr(s0)}, {sr(sw)}, 4\nv_add_u32 {vr(vsw)}, {sr(s0)}, {vr(vsr)}')
    p.ins(f'v_bfe_u32 {vr(vt+6)}, {vr(vl)}, 3, 1\nv_lshlrev_b32 {vr(vo)}, 9, {vr(vt+6)}\nv_bfe_u32 {vr(vt+6)}, {vr(vl)}, 4, 1\nv_lshl_add_u32 {vr(vo)}, {vr(vt+6)}, 8, {vr(vo)}')
    p.ins(f'v_lshrrev_b32 {vr(vt+6)}, 5, {vr(vl)}\nv_lshl_add_u32 {vr(vo)}, {vr(vt+6)}, 11, {vr(vo)}\nv_lshl_add_u32 {vr(vo)}, {vr(vt)}, 4, {vr(vo)}')
    p.ins(f's_bfe_u32 {sr(so)}, s2, 0x60001\ns_lshl2_add_u32 {sr(so)}, {sr(so)}, {sr(sw)}\ns_lshl_b32 {sr(so)}, {sr(so)}, 4\ns_and_b32 {sr(s0)}, s2, 1\ns_add_u32 {sr(so)}, {sr(so)}, {sr(s0)}\ns_lshl_b32 {sr(so)}, {sr(so)}, 10\ns_add_u32 {sr(so)}, {sr(so)}, {WS_H}')
    p.ins('\n'.join(f's_bfe_u32 {sr(sC+i)}, {sr(sTok)}, {hex(0x80000 + 8 * i)}' for i in range(4)))
    vh = ja + 4
    pe = g1.get('pearly', 2)
    def ploads():
        p.ins(f's_lshl_b32 {sr(s1)}, {sr(sw)}, 10')
        for q in range(4):
            p.vm(f'buffer_load_dwordx4 {vr(vs+4*q,4)}, v0, {sr(sWS,4)}, {sr(s1)} offen sc1', ('part', 2 * q))
            p.ins(f's_add_u32 {sr(s1)}, {sr(s1)}, 4096')
            p.vm(f'buffer_load_dwordx4 {vr(vc+4*q,4)}, v0, {sr(sWS,4)}, {sr(s1)} offen sc1', ('part', 2 * q + 1))
            if q < 3: p.ins(f's_add_u32 {sr(s1)}, {sr(s1)}, {24576-4096}')
    mv = jc
    for hf in range(2):
        q0 = vov
        for i in range(4):
            p.ins(f's_waitcnt vmcnt({7 - 4 * hf - i})')
            if 4 * hf + i in (0, 7): k.T(f'l:x{4 * hf + i}')
            for d in range(4): p.ins(unpack(vf + 32*hf + 8*i + 2*d, vx + 16*hf + 4*i + d))
            for d in range(4):
                r = vf + 32 * hf + 8 * i + 2 * d; t_ = q0 + 4 * (d & 1)
                if i == 0 and d < 2: p.ins(f'v_pk_mul_f32 {vr(t_+2,2)}, {vr(r,2)}, {vr(r,2)}')
                else: p.ins(f'v_pk_fma_f32 {vr(t_+2,2)}, {vr(r,2)}, {vr(r,2)}, {vr(t_+2,2)}\nv_pk_add_f32 {vr(t_,2)}, {vr(r,2)}, {vr(r-4 if i == 0 else t_,2)}')
        p.ins(f'v_pk_add_f32 {vr(q0,2)}, {vr(q0,2)}, {vr(q0+4,2)}\nv_pk_add_f32 {vr(q0+2,2)}, {vr(q0+2,2)}, {vr(q0+6,2)}\nv_add_f32 {vr(ja+2*hf)}, {vr(q0)}, {vr(q0+1)}\nv_add_f32 {vr(ja+2*hf+1)}, {vr(q0+2)}, {vr(q0+3)}')
    if pe == 1: ploads()
    p.ins('s_nop 0')
    for i in range(4): p.ins(f'v_add_f32_dpp {vr(mv+i)}, {vr(ja+i)}, {vr(ja+i)} row_ror:8 row_mask:0xf bank_mask:0xf')
    for st in (16, 32):
        for i in range(4): p.ins(f'v_mov_b32 {vr(ja+i)}, {vr(mv+i)}')
        for i in range(4): p.ins(f'v_permlane{st}_swap_b32 {vr(mv+i)}, {vr(ja+i)}')
        for i in (0, 2): p.ins(f'v_pk_add_f32 {vr(mv+i,2)}, {vr(mv+i,2)}, {vr(ja+i,2)}')
    p.lg(f'ds_write_b128 {vr(vsw)}, {vr(mv,4)}')
    p.wait(lg='all')
    p.ins('s_barrier')
    k.T('l:bar')
    for i in range(4): p.lg(f'ds_read_b128 {vr(vx+4*i,4)}, {vr(vsr)} offset:{16*i}')
    if pe == 2: ploads()
    p.wait(lg='all')
    for i in (0, 2, 4, 6): p.ins(f'v_pk_add_f32 {vr(vx+i,2)}, {vr(vx+i,2)}, {vr(vx+8+i,2)}')
    for i in (0, 2): p.ins(f'v_pk_add_f32 {vr(vx+i,2)}, {vr(vx+i,2)}, {vr(vx+4+i,2)}')
    for i in range(4): p.ins(f'v_mul_f32 {vr(mv+i)}, {f32(1/1024)}, {vr(vx+i)}')
    two = lambda f: p.ins('\n'.join(x for pr in zip(f(mv, mv + 1).split('\n'), f(mv + 2, mv + 3).split('\n')) for x in pr))
    two(lambda m_, v_: f'v_fma_f32 {vr(v_)}, -{vr(m_)}, {vr(m_)}, {vr(v_)}\nv_max_f32 {vr(v_)}, 0, {vr(v_)}\n' + rb(v_) + f'\nv_add_f32 {vr(v_)}, {f32(1e-5)}, {vr(v_)}\n' + rb(v_) + f'\nv_sqrt_f32 {vr(v_)}, {vr(v_)}\n' + rb(m_) + '\n' + rb(v_)
        + f'\nv_rcp_f32 {vr(v_)}, {vr(v_)}\nv_mul_f32 {vr(m_)}, -{vr(m_)}, {vr(v_)}')
    for i in range(0, 64, 2): p.ins(f'v_pk_fma_f32 {vr(vf+i,2)}, {vr(vf+i,2)}, {vr(mv+2*(i//32),2)}, {vr(mv+2*(i//32),2)} op_sel:[0,1,0] op_sel_hi:[1,1,0]')
    k.T('f:stat')
    p.ins(f's_mov_b32 {sr(spc)}, 30000' + ('\ns_branch PLC' if pe else ''))
    p.label('PLP')
    ploads()
    p.label('PLC')
    for n in range(8):
        r = (vs, vc)[n & 1] + 4 * (n >> 1)
        p.wait(vm=[('part', n)])
        for i in range(4): p.ins(f'v_xor_b32 {vr(r+i)}, {sr(sC+i)}, {vr(r+i)}')
        p.ins(f'v_or3_b32 {vr(vh)}, {vr(vh) if n else 0}, {vr(r)}, {vr(r+1)}\nv_or3_b32 {vr(vh)}, {vr(vh)}, {vr(r+2)}, {vr(r+3)}')
    p.ins(f'v_and_b32 {vr(vh)}, 0xff, {vr(vh)}\nv_cmp_ne_u32 vcc, 0, {vr(vh)}\ns_sub_u32 {sr(spc)}, {sr(spc)}, 1\ns_cmp_eq_u32 {sr(spc)}, 0\ns_cbranch_scc1 PLX\ns_nop 1\ns_cbranch_vccnz PLP')
    p.label('PLX')
    k.T('f:got')
    marks(ja)
    S.free(smk, 2)
    q0 = vh
    for i in (0, 2, 4, 6): p.ins(f'v_pk_add_f32 {vr(vc+i,2)}, {vr(vc+i,2)}, {vr(vc+8+i,2)}\nv_pk_add_f32 {vr(vs+i,2)}, {vr(vs+i,2)}, {vr(vs+8+i,2)}')
    for i in (0, 2): p.ins(f'v_pk_add_f32 {vr(vc+i,2)}, {vr(vc+i,2)}, {vr(vc+4+i,2)}\nv_pk_add_f32 {vr(vs+i,2)}, {vr(vs+i,2)}, {vr(vs+4+i,2)}')
    for r in (vs, vs + 2): p.ins(rb2(r, q0))
    p.lg(f'ds_write_b128 {vr(vpw)}, {vr(vs,4)} offset:1024')
    for r in (vc, vc + 2): p.ins(rb2(r, q0) + f'\nv_pk_add_f32 {vr(r,2)}, {vr(r,2)}, 1.0 op_sel_hi:[1,0]\n' + rb2(r, q0))
    p.lg(f'ds_write_b128 {vr(vpw)}, {vr(vc,4)}')
    for i in range(4):
        for h in range(2):
            p.lg(f'ds_read_b128 {vr(vs+8*i+4*h,4)}, {vr(vpr)} offset:{1024+256*i+16*h}')
            p.lg(f'ds_read_b128 {vr(vc+8*i+4*h,4)}, {vr(vpr)} offset:{256*i+16*h}', ('ms', i))
    C = []
    for i in range(4):
        C.append(WT(p, lg=[('ms', i)]))
        for hf in range(2):
            f_ = vf + 32 * hf + 8 * i
            for e in range(0, 8, 2): C.append(f'v_pk_fma_f32 {vr(f_+e,2)}, {vr(f_+e,2)}, {vr(vc+8*i+e,2)}, {vr(vs+8*i+e,2)}')
        for hf in range(2):
            for d in range(4): C.append(pk(vx + 16*hf + 4*i + d, vf + 32*hf + 8*i + 2*d))
        for hf in range(2):
            x_ = vx + 16 * hf + 4 * i
            C.append(f'v_permlane16_swap_b32 {vr(x_)}, {vr(x_+2)}\nv_permlane16_swap_b32 {vr(x_+1)}, {vr(x_+3)}')
        for hf in range(2): C.append(VM(p, f'buffer_store_dwordx4 {vr(vx+16*hf+4*i,4)}, {vr(vo)}, {sr(sWS,4)}, {sr(so)} offen offset:{128*hf} sc1', 'hs'))
        if i < 3: C.append(f's_add_u32 {sr(so)}, {sr(so)}, 4096')
    assert not weave(p, C, wops[:3 * wln], g1.get('wstep', 10), -8)
    k.publish('h', sfl, vt)
    p.label('J2')
    if stop == 0: return finish(k)
    S.free(sP, 4)

    sc = Sched(p, g1.get('cap', 2))
    R1, DAS1 = g1.get('R', 9), 4
    abuf, wbuf = A(0), A(80)
    def wrd(s, t, j, h):
        st, sl = divmod(slot1(s), 3)
        return waddr + 2 * st + (t & 1), sl * SB1 + h * 6144 + j * 1024
    accr = lambda t, m: acc1 + (t * 4 + m) * 4 if m < 4 else acc1 + 96 + 2 * t
    co = Core(p, sc, NS1, 4, wbuf, R1, g1.get('lead', 20), abuf, DAS1, accr, wrd, ard=True, extra={0: [4], 2: [4]}, swap=(2, 3), KG=1, name='g1', bmargin=g1.get('bm', 1))
    nst = 34
    co.wst = lambda g_, q: (g_ // 2, q)
    co.build([([(x, 0) for x in KS1(s)], (4, 0, 2)[s % 3] + c) for s in range(nst) for c in range(2)])
    for s in range(0, 32, 3):
        co.await_[(s, 0, 4)] = co.sfirst[s]
        sc.before(co.sfirst[s], WT(p, lg=[co.atag(s, 0, 4)]), 0)
    alead = g1.get('alead', 23); be, b0 = g1.get('be', 2), g1.get('b0', 6)
    co.barriers(lambda s: [('D1', s, n) for n in DL1(s)], alead=alead, have=range(g1.get('have', 2)), grp=lambda s: s if s < b0 else s - (s - b0) % be)
    MS = 26
    for f in wops[3 * wln:]: f()
    k.hop('a', 'AL', 'G3S', (1, 2, 3))
    k.poll('h', vph, FL_H, vt, spc)
    n0 = g1.get('n0', 3)
    for s in range(n0):
        for n in range(3, 6): dma1(s, n, p.ins, now)
    p.wait(vm=[('D1', g1.get('have', 2) - 1, 5)])
    p.ins('s_barrier')
    ev = []
    for s in range(n0, npre):
        for n in range(3 if s < npw else 0, 6): ev.append((g1.get('dsp', 4) * len(ev), s, n))
    sc.vgap = lambda i: g1.get('vgap', 3)
    sc.mcap = lambda i: g1.get('mcap', 2)
    dsl = [i * MS // 6 for i in range(6)]
    for s in range(npre, nst):
        for n in DL1(s): ev.append((max(co.slotfree(s) + 1, ev[-1][0] + g1.get('dsp', 4)), s, n))
    for e, s, n in ev:
        e = int(e)
        dma1(s, n, lambda t_: sc.add('v', max(e - 3, 0), co.bar[s], t_), lambda f, sep: sc.add('v', e, co.bar[s], f, sep=sep))
    lastd = e
    co.wreads()
    for s in range(32):
        st, sl = divmod(slot1(s), 3)
        for i, m in enumerate((0, 1, 2, 3, 4)):
            ar, off = (xaddr + st, sl * SB1 + SB1 - 1024) if m == 4 else (aaddr + st, sl * SB1 + WB1 + m * 1024)
            dl = co.await_[(s, 0, m)]
            e = max(co.bar[s], co.alast[(s - DAS1, 0, m)] if s >= DAS1 else -1, dl - alead + 1 + 2 * i)
            co.rq.append((e, dl, LG(p, f'ds_read_b128 {vr(co.abf(s,0,m),4)}, {vr(ar)} offset:{off}', co.atag(s, 0, m))))
    co.flush_reads()

    sx0, sx1 = s0, s1
    pos = [g1.get('fpos', 100)]
    def F(txt, d=INF, sep=False):
        o = sc.add('x', int(pos[0]), d, txt, sep=sep)
        pos[0] += (txt.count('\n') + 1 if isinstance(txt, str) else 1) * g1.get('fstep', 1.6)
        return o
    u = vt
    sm2 = S.alloc(); sn2 = S.alloc(); sorg = S.alloc(); sro = S.alloc(); sW4 = S.alloc(); soo = S.alloc(2); sk2 = so
    sy = S.alloc(); sst = S.alloc(); sax = S.alloc()
    vw2 = V.alloc('vw2', 4); vro = V.alloc('ro', 2); ea = V.alloc('ea', 6); vM = V.alloc('pm', 4)
    wa2 = V.alloc('wa2', 8); vxa = V.alloc('xa', 4); va2 = V.alloc('va2'); vgo = V.alloc('go', 3); vpo = V.alloc('po', 4)
    F(f's_bfe_u32 {sr(sorg)}, s2, 0x30003\ns_xor_b32 {sr(sorg)}, {sr(sorg)}, {cfg["g4"].get("wx", 1)}\ns_and_b32 {sr(sx0)}, s2, 1\ns_lshl1_add_u32 {sr(sn2)}, {sr(sorg)}, {sr(sx0)}')
    F(f's_bfe_u32 {sr(sm2)}, s2, 0x20001\ns_lshr_b32 {sr(sx1)}, s2, 6\ns_lshl2_add_u32 {sr(sm2)}, {sr(sm2)}, {sr(sx1)}\ns_lshl_b32 {sr(sW4)}, {sr(sw)}, 12')
    F(f's_lshl_b32 {sr(sx0)}, {sr(sn2)}, 7\ns_lshl_b32 {sr(sx1)}, {sr(sw)}, 16\ns_add_u32 {sr(sx0)}, {sr(sx0)}, {sr(sx1)}\nv_lshrrev_b32 {vr(u)}, 3, {vr(vl)}\nv_lshlrev_b32 {vr(u)}, 11, {vr(u)}\nv_add3_u32 {vr(vw2)}, {vr(u)}, {vr(vswz)}, {sr(sx0)}')
    for i in range(1, 4): F(f'v_add_u32 {vr(vw2+i)}, {i*(16384-1024)}, {vr(vw2)}')
    F(f's_lshl_b32 {sr(sro)}, {sr(sm2)}, 18\ns_add_u32 {sr(sro)}, {sr(sro)}, {sr(sx0)}')
    osu2 = F(f'v_and_b32 {vr(u+1)}, 7, {vr(vl)}\nv_lshrrev_b32 {vr(u+2)}, 4, {vr(vl)}\nv_xor_b32 {vr(u+1)}, {vr(u+1)}, {vr(u+2)}\nv_lshl_add_u32 {vr(vro)}, {vr(u+1)}, 4, {vr(u)}\nv_xor_b32 {vr(vro+1)}, 64, {vr(vro)}\nv_add_u32 {vr(vro+1)}, {16384-1024}, {vr(vro+1)}')
    F(f's_lshl_b32 {sr(sx0)}, {sr(sw)}, 10\ns_add_u32 {sr(sx0)}, {sr(sx0)}, {GL}\nv_add_u32 {vr(vgo+2)}, {sr(sx0)}, v0\nv_lshl_add_u32 {vr(vgo)}, {vr(u+2)}, 4, {sr(sx0)}\nv_and_b32 {vr(u)}, 1, {vr(vl)}\nv_lshlrev_b32 {vr(u)}, 8, {vr(u)}\nv_sub_u32 {vr(vgo+1)}, {vr(vgo)}, {vr(u)}')
    F(f's_lshl_b32 {sr(sx0)}, {sr(sn2)}, 7\nv_and_b32 {vr(u+1)}, 0xf0, v0\nv_lshl_add_u32 {vr(u+1)}, {vr(u+2)}, 12, {vr(u+1)}\ns_lshl1_add_u32 {sr(sx0)}, {sr(sx0)}, 8192\nv_add_u32 {vr(vpo+1)}, {sr(sx0)}, {vr(u+1)}')
    owa2 = F(f'v_lshrrev_b32 {vr(u)}, 2, {vr(vl)}\nv_lshl_add_u32 {vr(wa2)}, {vr(u)}, 7, {vr(vrd)}')
    for t in range(1, 8): F(f'v_xor_b32 {vr(wa2+t)}, {((t & 3) << 5) + ((t >> 2) << 16)}, {vr(wa2)}')
    F(f's_add_u32 {sr(sx0)}, {sr(sW4)}, {XL}\n' + xa_setup(vxa, u, sx0, vl))
    F(f's_lshl2_add_u32 {sr(sx0)}, {sr(sm2)}, {sr(sw)}\ns_lshl_b32 {sr(sx1)}, {sr(sx0)}, 16\ns_add_u32 {sr(sx1)}, {sr(sx1)}, {WS_O}\nv_add_u32 {vr(va2)}, {sr(sx1)}, v0')
    F(f's_lshl4_add_u32 {sr(sst)}, {sr(sx0)}, {sr(sn2)}\ns_lshl_b32 {sr(sst)}, {sr(sst)}, 8\ns_add_u32 {sr(sst)}, {sr(sst)}, {WS_ST}')
    F(f's_lshr_b32 {sr(sy)}, {sr(sx0)}, 1\ns_lshl_b32 {sr(sy)}, {sr(sy)}, 5\ns_add_u32 {sr(sy)}, {sr(sy)}, {sr(sn2)}\ns_and_b32 {sr(sx1)}, {sr(sx0)}, 1\ns_lshl1_add_u32 {sr(sy)}, {sr(sy)}, {sr(sx1)}\ns_lshl_b32 {sr(sy)}, {sr(sy)}, 11\ns_add_u32 {sr(sy)}, {sr(sy)}, {WS_Y}')
    F(f's_lshl2_add_u32 {sr(sax)}, {sr(sx0)}, {sr(sn2)}\ns_lshl_b32 {sr(sax)}, {sr(sax)}, 10\ns_add_u32 {sr(sax)}, {sr(sax)}, {WS_AUX}\ns_and_b32 {sr(sx0)}, {sr(sx0)}, 7\ns_cselect_b32 {sr(sax)}, {OOB}, {sr(sax)}')
    F(f's_and_b32 {sr(sx0)}, {sr(sm2)}, 7\ns_lshl_b32 {sr(sx0)}, {sr(sx0)}, 5\ns_lshr_b32 {sr(sx1)}, {sr(sm2)}, 3\ns_lshl2_add_u32 {sr(sx0)}, {sr(sx1)}, {sr(sx0)}')
    F(f'v_and_b32 {vr(u)}, 3, {vr(vl)}\nv_bfe_u32 {vr(u+1)}, {vr(vl)}, 2, 2\nv_lshl_add_u32 {vr(u)}, {vr(u)}, 3, {vr(u+1)}\nv_add_lshl_u32 {vr(vpo+2)}, {vr(u)}, {sr(sx0)}, 7')
    F(f'v_add_u32 {vr(vpo+2)}, {FL_O-FL_H}, {vr(vpo+2)}\nv_and_b32 {vr(u)}, 7, {vr(vl)}\nv_and_b32 {vr(u+1)}, 8, {vr(vl)}\nv_lshl_add_u32 {vr(u)}, {vr(u+1)}, 4, {vr(u)}\ns_lshl_b32 {sr(sx0)}, {sr(sn2)}, 3\nv_add_lshl_u32 {vr(u)}, {vr(u)}, {sr(sx0)}, 7\nv_cmp_gt_u32 vcc, 16, {vr(vl)}\ns_nop 1\nv_cndmask_b32 {vr(vpo+2)}, {vr(u)}, {vr(vpo+2)}, vcc')
    F(f's_lshl_b32 {sr(sx0)}, {sr(swm)}, 3\ns_add_u32 {sr(sx0)}, {sr(sx0)}, {EX}\nv_add_u32 {vr(u)}, {sr(sx0)}, v0\nv_add_u32 {vr(ea)}, {sr(sWL+1)}, {vr(u)}\nv_xor_b32 {vr(ea+1)}, 8, {vr(ea)}')
    F(f's_lshl_b32 {sr(sx0)}, {sr(shd)}, 11\ns_add_u32 {sr(sx0)}, {sr(sx0)}, 8192\nv_add_u32 {vr(ea+2)}, {sr(sx0)}, {vr(u)}\ns_lshl_b32 {sr(sx0)}, {sr(swm)}, 13\nv_subrev_u32 {vr(ea+3)}, {sr(sx0)}, {vr(ea+2)}\nv_xor_b32 {vr(ea+4)}, 8, {vr(ea+3)}\nv_and_b32 {vr(ea+5)}, -9, {vr(ea+3)}')
    assert EX % 16 == 0
    q_ = lambda l: l & 15
    gg = lambda l: l >> 4
    mpa = lanemask(lambda l: not (4 * gg(l) + (l & 1) <= q_(l))); mpb = lanemask(lambda l: not (4 * gg(l) + 2 + (l & 1) <= q_(l)))
    mO, mPa, mPb = S.alloc(2, 2), S.alloc(2, 2), S.alloc(2, 2)
    F(smov64(mO, lanemask(lambda l: l & 1)) + '\n' + smov64(mPa, mpa) + '\n' + smov64(mPb, mpb))
    F(f'v_mov_b32 {vr(u)}, 0x0c0c0100\nv_mov_b32 {vr(u+1)}, 0x01000c0c\nv_cndmask_b32 {vr(u)}, {vr(u)}, {vr(u+1)}, {sr(mO,2)}\nv_mov_b32 {vr(u+2)}, 0x0c0c0c0c\nv_cndmask_b32 {vr(vM)}, {vr(u+2)}, {vr(u)}, {sr(mPa,2)}\nv_cndmask_b32 {vr(vM+2)}, {vr(u)}, {vr(u+2)}, {sr(mPa,2)}')
    F(f'v_mov_b32 {vr(u)}, 0x0c0c0302\nv_mov_b32 {vr(u+1)}, 0x03020c0c\nv_cndmask_b32 {vr(u)}, {vr(u)}, {vr(u+1)}, {sr(mO,2)}\nv_cndmask_b32 {vr(vM+1)}, {vr(u+2)}, {vr(u)}, {sr(mPb,2)}\nv_cndmask_b32 {vr(vM+3)}, {vr(u)}, {vr(u+2)}, {sr(mPb,2)}')
    F(f's_lshl1_add_u32 {sr(sx0)}, {sr(sm)}, {sr(swm)}\ns_lshl_b32 {sr(soo)}, {sr(sx0)}, 17\ns_lshl1_add_u32 {sr(sx0)}, {sr(sn)}, {sr(shd)}\ns_lshl_b32 {sr(sx0)}, {sr(sx0)}, 11')
    F(f's_add_u32 {sr(soo)}, {sr(soo)}, {sr(sx0)}\ns_add_u32 {sr(soo)}, {sr(soo)}, {WS_O}\ns_add_u32 {sr(soo+1)}, {sr(soo)}, 65536\ns_or_b32 {sr(sm)}, {sr(sm)}, {sr(swm)}')
    F(k.flag_off(sfl, FL_O))
    S.free(sn); S.free(shd)
    sm3 = S.alloc(); sn3 = S.alloc(); sT3 = S.alloc(2); sWL3 = S.alloc(); sAb = S.alloc()
    wa3, vd3, SB3, ldw = 1, 3, 28672, 7168
    F(f's_lshr_b32 {sr(sx1)}, s2, 3\ns_and_b32 {sr(sn3)}, {sr(sx1)}, 3\ns_lshr_b32 {sr(sm3)}, {sr(sx1)}, 2\ns_lshl1_add_u32 {sr(sx1)}, {sr(sn3)}, {sr(sm3)}\ns_and_b32 {sr(sx1)}, {sr(sx1)}, 7\ns_and_b32 {sr(sx0)}, s2, 7\ns_lshl2_add_u32 {sr(sn3)}, {sr(sx0)}, {sr(sn3)}')
    for r, T in enumerate(g3_orders(cfg['g3'].get('aux', (6, 9)), cfg['g3'].get('leads'))):
        lo, hi = (sum(c << (4 * i) for i, c in enumerate(T[8*h:8*h+8])) for h in range(2))
        F(f's_mov_b32 {sr(sT3)}, 0x{lo:x}\ns_mov_b32 {sr(sT3+1)}, 0x{hi:x}' if r == 0 else f's_cmp_eq_u32 {sr(sx1)}, {r}\ns_cselect_b32 {sr(sT3)}, 0x{lo:x}, {sr(sT3)}\ns_cselect_b32 {sr(sT3+1)}, 0x{hi:x}, {sr(sT3+1)}')
    F(f's_mul_i32 {sr(sWL3)}, {sr(sw)}, 7168\ns_lshl2_add_u32 {sr(sAb)}, {sr(sm3)}, {sr(sw)}\ns_lshl_b32 {sr(sAb)}, {sr(sAb)}, 17\ns_add_u32 {sr(sAb)}, {sr(sAb)}, {WS_Y}')
    osel = F(f's_cmp_ge_u32 {sr(sw)}, 2\ns_cselect_b64 {sr(sWG,2)}, {sr(sWU,2)}, {sr(sWG,2)}')
    F(f'v_lshrrev_b32 {vr(u)}, 2, {vr(vl)}\nv_mul_u32_u24 {vr(u)}, 224, {vr(u)}\nv_and_b32 {vr(u+1)}, 3, {vr(vl)}\nv_lshl_add_u32 {vr(wa3)}, {vr(u+1)}, 3, {vr(u)}\nv_add_u32 {vr(wa3+1)}, {2*SB3}, {vr(wa3)}')
    F(f's_mul_i32 {sr(sx0)}, {sr(sn3)}, 224\ns_and_b32 {sr(sx1)}, {sr(sw)}, 1\ns_mul_i32 {sr(sx1)}, {sr(sx1)}, {64*ldw}\ns_add_u32 {sr(sx0)}, {sr(sx0)}, {sr(sx1)}\ns_and_b32 {sr(sx1)}, {sr(sn3)}, 1\ns_lshl_b32 {sr(sx1)}, {sr(sx1)}, 1')
    for i in range(7):
        F(f'v_add_u32 {vr(u)}, {64*i}, {vr(vl)}\nv_mul_u32_u24 {vr(u+1)}, 4682, {vr(u)}\nv_lshrrev_b32 {vr(u+1)}, 16, {vr(u+1)}\nv_mul_i32_i24 {vr(u+2)}, -14, {vr(u+1)}\nv_add3_u32 {vr(u)}, {vr(u)}, {vr(u+2)}, {sr(sx1)}')
        F(f'v_add_u32 {vr(u+2)}, -14, {vr(u)}\nv_min_u32 {vr(u)}, {vr(u)}, {vr(u+2)}\nv_mul_u32_u24 {vr(u+1)}, {ldw}, {vr(u+1)}\nv_lshl_add_u32 {vr(u)}, {vr(u)}, 4, {vr(u+1)}\nv_add_u32 {vr(vd3+i)}, {sr(sx0)}, {vr(u)}')
        F(f's_sub_u32 {sr(sx0)}, {sr(sx0)}, {1024 if i != 3 else -3072}')
    F(f's_and_b32 {sr(sx0)}, {sr(sm3)}, 1\ns_lshl_b32 {sr(sx0)}, {sr(sx0)}, 7\ns_and_b32 {sr(sx1)}, {sr(sm3)}, 6\ns_add_u32 {sr(sx0)}, {sr(sx0)}, {sr(sx1)}')
    F(f'v_bfe_u32 {vr(u)}, {vr(vl)}, 1, 4\nv_and_b32 {vr(u+1)}, 1, {vr(vl)}\nv_lshl_add_u32 {vr(u)}, {vr(u)}, 3, {vr(u+1)}\nv_add_lshl_u32 {vr(vpo+3)}, {vr(u)}, {sr(sx0)}, 7')
    F(f'v_add_u32 {vr(vpo+3)}, {FL_Y-FL_H}, {vr(vpo+3)}\nv_and_b32 {vr(u)}, 7, {vr(vl)}\nv_lshlrev_b32 {vr(u)}, 5, {vr(u)}\ns_and_b32 {sr(sx0)}, s2, 31\nv_add_lshl_u32 {vr(u)}, {vr(u)}, {sr(sx0)}, 7\nv_cmp_gt_u32 vcc, 32, {vr(vl)}\ns_nop 1\nv_cndmask_b32 {vr(vpo+3)}, {vr(u)}, {vr(vpo+3)}, vcc', d=co.end - 60)
    def wo_dma(pc, i, E, EV):
        if i == 0: E(f's_mov_b32 {sr(sk2)}, {pc << 18}\ns_add_u32 m0, {sr(sW4)}, {WOP[pc]*16384}')
        EV(VM(p, f'buffer_load_dwordx4 {vr(vw2+i)}, {sr(sWO,4)}, {sr(sk2)} offen offset:{1024*i} lds', ('D2', pc, i)), i == 0)
    e = lastd + 4
    def wo_in_loop(lo, hi, e):
        for pc in range(lo, hi):
            e = max(e, co.free_after(27 + ((pc + 1) * 16384 - 1) // SB1) + 1)
            for i in range(4):
                wo_dma(pc, i, lambda t_: sc.add('v', e - 4, INF, t_), lambda f, sep: sc.add('v', e, INF, f, sep=sep)); e += 4
        return e
    npl0, npl = g1.get('npl0', 1), g1.get('npl', 3)
    assert npl == 0
    sc.add('v', e - 6, INF, 's_nop 0', after=osu2)
    if g1.get('whelp') is not None:
        eh = lastd + g1['whelp']; vhp = vrd
        sc.add('h', eh - 30, INF, f's_lshr_b32 {sr(sC+2)}, s2, 3\ns_lshl2_add_u32 {sr(sC+2)}, {sr(sC+2)}, {sr(sw)}\ns_bfe_u32 {sr(sC+3)}, s2, 0x20001\ns_lshl_b32 {sr(sC+3)}, {sr(sC+3)}, 7\ns_add_u32 {sr(sC+3)}, {sr(sC+3)}, {sr(sC+2)}\ns_lshl_b32 {sr(sC+3)}, {sr(sC+3)}, 13\ns_lshl_b32 {sr(sC+2)}, {sr(sC+2)}, 14'
               f'\ns_bitcmp1_b32 s2, 0\ns_cselect_b32 {sr(sC+2)}, {sr(sC+2)}, {OOB}\ns_cselect_b32 {sr(sC+3)}, {sr(sC+3)}, {OOB}\nv_and_b32 {vr(vhp)}, 15, {vr(vl)}\nv_lshlrev_b32 {vr(vhp)}, 10, {vr(vhp)}', after=owa2)
        sc.add('h', eh, eh + 6, VM(p, f'buffer_load_dword a252, {vr(vhp)}, {sr(sWO,4)}, {sr(sC+2)} offen offset:384'))
        sc.add('h', eh, INF, f'v_and_b32 {vr(vhp)}, 0x1fff, {vr(vhp)}')
        sc.add('h', eh + 4, eh + 12, VM(p, f'buffer_load_dword a252, {vr(vhp)}, {sr(sX,4)}, {sr(sC+3)} offen offset:384'))
    e = wo_in_loop(0, npl0, e)
    def xtouch(e):
        sc.add('v', e - 8, INF, f'v_lshrrev_b32 {vr(vph)}, 2, {vr(vl)}\nv_min_u32 {vr(vph)}, (XEND-G3S)/4096, {vr(vph)}\nv_and_b32 {vr(vswz)}, 3, {vr(vl)}\nv_lshlrev_b32 {vr(vswz)}, 7, {vr(vswz)}\nv_lshl_add_u32 {vr(vph)}, {vr(vph)}, 12, {vr(vswz)}\n'
               f's_add_u32 s94, s92, AL-{k.name}+((G3S-AL+4095)/4096)*4096\ns_addc_u32 s95, s93, 0')
        sc.add('v', e, INF, VM(p, f'global_load_dword a252, {vr(vph)}, s[94:95]'))
        sc.add('v', e, INF, k.flag_off(sC, FL_H, 2) + f'\nv_and_b32 {vr(vph)}, 7, {vr(vl)}\nv_lshlrev_b32 {vr(vph)}, 15, {vr(vph)}')
        sc.add('v', e + 4, INF, VM(p, f'buffer_load_dword a252, {vr(vph)}, {sr(sWS,4)}, {sr(sC)} offen sc1')); e += 4
        pr = g1.get('prow2', 128)
        if pr:
            nl = pr * 56 // 512
            sc.add('v', e, INF, f's_and_b32 {sr(sC)}, {sr(sw)}, 1\ns_lshl1_add_u32 {sr(sC)}, s2, {sr(sC)}\ns_mul_i32 {sr(sC)}, {sr(sC)}, {nl}\nv_min_u32 {vr(vph)}, {nl-1}, {vr(vl)}\nv_add_u32 {vr(vph)}, {sr(sC)}, {vr(vph)}'
                   f'\nv_lshrrev_b32 {vr(vswz)}, 8, {vr(vph)}\nv_mul_u32_u24 {vr(vswz)}, 9363, {vr(vswz)}\nv_lshrrev_b32 {vr(vswz)}, 16, {vr(vswz)}\nv_mul_u32_u24 {vr(vswz)}, 1792, {vr(vswz)}\nv_add_lshl_u32 {vr(vph)}, {vr(vph)}, {vr(vswz)}, 7', after=osel)
            sc.add('v', e + 4, INF, VM(p, f'buffer_load_dword a252, {vr(vph)}, {sr(sWG,4)}, 0 offen'))
        return e + 8
    if g1.get('xt', 0) == 0: e = xtouch(e)
    if g1.get('jhelp', True):
        sc.add('v', e - 20, INF, f's_bfe_u32 {sr(sC)}, s2, 0x30004\ns_and_b32 {sr(sC+1)}, s2, 3\ns_lshl3_add_u32 {sr(sC)}, {sr(sC+1)}, {sr(sC)}\ns_lshl2_add_u32 {sr(sC)}, {sr(sC)}, {sr(sw)}\ns_mul_i32 {sr(sC)}, {sr(sC)}, {8*12288}\ns_and_b32 {sr(sC+1)}, {sr(sjw)}, 0x3800\ns_add_u32 {sr(sC)}, {sr(sC)}, {sr(sC+1)}\ns_and_b32 {sr(sC+1)}, s2, 8\ns_lshl_b32 {sr(sC+1)}, {sr(sC+1)}, 7\ns_add_u32 {sr(sC)}, {sr(sC)}, {sr(sC+1)}'
               f'\nv_and_b32 {vr(vph)}, 7, {vr(vl)}\nv_mul_u32_u24 {vr(vph)}, 12288, {vr(vph)}')
        sc.add('v', e, INF, VM(p, f'buffer_load_dword a252, {vr(vph)}, {sr(sWM,4)}, {sr(sC)} offen offset:384')); e += 4
    for i in range(8):
        sc.add('v', e, INF, VM(p, f'buffer_load_dwordx4 {vr(jw+4*i,4)}, {vr(jad)}, {sr(sWM,4)}, {sr(sjw)} offen nt', ('jw', i)))
        if i < 7: sc.add('v', e, INF, f's_add_u32 {sr(sjw)}, {sr(sjw)}, 12288')
        e += g1.get('jstep', 4)
    if g1.get('xt', 0) == 1: e = xtouch(e + g1.get('xgap', 0))
    e = wo_in_loop(npl0, npl, e + g1.get('jgap', 50))
    assert e < co.end + 4
    sc.bias = dict(x=10000)
    k.ctouch(sc, g1.get('ct0', 40), lastd - 20, 270)
    kf = lambda m: accr(0, m) if m >= 0 else vov
    vd = lambda c, m: accr(2 + c, 0) + 2 * (m + 1)
    def cv(d, r): return pk(d, r) + '\n' + pk(d + 1, r + 2) if d != r + 2 else pk(d + 1, r + 2) + '\n' + pk(d, r)
    def X(e, txt): sc.add('x', e, INF, txt)
    hk, hv = accr(0, 4), accr(2, 4)
    e = co.cdone[(0, 4)] + 8
    X(e, cv(hk, hk))
    X(e, LG(p, f'ds_write_b64 {vr(ea+2)}, {vr(hk,2)}'))
    for m in (3, 2, 1, 0):
        e = co.cdone[(1, m)] + 7
        X(e, cv(kf(m), kf(m)) + '\n' + cv(kf(m) + 2, accr(1, m)))
        if m == 3:
            X(e, LG(p, f'ds_write_b64 {vr(ea)}, {vr(kf(3),2)}'))
            X(e, LG(p, f'ds_write_b64 {vr(ea+1)}, {vr(kf(3)+2,2)}'))
    for m in range(4): X(co.cdone[(2, m)] + 7, cv(vd(0, m), accr(2, m)))
    e = co.cdone[(2, 4)] + 7
    X(e, cv(hv, hv))
    X(e, LG(p, f'ds_write_b64 {vr(ea)}, {vr(vd(0,3),2)} offset:1024'))
    X(e, LG(p, f'ds_write_b64 {vr(ea+2)}, {vr(hv,2)} offset:1024'))
    e = co.cdone[(3, 0)] + 7
    for m in range(4): X(e, cv(vd(1, m), accr(3, m)))
    X(e, LG(p, f'ds_write_b64 {vr(ea+1)}, {vr(vd(1,3),2)} offset:1024'))
    if TL:
        for s in g1.get('marks', (2, 6, 26)): sc.before(co.sfirst[s] + 1, lambda s=s: k.T(f'g1:s{s}'), 0)
    left = sc.run()
    k.T('g1:loopend')
    for st_, o in left: now(o.fn, o.sep)
    k.info = f'g1 over {sc.over} left {len(left)}'
    p.wait(lg='all')
    p.ins('s_barrier')
    for c in range(2): p.lg(f'ds_read_b64 {vr(kf(-1)+2*c,2)}, {vr(ea+3+c)}', ('pk', c))
    for c in range(2): p.lg(f'ds_read_b64 {vr(vd(c,-1),2)}, {vr(ea+5)} offset:{1024+8*c}', ('pv', c))
    Q = lambda m: accr(4, m)
    Sv = lambda m, h: accr(5 if h else 1, m)
    P_ = lambda m: accr(1, m)
    O_ = lambda m, c: accr(4 if c else 0, m)
    C = []
    mF = sC
    SCL = (32 ** -0.5) * LOG2E
    for m in (3, 2, 1, 0):
        C.append(cv(Q(m), Q(m)) + '\n' + cv(Q(m) + 2, accr(5, m)))
        if m < 3:
            for h in (1, 0): C.append(f'{MFMA} {vr(Sv(m+1,h),4)}, {vr(kf(m+h),4)}, {vr(Q(m+1),4)}, 0')
    C.append(f's_cmp_eq_u32 {sr(sm)}, 0\ns_cselect_b64 {sr(mF,2)}, {sr(mPa,2)}, 0\ns_cselect_b64 {sr(mF+2,2)}, {sr(mPb,2)}, 0')
    C.append(WT(p, lg=[('pk', 1)]))
    for h in (1, 0): C.append(f'{MFMA} {vr(Sv(0,h),4)}, {vr(kf(h-1),4)}, {vr(Q(0),4)}, 0')
    def vswap():
        p.ins(f's_cmp_eq_u32 {sr(swm)}, 0\ns_cbranch_scc1 F_sw')
        for i in range(8): p.ins(f'v_swap_b32 {vr(vd(0,0)+i)}, {vr(vd(1,0)+i)}')
        p.label('F_sw')
    C.append(vswap)
    C.append(f'v_mov_b32 {vr(vt)}, {f32(-1e9 * 32 ** 0.5)}\nv_mov_b32 {vr(vt+2)}, {f32(SCL)}')
    def al(f):
        for m in (3, 2, 1, 0): C.append(f(m, Wv + 4 * m))
    al(lambda m, w: '\n'.join(f'v_cndmask_b32 {vr(w+i)}, {vr(Sv(m,i>>1)+2*(i&1))}, {vr(Sv(m,i>>1)+2*(i&1)+1)}, {sr(mO,2)}' for i in (2, 3, 0, 1)))
    al(lambda m, w: f'v_cndmask_b32 {vr(w)}, {vr(w+2)}, {vr(w)}, {sr(mPa,2)}\nv_cndmask_b32 {vr(w+1)}, {vr(w+3)}, {vr(w+1)}, {sr(mPb,2)}')
    C.append(f'v_cndmask_b32 {vr(Wv)}, {vr(Wv)}, {vr(vt)}, {sr(mF,2)}\nv_cndmask_b32 {vr(Wv+1)}, {vr(Wv+1)}, {vr(vt)}, {sr(mF+2,2)}')
    def xred(op):
        al(lambda m, w: f'{op} {vr(w+2)}, {vr(w)}, {vr(w+1)}\n{op} {vr(w+3)}, {vr(w)}, {vr(w+1)}')
        al(lambda m, w: f'v_permlane16_swap_b32 {vr(w+2)}, {vr(w+3)}')
        al(lambda m, w: f'{op} {vr(w+2)}, {vr(w+2)}, {vr(w+3)}')
        al(lambda m, w: f'v_mov_b32 {vr(w+3)}, {vr(w+2)}')
        al(lambda m, w: f'v_permlane32_swap_b32 {vr(w+2)}, {vr(w+3)}')
        al(lambda m, w: f'{op} {vr(w+2)}, {vr(w+2)}, {vr(w+3)}')
    xred('v_max_f32')
    al(lambda m, w: f'v_mul_f32 {vr(w+2)}, {f32(-SCL)}, {vr(w+2)}')
    al(lambda m, w: f'v_pk_fma_f32 {vr(w,2)}, {vr(w,2)}, {vr(vt+2,2)}, {vr(w+2,2)} op_sel_hi:[1,0,0]')
    al(lambda m, w: f'v_exp_f32 {vr(w)}, {vr(w)}\nv_exp_f32 {vr(w+1)}, {vr(w+1)}')
    xred('v_add_f32')
    al(lambda m, w: f'v_rcp_f32 {vr(w+2)}, {vr(w+2)}')
    al(lambda m, w: f'v_pk_mul_f32 {vr(w,2)}, {vr(w,2)}, {vr(w+2,2)} op_sel_hi:[1,0]')
    al(lambda m, w: pk(w, w))
    def xd(m, q):
        if q == 0: p.ins(f's_add_u32 m0, {sr(sW4)}, {XL+2048*m}\n' + (f's_add_u32 {sr(s0)}, {sr(sro)}, 32768' if m else 's_nop 0'))
        p.vm(f'buffer_load_dwordx4 {vr(vro+q)}, {sr(sX,4)}, {sr(s0 if m else sro)} offen offset:{1024*q} lds', ('xd', m, q))
    wl = [(lambda pc=pc, i=i: wo_dma(pc, i, p.ins, now)) for pc in range(npl, 8) for i in range(4)] + [(lambda m=m, q=q: xd(m, q)) for m in range(2) for q in range(2)]
    nat, ndr = g1.get('nat', 8), g1.get('ndr', 8)
    assert not weave(p, C, wl[:nat], g1.get('astep', 10), g1.get('afirst', 0))
    p.wait(lg=[('pv', 1)])
    pv = lambda m: '\n'.join(f'{MFMA} {vr(O_(m,c),4)}, {vr(vd(c,m-1),4)}, {vr(P_(m),4)}, 0' for c in range(2))
    for m in (3, 2, 1, 0):
        for i in range(4): p.ins(f'v_perm_b32 {vr(P_(m)+i)}, {vr(Wv+4*m)}, {vr(Wv+4*m)}, {vr(vM+i)}')
        if m < 3: p.ins(pv(m + 1))
    p.ins('s_nop 0\n' + pv(0))
    for m in (3, 2, 1, 0):
        w = Wv + 4 * m
        for i in range(4): p.ins(pk(w + i, O_(m, i >> 1) + 2 * (i & 1)))
        p.vm(f'buffer_store_dwordx4 {vr(w,4)}, v0, {sr(sWS,4)}, {sr(soo+(m>>1))} offen offset:{1024*(m&1)} sc1', 'os')
    k.T('o:st')
    p.wait(vm=[('jw', 7)])
    JA = acc1 + 32
    assert not weave(p, gemv(None, JA, JA + 8), wl[nat:nat + ndr], g1.get('dstep', 12))
    k.publish('o', sfl, vt, vm=['os'])
    if stop == 1: return finish(k)
    for i in range(4): p.lg(f'ds_read_b32 {vr(JA+i)}, {vr(JA+8)} offset:{256*i}', 'jr')
    p.ins(f's_cmp_eq_u32 {sr(sw)}, 1\ns_cselect_b32 {sr(s1)}, {sr(sjo)}, {OOB}\n' + k.flag_off(sfl, FL_Y))
    p.wait(lg=['jr'])
    p.ins(f'v_add_f32 {vr(JA)}, {vr(JA)}, {vr(JA+1)}\nv_add_f32 {vr(JA+2)}, {vr(JA+2)}, {vr(JA+3)}\nv_add_f32 {vr(JA)}, {vr(JA)}, {vr(JA+2)}')
    p.vm(f'buffer_store_dword {vr(JA)}, {vr(jad+2)}, {sr(sWS,4)}, {sr(s1)} offen sc1')
    S.free(sjo)
    wl = wl[nat + ndr:]
    for r_, n_ in ((sm, 1), (swm, 1), (sK, 1), (sXc, 1), (sWL, 3), (sC, 4), (sjw, 1), (soo, 2), (so, 1), (mO, 2), (mPa, 2), (mPb, 2)): S.free(r_, n_)
    env = dict(locals())
    import k3b
    return k3b.rest(k, env)

def finish(k):
    p = k.p
    if TL:
        k.T('preend')
        p.ins('s_waitcnt vmcnt(0) lgkmcnt(0)')
        k.T('end')
        p.ins(f's_load_dwordx2 s[96:97], s[0:1], 88\nv_lshrrev_b32 v1, 2, v0\ns_lshl_b32 s98, s2, 12\ns_lshl_b32 s99, {sr(sw)}, 9\ns_add_u32 s98, s98, s99\ns_add_u32 s98, s98, {WS_STAMP}\nv_add_u32 v1, s98, v1\ns_waitcnt lgkmcnt(0)')
        p.ins('global_store_dword v1, a254, s[96:97]\nglobal_store_dword v1, a255, s[96:97] offset:256')
        if k.cfg.get('diag'):
            a_, b_ = (k.tn.index(x) for x in k.cfg['diag'])
            p.ins(f'v_accvgpr_read_b32 v2, a254\ns_nop 1\nv_readlane_b32 s90, v2, {a_}\nv_readlane_b32 s91, v2, {b_}\nv_readlane_b32 s88, v2, 0\ns_nop 3\ns_sub_u32 s90, s91, s90\ns_min_u32 s90, s90, 8000\ns_lshl_b32 s90, s90, 1\ns_add_u32 s90, s90, 7500')
            p.label('DGL')
            p.ins('s_memrealtime s[96:97]\ns_waitcnt lgkmcnt(0)\ns_sub_u32 s96, s96, s88\ns_cmp_lt_u32 s96, s90\ns_cbranch_scc1 DGL')
    p.label('XEND')
    p.ins('s_endpgm')
    t0 = k.text
    k.text = lambda: t0() + ''.join(k.cold)
    return k
```

```python
from k3 import *
import k3

def rest(k, env):
    p, cfg = k.p, k.cfg
    stop = cfg.get('stop', 9)
    TL = k3.TL
    g = lambda n: env[n]
    S, vl, vt, s0, s1, sfl, spc, now = g('S'), g('vl'), g('vt'), g('s0'), g('s1'), g('sfl'), g('spc'), g('now')
    sm2, sn2, sorg, sro, sW4, sy, sst, sax = g('sm2'), g('sn2'), g('sorg'), g('sro'), g('sW4'), g('sy'), g('sst'), g('sax')
    wa2, vxa, va2, vgo, vpo = g('wa2'), g('vxa'), g('va2'), g('vgo'), g('vpo')
    sm3, sn3, sT3, sWL3, sAb, wa3, vd3, SB3, ldw = g('sm3'), g('sn3'), g('sT3'), g('sWL3'), g('sAb'), g('wa3'), g('vd3'), g('SB3'), g('ldw')
    g1, g2, g3, g4 = cfg['g1'], cfg['g2'], cfg['g3'], cfg['g4']
    ST1, GBA = A(232), A(248)

    V = Regs('v', 20, g('vw2'))
    acc = V.alloc('acc', 32, 4); vf = V.alloc('f', 32, 4); vg = V.alloc('g', 16, 4); vc = V.alloc('c', 16, 4); vx = V.alloc('x', 16, 4)
    vy = V.alloc('y', 24, 4); gp = V.alloc('gp', 16, 4)
    sA2 = S.alloc(); sy1 = S.alloc()
    u = vt
    sc = Sched(p, g2.get('cap', 2))
    LG2 = g2.get('lag', 8)
    DAS, R, AL2 = g2.get('DAS', LG2 + 3), g2.get('R', 14), g2.get('AL', 4)
    assert 16 * DAS + 4 * R <= 232
    def wrd(s, t, j, h):
        st, off = divmod(WOP[s // 2] * 16384 + (2 * (s % 2) + j) * 4096 + h * 2048, 65536)
        return wa2 + 4 * st + t, off
    accr = lambda t, m: acc + (t * 2 + m) * 4
    co = Core(p, sc, 16, 2, A(16 * DAS), R, g2.get('lead', 16), A(0), DAS, accr, wrd, ard=False, name='g2')
    co.build([(s, t) for s in range(16) for t in range(4 if s < 16 - LG2 else 2)] + [(s, t) for s in range(16 - LG2, 16) for t in (2, 3)], wg=g2.get('wg', 1), fine0=True)
    P1 = 256 - 8 * LG2
    co.barriers(None, have=range(16))
    NP = 2 * R - g2.get('rlate', 0)
    assert NP // 32 < g('npl') + g('nat') // 4
    co.rtime = lambda n: -1 if n < 2 * R else int((n - 2 * R) * 236 / (256 - 2 * R))
    co.wreads()
    for f in g('wl'): f()
    for _ in range(NP): co.rq.pop(0)[2]()
    hs = cfg.get('hsplit')
    if hs: k.hop('c', 'G3S', 'G3M', (1, 2, 3))
    k.poll('o', vpo + 2, FL_H, u + 1, spc, pre=lambda: p.wait(vm=[('xd', 1, 1)]))
    a0 = g2.get('a0', 2); last = -2
    for s in range(16):
        for i in (0, 2, 1, 3) if s == 0 else range(4):
            j, m = divmod(i, 2)
            if s < a0: e, d = -1, 0
            else:
                e = last = max(last + g2.get('asp', 2), co.alast[(s - DAS, j, m)] if s >= DAS else 0, co.sfirst[s - AL2] + (co.sfirst[s - AL2 + 1] - co.sfirst[s - AL2]) * i // 4 + 1 if s >= AL2 else 0); d = co.await_[(s, j, m)]
            if i == 0 and s: sc.add('v', e - 1, d, f's_mov_b32 {sr(sA2)}, {4096*s}')
            sc.add('v', e, d, VM(p, f'buffer_load_dwordx4 {vr(co.abf(s,j,m),4)}, {vr(va2)}, {sr(sWS,4)}, {sr(sA2) if s else 0} offen offset:{1024*i} sc1', co.atag(s, j, m)))
    co.flush_reads()
    for m in range(2):
        for t in range(4): sc.add('x', -1, 0, LG(p, f'ds_read_b64 {vr(vx+8*m+2*t,2)}, {vr(vxa+t)} offset:{2048*m}', 'xl'))
    sc.add('x', -1, 0, f'v_lshrrev_b32 {vr(u+1)}, 4, {vr(vl)}\nv_cmp_eq_u32 vcc, 2, {vr(u+1)}\ns_add_u32 {sr(sy1)}, {sr(sy)}, 65536\nv_mov_b32 {vr(u)}, {sr(sTok)}\nv_cndmask_b32 {vr(u+1)}, 0, 1.0, vcc')
    sc.add('x', -1, 0, WT(p, lg=['xl']))
    for i in range(16): sc.add('x', -1, 0, unpack(vf + 2 * i, vx + i))
    pos = [g2.get('jf', 12)]
    def F(t_, d=INF): return sc.add('x', pos[0], d, t_)
    ld = [(f's_mov_b32 {sr(s1)}, {24576*q}', f'buffer_load_dwordx4 {vr(gp+4*q,4)}, {vr(vpo+1)}, {sr(sWS,4)}, {sr(s1)} offen sc1') for q in range(4)]
    for a_, b_ in ld: F(a_); F(VM(p, b_, 'gp'))
    pos[0] += g2.get('jl', 76)
    F(WT(p, vm=['gp']))
    tst = f'v_max_u32 {vr(u+3)}, {vr(gp)}, {vr(gp+1)}\n' + '\n'.join(f'v_max3_u32 {vr(u+3)}, {vr(u+3)}, {vr(gp+i)}, {vr(gp+i+1)}' for i in range(2, 16, 2))
    F(tst)
    o = F(lambda: k.dcheck('jf', '\n'.join(a_ + '\n' + b_ for a_, b_ in ld), tst, u + 3, spc), d=pos[0] + 20); o.cost = 4; o.wscc = True; o.kind = 'V'
    for i in range(8): F(f'v_add_f32 {vr(gp+i)}, {vr(gp+i)}, {vr(gp+8+i)}')
    for i in range(4): F(f'v_add_f32 {vr(gp+i)}, {vr(gp+i)}, {vr(gp+4+i)}')
    F(rb2(gp, gp + 4) + '\n' + rb2(gp + 2, gp + 5))
    for i in range(4): F(f'v_add_f32 {vr(gp+i)}, {vr(u+1)}, {vr(gp+i)}')
    F(rb2(gp, gp + 4) + '\n' + rb2(gp + 2, gp + 5))
    F(LG(p, f'ds_write_b128 {vr(vgo+2)}, {vr(gp,4)}'))
    for t in range(4):
        F(LG(p, f'ds_read_b128 {vr(vg+4*t,4)}, {vr(vgo)} offset:{64*t}'))
        F(LG(p, f'ds_read_b128 {vr(vc+4*t,4)}, {vr(vgo)} offset:{512+64*t}', 'vv'), d=P1 - 8)
    for t in range(4): F(LG(p, f'ds_read_b128 {vr(vx+4*t,4)}, {vr(vgo+1)} offset:{512+64*t}', 'ax'))
    for i in range(4): F(f'v_accvgpr_write_b32 {vr(GBA+i)}, {vr(gp+i)}')
    oax = sc.streams['x'][-5]
    sc.add('x', pos[0], INF, WT(p, lg=['ax']), after=oax).gap = 10
    for i in range(8): F(pk(vy + 16 + i, vx + 2 * i))
    pos[0] = P1 + 8
    for q in range(2):
        if q: F(f's_add_u32 {sr(sax)}, {sr(sax)}, 16384')
        F(VM(p, f'buffer_store_dwordx4 {vr(vy+16+4*q,4)}, v0, {sr(sWS,4)}, {sr(sax)} offen sc1'))
    sxo = S.alloc(4); so = S.alloc(3); sx = S.alloc(3); sK = S.alloc(); sAc = S.alloc(); sC = S.alloc(); sk4 = S.alloc()
    NS, AUX = 4, g3.get('aux', (6, 9))
    cx = lambda d, s: f's_bfe_u32 {sr(d)}, {sr(sT3 + s // 8)}, {hex(0x40000 + 4 * (s % 8))}'
    def dma3(s, i, E, EV):
        if i == 0: E(f's_bfe_u32 {sr(sK)}, {sr(sT3 + s // 8)}, {hex(0x30000 + 4 * (s % 8))}\ns_lshl_b32 {sr(sK)}, {sr(sK)}, 2\ns_bitcmp1_b32 {sr(sT3 + s // 8)}, {4 * (s % 8) + 3}\ns_addc_u32 {sr(sK)}, {sr(sK)}, 0\ns_mul_i32 {sr(sK)}, {sr(sK)}, {32*ldw}')
        if i % 4 == 0: E(f's_add_u32 m0, {sr(sWL3)}, {((s + 3) % 4) * SB3 + 1024 * i}')
        EV(VM(p, f'buffer_load_dwordx4 {vr(vd3+i)}, {sr(sWG,4)}, {sr(sK)} offen offset:{1024*(i%4)} lds', ('D3', s, i)), i % 4 == 0)
    def yhalf(tp):
        C = []
        for m in (1, 0):
            fm = vf + 16 * m; ym = vy + 8 * m
            for t in (tp, tp + 1):
                for e in (0, 2): C.append(f'v_pk_fma_f32 {vr(fm+4*t+e,2)}, {vr(vg+4*t+e,2)}, {vr(accr(t,m)+e,2)}, {vr(fm+4*t+e,2)}')
            for t in (tp, tp + 1):
                for e in (0, 2): C.append(f'v_pk_mul_f32 {vr(accr(t,m)+e,2)}, {vr(fm+4*t+e,2)}, {vr(vc+4*t+e,2)}')
            for t in (tp, tp + 1): C.append(pk(ym + 2 * t, accr(t, m)) + '\n' + pk(ym + 2 * t + 1, accr(t, m) + 2))
            C.append(VM(p, f'buffer_store_dwordx4 {vr(ym+2*tp,4)}, v0, {sr(sWS,4)}, {sr(sy1 if tp else sy)} offen offset:{1024*m} sc1', ('yh', tp)))
        return C
    def first_half():
        k.T('y:p1')
        p.wait(lg=['vv'])
        p.ins('s_nop 3')
        weave(p, yhalf(0), [], 1)
    sc.before(P1 + 1, first_half, 2)
    yb = min(P1 + g2.get('ydr', 40), 254)
    co.addbar(yb, vm=[('yh', 0)])
    o = sc.add('f', yb, yb + 2, lambda: (k.flag_store(sfl, u), k.T('y:pub'))); o.cost = 3
    sc.add('f', yb, INF, f's_add_u32 {sr(sfl)}, {sr(sfl)}, {FL_JOB - FL_Y}')
    assert LG2 <= 8
    d3l = [(s, i) for s in range(g3.get('npre', 2)) for i in range(7)]
    e = yb + 2
    if g2.get('d0e') is not None:
        co.addbar(co.sfirst[5] + 2); e = P1 + g2['d0e']
    for _ in range(g2.get('nin', 7)):
        dma3(*d3l.pop(0), lambda t_: sc.add('v', e - 5, INF, t_), lambda f, sep: sc.add('v', e, INF, f, sep=sep)); e += g2.get('d3step', 3)
    d3l = [(lambda s=s, i=i: dma3(s, i, p.ins, now)) for s, i in d3l]
    sc.bias = dict(x=g2.get('bias', 0))
    sc.capf = lambda i: 4 if g2.get('c3', 110) <= i < P1 else 2
    if TL:
        for s in g2.get('marks', (1, 4, 10)): sc.before(co.sfirst[s] + 1, lambda s=s: k.T(f'g2:s{s}'), 0)
    left = sc.run()
    k.T('g2:loopend')
    k.info += f' | g2 over {sc.over} left {len(left)}'
    for st_, o in left: now(o.fn, o.sep)
    p.ins(cx(sAc, 0) + f'\ns_lshl_b32 {sr(sAc)}, {sr(sAc)}, 13\ns_add_u32 {sr(sAc)}, {sr(sAc)}, {sr(sAb)}\ns_nop 0')
    Y2 = yhalf(2)
    npo = g2.get('npo', 7)
    for f in weave(p, [c for c in Y2 if isinstance(c, str)], d3l[:npo], 4): f()
    d3l = d3l[npo:]
    def g2_rest(acc=acc, vf=vf, vx=vx):
        for c in Y2:
            if not isinstance(c, str): c()
        q_ = acc + 8
        for i in range(0, 16, 2):
            for m in range(2):
                r = vf + 16 * m + i
                if i == 0: p.ins(f'v_pk_mul_f32 {vr(q_+4*m+2,2)}, {vr(r,2)}, {vr(r,2)}')
                else: p.ins(f'v_pk_fma_f32 {vr(q_+4*m+2,2)}, {vr(r,2)}, {vr(r,2)}, {vr(q_+4*m+2,2)}\nv_pk_add_f32 {vr(q_+4*m,2)}, {vr(r,2)}, {vr(r-2 if i == 2 else q_+4*m,2)}')
        for i in range(4): p.ins(f'v_add_f32 {vr(acc+i)}, {vr(q_+2*i)}, {vr(q_+2*i+1)}')
        for st in (16, 32):
            for i in range(4): p.ins(f'v_mov_b32 {vr(acc+4+i)}, {vr(acc+i)}')
            for i in range(4): p.ins(f'v_permlane{st}_swap_b32 {vr(acc+i)}, {vr(acc+4+i)}')
            for i in (0, 2): p.ins(f'v_pk_add_f32 {vr(acc+i,2)}, {vr(acc+i,2)}, {vr(acc+4+i,2)}')
        p.ins('s_mov_b64 exec, 0xffff')
        p.vm(f'buffer_store_dwordx4 {vr(acc,4)}, v0, {sr(sWS,4)}, {sr(sst)} offen sc1', 'ys')
        p.ins('s_mov_b64 exec, -1')
        for f in weave(p, [pk(vx + i, vf + 2 * i) for i in range(16)] + [f'v_accvgpr_write_b32 {vr(ST1+i)}, {vr(vx+i)}' for i in range(16)], d3l, 4, -4): f()
        p.ins(f'v_and_b32 v30, 0x7fff, {vr(vpo+3)}')
        for r_ in (sA2, sy1, sy, sst, sax): S.free(r_)

    nst, FS = 16, 3
    DAS, R = 4, g3.get('R', 12)
    abuf, wbuf = A(0), A(128); xw = A(176); xb = A(208); xacc = A(216)
    assert 128 + 4 * R <= 176
    UTL = 159744
    acc = 32; vs = 10; tm = 22
    accr = lambda t, m: acc + (t * 4 + m) * 4
    sc = Sched(p, 2)
    def wrd(s, t, j, h):
        st, sl = divmod((s + 3) % 4, 2)
        return wa3 + st, sl * SB3 + (t // 7) * 14336 + (32 * j + 16 * h) * 224 + (t % 7) * 32
    co = Core(p, sc, NS, 4, wbuf, R, g3.get('lead', 32), abuf, DAS, accr, wrd, ard=False, name='g3')
    order = [6, 0, 1, 2, 3, 4, 5]
    j0 = g3.get('j0', 0)
    groups = [([(0, 0)], t) for t in range(j0)] + [([(0, 1)], t) for t in range(j0)] + [(s, t) for s in range(nst - FS) for t in range(14)][j0:] + [(s, t + 7 * sg) for t in order for s in range(nst - FS, nst) for sg in range(2)]
    xpos = {}
    def auxm(n):
        def f(pos):
            xpos[n] = pos
            for i in range(4):
                for j in range(2):
                    c = xacc + 4 * i
                    sc.mf.append(f'{MFMA} {vr(c,4)}, {vr(xw+8*i+4*j,4)}, {vr(xb+4*j,4)}, {vr(c,4) if (n or j) else 0}')
            sc.before(pos, lambda: p.wait(vm=[('xb', n, 1)], lg=[('xw', n)]))
        return f
    ipos = {}
    BI, WI = A(0), A(16)
    def injm(oi):
        def f(pos):
            ipos[oi] = pos
            for sg in range(2):
                for m in range(4):
                    c = accr(order[oi] + 7 * sg, m)
                    sc.mf.append(f'{MFMA} {vr(c,4)}, {vr(WI+8*(oi&1)+4*sg,4)}, {vr(BI+4*m,4)}, {vr(c,4)}')
            sc.before(pos, WT(p, lg=[('wi', oi)]))
        return f
    ins = {j0 + 14 * s + (4, 2)[n]: auxm(n) for n, s in enumerate(AUX)}
    ins.update({j0 + 14 * (nst - FS) + 2 * FS * oi + (4 if oi == 0 else 1): injm(oi) for oi in range(7)})
    co.build(groups, wg=g3.get('wg', 2), ins=ins, fine0=True)
    early = range(g3.get('early', 13), nst - FS + 1)
    co.barriers(lambda s: [('D3', s, 6)], have=[0, nst - 1] + list(early))
    co.bar[nst - 1] = co.sfirst[nst - FS] + 2
    for o in range(g3.get('bar0', 1), nst - FS + 1):
        co.addbar(co.sfirst[o] + 2, vm=[('D3', o + 1, 6)] if o + 1 in early else [('D3', nst - 1, 6)] if o == nst - FS else None)
        if o + 1 in early: co.bar[o + 1] = co.sfirst[o] + 2
    z = co.sfirst[nst - FS]
    def al3(s, i, E, EV):
        j, m = divmod(i, 4)
        if i == 0: E(cx(sAc, s) + f'\ns_lshl_b32 {sr(sAc)}, {sr(sAc)}, 13\ns_add_u32 {sr(sAc)}, {sr(sAc)}, {sr(sAb)}')
        if i == 4: E(f's_add_u32 {sr(sAc)}, {sr(sAc)}, 4096')
        EV(VM(p, f'buffer_load_dwordx4 {vr(co.abf(s,j,m),4)}, v0, {sr(sWS,4)}, {sr(sAc)} offen offset:{1024*m} sc1', co.atag(s, j, m)), False)
    npre = g3.get('npre', 2)
    p.ins(f's_lshl2_add_u32 {sr(s0)}, s2, {sr(sw)}\ns_cmp_eq_u32 {sr(s0)}, 1\ns_cbranch_scc1 CKSs')
    p.label('CKSx')
    sd_ = (f'CKSs:\ns_mov_b32 {sr(spc)}, 30000\nv_lshlrev_b32 {vr(u+2)}, 3, v0\nCKS:\n' + ''.join(f's_mov_b32 {sr(s0)}, {FL_H+8192*i}\nbuffer_load_dword {vr(u+4+i)}, {vr(u+2)}, {sr(sWS,4)}, {sr(s0)} offen sc1\n' for i in range(4))
           + f's_sub_u32 {sr(spc)}, {sr(spc)}, 1\ns_cmp_eq_u32 {sr(spc)}, 0\ns_waitcnt vmcnt(0)\ns_cbranch_scc1 CKSy\nv_xor_b32 {vr(u+3)}, {sr(sTok)}, {vr(u+4)}\n'
           + ''.join(f'v_bitop3_b32 {vr(u+3)}, {vr(u+3)}, {vr(u+4+i)}, {sr(sTok)} bitop3:0xf6\n' for i in range(1, 4))
           + f'v_cmp_ne_u32 vcc, 0, {vr(u+3)}\ns_nop 4\ns_cbranch_vccnz CKS\nCKSy:\ns_mov_b32 {sr(s0)}, {WS_SEED}\ns_mov_b64 exec, 1\nbuffer_store_dword {vr(u)}, v0, {sr(sWS,4)}, {sr(s0)} offen sc1\ns_mov_b64 exec, -1\ns_branch CKSx')
    k.cold.append('\n'.join(l if l.endswith(':') else '  ' + l for l in sd_.split('\n')) + '\n')
    if hs != 99: k.hop('b', 'G3M' if hs else 'G3S', 'NONE', (1, 2, 3))
    p.label('G3S')
    k.poll('y', vpo + 3, FL_H, u + 1, spc, pre=lambda: p.wait(vm=[('D3', 0, 6)]))
    for i in range(8): al3(0, i, p.ins if i else (lambda t_: None), now)
    g2_rest()
    f2 = g3.get('f2', 34)
    co.addbar(f2, vm=['ys'])
    o = sc.add('f', f2, f2 + 3, lambda u=u: k.flag_store(sfl, u)); o.cost = 3
    ev = []
    at = lambda x: co.sfirst[min(int(x), nst - FS)] + int((x % 1) * 112) if x >= 0 else 0
    c0, c1 = g3.get('catch', (6, 11))
    def warp(x, lag):
        return x + lag * min(1.0, max(0.0, (c1 - x) / (c1 - c0)))
    for s in range(1, nst):
        w = 1.0 if s < nst - 1 else g3.get('wl', 0.62)
        if s == nst - 1:
            ev += [(co.slotfree(s) + 2 + 5 * i, 'D', s, i, co.bar[s]) for i in range(7)]
            ev += [(co.slotfree(s) + 38 + 6 * i, 'A', s, i, co.await_[(s,) + divmod(i, 4)]) for i in range(8)]
            continue
        if s >= npre:
            ev += [(max(co.slotfree(s) + 1 + i, at(warp(s - 3 + w * (i + 0.55) / 7.5, g3.get('dlag', 0.6)))), 'D', s, i, co.bar[s]) for i in range(7)]
        ev += [(at(warp(s - 3 + w * (i + 0.05) / 7.5, g3.get('alag', 1.2))), 'A', s, i, co.await_[(s,) + divmod(i, 4)]) for i in range(8)]
    ev.sort(key=lambda x: (x[0], x[4]))
    for kind in 'AD':
        L = [x[2:4] for x in ev if x[1] == kind]
        assert L == sorted(L), (kind, L)
    s2nd = min(s for T in g3_orders(AUX, g3.get('leads')) for s in range(16) if T[s] >= 8)
    e2 = [x[0] for x in ev if x[1:4] == ('A', s2nd, 0)][0] - 6
    sc.add('c', 10, INF, f's_mov_b32 {sr(sk4)}, {FL_JOB}')
    sc.add('c', e2 - 70, e2 - 60, VM(p, f'buffer_load_dword v29, v30, {sr(sWS,4)}, {sr(sk4)} offen sc1', 'zf'))
    oz = sc.add('c', e2, e2 + 3, lambda: k.check(30, sk4, 29, spc, 'zf')); oz.cost = 4; oz.wscc = True
    assert e2 < xpos[0] - 160
    for e, kind, s, i, d in ev:
        (dma3 if kind == 'D' else al3)(s, i, lambda t_: sc.add('v', max(e - 4, 0), d, t_, after=oz if (kind, s, i) == ('A', s2nd, 0) else None), lambda f, sep: sc.add('v', e, d, f, sep=sep))
    lastv = ev[-1][0]
    co.wreads(); co.flush_reads()
    pos = [40]
    def F(t_, d=INF): return sc.add('x', pos[0], d, t_)
    def U(t_, d=INF): return sc.add('u', pos[0], d, t_)
    vxa_ = tm + 9
    F(f's_lshr_b32 {sr(sx)}, {sr(sw)}, 1\ns_mul_i32 {sr(sx)}, {sr(sx)}, 14336\ns_and_b32 {sr(sx+1)}, {sr(sw)}, 1\ns_lshl_b32 {sr(sx+1)}, {sr(sx+1)}, 7\ns_add_u32 {sr(sx)}, {sr(sx)}, {sr(sx+1)}\nv_add_u32 {vr(vxa_)}, {sr(sx)}, {vr(wa3)}', d=200)
    U(cx(sC, AUX[0]) + f'\ns_lshl4_add_u32 {sr(sC)}, {sr(sm3)}, {sr(sC)}\ns_lshl_b32 {sr(sC)}, {sr(sC)}, 11\ns_add_u32 {sr(sC)}, {sr(sC)}, {WS_AUX}')
    def auxl(n):
        s = AUX[n]
        pos[0] = xpos[n] - 150
        dlt = ((s + 3) % 4 - ((AUX[0] + 3) % 4 if n else 0)) * SB3
        if dlt: F(f'v_add_u32 {vr(vxa_)}, {dlt}, {vr(vxa_)}')
        if n: U(f's_add_u32 {sr(sC)}, {sr(sC)}, 16384')
        for j in range(2): U(VM(p, f'buffer_load_dwordx4 {vr(xb+4*j,4)}, v0, {sr(sWS,4)}, {sr(sC)} offen offset:{1024*j} sc1', ('xb', n, j)), d=xpos[n] - 90)
        pos[0] = max(co.bar[s], xpos[n] - 60)
        for i in range(4):
            for j in range(2):
                for h in range(2):
                    off = (32 * j + 16 * h) * 224 + 32 * i
                    F(LG(p, f'ds_read_b64_tr_b16 {vr(xw+8*i+4*j+2*h,2)}, {vr(vxa_)} offset:{off}', ('xw', n)), d=xpos[n] - 8); pos[0] += 2
    F(f's_lshl_b32 {sr(sxo)}, s2, 15\ns_lshl1_add_u32 {sr(sxo)}, {sr(sW4)}, {sr(sxo)}\ns_xor_b32 {sr(sxo+2)}, {sr(sxo)}, 32768\ns_add_u32 {sr(sxo)}, {sr(sxo)}, {WS_XC}\ns_add_u32 {sr(sxo+1)}, {sr(sxo)}, 4096\ns_add_u32 {sr(sxo+2)}, {sr(sxo+2)}, {WS_XC}\ns_add_u32 {sr(sxo+3)}, {sr(sxo+2)}, 4096')
    auxl(0)
    pos[0] = xpos[0] + 10
    osx = F(f's_lshl2_add_u32 {sr(sx)}, {sr(sm3)}, {sr(sw)}\ns_lshl_b32 {sr(sx)}, {sr(sx)}, 13\ns_add_u32 {sr(sx)}, {sr(sx)}, {WS_ST}\ns_add_u32 {sr(sx+1)}, {sr(sx)}, 4096')
    for h in range(2):
        for q in range(4):
            F(VM(p, f'buffer_load_dwordx4 {vr(xw+16*h+4*q,4)}, v0, {sr(sWS,4)}, {sr(sx+h)} offen offset:{1024*q} sc1', 'st'), d=pos[0] + 30); pos[0] += 9
    pos[0] += 70
    F(WT(p, vm=['st']))
    for m in range(4):
        b = tm + 2 * (m & 1); o = vs + 3 * m
        if m % 2 == 0:
            for i in range(4): F(f'v_accvgpr_read_b32 {vr(tm+i)}, {vr(xw+8*m+i)}')
            for q in range(1, 4):
                for i in range(4): F(f'v_accvgpr_read_b32 {vr(tm+4+i)}, {vr(xw+8*m+4*q+i)}')
                for i in range(4): F(f'v_add_f32 {vr(tm+i)}, {vr(tm+i)}, {vr(tm+4+i)}')
            for st in (16, 32):
                for i in range(4): F(f'v_mov_b32 {vr(tm+4+i)}, {vr(tm+i)}')
                for i in range(4): F(f'v_permlane{st}_swap_b32 {vr(tm+i)}, {vr(tm+4+i)}')
                for i in range(4): F(f'v_add_f32 {vr(tm+i)}, {vr(tm+i)}, {vr(tm+4+i)}')
        F(f'v_mul_f32 {vr(b)}, {f32(1/1024)}, {vr(b)}\nv_mul_f32 {vr(b+1)}, {f32(1/1024)}, {vr(b+1)}\nv_fma_f32 {vr(b+1)}, -{vr(b)}, {vr(b)}, {vr(b+1)}\nv_max_f32 {vr(b+1)}, 0, {vr(b+1)}\n' + rb(b + 1))
        F(f'v_add_f32 {vr(b+1)}, {f32(1e-5)}, {vr(b+1)}\n' + rb(b + 1) + f'\nv_sqrt_f32 {vr(b+1)}, {vr(b+1)}\ns_nop 0\nv_cvt_pk_bf16_f32 {vr(o+2)}, -{vr(b)}, {vr(b+1)}\nv_and_b32 {vr(b+1)}, 0xffff0000, {vr(o+2)}')
        F(f'v_rcp_f32 {vr(o)}, {vr(b+1)}\nv_mul_f32 {vr(o+1)}, {vr(b+1)}, {vr(b+1)}\nv_mul_f32 {vr(o)}, {f32(-LOG2E)}, {vr(o)}')
    auxl(1)
    b = tm
    F(f'v_lshrrev_b32 {vr(b)}, 4, v0\nv_and_b32 {vr(b+1)}, 14, {vr(b)}\nv_lshlrev_b32 {vr(b+1)}, 27, {vr(b+1)}\nv_and_b32 {vr(b+2)}, 1, {vr(b)}\nv_lshl_add_u32 {vr(b+1)}, {vr(b+2)}, 9, {vr(b+1)}\nv_and_b32 {vr(b)}, 0x30, {vr(b)}\nv_add_u32 {vr(b)}, {vr(b)}, {vr(b+1)}')
    F(f's_lshl3_add_u32 {sr(sx)}, {sr(sn3)}, {sr(sm3)}\ns_lshr_b32 {sr(sx+1)}, {sr(sw)}, 1\ns_lshl1_add_u32 {sr(sx)}, {sr(sx)}, {sr(sx+1)}\ns_and_b32 {sr(sx+1)}, {sr(sw)}, 1\ns_lshl2_add_u32 {sr(sx)}, {sr(sx)}, {sr(sx+1)}\ns_lshl_b32 {sr(sx)}, {sr(sx)}, 8\ns_add_u32 {sr(sx)}, {sr(sx)}, {WS_UT}')
    pos[0] = xpos[1] + 8 + 8
    for i in range(4): F(VM(p, f'buffer_store_dwordx4 {vr(xacc+4*i,4)}, {vr(b)}, {sr(sWS,4)}, {sr(sx)} offen offset:{64*i} sc1', 'us'), d=pos[0] + 12 + 4 * i)
    ub = pos[0] + 30
    F(f's_lshl_b32 {sr(sx+1)}, {sr(sn3)}, 14\ns_lshl_b32 {sr(sx+2)}, {sr(sw)}, 9\ns_add_u32 {sr(sx+1)}, {sr(sx+1)}, {sr(sx+2)}\ns_add_u32 {sr(sx+1)}, {sr(sx+1)}, {WS_UT}')
    F(f's_lshr_b32 {sr(sx+2)}, {sr(sw)}, 1\ns_lshl_b32 {sr(sx+2)}, {sr(sx+2)}, 8\ns_and_b32 {sr(so)}, {sr(sw)}, 1\ns_add_u32 {sr(sx+2)}, {sr(sx+2)}, {sr(so)}\ns_lshl3_add_u32 {sr(sx+2)}, {sr(sx+2)}, {UTL}')
    F(f'v_and_b32 {vr(b+2)}, 0x1f0, v0\nv_min_u32 {vr(b+2)}, {27*16}, {vr(b+2)}\nv_and_b32 {vr(b+4)}, 0x200, v0\nv_lshl_add_u32 {vr(b+3)}, {vr(b+4)}, 4, {vr(b+2)}\nv_lshrrev_b32 {vr(b+4)}, 4, {vr(b+4)}\nv_lshl_add_u32 {vr(b+2)}, {vr(b+2)}, 2, {vr(b+4)}\nv_add_u32 {vr(b+2)}, {sr(sx+2)}, {vr(b+2)}')
    F(f's_lshl2_add_u32 {sr(so)}, {sr(sm3)}, {sr(sw)}\ns_lshl_b32 {sr(so)}, {sr(so)}, 19\ns_mul_i32 {sr(so+1)}, {sr(sn3)}, 7\ns_and_b32 {sr(sx+2)}, {sr(sn3)}, 1\ns_add_u32 {sr(so+1)}, {sr(so+1)}, {sr(sx+2)}\ns_lshl_b32 {sr(so+1)}, {sr(so+1)}, 10\ns_add_u32 {sr(so)}, {sr(so)}, {sr(so+1)}\ns_add_u32 {sr(so+2)}, {sr(so)}, {WS_ACT}')
    F(f's_mul_i32 {sr(sx+2)}, {sr(sx+2)}, {8192-512}\ns_sub_u32 {sr(so)}, {sr(so+2)}, {sr(sx+2)}\ns_add_u32 {sr(so)}, {sr(so)}, 6144\ns_add_u32 {sr(so+1)}, {sr(so)}, 262144')
    F(k.flag_off(sfl, FL_UT))
    F(f's_add_u32 {sr(sx)}, {sr(sx+1)}, 4096')
    pos[0] = ub + g3.get('uwait', 200)
    ld = [f'buffer_load_dwordx4 {vr(xb+4*q,4)}, {vr(b+3)}, {sr(sWS,4)}, {sr(sx if q >= 2 else sx+1)} offen offset:{2048*(q&1)} sc1' for q in range(4)]
    for q in range(4): F(VM(p, ld[q], 'up'), d=pos[0] + 8 + 5 * q)
    pos[0] += 95
    F(WT(p, vm=['up']))
    c4 = b + 4; mx = b + 9
    tst = [f'v_accvgpr_read_b32 {vr(c4+i)}, {vr(xb+i)}' for i in range(4)]
    tst += [f'v_max_u32 {vr(mx)}, {vr(c4)}, {vr(c4+1)}', f'v_max3_u32 {vr(mx)}, {vr(mx)}, {vr(c4+2)}, {vr(c4+3)}']
    for q in range(1, 4):
        for h in range(2):
            tst += [f'v_accvgpr_read_b32 {vr(b+i)}, {vr(xb+4*q+2*h+i)}' for i in range(2)]
            tst += [f'v_max3_u32 {vr(mx)}, {vr(mx)}, {vr(b)}, {vr(b+1)}'] + [f'v_add_f32 {vr(c4+2*h+i)}, {vr(c4+2*h+i)}, {vr(b+i)}' for i in range(2)]
    tst = '\n'.join(tst)
    F(tst)
    o = F(lambda: k.dcheck('uf', '\n'.join(ld), tst, mx, spc)); o.cost = 4; o.wscc = True; o.kind = 'V'
    F(f's_nop 0\nv_permlane32_swap_b32 {vr(c4)}, {vr(c4+2)}\nv_permlane32_swap_b32 {vr(c4+1)}, {vr(c4+3)}\nv_add_f32 {vr(c4)}, {vr(c4)}, {vr(c4+2)}\nv_add_f32 {vr(c4+1)}, {vr(c4+1)}, {vr(c4+3)}')
    tb = z + 2
    for i in range(2):
        x_, h_, d_ = c4 + i, b + 3, (b, c4 + 2)[i]
        F(rb(h_, x_) + f'\nv_sub_f32 {vr(b+8)}, {vr(x_)}, {vr(h_)}\nv_cvt_pk_bf16_f32 {vr(d_)}, {vr(x_)}, {vr(b+8)}\nv_and_b32 {vr(h_)}, 0xffff0000, {vr(d_)}\nv_sub_f32 {vr(b+8)}, {vr(b+8)}, {vr(h_)}\nv_cvt_pk_bf16_f32 {vr(d_+1)}, {vr(b+8)}, 0')
        F(LG(p, f'ds_write_b64 {vr(b+2)}, {vr(d_,2)} offset:{16*i}', 'utw'), d=tb - 10)
    pos[0] = tb - 3
    F(WT(p, lg=['utw']), d=tb)
    sc.add('z', lastv, INF, f's_lshl_b32 {sr(sk4)}, {sr(sw)}, 8\ns_add_u32 {sr(sk4)}, {sr(sk4)}, s2\ns_mul_i32 {sr(sk4)}, {sr(sk4)}, 7168')
    sc.add('z', z + 3, INF, f'v_min_u32 {vr(vd3)}, {55*16}, v0\nv_lshlrev_b32 {vr(vd3)}, 3, {vr(vd3)}')
    if not g3.get('nowd'): sc.add('z', z + 3, z + 20, VM(p, f'buffer_load_dword a252, {vr(vd3)}, {sr(sWD,4)}, {sr(sk4)} offen'))
    if g3.get('wd3', 0):
        e = z + g3.get('wd3', 0)
        sc.add('z', z + 22, INF, f's_lshr_b32 {sr(sk4)}, s2, 4\ns_and_b32 {sr(sC)}, s2, 1\ns_lshl3_add_u32 {sr(sk4)}, {sr(sC)}, {sr(sk4)}\ns_mul_i32 {sr(sk4)}, {sr(sk4)}, {7*65536}\ns_bfe_u32 {sr(sC)}, s2, 0x10003\ns_lshl_b32 {sr(sC)}, {sr(sC)}, 10\ns_add_u32 {sr(sk4)}, {sr(sk4)}, {sr(sC)}\ns_add_u32 {sr(sk4)}, {sr(sk4)}, {3*65536}'
               f'\ns_lshl_b32 {sr(sC)}, {sr(sw)}, 8\ns_add_u32 {sr(sC)}, {sr(sC)}, s2\ns_cmp_lt_u32 {sr(sC)}, 128\ns_cselect_b32 {sr(sk4)}, {sr(sk4)}, {OOB}\nv_lshlrev_b32 {vr(vd3)}, 7, v0')
        k.owd3 = sc.add('z', e, e + 6, VM(p, f'buffer_load_dword a252, {vr(vd3)}, {sr(sWD,4)}, {sr(sk4)} offen offset:{384+2048}'))
    ve = [22 + i for i in range(8)]; vub = 31
    pos[0] = z
    F(f'v_lshrrev_b32 v8, 1, v0\nv_and_b32 {vr(vub)}, 0xf0, v0\nv_add_u32 {vr(vub)}, {UTL}, {vr(vub)}\nv_cmp_gt_u32 vcc, 0x100, v0\ns_mov_b32 {sr(sx)}, 0x01000100\ns_mov_b32 {sr(sx+1)}, 0x03020302', d=z + 12)
    for m in range(4):
        q_ = vs + 3 * m + 2; t_ = ve[4 * (m & 1):]
        F(f'v_cndmask_b32 {vr(q_)}, 0, {vr(q_)}, vcc\nv_perm_b32 {vr(t_[0])}, {vr(q_)}, {vr(q_)}, {sr(sx)}\nv_and_b32 {vr(t_[1])}, 0xffff, {vr(q_)}\nv_perm_b32 {vr(t_[2])}, {vr(q_)}, {vr(q_)}, {sr(sx+1)}\nv_lshrrev_b32 {vr(t_[3])}, 16, {vr(q_)}')
        F('\n'.join(f'v_accvgpr_write_b32 {vr(BI+4*m+i)}, {vr(t_[i])}' for i in range(4)), d=ipos[0] - 2)
    for oi, t in enumerate(order):
        for sg in range(2):
            sc.add('u', max(tb + 11 + sg, ipos[oi] - 24 + 2 * sg), ipos[oi] - 6, LG(p, f'ds_read_b128 {vr(WI+8*(oi&1)+4*sg,4)}, {vr(vub)} offset:{2048*sg+256*t}', ('wi', oi)))
    edone = {}
    def mix(a_, b_):
        out = []
        for n in range(max(len(a_), len(b_))): out += a_[n:n+1] + b_[n:n+1]
        return out
    for oi, t in enumerate(order):
        ph = []
        for m in range(4):
            st_ = vs + 3 * m; a_, u_ = accr(t, m), accr(t + 7, m); e4 = ve[4 * (m & 1):]
            o = accr(t & ~1, m) + 2 * (t & 1)
            fin = [pk(o, u_), pk(o + 1, u_ + 2)]
            if t & 1: fin.append(VM(p, f'buffer_store_dwordx4 {vr(o-2,4)}, v0, {sr(sWS,4)}, {sr(so+(m>>1))} offen offset:{1024*(m&1)} sc1', ('as', t)))
            elif t == 6: fin.append(VM(p, f'buffer_store_dwordx2 {vr(o,2)}, v8, {sr(sWS,4)}, {sr(so+(m>>1))} offen offset:{1024*(m&1)} sc1', ('as', t)))
            ph.append(dict(A=[f'v_mul_f32 {vr(e4[x])}, {vr(st_)}, {vr(a_+x)}' for x in range(4)], B=[f'v_exp_f32 {vr(e4[x])}, {vr(e4[x])}' for x in range(4)],
                           C=[f'v_mul_f32 {vr(u_+x)}, {vr(a_+x)}, {vr(u_+x)}' for x in range(4)], D=[f'v_fma_f32 {vr(e4[x])}, {vr(e4[x])}, {vr(st_+1)}, {vr(st_+1)}' for x in range(4)],
                           E=[f'v_rcp_f32 {vr(e4[x])}, {vr(e4[x])}' for x in range(4)], G=[f'v_mul_f32 {vr(u_+x)}, {vr(u_+x)}, {vr(e4[x])}' for x in range(4)], H=fin))
        pg = max(co.cdone[(t, m)] for m in range(4)) + 1; pu = max(co.cdone[(t + 7, m)] for m in range(4)) + 4
        pos[0] = pg
        a, b_, c_, d_ = ph
        for x in a['A'] + mix(a['B'], b_['A']) + mix(b_['B'], a['D']) + mix(a['E'], b_['D']): F(x)
        pos[0] = pu
        for x in mix(b_['E'], a['C']) + a['G'] + c_['A'] + mix(c_['B'], b_['C']) + b_['G'] + a['H'] + d_['A'] + mix(d_['B'], c_['D']) + b_['H'] + mix(c_['E'], d_['D']) + mix(d_['E'], c_['C']) + c_['G'] + d_['C'] + c_['H'] + d_['G'] + d_['H']: lo = F(x)
        edone[t] = lo
        if t == 6: F(f's_mov_b32 {sr(so)}, {sr(so+2)}\ns_add_u32 {sr(so+1)}, {sr(so+2)}, 262144')
        elif t & 1 and t < 5: F(f's_add_u32 {sr(so)}, {sr(so)}, 2048\ns_add_u32 {sr(so+1)}, {sr(so+1)}, 2048')
    if hs and hs != 99: sc.before(z + hs, lambda: p.label('G3M'), 0)
    E3 = co.end; co3 = co; accr3 = accr
    TP = 16 * FS + 8
    for oi, t in enumerate(order[:-1]): edone[t].d = z + (oi + 2) * TP + g3.get('eslack', 10)
    k.ctouch(sc, g3.get('ct0', 20), z, g3.get('cts', 250)); k.ctouch(sc, z, E3, g3.get('cts2', 80))
    if TL:
        for s in g3.get('marks', (1, 3, 11, 13)): sc.before(at(s) + 1, lambda s=s: k.T(f'g3:s{s}'), 0)
        for n in g3.get('fmarks', ()): sc.before(z + n * TP + 1, lambda n=n: k.T(f'g3:f{n}'), 0)

    NS, nst, FS, DAS, R = 9, 28, g4.get('FS', 6), g4.get('DAS', 7), 10
    NC = 10
    sK4 = S.alloc(); sA4 = S.alloc(); sC4 = [S.alloc() for _ in range(NC)]; sLead = S.alloc(); sD7 = S.alloc(); sg0 = S.alloc(); sg1 = S.alloc(); sfp = S.alloc()
    Va = Regs('v', accr3(6, 0), accr3(6, 0) + 16); Vb = Regs('v', accr3(13, 0), accr3(13, 0) + 16)
    vl = Va.alloc('l'); u = Va.alloc('u', 4); vdma = Va.alloc('vdma', 4); va = Va.alloc('va'); vpl = Va.alloc('pl', 2); vxa = Va.alloc('xa', 4)
    waddr = Vb.alloc('waddr', 12); vro = Vb.alloc('ro', 2); vol = Vb.alloc('ol')
    acc4 = [accr3(0, 0), accr3(7, 0)]
    accr = lambda t, m: acc4[t // 4] + ((t % 4) * 2 + m) * 4
    vf = accr3(2, 0); vg = accr3(9, 0); vx = accr3(10, 0); vp = accr3(4, 0)
    GL = 0
    base4 = lambda s: 12288 + ((s + 5) % NS) * 16384
    NP4 = g4.get('np4', 4)
    def wrd(s, t, j, h):
        st, off = divmod(base4(s) + (2 * j + h) * 4096 + (t >> 2) * 2048, 65536)
        return waddr + 4 * st + (t & 3), off
    co = Core(p, sc, NS, 2, A(176), R, g4.get('lead', 16), 0, DAS, accr, wrd, ard=False, name='g4')
    aset = [216, 0, 16, 32, 48, 64, 80, 96, 112, 128]
    NA4 = g4.get('na4', 4)
    afirst = [A(216), accr3(9, 0), accr3(2, 0), accr3(3, 0)]
    co.abf = lambda s, j, m: (afirst[s] if s < NA4 == 4 else A(aset[s % DAS])) + (2 * j + m) * 4
    Ss = list(range(nst - FS, nst))
    groups = [(s, t) for s in range(nst - FS) for t in range(8)] + [(s, t) for s in Ss for t in range(4, 8)] + [(s, t) for s in Ss for t in range(4)]
    co.build(groups, wg=g4.get('wg', 1))
    co.base = z
    be, b0 = g4.get('be', 2), g4.get('b0', 5)
    co.barriers(lambda s: [('D4', s, 3)], have=(), grp=lambda s: 0 if s < NP4 else s if s < b0 else s - (s - b0) % be)
    rf = co3.wdl[-1] + 1
    co.addbar(rf)
    gpos = [z + TP + 20]
    def G(t_, d=INF, after=None): return sc.add('g', gpos[0], d, t_, after=after)
    G(f'v_lshrrev_b32 {vr(vl)}, 4, v0\ns_lshr_b32 {sr(sg1)}, {sr(sorg)}, 2\ns_mul_i32 {sr(sg1)}, {sr(sg1)}, {g4.get("lm", 2)}\ns_add_u32 {sr(sLead)}, {sr(sm2)}, {sr(sorg)}\ns_add_u32 {sr(sLead)}, {sr(sLead)}, {sr(sg1)}\ns_and_b32 {sr(sLead)}, {sr(sLead)}, 3\ns_and_b32 {sr(sg1)}, s2, 1', after=edone[6])
    G(f's_lshl_b32 {sr(sg0)}, {sr(sn2)}, 7\ns_lshl3_add_u32 {sr(sg0)}, {sr(sW4)}, {sr(sg0)}\ns_mul_i32 {sr(sD7)}, {sr(sg1)}, {1792*2048}\ns_add_u32 {sr(sg0)}, {sr(sg0)}, {sr(sD7)}\ns_lshr_b32 {sr(sD7)}, {sr(sw)}, 1\ns_mul_i32 {sr(sD7)}, {sr(sD7)}, {3*65536}')
    G(f'v_bfe_u32 {vr(u)}, {vr(vl)}, 4, 2\nv_bfe_u32 {vr(u+1)}, {vr(vl)}, 1, 2\nv_xor_b32 {vr(u)}, {vr(u)}, {vr(u+1)}\nv_lshlrev_b32 {vr(u)}, 5, {vr(u)}\nv_and_b32 {vr(u+1)}, 1, {vr(vl)}\nv_lshl_add_u32 {vr(u)}, {vr(u+1)}, 4, {vr(u)}\nv_lshrrev_b32 {vr(u+1)}, 3, {vr(vl)}\nv_lshlrev_b32 {vr(u+1)}, 11, {vr(u+1)}')
    G(f's_sub_u32 {sr(sWD)}, {sr(sWD)}, 2048\ns_subb_u32 {sr(sWD+1)}, {sr(sWD+1)}, 0\ns_mov_b32 {sr(sWD+2)}, {FF*DM*2+2048}')
    if g3.get('wd3', 0): k.owd3.after = sc.streams['g'][-1]
    osu = G(f'v_add3_u32 {vr(u)}, {vr(u)}, {vr(u+1)}, {sr(sg0)}\nv_add_u32 {vr(vdma)}, 2048, {vr(u)}\nv_add_u32 {vr(vdma+1)}, {16384+1024}, {vr(u)}\nv_xor_b32 {vr(vdma+2)}, 128, {vr(u)}\nv_add_u32 {vr(vdma+3)}, {16384-1024}, {vr(vdma+2)}')
    G(f'v_and_b32 {vr(u)}, 7, {vr(vl)}\nv_lshrrev_b32 {vr(u+2)}, 4, {vr(vl)}\nv_xor_b32 {vr(u)}, {vr(u)}, {vr(u+2)}\nv_lshl_add_u32 {vr(vro)}, {vr(u)}, 4, {vr(u+1)}\nv_xor_b32 {vr(vro+1)}, 64, {vr(vro)}\nv_add_u32 {vr(vro+1)}, 16384, {vr(vro+1)}')
    G(f's_lshl2_add_u32 {sr(sg0)}, {sr(sm2)}, {sr(sw)}\ns_lshl_b32 {sr(sg0)}, {sr(sg0)}, 18\ns_mul_i32 {sr(sfp)}, {sr(sg1)}, {56*2048}\ns_add_u32 {sr(sg0)}, {sr(sg0)}, {sr(sfp)}\ns_add_u32 {sr(sg0)}, {sr(sg0)}, {WS_ACT}\nv_add_u32 {vr(va)}, {sr(sg0)}, v0\nv_add_u32 v7, {sr(sg0)}, v8')
    G(f'v_bfe_u32 {vr(u)}, {vr(vl)}, 3, 2\nv_lshlrev_b32 {vr(u)}, 5, {vr(u)}\nv_and_b32 {vr(u+1)}, 3, {vr(vl)}\nv_lshl_add_u32 {vr(u)}, {vr(u+1)}, 3, {vr(u)}\nv_lshrrev_b32 {vr(u+1)}, 2, {vr(vl)}\nv_lshl_add_u32 {vr(waddr)}, {vr(u+1)}, 7, {vr(u)}')
    for t in range(1, 12): G(f'v_xor_b32 {vr(waddr+t)}, {((t & 3) << 5) + ((t >> 2) << 16)}, {vr(waddr)}')
    G(f's_lshr_b32 {sr(sg0)}, {sr(sm2)}, 1\ns_lshl_b32 {sr(sg0)}, {sr(sg0)}, 5\ns_lshl2_add_u32 {sr(sg0)}, {sr(sg1)}, {sr(sg0)}\nv_and_b32 {vr(u)}, 3, {vr(vl)}\nv_bfe_u32 {vr(u+1)}, {vr(vl)}, 2, 2\nv_lshl_add_u32 {vr(u)}, {vr(u)}, 3, {vr(u+1)}\nv_add_lshl_u32 {vr(vpl)}, {vr(u)}, {sr(sg0)}, 7\ns_mov_b32 {sr(sfp)}, {FL_UT}', d=z + 4 * TP)
    assert FL_AE - FL_UT == FL_AL - FL_AE == 32768
    one = 9
    sc.add('f', z + 30, z + 60, f'v_mov_b32 {vr(one)}, {sr(sTok)}')
    edone[6].d = z + g3.get('e6', 96); edone[1].d = z + g3.get('e1', 216)
    edone[5].d = E3 + g4.get('ldl', 84)
    for t, dr in ((6, g3.get('dr6', 60)), (1, g3.get('dr1', 50)), (5, None)):
        if dr: eb = edone[t].d + dr; co.addbar(eb, vm=[('as', t)])
        else:
            eb = co.nextbar(edone[5].d + g4.get('ldrain', 40))
            sc.add('f', eb - 2, eb, WT(p, vm=[('as', 5)]))
        o = sc.add('f', eb, eb + 3, lambda: k.flag_store(sfl, one)); o.cost = 3
        sc.add('f', eb, INF, f's_add_u32 {sr(sfl)}, {sr(sfl)}, 32768')
    def chk(tag, pl_, pc_):
        gpos[0] = pl_
        G(VM(p, f'buffer_load_dword {vr(vpl+1)}, {vr(vpl)}, {sr(sWS,4)}, {sr(sfp)} offen sc1', tag), d=pl_ + 4)
        gpos[0] = pc_
        o = G(lambda: k.check(vpl, sfp, vpl + 1, spc, tag), d=pc_ + 3); o.cost = 4; o.wscc = True
        G(f's_add_u32 {sr(sfp)}, {sr(sfp)}, 32768')
        return o
    ock = chk('ef', z + g4.get('c0', 262), z + g4.get('c0', 262) + 32)
    a_e0 = gpos[0] + 1
    DF = g4.get('DF', FS)
    for s_ in range(nst - DF, nst):
        if (s_ - nst + DF) % be == 0:
            b_ = co.gpos[groups.index((s_, 0))] - co.lead - 8
            co.addbar(b_, vm=[('D4', min(s_ + be, nst) - 1, 1)])
        for t in range(4): co.bar2[(s_, t)] = b_
    n1 = 4 * (2 * nst - NP4 - NA4) - 2 * DF
    nb4 = lambda s: sum(4 for x in range(s + 1) if x >= NP4) + sum(4 for x in range(s) if x >= NA4) - 3
    tl_ = co.bar[nst - 1] - g4.get('margin', 56) - E3
    vt_ = lambda n: E3 + g4.get('v0', -6) + int(n * tl_ / (n1 - 1))
    omk = chk('mf', vt_(nb4(4)) - g4.get('c1', 45), vt_(nb4(4)) - 3)
    lck = vt_(nb4(12)) - 3
    olk = chk('lf', lck - 50, lck)
    KB = [14 * q + 3 for q in range(4)] + [7 * q for q in range(8)] + [7 * (q // 2) + 1 + 4 * (q % 2) for q in range(16)]
    XS = lambda s: 2 if s < 4 else 1 if s < 12 else 0
    dist = g4.get('dist', 2)
    def ord4(r):
        o = list(range(nst))
        for s in range(4, nst):
            if dist == 4: o[s] = s if s % 4 != r else 4 + lead_chunk(s - 4, 8) if s < 12 else 12 + lead_chunk(s - 12, 16)
            elif s % 4 == r and s + dist < nst and XS(s) == XS(s + dist): o[s], o[s + dist] = o[s + dist], o[s]
        return o
    O4 = [ord4(r) for r in range(4)]
    done = set()
    def chunk(E, s):
        if s in done: return
        done.add(s)
        c = sC4[s % NC]
        alt = [r for r in range(4) if O4[r][s] != s]
        if not alt: E(f's_mov_b32 {sr(c)}, {KB[s]}')
        for n, r in enumerate(alt): E(f's_cmp_eq_u32 {sr(sLead)}, {r}\ns_cselect_b32 {sr(c)}, {KB[O4[r][s]]}, {sr(c) if n else KB[s]}')
    def dma4(s, i, E, EV):
        fst = i == 0 or (i == 2 and s >= nst - DF)
        if fst:
            chunk(E, s)
            E(f's_lshl_b32 {sr(sK4)}, {sr(sC4[s % NC])}, 16' + ('', f'\ns_add_u32 {sr(sK4)}, {sr(sK4)}, {sr(sD7)}', f'\ns_lshl1_add_u32 {sr(sK4)}, {sr(sD7)}, {sr(sK4)}')[XS(s)])
            E(f's_add_u32 m0, {sr(sW4)}, {base4(s)}')
        EV(VM(p, f'buffer_load_dwordx4 {vr(vdma+i)}, {sr(sWD,4)}, {sr(sK4)} offen offset:{1024*i} lds', ('D4', s, i)), fst)
    def al4(s, i, E, EV):
        j, m = divmod(i, 2)
        if i == 0: E(f's_lshl_b32 {sr(sA4)}, {sr(sC4[s % NC])}, 11')
        if i == 2 and XS(s): E(f's_add_u32 {sr(sA4)}, {sr(sA4)}, {3*2048*XS(s)}')
        if s < 4:
            for h in range(2): EV(VM(p, f'buffer_load_dwordx2 {vr(co.abf(s,j,m)+2*h,2)}, v7, {sr(sWS,4)}, {sr(sA4)} offen offset:{1024*i+512*h} sc1', co.atag(s, j, m)), False)
            return
        EV(VM(p, f'buffer_load_dwordx4 {vr(co.abf(s,j,m),4)}, {vr(va)}, {sr(sWS,4)}, {sr(sA4)} offen offset:{1024*i} sc1', co.atag(s, j, m)), False)
    ev = []
    e = z + g4.get('d0', 142)
    for s in range(NP4):
        for i in range(4): ev.append((e, 'D', s, i, co.bar[s])); e += g4.get('dsp', 4)
    e = a_e0
    for s in range(NA4):
        if s == 1 and NA4 == 3: e = max(e, ipos[6] + 9)
        for i in range(4): ev.append((e, 'A', s, i, co.await_[(s,) + divmod(i, 2)])); e += 3
    c_ = 0
    for n in range(3, nst):
        for i in range(4):
            if n >= NP4 and (n < nst - DF or i >= 2):
                ev.append((max(rf + 1, co.slotfree(n) + 1, vt_(c_), ev[-1][0]), 'D', n, i, co.bar[n])); c_ += 1
            if n < NA4: continue
            ev.append((max(E3, co.alast[(n - DAS,) + divmod(i, 2)] + 1 if n >= DAS else 0, vt_(c_), ev[-1][0]), 'A', n, i, co.await_[(n,) + divmod(i, 2)])); c_ += 1
    for n in range(nst - DF, nst):
        for i in range(2): ev.append((ev[-1][0] + 4, 'D', n, i, co.bar2[(n, 0)]))
    for e, kind, s, i, d in ev:
        aft = osu if (kind, s, i) == ('D', 0, 0) else ock if (kind, s, i) == ('A', 0, 0) else edone[3] if (kind, s, i) == ('A', 2, 0) else omk if (kind, s, i) == ('A', 4, 0) else olk if (kind, s, i) == ('A', 12, 0) else None
        if kind == 'A' and i == 0: chunk(lambda t_: sc.add('v', e - 4, d, t_), s)
        (dma4 if kind == 'D' else al4)(s, i, lambda t_: sc.add('v', e - 4, d, t_, after=aft), lambda f, sep: sc.add('v', e, d, f, sep=sep))
    co.wreads(); co.flush_reads('w4')
    pos[0] = E3 + 150
    XL = base4(nst - FS)
    assert DF >= 2
    F(f's_add_u32 {sr(sx)}, {sr(sW4)}, {XL}\n' + xa_setup(vxa, u, sx, vl) + f'\nv_add_u32 {vr(vol)}, {sr(sx)}, v0')
    F(f's_lshl_b32 {sr(sx)}, {sr(sw)}, 10\ns_add_u32 {sr(sx)}, {sr(sx)}, {GL}\nv_add_u32 {vr(u)}, {sr(sx)}, v0\nv_lshrrev_b32 {vr(u+1)}, 4, {vr(vl)}\nv_lshl_add_u32 {vr(u+1)}, {vr(u+1)}, 4, {sr(sx)}')
    F(LG(p, f'ds_write_b128 {vr(u)}, {vr(GBA,4)}'))
    for t in range(4): F(LG(p, f'ds_read_b128 {vr(vg+4*t,4)}, {vr(u+1)} offset:{768+64*t}'))
    for i in range(16): F(f'v_accvgpr_read_b32 {vr(u+2)}, {vr(ST1+i)}\n' + unpack(vf + 2 * i, u + 2))
    F(f's_add_u32 {sr(s1)}, {sr(sro)}, 32768\ns_lshl_b32 {sr(sx)}, s2, 5\ns_add_u32 {sr(sx)}, {sr(sx)}, {sr(sw)}\ns_lshl2_add_u32 {sr(sx)}, {sr(sx)}, {FL_XC}\ns_xor_b32 {sr(sx+1)}, {sr(sx)}, 128\nv_mov_b32 {vr(u+3)}, 0')
    for t in range(4, 8):
        pos[0] = max(co.cdone[(t, 0)], co.cdone[(t, 1)]) + 4
        for m in range(2):
            i = (t - 4) * 2 + m
            F(VM(p, f'buffer_store_dwordx4 {vr(accr(t, m),4)}, v0, {sr(sWS,4)}, {sr(sxo + i // 4)} offen offset:{1024*(i%4)} sc1', 'xs'), d=pos[0] + 4)
    xl = [f'buffer_load_dwordx4 {vr(vp+4*i,4)}, v0, {sr(sWS,4)}, {sr(sxo + 2 + i // 4)} offen offset:{1024*(i%4)} sc1' for i in range(8)]
    xfl = f'buffer_load_dword {vr(vpl+1)}, {vr(u+3)}, {sr(sWS,4)}, {sr(sx+1)} offen sc1'
    pos[0] += g4.get('xf1', 4)
    F(VM(p, xfl, 'xf'), d=pos[0] + 6)
    pos[0] = co.end - g4.get('xpub', 56)
    F(WT(p, vm=['xf']), d=pos[0] + 2)
    o = F(lambda: k.flag_store(sx, one), d=pos[0] + 3); o.cost = 3
    F(f'v_readfirstlane_b32 {sr(sx+2)}, {vr(vpl+1)}\ns_nop 0\ns_cmp_eq_u32 {sr(sx+2)}, {sr(sTok)}\ns_cselect_b32 {sr(sg0)}, {sr(sxo+2)}, {OOB}\ns_cselect_b32 {sr(sg1)}, {sr(sxo+3)}, {OOB}', d=pos[0] + 8)
    for i in range(8): F(VM(p, xl[i].replace(sr(sxo + 2 + i // 4) + ' ', sr((sg0, sg1)[i // 4]) + ' '), ('xc', i)), d=pos[0] + 12 + 3 * i)
    pos[0] = co.end - g4.get('xf2', 12)
    F(VM(p, xfl), d=pos[0] + 3)
    sc.bias = dict(x=10000)
    ce, c4_ = g3.get('ecap', 3), g4.get('cap0', 3)
    sc.capf = lambda i: 2 if i < z + TP - 10 else ce + (i % g3.get('emod', 4) == 0) if i < E3 else c4_ if i < edone[5].d else 2
    sc.vgap = lambda i: g3.get('vgap', 5) if i < z else 2 if i < E3 + 60 else g4.get('vgap', 3)
    sc.mcap = lambda i: g3.get('mcap', 2) if i < E3 - 30 else 2
    if g4.get('ct', True): k.ctouch(sc, E3, co.end - 250, 190)
    if TL:
        for s in g4.get('marks', (0, 4, 8, 16, 23)): sc.before(co.sfirst[s] + 1, lambda s=s: k.T(f'g4:s{s}'), 0)
        if cfg.get('ckm'):
            for x_ in (16 * FS + 48, 16 * FS, 90, 68, 58, 38, 28): sc.before(co.end - x_, lambda x_=x_: k.T(f'g4:e-{x_}'), 0)
    left = sc.run()
    k.T('g4:loopend')
    k.info += f' | g34 over {sc.over} left {len(left)} edone ' + ' '.join(str(edone[t].pos - z) for t in order)
    assert not left
    for t in (0, 1): assert edone[t].pos < E3 - 4
    p.ins(f's_cmp_eq_u32 {sr(sx+2)}, {sr(sTok)}\ns_cbranch_scc0 CKXs')
    p.label('CKXx')
    k.cold.append(f'CKXs:\n  s_mov_b32 {sr(spc)}, 60000\n  s_branch CKXw\nCKX:\n  {xfl}\nCKXw:\n  s_sub_u32 {sr(spc)}, {sr(spc)}, 1\n  s_cmp_eq_u32 {sr(spc)}, 0\n  s_waitcnt vmcnt(0)\n  s_cbranch_scc1 CKXy\n'
                  f'  v_cmp_ne_u32 vcc, {sr(sTok)}, {vr(vpl+1)}\n  s_nop 4\n  s_cbranch_vccnz CKX\nCKXy:\n  ' + '\n  '.join(xl + [xfl]) + '\n  s_branch CKXx\n')
    k.T('xc:rel')
    for t in range(4):
        for m in range(2):
            for e in (0, 2): p.ins(f'v_pk_fma_f32 {vr(vf+16*m+4*t+e,2)}, {vr(vg+4*t+e,2)}, {vr(accr(t, m)+e,2)}, {vr(vf+16*m+4*t+e,2)}')
    for i in range(8):
        t, m = divmod(i, 2)
        p.wait(vm=[('xc', i)])
        fm = vf + 16 * m + 4 * t
        for e in (0, 2): p.ins(f'v_pk_fma_f32 {vr(fm+e,2)}, {vr(vg+4*t+e,2)}, {vr(vp+4*i+e,2)}, {vr(fm+e,2)}')
        p.ins(pk(vx + 8 * m + 2 * t, fm) + '\n' + pk(vx + 8 * m + 2 * t + 1, fm + 2))
        p.lg(f'ds_write_b64 {vr(vxa+t)}, {vr(vx+8*m+2*t,2)} offset:{2048*m}')
    for i in range(4): p.lg(f'ds_read_b128 {vr(vf+4*i,4)}, {vr(vol)} offset:{1024*i}', ('o', i))
    for i in range(4):
        p.wait(lg=[('o', i)])
        p.vm(f'buffer_store_dwordx4 {vr(vf+4*i,4)}, {vr(vro+(i&1))}, {sr(sOUT,4)}, {sr(s1 if i >= 2 else sro)} offen {g4.get("oflags", "")}')
    return finish(k)
```

```python
import sys
sys.path.insert(0, 'gen3'); sys.path.insert(0, 'gen')
from core3 import *
import kernels as KO
from kernels import f32, lanemask, LOG2E, A_X, A_WQKV, A_WO, B_WG, B_WU, B_WD, IN_C, W_MOD, OUT, WS

M, DM, FF = 2048, 1024, 3584
WS_MODP, WS_ST, WS_UT, WS_H, WS_FL, WS_AUX, WS_O, WS_ACT, WS_Y, WS_XC = 0x0, 0x40000, 0x80000, 0x100000, 0x500000, 0x580000, 0x700000, 0x1300000, 0x2300000, 0x2800000
WS_SIZE = 0x3000000
WS_STAMP = 0x3000000
OOB = 0x40000000
FL_H, FL_O, FL_JOB, FL_Y, FL_UT, FL_AE, FL_AL, FL_XC = [WS_FL + 32768 * i for i in range(8)]
sX, sWQ, sWO, sWG, sWU, sWD, sWM, sOUT, sWS, sCC = [4 + 4 * i for i in range(10)]
sw = 44
sTok = 3
WS_SEED = WS_FL + 8 * 32768
KNAME = 'adaLN_cond__sliding_local_dilated__swiglu_ffn__prompt_kernel'
INF = 1 << 30
WOP = [5, 6, 0, 1, 2, 3, 4, 7]
TL = False
LN2 = 0.6931471805599453

def A(n): return AOFF + n
def rb(d, s=None):
    s = d if s is None else s
    return f'v_cvt_pk_bf16_f32 {vr(d)}, {vr(s)}, {vr(s)}\nv_lshlrev_b32 {vr(d)}, 16, {vr(d)}'
def rb2(a, t):
    return f'v_cvt_pk_bf16_f32 {vr(t)}, {vr(a)}, {vr(a+1)}\nv_lshlrev_b32 {vr(a)}, 16, {vr(t)}\nv_and_b32 {vr(a+1)}, 0xffff0000, {vr(t)}'
def unpack(d, s):
    return f'v_lshlrev_b32 {vr(d)}, 16, {vr(s)}\nv_and_b32 {vr(d+1)}, 0xffff0000, {vr(s)}'
def pk(d, a): return f'v_cvt_pk_bf16_f32 {vr(d)}, {vr(a)}, {vr(a+1)}'
def smov64(s, m): return f's_mov_b32 {sr(s)}, 0x{m & 0xffffffff:08x}\ns_mov_b32 {sr(s+1)}, 0x{m >> 32:08x}'

class Pool:
    def __init__(self, regs): self.free_ = set(regs)
    def alloc(self, n=1, align=1):
        for a in sorted(self.free_):
            if a % align == 0 and all(a + i in self.free_ for i in range(n)):
                self.free_ -= set(range(a, a + n)); return a
        raise AssertionError('out of registers')
    def free(self, a, n=1):
        assert not (set(range(a, a + n)) & self.free_)
        self.free_ |= set(range(a, a + n))

def g3_orders(aux=(6, 9), leads=None):
    O = [{aux[0]: r, aux[1]: 8 + r} for r in range(8)]
    r = 0
    for s in sorted(leads or {}):
        for c in leads[s]:
            while s in O[r] or c in O[r].values(): r = (r + 1) % 8
            O[r][s] = c; r = (r + 1) % 8
    T = []
    for o in O:
        rest = [c for c in range(16) if c not in o.values()]
        T.append([o[s] if s in o else rest.pop(0) for s in range(16)])
    return T

class K3:
    def __init__(self, name, cfg):
        self.name, self.cfg = name, cfg
        self.p = Prog(); self.tn = []; self.nl = 0
        self.nthreads, self.nwg = 256, 256
    def T(self, nm):
        if not TL: return
        i = len(self.tn); self.tn.append(nm)
        self.p.ins(f's_memrealtime s[96:97]\ns_memtime s[98:99]\nv_accvgpr_write_b32 a253, v0\nv_accvgpr_read_b32 v0, a254\ns_waitcnt lgkmcnt(0)\nv_writelane_b32 v0, s96, {i}\nv_accvgpr_write_b32 a254, v0\n'
                   f'v_accvgpr_read_b32 v0, a255\ns_nop 0\nv_writelane_b32 v0, s98, {i}\nv_accvgpr_write_b32 a255, v0\nv_accvgpr_read_b32 v0, a253')
    def lab(self, s):
        self.nl += 1
        return f'{s}{self.nl}'
    def text(self): return '.p2align 12\n.p2align 8\n' + self.p.text().replace('  .p2align', '.p2align').replace('  ; HOPS', '; HOPS')
    def desc(self, minv=0): return kdesc(self.name, 512, 102, 256)
    def launch(self): return f'; @launch kernel={self.name} grid=(256,1,1) block=(256,1,1) lds=163840' if self.cfg.get('list', False) else '; @launch grid=(256,1,1) block=(256,1,1) lds=163840'

    def flag_off(self, d, region, wave=0):
        return f's_lshl_b32 {sr(d)}, s2, 7\ns_add_u32 {sr(d)}, {sr(d)}, {region}\ns_cmp_eq_u32 {sr(sw)}, {wave}\ns_cselect_b32 {sr(d)}, {sr(d)}, {OOB}'
    def flag_store(self, sd, v1):
        self.p.ins('s_mov_b64 exec, 1')
        self.p.vm(f'buffer_store_dword {vr(v1)}, v0, {sr(sWS,4)}, {sr(sd)} offen sc1')
        self.p.ins('s_mov_b64 exec, -1')
    def publish(self, nm, sd, v1, vm='all'):
        p = self.p
        self.T(nm + ':pre')
        p.ins(f'v_mov_b32 {vr(v1)}, {sr(sTok)}')
        p.wait(vm=vm, lg='all')
        p.ins('s_barrier')
        self.flag_store(sd, v1)
        self.T(nm + ':pub')
    def poll(self, nm, voff, region, vd, sc_, wave=0, pre=None, n=1, join=None):
        p = self.p
        L = self.lab('SM')
        self.T(nm + ':btw')
        p.ins(f's_cmp_lg_u32 {sr(sw)}, {wave}\ns_cbranch_scc1 {L}x\ns_mov_b32 {sr(sc_)}, 60000\ns_mov_b32 {sr(sc_+1)}, {region}')
        p.label(L)
        p.ins(f'buffer_load_dword{"x4" if n == 4 else ""} {vr(vd,n)}, {vr(voff)}, {sr(sWS,4)}, {sr(sc_+1)} offen sc1')
        p.ins(f's_sub_u32 {sr(sc_)}, {sr(sc_)}, 1\ns_cmp_eq_u32 {sr(sc_)}, 0\ns_waitcnt vmcnt(0)\ns_cbranch_scc1 {L}x')
        if n == 4: p.ins(f'v_and_b32 {vr(vd)}, {vr(vd)}, {vr(vd+1)}\nv_and_b32 {vr(vd+2)}, {vr(vd+2)}, {vr(vd+3)}\nv_and_b32 {vr(vd)}, {vr(vd)}, {vr(vd+2)}')
        pm, ps = self.cfg.get('pmask', False), self.cfg.get('psleep', 0)
        if pm or ps:
            p.ins(f'v_cmp_ne_u32 vcc, {sr(sTok)}, {vr(vd)}\ns_nop 4\ns_cbranch_vccz {L}x' + ('\ns_mov_b64 exec, vcc' if pm else '') + (f'\ns_sleep {ps}' if ps else '') + f'\ns_branch {L}')
        else: p.ins(f'v_cmp_ne_u32 vcc, {sr(sTok)}, {vr(vd)}\ns_nop 4\ns_cbranch_vccnz {L}')
        p.label(L + 'x')
        if pm: p.ins('s_mov_b64 exec, -1')
        if pre: pre()
        if join: p.label(join)
        p.ins('s_barrier')
        self.T(nm + ':rel')
    def check(self, voff, soff, vd, sc_, tag, n=1):
        p = self.p
        L = self.lab('CK')
        tst = ''
        if n == 4: tst = f'v_and_b32 {vr(vd)}, {vr(vd)}, {vr(vd+1)}\nv_and_b32 {vr(vd+2)}, {vr(vd+2)}, {vr(vd+3)}\nv_and_b32 {vr(vd)}, {vr(vd)}, {vr(vd+2)}\n'
        tst += f'v_cmp_ne_u32 vcc, {sr(sTok)}, {vr(vd)}\ns_nop 4'
        if self.cfg.get('ckm'): self.T(f'{tag}:a')
        p.wait(vm=[tag])
        if self.cfg.get('ckm'): self.T(f'{tag}:b')
        p.ins(tst + f'\ns_cbranch_vccnz {L}s')
        p.label(L + 'x')
        if self.cfg.get('ckm'): self.T(f'{tag}:c')
        self.cold.append(f'{L}s:\n  s_mov_b32 {sr(sc_)}, 60000\n{L}:\n' + ('  s_mov_b64 exec, vcc\n' if self.cfg.get('cmask', False) else '') + (f'  s_sleep {self.cfg["csleep"]}\n' if self.cfg.get('csleep') else '') + f'  buffer_load_dword{"x4" if n == 4 else ""} {vr(vd,n)}, {vr(voff)}, {sr(sWS,4)}, {sr(soff)} offen sc1\n'
                         f'  s_sub_u32 {sr(sc_)}, {sr(sc_)}, 1\n  s_cmp_eq_u32 {sr(sc_)}, 0\n  s_waitcnt vmcnt(0)\n  s_cbranch_scc1 {L}y\n  ' + tst.replace('\n', '\n  ') + f'\n  s_cbranch_vccnz {L}\n{L}y:\n  s_mov_b64 exec, -1\n  s_branch {L}x\n')
    def dcheck(self, nm, loads, test, vt_, sc_, op='v_cmp_eq_u32 vcc, -1'):
        p = self.p
        L = self.lab('CK')
        cmp_ = f'{op}, {vr(vt_)}\ns_nop 4'
        if self.cfg.get('ckm'): self.T(f'{nm}:b')
        p.ins(cmp_ + f'\ns_cbranch_vccnz {L}s')
        p.label(L + 'x')
        if self.cfg.get('ckm'): self.T(f'{nm}:c')
        body = loads + f'\ns_sub_u32 {sr(sc_)}, {sr(sc_)}, 1\ns_waitcnt vmcnt(0)\n' + test + f'\ns_cmp_eq_u32 {sr(sc_)}, 0\ns_cbranch_scc1 {L}x\n' + cmp_ + f'\ns_cbranch_vccnz {L}\ns_branch {L}x'
        self.cold.append(f'{L}s:\n  s_mov_b32 {sr(sc_)}, 30000\n{L}:\n  ' + body.replace('\n', '\n  ') + '\n')
    def hop(self, nm, lo, hi, waves):
        if not self.cfg.get('hop', True): return
        p = self.p
        p.ins(f'; HOPS {nm} {lo} {hi} {len(waves)}\ns_mov_b64 exec, 0')
        for c, w in enumerate(waves): p.ins(f's_cmp_eq_u32 {sr(sw)}, {w}\ns_cbranch_scc1 H{nm}{c}')
        p.label(f'R{nm}')
        p.ins('s_mov_b64 exec, -1')
    def ctouch_now(self, n, lead):
        if not self.cfg.get('ct', True): return []
        L = self.lab('CT')
        self.p.label(L)
        def f(i):
            self.p.ins(f's_add_u32 s94, s92, {L}-{self.name}+{lead + 4096 * i}\ns_addc_u32 s95, s93, 0')
            self.p.vm('global_load_dword a252, v0, s[94:95]')
        return [(lambda i=i: f(i)) for i in range(n)]
    def ctouch(self, sc, lo, hi, step, lead=3072):
        if not self.cfg.get('ct', True): return
        for pos in range(lo, hi, step):
            def f():
                L = self.lab('CT')
                self.p.label(L)
                self.p.ins(f's_add_u32 s94, s92, {L}-{self.name}+{lead}\ns_addc_u32 s95, s93, 0')
            o = sc.add('y', pos, INF, f, cost=2); o.wscc = True
            sc.add('y', pos, INF, VM(self.p, 'global_load_dword a252, v0, s[94:95]'))

def xa_setup(vxa, u, sxl, vl):
    t_ = f'v_and_b32 {vr(u)}, 15, {vr(vl)}\nv_lshrrev_b32 {vr(u+2)}, 1, {vr(u)}\nv_lshrrev_b32 {vr(u+1)}, 5, {vr(vl)}\nv_xor_b32 {vr(u+2)}, {vr(u+2)}, {vr(u+1)}\nv_lshlrev_b32 {vr(u+2)}, 4, {vr(u+2)}\nv_lshl_add_u32 {vr(u+2)}, {vr(u)}, 7, {vr(u+2)}\n'
    t_ += f'v_bfe_u32 {vr(u+1)}, {vr(vl)}, 4, 1\nv_lshl_add_u32 {vr(u+2)}, {vr(u+1)}, 3, {vr(u+2)}\nv_add_u32 {vr(vxa)}, {sr(sxl)}, {vr(u+2)}\n'
    return t_ + '\n'.join(f'v_xor_b32 {vr(vxa+t)}, {t<<5}, {vr(vxa)}' for t in range(1, 4))

def weave(p, code, ops, step, first=0):
    ops = list(ops); n = -first
    for c in code:
        for t in (c.split('\n') if isinstance(c, str) else [c]):
            p.ins(t) if isinstance(t, str) else t()
            n += 1
            if ops and n >= step and isinstance(t, str) and t.startswith('v_') and not t.startswith('v_mfma'):
                ops.pop(0)(); n = 0
    return ops

def build_k3(cfg):
    k = K3(KNAME, cfg); p = k.p
    k.cold = []
    stop = cfg.get('stop', 9)
    p.label(k.name)
    p.ins(f's_cmp_ge_u32 s2, 256\ns_cbranch_scc1 XEND')
    srds = ((sWS, WS, WS_SIZE), (sCC, IN_C, 2048), (sWM, W_MOD, 1024*6144*2), (sX, A_X, M*DM*2), (sWQ, A_WQKV, DM*3072*2), (sWO, A_WO, DM*DM*2),
            (sWG, B_WG, DM*FF*2), (sWU, B_WU, DM*FF*2), (sWD, B_WD, FF*DM*2), (sOUT, OUT, M*DM*2))
    if TL:
        p.ins('v_accvgpr_write_b32 a254, 0\nv_accvgpr_write_b32 a255, 0')
        k.T('start')
    for s_, slot, nb in srds: p.ins(f's_load_dwordx2 {sr(s_,2)}, s[0:1], {slot}')
    S = Pool(list(range(45, 92)) + [100, 101]); V = Regs('v', 10, 256)
    sfl = S.alloc(); spc = S.alloc(2, 2); s0 = S.alloc(); s1 = S.alloc()
    vl = V.alloc('lane'); vt = V.alloc('t', 8, 2)
    p.ins(f'v_lshrrev_b32 v1, 6, v0\nv_and_b32 {vr(vl)}, 63, v0\nv_readfirstlane_b32 {sr(sw)}, v1\nv_lshlrev_b32 v0, 4, {vr(vl)}')
    for s_, slot, nb in srds: p.ins(f's_mov_b32 {sr(s_+2)}, {nb}\ns_mov_b32 {sr(s_+3)}, 0x20000')
    def now(f, sep):
        if sep: p.ins('s_nop 0')
        f()

    SP = 150528
    EX, JL, XL, GL = SP, SP + 12288, 131072, 147456
    g1 = cfg['g1']
    NS1, SB1, WB1 = 7, 21504, 12288
    acc1 = V.alloc('acc1', 104, 4)
    vf, vc, vs = acc1, acc1 + 64, 220
    vov = V.alloc('lnov', 8, 4)
    assert vov == acc1 + 104
    vo = V.alloc('lno'); so = S.alloc(); sP = S.alloc(4, 4)
    jw = V.alloc('jw', 32, 4); js = V.alloc('js', 8); jad = V.alloc('jad', 3); Wv = V.alloc('Wv', 16, 4)
    ja, jc, ju, vsd = Wv, Wv + 8, Wv + 12, Wv + 15
    sjw = S.alloc(); sjo = S.alloc()
    p.ins(f's_and_b32 {sr(s0)}, s2, 3\ns_lshl2_add_u32 {sr(s0)}, {sr(s0)}, {sr(sw)}\ns_lshl_b32 {sr(s0)}, {sr(s0)}, 6')
    p.ins(f'v_and_b32 {vr(jad)}, 0x38, {vr(vl)}\nv_add_u32 {vr(jad)}, {sr(s0)}, {vr(jad)}\nv_lshlrev_b32 {vr(jad+1)}, 1, {vr(jad)}\nv_mul_u32_u24 {vr(jad)}, 12288, {vr(jad)}')
    p.ins(f'v_and_b32 {vr(vt)}, 7, {vr(vl)}\nv_lshl_add_u32 {vr(jad)}, {vr(vt)}, 4, {vr(jad)}\nv_mov_b32 {vr(jad+2)}, 0')
    vx = jw
    p.ins(f's_bfe_u32 {sr(sjw)}, s2, 0x40003\ns_and_b32 {sr(s1)}, s2, 4\ns_lshl2_add_u32 {sr(sjw)}, {sr(s1)}, {sr(sjw)}\ns_and_b32 {sr(s1)}, s2, 128\ns_lshl2_add_u32 {sr(sjw)}, {sr(sjw)}, {sr(s1)}\ns_lshl_b32 {sr(sjw)}, {sr(sjw)}, 5\ns_mov_b32 {sr(s1)}, {sr(sjw)}\ns_mov_b32 {sr(so)}, {WS_SEED}')
    p.ins(f'v_lshrrev_b32 {vr(vt+1)}, 3, {vr(vl)}\nv_lshlrev_b32 {vr(vo)}, 11, {vr(vt)}\nv_lshl_add_u32 {vr(vo)}, {vr(vt+1)}, 4, {vr(vo)}')
    p.ins(f's_and_b32 {sr(s0)}, s2, 127\ns_lshl_b32 {sr(s0)}, {sr(s0)}, 7\ns_add_u32 {sr(s0)}, {sr(s0)}, {sr(sw)}\ns_lshl_b32 {sr(s0)}, {sr(s0)}, 8\ns_cmp_lt_u32 s2, 128')
    p.ins('s_waitcnt lgkmcnt(0)')
    p.vm(f'buffer_load_dwordx4 {vr(jc,4)}, {vr(jad+1)}, {sr(sCC,4)}, 0 offen', 'jc')
    p.ins('s_cbranch_scc0 F_x')
    for i in range(8):
        p.vm(f'buffer_load_dwordx4 {vr(jw+4*i,4)}, {vr(jad)}, {sr(sWM,4)}, {sr(s1)} offen {g1.get("mfl", "nt")}', ('mw', i))
        if i < 7: p.ins(f's_add_u32 {sr(s1)}, {sr(s1)}, 12288')
    p.label('F_x')
    p.vm(f'buffer_load_dword {vr(vsd)}, {vr(jad+2)}, {sr(sWS,4)}, {sr(so)} offen sc1', 'seed')
    p.ins(f's_mov_b32 {sr(so)}, {sr(s0)}')
    def xloads():
        L = k.lab('F_xl')
        p.ins(f's_cmp_lt_u32 s2, 128\ns_cbranch_scc1 {L}')
        for i in range(8):
            if i == 4: p.ins(f's_add_u32 {sr(so)}, {sr(so)}, 16384')
            p.ins(f'buffer_load_dwordx4 {vr(vx+4*i,4)}, {vr(vo)}, {sr(sX,4)}, {sr(so)} offen offset:{128*(i&1)+512*(i&2)} {g1.get("xfl", "")}')
        p.label(L)
    p.ins('s_getpc_b64 s[92:93]')
    p.label('PC0')
    p.ins(f's_sub_u32 s92, s92, PC0-{k.name}\ns_subb_u32 s93, s93, 0')
    p.ins('s_cmp_lt_u32 s2, 128\ns_cbranch_scc1 F_ct')
    hw = g1.get('help', 1)
    p.ins(f's_bfe_u32 {sr(s0)}, s2, 0x30004\ns_and_b32 {sr(s1)}, s2, 3\ns_lshl3_add_u32 {sr(s0)}, {sr(s1)}, {sr(s0)}\ns_mul_i32 {sr(s0)}, {sr(s0)}, {32*12288}\ns_and_b32 {sr(s1)}, s2, 4\ns_lshl_b32 {sr(s1)}, {sr(s1)}, 9\ns_add_u32 {sr(s0)}, {sr(s0)}, {sr(s1)}\ns_and_b32 {sr(s1)}, s2, 8\ns_lshl_b32 {sr(s1)}, {sr(s1)}, 7\ns_add_u32 {sr(s0)}, {sr(s0)}, {sr(s1)}')
    p.ins(f's_cmp_lt_u32 {sr(sw)}, {hw}\ns_cselect_b32 {sr(s0)}, {sr(s0)}, {OOB}\nv_and_b32 {vr(vt+7)}, 31, {vr(vl)}\nv_mul_u32_u24 {vr(vt+7)}, 12288, {vr(vt+7)}\nbuffer_load_dword a252, {vr(vt+7)}, {sr(sWM,4)}, {sr(s0)} offen offset:384')
    p.ins(f's_bfe_u32 {sr(s0)}, s2, 0x40003\ns_cmp_lt_u32 {sr(s0)}, (code_end-{k.name})/8192+1\ns_cselect_b32 {sr(s1)}, 3, 4\ns_lshl_b32 {sr(s0)}, {sr(s0)}, 13\nv_lshl_add_u32 {vr(vt+7)}, v0, 3, {sr(s0)}\ns_cmp_eq_u32 {sr(sw)}, {sr(s1)}\ns_cselect_b32 {sr(s1)}, -1, 0\nv_and_b32 {vr(vt+7)}, {sr(s1)}, {vr(vt+7)}\nglobal_load_dword a252, {vr(vt+7)}, s[92:93]')
    p.ins(f's_bfe_u32 {sr(s0)}, s2, 0x20003\ns_mul_i32 {sr(s0)}, {sr(s0)}, 24576\ns_lshr_b32 {sr(s1)}, s2, 5\ns_lshl3_add_u32 {sr(s1)}, {sr(sw)}, {sr(s1)}\ns_cmp_eq_u32 {sr(s1)}, 15\ns_cselect_b32 {sr(s0)}, {sr(s0)}, {OOB}\nv_lshlrev_b32 {vr(vt+7)}, 3, v0\nbuffer_load_dword a252, {vr(vt+7)}, {sr(sWS,4)}, {sr(s0)} offen sc1')
    p.label('F_ct')
    xp = g1.get('xpos', 4)
    if xp == 0: xloads()

    sm = S.alloc(); sn = S.alloc(); swm = S.alloc(); shd = S.alloc()
    sK = S.alloc(); sXc = S.alloc(); sWL = S.alloc(3); sC = S.alloc(4, 2)
    waddr = V.alloc('waddr', 6); vdma = V.alloc('vdma', 3); va = V.alloc('va'); vxh = V.alloc('vxh'); aaddr = V.alloc('aaddr', 3); xaddr = V.alloc('xaddr', 3)
    u = vt + 2
    p.ins(f's_and_b32 {sr(s0)}, s2, 7\ns_lshr_b32 {sr(s1)}, s2, 3')
    p.ins(f's_and_b32 {sr(sn)}, {sr(s0)}, 3\ns_lshl_b32 {sr(sn)}, {sr(sn)}, 2\ns_and_b32 {sr(sm)}, {sr(s1)}, 3\ns_add_u32 {sr(sn)}, {sr(sn)}, {sr(sm)}')
    p.ins(f's_lshr_b32 {sr(sm)}, {sr(s0)}, 2\ns_lshl_b32 {sr(sm)}, {sr(sm)}, 3\ns_lshr_b32 {sr(s1)}, {sr(s1)}, 2\ns_add_u32 {sr(sm)}, {sr(sm)}, {sr(s1)}')
    p.ins(f's_lshr_b32 {sr(swm)}, {sr(sw)}, 1\ns_and_b32 {sr(shd)}, {sr(sw)}, 1')
    p.ins(f's_mul_i32 {sr(sWL)}, {sr(sw)}, 3072\ns_lshl_b32 {sr(sWL+1)}, {sr(sw)}, 11\ns_lshl_b32 {sr(sWL+2)}, {sr(sw)}, 8')
    vswz = V.alloc('swz')
    p.ins(f'v_bfe_u32 {vr(u)}, {vr(vl)}, 4, 2\nv_bfe_u32 {vr(u+1)}, {vr(vl)}, 1, 2\nv_xor_b32 {vr(u)}, {vr(u)}, {vr(u+1)}\nv_lshlrev_b32 {vr(u)}, 5, {vr(u)}\nv_and_b32 {vr(u+1)}, 1, {vr(vl)}\nv_lshl_add_u32 {vr(vswz)}, {vr(u+1)}, 4, {vr(u)}')
    p.ins(f's_lshl_b32 {sr(s0)}, {sr(sn)}, 7\ns_mul_i32 {sr(s1)}, {sr(sw)}, {8*6144}\ns_add_u32 {sr(s0)}, {sr(s0)}, {sr(s1)}\nv_mul_u32_u24 {vr(u)}, 6144, {vr(vt+1)}\nv_add3_u32 {vr(vdma)}, {vr(u)}, {vr(vswz)}, {sr(s0)}')
    p.ins(f'v_add_u32 {vr(vdma+1)}, {32*6144-1024}, {vr(vdma)}\nv_add_u32 {vr(vdma+2)}, {64*6144-2048}, {vr(vdma)}')
    vrd = V.alloc('rd')
    p.ins(f'v_bfe_u32 {vr(u)}, {vr(vl)}, 3, 2\nv_lshlrev_b32 {vr(u)}, 5, {vr(u)}\nv_and_b32 {vr(u+1)}, 3, {vr(vl)}\nv_lshl_add_u32 {vr(vrd)}, {vr(u+1)}, 3, {vr(u)}')
    p.ins(f'v_bfe_u32 {vr(u)}, {vr(vl)}, 2, 3\nv_lshrrev_b32 {vr(u+1)}, 5, {vr(vl)}\nv_mul_u32_u24 {vr(u+1)}, 24, {vr(u+1)}\nv_add_lshl_u32 {vr(u)}, {vr(u)}, {vr(u+1)}, 7')
    p.ins(f's_lshl_b32 {sr(s0)}, {sr(shd)}, 1\ns_add_u32 {sr(s0)}, {sr(s0)}, {sr(swm)}\ns_lshl_b32 {sr(s0)}, {sr(s0)}, 5\nv_xor_b32 {vr(u+1)}, {sr(s0)}, {vr(vrd)}\nv_add_u32 {vr(waddr)}, {vr(u)}, {vr(u+1)}\nv_xor_b32 {vr(waddr+1)}, 32, {vr(waddr)}')
    for st in (1, 2):
        p.ins(f'v_add_u32 {vr(waddr+2*st)}, {st*3*SB1}, {vr(waddr)}\nv_add_u32 {vr(waddr+2*st+1)}, {st*3*SB1}, {vr(waddr+1)}')
    p.ins(f's_lshl_b32 {sr(s0)}, {sr(sm)}, 2\ns_add_u32 {sr(s1)}, {sr(s0)}, {sr(sw)}\ns_lshl_b32 {sr(s1)}, {sr(s1)}, 16\ns_add_u32 {sr(s1)}, {sr(s1)}, {WS_H}\nv_add_u32 {vr(va)}, {sr(s1)}, v0')
    p.ins(f's_max_u32 {sr(s0)}, {sr(s0)}, 1\ns_lshl_b32 {sr(s0)}, {sr(s0)}, 16\ns_add_u32 {sr(s0)}, {sr(s0)}, {WS_H - 65536 + 1024}\ns_add_u32 {sr(s0)}, {sr(s0)}, {sr(sWL+2)}\nv_lshl_add_u32 {vr(vxh)}, {vr(vl)}, 2, {sr(s0)}')
    p.ins(f's_lshl_b32 {sr(s0)}, {sr(swm)}, 12')
    for st in range(3):
        p.ins(f'v_add_u32 {vr(xaddr+st)}, {st*3*SB1}, v0\nv_add_u32 {vr(aaddr+st)}, {sr(s0)}, {vr(xaddr+st)}')
    vph = V.alloc('pollh')
    p.ins(f's_lshl3_add_u32 {sr(s0)}, {sr(sm)}, 127\nv_min_u32 {vr(vph)}, 8, {vr(vl)}\nv_add_u32 {vr(vph)}, {sr(s0)}, {vr(vph)}\nv_max_u32 {vr(vph)}, 0x80, {vr(vph)}\nv_lshlrev_b32 {vr(vph)}, 7, {vr(vph)}')
    slot1 = lambda s: (s + 1) % NS1
    KS1 = lambda s: [x for x in (s - 2, s - 1, s) if 0 <= x < 32]
    DL1 = lambda s: list(range(len(KS1(s)))) + ([3, 4, 5] if s < 32 else [])
    def dma1(s, n, E, EV):
        base = slot1(s) * SB1
        if n == 0: E(f's_mov_b32 {sr(sK)}, {KS1(s)[0]*32*6144 + (s % 3)*2048}\ns_add_u32 m0, {sr(sWL)}, {base}')
        if n == 3: E(f's_mov_b32 {sr(sXc)}, {s*2048}\ns_add_u32 m0, {sr(sWL+1)}, {base + WB1}')
        if n == 5: E(f's_add_u32 m0, {sr(sWL+2)}, {base + SB1 - 1024}')
        if n < 3: t_ = f'buffer_load_dwordx4 {vr(vdma+n)}, {sr(sWQ,4)}, {sr(sK)} offen offset:{1024*n} lds'
        elif n < 5: t_ = f'buffer_load_dwordx4 {vr(va)}, {sr(sWS,4)}, {sr(sXc)} offen offset:{1024*(n-3)} sc1 lds'
        else: t_ = f'buffer_load_dword {vr(vxh)}, {sr(sWS,4)}, {sr(sXc)} offen sc1 lds'
        EV(VM(p, t_, ('D1', s, n)), n in (0, 3, 5))
    npre = 7; npw = g1.get('npw', 5); wln = 0; wpre = g1.get('wpre', 0)
    wops = [(lambda s=s, n=n: dma1(s, n, p.ins, now)) for s in range(npw) for n in DL1(s) if n < 3]
    p.ins(f'v_lshlrev_b32 {vr(vt+6)}, 5, {vr(vt)}\nv_lshrrev_b32 {vr(vt+7)}, 4, {vr(vl)}\nv_lshl_add_u32 {vr(vt+6)}, {vr(vt+7)}, 3, {vr(vt+6)}\ns_add_u32 {sr(s0)}, {sr(sWL+2)}, {JL}\nv_add_u32 {vr(jad+1)}, {sr(s0)}, {vr(vt+6)}\nv_lshlrev_b32 {vr(jad+2)}, 2, {vr(vl)}')
    p.ins(f's_and_b32 {sr(s1)}, s2, 3\ns_mul_i32 {sr(sjo)}, {sr(s1)}, 24576\ns_lshl1_add_u32 {sr(sjo)}, {sr(sjw)}, {sr(sjo)}\ns_add_u32 {sr(sjw)}, {sr(sjw)}, 4096')
    if xp == 2: xloads()
    k.T('f:setup')
    def gemv(tag, ja, ju, mid={}):
        C = []
        for i in range(8):
            if tag: C.append(WT(p, vm=[(tag, i)]))
            C += mid.get(i, [])
            for d in range(4):
                C.append(unpack(ju + 2 * (d & 1), jw + 4 * i + d))
                if d & 1:
                    for x in (0, 2):
                        if i == 0: C.append(f'v_pk_mul_f32 {vr(ja+2*(d-1)+x,2)}, {vr(ju+x,2)}, {vr(js,2)} op_sel_hi:[1,0]')
                        else: C.append(f'v_pk_fma_f32 {vr(ja+2*(d-1)+x,2)}, {vr(ju+x,2)}, {vr(js+(i&~1),2)}, {vr(ja+2*(d-1)+x,2)} op_sel:[0,{i&1},0] op_sel_hi:[1,{i&1},1]')
        C.append('s_nop 0')
        C += [f'v_permlane32_swap_b32 {vr(ja+i)}, {vr(ja+i+4)}' for i in range(4)]
        C += [f'v_add_f32 {vr(ja+i)}, {vr(ja+i)}, {vr(ja+i+4)}' for i in range(4)]
        C.append('s_nop 0')
        C += [f'v_permlane16_swap_b32 {vr(ja+i)}, {vr(ja+i+2)}' for i in range(2)]
        C += [f'v_add_f32 {vr(ja+i)}, {vr(ja+i)}, {vr(ja+i+2)}' for i in range(2)]
        C.append(f'v_add_u32 {vr(ju)}, {JL}, {vr(jad+2)}')
        C += [f'v_add_f32_dpp {vr(ja+i)}, {vr(ja+i)}, {vr(ja+i)} row_ror:8 row_mask:0xf bank_mask:0xf' for i in range(2)]
        C.append(LG(p, f'ds_write_b64 {vr(jad+1)}, {vr(ja,2)}'))
        return C
    assert js % 2 == 0
    if xp >= 3:
        p.ins('s_cmp_lt_u32 s2, 128\ns_cbranch_scc1 F_cw\ns_waitcnt vmcnt(4)')
        p.label('F_cw')
        p.wait(vm=['jc'])
    else:
        p.ins('s_cmp_lt_u32 s2, 128\ns_waitcnt vmcnt(12)\ns_cbranch_scc0 F_cw')
        p.wait(vm=['jc'])
        p.label('F_cw')
    if xp == 3: xloads()
    k.T('f:c')
    for i in range(4): p.ins(unpack(js + 2 * i, jc + i))
    for op in ('mul', 'exp', 'add', 'rcp', 'fin'):
        for i in range(8):
            p.ins({'mul': f'v_mul_f32 {vr(ja+i)}, {f32(-LOG2E)}, {vr(js+i)}', 'exp': f'v_exp_f32 {vr(ja+i)}, {vr(ja+i)}', 'add': f'v_add_f32 {vr(ja+i)}, 1.0, {vr(ja+i)}',
                   'rcp': f'v_rcp_f32 {vr(ja+i)}, {vr(ja+i)}', 'fin': f'v_mul_f32 {vr(js+i)}, {vr(js+i)}, {vr(ja+i)}'}[op])
    for i in range(0, 8, 2): p.ins(rb2(js + i, ju))
    smk = S.alloc(2)
    if xp == 4: xloads()
    p.ins(f's_cmp_lt_u32 s2, 128\ns_cbranch_scc0 AL')
    p.items.append(('save', 'role'))
    def common():
        p.ins(f'v_readfirstlane_b32 {sr(sTok)}, {vr(vsd)}\n' + k.flag_off(sfl, FL_H) + f'\ns_mul_i32 {sr(sTok)}, {sr(sTok)}, 0x9e3779b1\ns_add_u32 {sr(sTok)}, {sr(sTok)}, 0x7f4a7c15')
        p.ins(f's_and_b32 {sr(smk)}, s2, 7\ns_bfe_u32 {sr(s1)}, s2, 0x20003\ns_lshl2_add_u32 {sr(smk)}, {sr(smk)}, {sr(s1)}\ns_lshr_b32 {sr(s1)}, s2, 5\ns_lshl3_add_u32 {sr(smk)}, {sr(smk)}, {sr(s1)}\ns_lshl1_add_u32 {sr(smk)}, {sr(smk)}, {sr(sw)}\ns_lshl_b32 {sr(smk)}, {sr(smk)}, 10\ns_add_u32 {sr(smk)}, {sr(smk)}, {WS_UT}')
        p.ins(f's_add_u32 {sr(sjo)}, {sr(sjo)}, 8192\ns_cmp_lt_u32 {sr(sw)}, 2\ns_cselect_b32 {sr(smk)}, {sr(smk)}, {OOB}\ns_cmp_eq_u32 {sr(sw)}, 2\ns_cselect_b32 {sr(smk+1)}, {sr(sjo)}, {OOB}')
    def marks(r):
        p.ins('\n'.join(f'v_mov_b32 {vr(r+i)}, -1' for i in range(4)))
        p.vm(f'buffer_store_dwordx4 {vr(r,4)}, v0, {sr(sWS,4)}, {sr(smk)} offen sc1')
        p.vm(f'buffer_store_dword {vr(r)}, {vr(jad+2)}, {sr(sWS,4)}, {sr(smk+1)} offen sc1', 'mk')
    weave(p, gemv('mw', ja, jc), [], 1)
    p.ins(f'v_and_b32 {vr(ja+4)}, 3, {vr(vl)}\nv_lshlrev_b32 {vr(ja+4)}, 3, {vr(ja+4)}\ns_cmp_eq_u32 {sr(sw)}, 0\ns_cselect_b32 {sr(s0)}, {sr(sjo)}, {OOB}')
    p.wait(lg='all')
    k.T('f:acc')
    p.ins('s_barrier')
    for i in range(4): p.lg(f'ds_read_b32 {vr(ja+i)}, {vr(jc)} offset:{256*i}', 'jr0')
    p.wait(vm=['seed'])
    common()
    p.ins(f'v_bfe_u32 {vr(ja+4)}, {sr(sTok)}, {vr(ja+4)}, 8\nv_mov_b32 {vr(ja+5)}, 0xffffff00')
    p.wait(lg=['jr0'])
    p.ins(f'v_add_f32 {vr(ja)}, {vr(ja)}, {vr(ja+1)}\nv_add_f32 {vr(ja+2)}, {vr(ja+2)}, {vr(ja+3)}\nv_add_f32 {vr(ja)}, {vr(ja)}, {vr(ja+2)}\nv_add_u32 {vr(ja)}, 0x80, {vr(ja)}\nv_and_or_b32 {vr(ja)}, {vr(ja)}, {vr(ja+5)}, {vr(ja+4)}')
    p.vm(f'buffer_store_dword {vr(ja)}, {vr(jad+2)}, {sr(sWS,4)}, {sr(s0)} offen sc1')
    k.T('f:part')
    marks(ja + 4)
    p.ins(f's_lshl_b32 {sr(s0)}, {sr(sw)}, 7\ns_add_u32 {sr(s0)}, {sr(s0)}, s2\ns_lshl_b32 {sr(s0)}, {sr(s0)}, 13\nv_lshlrev_b32 {vr(vt+2)}, 3, v0')
    t1 = VM(p, f'buffer_load_dword a252, {vr(vt+2)}, {sr(sWQ,4)}, {sr(so)} offen {g1.get("tfl", "")}', 't1')
    p.ins(f's_mov_b32 {sr(so)}, {sr(s0)}')
    if g1.get('t1', 1) == 0: t1()
    p.ins(f's_mov_b32 {sr(sP+3)}, 0x20000\ns_sub_u32 {sr(s1)}, {sr(s0)}, {2<<20}\ns_add_u32 {sr(s0)}, {sr(s0)}, {4<<20}\ns_cmp_ge_u32 {sr(sw)}, 2\ns_cselect_b64 {sr(sP,2)}, {sr(sWO,2)}, {sr(sWQ,2)}\ns_cselect_b32 {sr(sP+2)}, {sr(sWO+2)}, {sr(sWQ+2)}\ns_cselect_b32 {sr(s0)}, {sr(s1)}, {sr(s0)}\nv_mov_b32 {vr(vt)}, {sr(sTok)}')
    p.wait(vm=['mk'])
    p.ins('s_barrier')
    k.flag_store(sfl, vt)
    if g1.get('t1', 1) == 1: t1()
    p.wait(vm=['t1'])
    qn = g1.get('qn', 64)
    def q3():
        p.ins(f's_lshr_b32 {sr(s1)}, s2, 3\ns_mul_i32 {sr(s1)}, {sr(s1)}, {qn*6144}\ns_add_u32 {sr(s1)}, {sr(s1)}, {sr(sWL+1)}\ns_and_b32 {sr(so)}, s2, 2\ns_lshl_b32 {sr(so)}, {sr(so)}, 9\ns_add_u32 {sr(s1)}, {sr(s1)}, {sr(so)}')
        p.ins(f's_and_b32 {sr(so)}, s2, 1\ns_lshl2_add_u32 {sr(so)}, {sr(so)}, {sr(sw)}\ns_cmp_lt_u32 {sr(so)}, 3\ns_cselect_b32 {sr(s1)}, {sr(s1)}, {OOB}\nv_min_u32 {vr(vt+3)}, {qn-1}, {vr(vl)}\nv_mul_u32_u24 {vr(vt+3)}, 6144, {vr(vt+3)}')
        p.vm(f'buffer_load_dword a252, {vr(vt+3)}, {sr(sWQ,4)}, {sr(s1)} offen offset:384')
    if g1.get('q3', 1) == 1: q3()
    p.vm(f'buffer_load_dword a252, {vr(vt+2)}, {sr(sP,4)}, {sr(s0)} offen')
    if g1.get('q3', 1) == 2: q3()
    pr = g1.get('prow', 128)
    if pr:
        p.ins(f's_lshl_b32 {sr(s0)}, {sr(shd)}, 7\ns_add_u32 {sr(s0)}, {sr(s0)}, s2\ns_mul_i32 {sr(s0)}, {sr(s0)}, 7168\ns_cmp_ge_u32 {sr(sw)}, 2\ns_cselect_b64 {sr(sP,2)}, {sr(sWU,2)}, {sr(sWG,2)}\ns_mov_b32 {sr(sP+2)}, {pr*7168}')
        if g1.get('pw', 1): p.ins('s_waitcnt vmcnt(0)')
        p.vm(f'buffer_load_dword a252, {vr(vt+2)}, {sr(sP,4)}, {sr(s0)} offen')
    for f in wops[:wpre]: f()
    k.T('f:t2')
    p.ins('s_branch J2\n.p2align 12')
    p.label('AL')
    p.items.append(('restore', 'role'))
    if xp == 5: xloads()
    k.T('l:al')
    p.ins('s_waitcnt vmcnt(8)')
    common()
    vpw, vpr, vsw, vsr = vt + 2, vt + 3, vt + 4, vt + 5
    p.ins(f's_add_u32 {sr(s0)}, {sr(sWL+1)}, {SP}\nv_add_u32 {vr(vpw)}, {sr(s0)}, v0\nv_lshl_add_u32 {vr(vpr)}, {vr(vt+1)}, 5, {sr(s0)}')
    p.ins(f'v_lshlrev_b32 {vr(vsr)}, 6, {vr(vt)}\nv_add_u32 {vr(vsr)}, {SP+8192}, {vr(vsr)}\ns_lshl_b32 {sr(s0)}, {sr(sw)}, 4\nv_add_u32 {vr(vsw)}, {sr(s0)}, {vr(vsr)}')
    p.ins(f'v_bfe_u32 {vr(vt+6)}, {vr(vl)}, 3, 1\nv_lshlrev_b32 {vr(vo)}, 9, {vr(vt+6)}\nv_bfe_u32 {vr(vt+6)}, {vr(vl)}, 4, 1\nv_lshl_add_u32 {vr(vo)}, {vr(vt+6)}, 8, {vr(vo)}')
    p.ins(f'v_lshrrev_b32 {vr(vt+6)}, 5, {vr(vl)}\nv_lshl_add_u32 {vr(vo)}, {vr(vt+6)}, 11, {vr(vo)}\nv_lshl_add_u32 {vr(vo)}, {vr(vt)}, 4, {vr(vo)}')
    p.ins(f's_bfe_u32 {sr(so)}, s2, 0x60001\ns_lshl3_add_u32 {sr(so)}, {sr(so)}, {sr(sw)}\ns_lshl_b32 {sr(so)}, {sr(so)}, 3\ns_and_b32 {sr(s0)}, s2, 1\ns_add_u32 {sr(so)}, {sr(so)}, {sr(s0)}\ns_lshl_b32 {sr(so)}, {sr(so)}, 10\ns_add_u32 {sr(so)}, {sr(so)}, {WS_H}')
    p.ins('\n'.join(f's_bfe_u32 {sr(sC+i)}, {sr(sTok)}, {hex(0x80000 + 8 * i)}' for i in range(4)))
    vh = ja + 4
    pe = g1.get('pearly', 2)
    assert pe
    vpp = vh + 1
    p.ins(f'v_and_b32 {vr(vpp)}, 0x200, v0\nv_mul_u32_u24 {vr(vpp)}, 3, {vr(vpp)}\nv_add_u32 {vr(vpp)}, {vr(vpp)}, v0')
    def ploads(tag=True):
        p.ins(f's_lshl_b32 {sr(s1)}, {sr(sw)}, 9')
        for q in range(4):
            p.vm(f'buffer_load_dwordx4 {vr(vs+4*q,4)}, {vr(vpp)}, {sr(sWS,4)}, {sr(s1)} offen sc1', ('part', 2 * q) if tag else None)
            p.ins(f's_add_u32 {sr(s1)}, {sr(s1)}, 4096')
            p.vm(f'buffer_load_dwordx4 {vr(vc+4*q,4)}, {vr(vpp)}, {sr(sWS,4)}, {sr(s1)} offen sc1', ('part', 2 * q + 1) if tag else None)
            if q < 3: p.ins(f's_add_u32 {sr(s1)}, {sr(s1)}, {24576-4096}')
    mv = jc
    for hf in range(2):
        q0 = vov
        for i in range(4):
            p.ins(f's_waitcnt vmcnt({7 - 4 * hf - i})')
            if 4 * hf + i in (0, 7): k.T(f'l:x{4 * hf + i}')
            for d in range(4): p.ins(unpack(vf + 32*hf + 8*i + 2*d, vx + 16*hf + 4*i + d))
            for d in range(4):
                r = vf + 32 * hf + 8 * i + 2 * d; t_ = q0 + 4 * (d & 1)
                if i == 0 and d < 2: p.ins(f'v_pk_mul_f32 {vr(t_+2,2)}, {vr(r,2)}, {vr(r,2)}')
                else: p.ins(f'v_pk_fma_f32 {vr(t_+2,2)}, {vr(r,2)}, {vr(r,2)}, {vr(t_+2,2)}\nv_pk_add_f32 {vr(t_,2)}, {vr(r,2)}, {vr(r-4 if i == 0 else t_,2)}')
        p.ins(f'v_pk_add_f32 {vr(q0,2)}, {vr(q0,2)}, {vr(q0+4,2)}\nv_pk_add_f32 {vr(q0+2,2)}, {vr(q0+2,2)}, {vr(q0+6,2)}\nv_add_f32 {vr(ja+2*hf)}, {vr(q0)}, {vr(q0+1)}\nv_add_f32 {vr(ja+2*hf+1)}, {vr(q0+2)}, {vr(q0+3)}')
    if pe == 1: ploads()
    p.ins('s_nop 0')
    for i in range(4): p.ins(f'v_add_f32_dpp {vr(mv+i)}, {vr(ja+i)}, {vr(ja+i)} row_ror:8 row_mask:0xf bank_mask:0xf')
    for st in (16, 32):
        for i in range(4): p.ins(f'v_mov_b32 {vr(ja+i)}, {vr(mv+i)}')
        for i in range(4): p.ins(f'v_permlane{st}_swap_b32 {vr(mv+i)}, {vr(ja+i)}')
        for i in (0, 2): p.ins(f'v_pk_add_f32 {vr(mv+i,2)}, {vr(mv+i,2)}, {vr(ja+i,2)}')
    p.lg(f'ds_write_b128 {vr(vsw)}, {vr(mv,4)}')
    p.wait(lg='all')
    p.ins('s_barrier')
    k.T('l:bar')
    for i in range(4): p.lg(f'ds_read_b128 {vr(vx+4*i,4)}, {vr(vsr)} offset:{16*i}')
    if pe == 2: ploads()
    p.wait(lg='all')
    for i in (0, 2, 4, 6): p.ins(f'v_pk_add_f32 {vr(vx+i,2)}, {vr(vx+i,2)}, {vr(vx+8+i,2)}')
    for i in (0, 2): p.ins(f'v_pk_add_f32 {vr(vx+i,2)}, {vr(vx+i,2)}, {vr(vx+4+i,2)}')
    for i in range(4): p.ins(f'v_mul_f32 {vr(mv+i)}, {f32(1/1024)}, {vr(vx+i)}')
    two = lambda f: p.ins('\n'.join(x for pr in zip(f(mv, mv + 1).split('\n'), f(mv + 2, mv + 3).split('\n')) for x in pr))
    two(lambda m_, v_: f'v_fma_f32 {vr(v_)}, -{vr(m_)}, {vr(m_)}, {vr(v_)}\nv_max_f32 {vr(v_)}, 0, {vr(v_)}\n' + rb(v_) + f'\nv_add_f32 {vr(v_)}, {f32(1e-5)}, {vr(v_)}\n' + rb(v_) + f'\nv_sqrt_f32 {vr(v_)}, {vr(v_)}\n' + rb(m_) + '\n' + rb(v_)
        + f'\nv_rcp_f32 {vr(v_)}, {vr(v_)}\nv_mul_f32 {vr(m_)}, -{vr(m_)}, {vr(v_)}')
    for i in range(0, 64, 2): p.ins(f'v_pk_fma_f32 {vr(vf+i,2)}, {vr(vf+i,2)}, {vr(mv+2*(i//32),2)}, {vr(mv+2*(i//32),2)} op_sel:[0,1,0] op_sel_hi:[1,1,0]')
    k.T('f:stat')
    for f in wops[:wpre]: f()
    p.ins(f's_mov_b32 {sr(spc)}, 30000' + ('\ns_branch PLC' if pe else ''))
    p.label('PLP')
    p.items.append(('save', 'plp'))
    ploads(False)
    if wpre: p.ins('s_waitcnt vmcnt(0)')
    p.items.append(('restore', 'plp'))
    p.label('PLC')
    for n in range(8):
        r = (vs, vc)[n & 1] + 4 * (n >> 1)
        p.wait(vm=[('part', n)])
        for i in range(4): p.ins(f'v_xor_b32 {vr(r+i)}, {sr(sC+i)}, {vr(r+i)}')
        p.ins(f'v_or3_b32 {vr(vh)}, {vr(vh) if n else 0}, {vr(r)}, {vr(r+1)}\nv_or3_b32 {vr(vh)}, {vr(vh)}, {vr(r+2)}, {vr(r+3)}')
    p.ins(f'v_and_b32 {vr(vh)}, 0xff, {vr(vh)}\nv_cmp_ne_u32 vcc, 0, {vr(vh)}\ns_sub_u32 {sr(spc)}, {sr(spc)}, 1\ns_cmp_eq_u32 {sr(spc)}, 0\ns_cbranch_scc1 PLX\ns_nop 1\ns_cbranch_vccnz PLP')
    p.label('PLX')
    k.T('f:got')
    hl = g1.get('hl', 1)
    if not hl: marks(ja)
    q0 = vh
    for i in (0, 2, 4, 6): p.ins(f'v_pk_add_f32 {vr(vc+i,2)}, {vr(vc+i,2)}, {vr(vc+8+i,2)}\nv_pk_add_f32 {vr(vs+i,2)}, {vr(vs+i,2)}, {vr(vs+8+i,2)}')
    for i in (0, 2): p.ins(f'v_pk_add_f32 {vr(vc+i,2)}, {vr(vc+i,2)}, {vr(vc+4+i,2)}\nv_pk_add_f32 {vr(vs+i,2)}, {vr(vs+i,2)}, {vr(vs+4+i,2)}')
    for r in (vs, vs + 2): p.ins(rb2(r, q0))
    p.lg(f'ds_write_b128 {vr(vpw)}, {vr(vs,4)} offset:1024')
    for r in (vc, vc + 2): p.ins(rb2(r, q0) + f'\nv_pk_add_f32 {vr(r,2)}, {vr(r,2)}, 1.0 op_sel_hi:[1,0]\n' + rb2(r, q0))
    p.lg(f'ds_write_b128 {vr(vpw)}, {vr(vc,4)}')
    for i in range(4):
        for h in range(2):
            p.lg(f'ds_read_b128 {vr(vs+8*i+4*h,4)}, {vr(vpr)} offset:{1024+256*i+16*h}')
            p.lg(f'ds_read_b128 {vr(vc+8*i+4*h,4)}, {vr(vpr)} offset:{256*i+16*h}', ('ms', i))
    C = []; C2 = []
    for i in range(4):
        C.append(WT(p, lg=[('ms', i)]))
        for hf in range(2):
            f_ = vf + 32 * hf + 8 * i
            for e in range(0, 8, 2): C.append(f'v_pk_fma_f32 {vr(f_+e,2)}, {vr(f_+e,2)}, {vr(vc+8*i+e,2)}, {vr(vs+8*i+e,2)}')
        for hf in range(2):
            for d in range(4): C.append(pk(vx + 16*hf + 4*i + d, vf + 32*hf + 8*i + 2*d))
        for hf in range(2):
            x_ = vx + 16 * hf + 4 * i
            C.append(f'v_permlane16_swap_b32 {vr(x_)}, {vr(x_+2)}\nv_permlane16_swap_b32 {vr(x_+1)}, {vr(x_+3)}')
        D_ = C2 if (i >= 2 and hl == 2) else C
        for hf in range(2): D_.append(VM(p, f'buffer_store_dwordx4 {vr(vx+16*hf+4*i,4)}, {vr(vo)}, {sr(sWS,4)}, {sr(so)} offen offset:{128*hf} sc1', ('hs', i >> 1)))
        if i < 3: D_.append(f's_add_u32 {sr(so)}, {sr(so)}, {4096 if i != 1 else 32768 - 4096}')
    assert not weave(p, C, wops[:3 * wln], g1.get('wstep', 10), -8)
    h2 = g1.get('h2', True)
    if hl == 1: marks(ja)
    k.publish('h', sfl, vt, vm=[('hs', 0 if h2 else 1)])
    if hl == 2:
        weave(p, C2, [], 1); marks(ja)
    S.free(smk, 2)
    p.label('J2')
    if stop == 0: return finish(k)
    S.free(sP, 4)

    sc = Sched(p, g1.get('cap', 2))
    R1, DAS1 = g1.get('R', 9), 4
    abuf, wbuf = A(0), A(80)
    def wrd(s, t, j, h):
        st, sl = divmod(slot1(s), 3)
        return waddr + 2 * st + (t & 1), sl * SB1 + h * 6144 + j * 1024
    accr = lambda t, m: acc1 + (t * 4 + m) * 4 if m < 4 else acc1 + 96 + 2 * t
    co = Core(p, sc, NS1, 4, wbuf, R1, g1.get('lead', 20), abuf, DAS1, accr, wrd, ard=True, extra={0: [4], 2: [4]}, swap=(2, 3), KG=1, name='g1', bmargin=g1.get('bm', 1))
    nst = 34
    co.wst = lambda g_, q: (g_ // 2, q)
    co.build([([(x, 0) for x in KS1(s)], (4, 0, 2)[s % 3] + c) for s in range(nst) for c in range(2)])
    for s in range(0, 32, 3):
        co.await_[(s, 0, 4)] = co.sfirst[s]
        sc.before(co.sfirst[s], WT(p, lg=[co.atag(s, 0, 4)]), 0)
    alead = g1.get('alead', 23); be, b0 = g1.get('be', 2), g1.get('b0', 6)
    co.barriers(lambda s: [('D1', s, n) for n in DL1(s)], alead=alead, have=range(g1.get('have', 2)), grp=lambda s: s if s < b0 else s - (s - b0) % be)
    MS = 26
    for f in wops[wpre:]: f()
    k.hop('a', 'AL', 'G3S', (1, 2, 3))
    k.poll('h', vph, FL_H, vt + 1, spc, pre=lambda: p.wait(vm=[('hs', 1), 'mk']))
    n0 = g1.get('n0', 3)
    for s in range(n0):
        for n in range(3, 6): dma1(s, n, p.ins, now)
    p.ins(f's_add_u32 {sr(sfl)}, {sr(sfl)}, 4\ns_mov_b32 {sr(sC)}, {FL_H + 4}')
    k.flag_store(sfl, vt)
    p.wait(vm=[('D1', g1.get('have', 2) - 1, 5)])
    p.ins('s_barrier')
    ev = []
    for s in range(n0, npre):
        for n in range(3 if s < npw else 0, 6): ev.append((g1.get('dsp', 4) * len(ev), s, n))
    jp_, jmn, jpa = g1.get('jm', (33, 0, 0))
    jm0 = co.sfirst[jp_] if jmn else INF; jm1 = jm0 + jpa
    sc.vgap = lambda i: g1.get('vgap', 3) if i < jm0 else 3
    sc.mcap = lambda i: g1.get('mcap', 2)
    dsl = [i * MS // 6 for i in range(6)]
    for s in range(npre, nst):
        for n in DL1(s):
            e = max(co.slotfree(s) + 1, ev[-1][0] + (g1.get('dsp', 4) if ev[-1][0] < jm0 else g1.get('dsp2', 3.6)))
            if jm0 <= e < jm1: e = jm1
            ev.append((e, s, n))
    for i in range(jmn):
        sc.add('u', jm0 + 3 * i, jm0 + 3 * i + 6, VM(p, f'buffer_load_dwordx4 {vr(jw+4*i,4)}, {vr(jad)}, {sr(sWM,4)}, {sr(sjw)} offen nt', ('jw', i)))
        sc.add('u', jm0 + 3 * i, INF, f's_add_u32 {sr(sjw)}, {sr(sjw)}, 12288')
    e2 = int([x[0] for x in ev if x[1:] == (16, 3)][0]) - 5
    eh = min(e2 - 60, jm0 - 4)
    sc.add('c', eh, eh + 4, VM(p, f'buffer_load_dword {vr(vt+7)}, {vr(vph)}, {sr(sWS,4)}, {sr(sC)} offen sc1', 'hf'))
    oh = sc.add('c', e2, e2 + 3, lambda: k.check(vph, sC, vt + 7, spc, 'hf')); oh.cost = 4; oh.wscc = True
    for e, s, n in ev:
        e = int(e)
        dma1(s, n, lambda t_: sc.add('v', max(e - 3, 0), co.bar[s], t_, after=oh if (s, n) == (16, 3) else None), lambda f, sep: sc.add('v', e, co.bar[s], f, sep=sep))
    lastd = e
    co.wreads()
    for s in range(32):
        st, sl = divmod(slot1(s), 3)
        for i, m in enumerate((0, 1, 2, 3, 4)):
            ar, off = (xaddr + st, sl * SB1 + SB1 - 1024) if m == 4 else (aaddr + st, sl * SB1 + WB1 + m * 1024)
            dl = co.await_[(s, 0, m)]
            e = max(co.bar[s], co.alast[(s - DAS1, 0, m)] if s >= DAS1 else -1, dl - alead + 1 + 2 * i)
            co.rq.append((e, dl, LG(p, f'ds_read_b128 {vr(co.abf(s,0,m),4)}, {vr(ar)} offset:{off}', co.atag(s, 0, m))))
    co.flush_reads()

    sx0, sx1 = s0, s1
    pos = [g1.get('fpos', 100)]
    def F(txt, d=INF, sep=False):
        o = sc.add('x', int(pos[0]), d, txt, sep=sep)
        pos[0] += (txt.count('\n') + 1 if isinstance(txt, str) else 1) * g1.get('fstep', 1.6)
        return o
    u = vt
    sm2 = S.alloc(); sn2 = S.alloc(); sorg = S.alloc(); sro = S.alloc(); sW4 = S.alloc(); soo = S.alloc(2); sk2 = so
    sy = S.alloc(); sst = S.alloc(); sax = S.alloc(); sor2 = S.alloc()
    vw2 = V.alloc('vw2', 4); vro = V.alloc('ro', 2); ea = V.alloc('ea', 6); vM = V.alloc('pm', 4)
    wa2 = V.alloc('wa2', 8); vxa = V.alloc('xa', 4); va2 = V.alloc('va2'); vgo = V.alloc('go', 3); vpo = V.alloc('po', 4)
    F(f's_bfe_u32 {sr(sorg)}, s2, 0x30003\ns_xor_b32 {sr(sorg)}, {sr(sorg)}, {cfg["g4"].get("wx", 1)}\ns_and_b32 {sr(sx0)}, s2, 1\ns_lshl1_add_u32 {sr(sn2)}, {sr(sorg)}, {sr(sx0)}')
    ob = cfg['g2'].get('ob', 1)
    F(f's_and_b32 {sr(sor2)}, {sr(sorg)}, {(1 << ob) - 1}\ns_lshl_b32 {sr(sor2)}, {sr(sor2)}, {21 - ob}')
    F(f's_bfe_u32 {sr(sm2)}, s2, 0x20001\ns_lshr_b32 {sr(sx1)}, s2, 6\ns_lshl2_add_u32 {sr(sm2)}, {sr(sm2)}, {sr(sx1)}\ns_lshl_b32 {sr(sW4)}, {sr(sw)}, 12')
    F(f's_lshl_b32 {sr(sx0)}, {sr(sn2)}, 7\ns_lshl_b32 {sr(sx1)}, {sr(sw)}, 16\ns_add_u32 {sr(sx0)}, {sr(sx0)}, {sr(sx1)}\nv_lshrrev_b32 {vr(u)}, 3, {vr(vl)}\nv_lshlrev_b32 {vr(u)}, 11, {vr(u)}\nv_add3_u32 {vr(vw2)}, {vr(u)}, {vr(vswz)}, {sr(sx0)}')
    for i in range(1, 4): F(f'v_add_u32 {vr(vw2+i)}, {i*(16384-1024)}, {vr(vw2)}')
    F(f's_lshl_b32 {sr(sro)}, {sr(sm2)}, 18\ns_add_u32 {sr(sro)}, {sr(sro)}, {sr(sx0)}')
    osu2 = F(f'v_and_b32 {vr(u+1)}, 7, {vr(vl)}\nv_lshrrev_b32 {vr(u+2)}, 4, {vr(vl)}\nv_xor_b32 {vr(u+1)}, {vr(u+1)}, {vr(u+2)}\nv_lshl_add_u32 {vr(vro)}, {vr(u+1)}, 4, {vr(u)}\nv_xor_b32 {vr(vro+1)}, 64, {vr(vro)}\nv_add_u32 {vr(vro+1)}, {16384-1024}, {vr(vro+1)}')
    F(f's_lshl_b32 {sr(sx0)}, {sr(sw)}, 10\ns_add_u32 {sr(sx0)}, {sr(sx0)}, {GL}\nv_add_u32 {vr(vgo+2)}, {sr(sx0)}, v0\nv_lshl_add_u32 {vr(vgo)}, {vr(u+2)}, 4, {sr(sx0)}\nv_and_b32 {vr(u)}, 1, {vr(vl)}\nv_lshlrev_b32 {vr(u)}, 8, {vr(u)}\nv_sub_u32 {vr(vgo+1)}, {vr(vgo)}, {vr(u)}')
    F(f's_lshl_b32 {sr(sx0)}, {sr(sn2)}, 7\nv_and_b32 {vr(u+1)}, 0xf0, v0\nv_lshl_add_u32 {vr(u+1)}, {vr(u+2)}, 12, {vr(u+1)}\ns_lshl1_add_u32 {sr(sx0)}, {sr(sx0)}, 8192\nv_add_u32 {vr(vpo+1)}, {sr(sx0)}, {vr(u+1)}')
    owa2 = F(f'v_lshrrev_b32 {vr(u)}, 2, {vr(vl)}\nv_lshl_add_u32 {vr(wa2)}, {vr(u)}, 7, {vr(vrd)}')
    for t in range(1, 8): F(f'v_xor_b32 {vr(wa2+t)}, {((t & 3) << 5) + ((t >> 2) << 16)}, {vr(wa2)}')
    F(f's_add_u32 {sr(sx0)}, {sr(sW4)}, {XL}\n' + xa_setup(vxa, u, sx0, vl))
    F(f's_lshl2_add_u32 {sr(sx0)}, {sr(sm2)}, {sr(sw)}\ns_lshl_b32 {sr(sx1)}, {sr(sx0)}, 16\ns_add_u32 {sr(sx1)}, {sr(sx1)}, {WS_O}\nv_add_u32 {vr(va2)}, {sr(sx1)}, v0')
    F(f's_lshl4_add_u32 {sr(sst)}, {sr(sx0)}, {sr(sn2)}\ns_lshl_b32 {sr(sst)}, {sr(sst)}, 8\ns_add_u32 {sr(sst)}, {sr(sst)}, {WS_ST}')
    F(f's_lshr_b32 {sr(sy)}, {sr(sx0)}, 1\ns_lshl_b32 {sr(sy)}, {sr(sy)}, 5\ns_add_u32 {sr(sy)}, {sr(sy)}, {sr(sn2)}\ns_and_b32 {sr(sx1)}, {sr(sx0)}, 1\ns_lshl1_add_u32 {sr(sy)}, {sr(sy)}, {sr(sx1)}\ns_lshl_b32 {sr(sy)}, {sr(sy)}, 11\ns_add_u32 {sr(sy)}, {sr(sy)}, {WS_Y}')
    F(f's_lshl2_add_u32 {sr(sax)}, {sr(sx0)}, {sr(sn2)}\ns_lshl_b32 {sr(sax)}, {sr(sax)}, 10\ns_add_u32 {sr(sax)}, {sr(sax)}, {WS_AUX}\ns_and_b32 {sr(sx0)}, {sr(sx0)}, 7\ns_cselect_b32 {sr(sax)}, {OOB}, {sr(sax)}')
    F(f's_and_b32 {sr(sx0)}, {sr(sm2)}, 7\ns_lshl_b32 {sr(sx0)}, {sr(sx0)}, 5\ns_lshr_b32 {sr(sx1)}, {sr(sm2)}, 3\ns_lshl2_add_u32 {sr(sx0)}, {sr(sx1)}, {sr(sx0)}')
    F(f'v_and_b32 {vr(u)}, 3, {vr(vl)}\nv_bfe_u32 {vr(u+1)}, {vr(vl)}, 2, 2\nv_lshl_add_u32 {vr(u)}, {vr(u)}, 3, {vr(u+1)}\nv_add_lshl_u32 {vr(vpo+2)}, {vr(u)}, {sr(sx0)}, 7')
    F(f'v_add_u32 {vr(vpo+2)}, {FL_O-FL_H}, {vr(vpo+2)}\nv_and_b32 {vr(u)}, 7, {vr(vl)}\nv_and_b32 {vr(u+1)}, 8, {vr(vl)}\nv_lshl_add_u32 {vr(u)}, {vr(u+1)}, 4, {vr(u)}\ns_lshl_b32 {sr(sx0)}, {sr(sn2)}, 3\nv_add_lshl_u32 {vr(u)}, {vr(u)}, {sr(sx0)}, 7\nv_cmp_gt_u32 vcc, 16, {vr(vl)}\nv_add_u32 {vr(u)}, 4, {vr(u)}\ns_nop 0\nv_cndmask_b32 {vr(vpo+2)}, {vr(u)}, {vr(vpo+2)}, vcc')
    F(f's_lshl_b32 {sr(sx0)}, {sr(swm)}, 3\ns_add_u32 {sr(sx0)}, {sr(sx0)}, {EX}\nv_add_u32 {vr(u)}, {sr(sx0)}, v0\nv_add_u32 {vr(ea)}, {sr(sWL+1)}, {vr(u)}\nv_xor_b32 {vr(ea+1)}, 8, {vr(ea)}')
    F(f's_lshl_b32 {sr(sx0)}, {sr(shd)}, 11\ns_add_u32 {sr(sx0)}, {sr(sx0)}, 8192\nv_add_u32 {vr(ea+2)}, {sr(sx0)}, {vr(u)}\ns_lshl_b32 {sr(sx0)}, {sr(swm)}, 13\nv_subrev_u32 {vr(ea+3)}, {sr(sx0)}, {vr(ea+2)}\nv_xor_b32 {vr(ea+4)}, 8, {vr(ea+3)}\nv_and_b32 {vr(ea+5)}, -9, {vr(ea+3)}')
    assert EX % 16 == 0
    q_ = lambda l: l & 15
    gg = lambda l: l >> 4
    mpa = lanemask(lambda l: not (4 * gg(l) + (l & 1) <= q_(l))); mpb = lanemask(lambda l: not (4 * gg(l) + 2 + (l & 1) <= q_(l)))
    mO, mPa, mPb = S.alloc(2, 2), S.alloc(2, 2), S.alloc(2, 2)
    F(smov64(mO, lanemask(lambda l: l & 1)) + '\n' + smov64(mPa, mpa) + '\n' + smov64(mPb, mpb))
    F(f'v_mov_b32 {vr(u)}, 0x0c0c0100\nv_mov_b32 {vr(u+1)}, 0x01000c0c\nv_cndmask_b32 {vr(u)}, {vr(u)}, {vr(u+1)}, {sr(mO,2)}\nv_mov_b32 {vr(u+2)}, 0x0c0c0c0c\nv_cndmask_b32 {vr(vM)}, {vr(u+2)}, {vr(u)}, {sr(mPa,2)}\nv_cndmask_b32 {vr(vM+2)}, {vr(u)}, {vr(u+2)}, {sr(mPa,2)}')
    F(f'v_mov_b32 {vr(u)}, 0x0c0c0302\nv_mov_b32 {vr(u+1)}, 0x03020c0c\nv_cndmask_b32 {vr(u)}, {vr(u)}, {vr(u+1)}, {sr(mO,2)}\nv_cndmask_b32 {vr(vM+1)}, {vr(u+2)}, {vr(u)}, {sr(mPb,2)}\nv_cndmask_b32 {vr(vM+3)}, {vr(u)}, {vr(u+2)}, {sr(mPb,2)}')
    F(f's_lshl1_add_u32 {sr(sx0)}, {sr(sm)}, {sr(swm)}\ns_lshl_b32 {sr(soo)}, {sr(sx0)}, 17\ns_lshl1_add_u32 {sr(sx0)}, {sr(sn)}, {sr(shd)}\ns_lshl_b32 {sr(sx0)}, {sr(sx0)}, 11')
    F(f's_add_u32 {sr(soo)}, {sr(soo)}, {sr(sx0)}\ns_add_u32 {sr(soo)}, {sr(soo)}, {WS_O}\ns_add_u32 {sr(soo+1)}, {sr(soo)}, 65536\ns_or_b32 {sr(sm)}, {sr(sm)}, {sr(swm)}')
    F(k.flag_off(sfl, FL_O))
    S.free(sn); S.free(shd)
    sm3 = S.alloc(); sn3 = S.alloc(); sT3 = S.alloc(2); sWL3 = S.alloc(); sAb = S.alloc()
    wa3, vd3, SB3, ldw = 1, 3, 28672, 7168
    F(f's_lshr_b32 {sr(sx1)}, s2, 3\ns_and_b32 {sr(sn3)}, {sr(sx1)}, 3\ns_lshr_b32 {sr(sm3)}, {sr(sx1)}, 2\ns_lshl1_add_u32 {sr(sx1)}, {sr(sn3)}, {sr(sm3)}\ns_and_b32 {sr(sx1)}, {sr(sx1)}, 7\ns_and_b32 {sr(sx0)}, s2, 7\ns_lshl2_add_u32 {sr(sn3)}, {sr(sx0)}, {sr(sn3)}')
    for r, T in enumerate(g3_orders(cfg['g3'].get('aux', (6, 9)), cfg['g3'].get('leads'))):
        lo, hi = (sum(c << (4 * i) for i, c in enumerate(T[8*h:8*h+8])) for h in range(2))
        F(f's_mov_b32 {sr(sT3)}, 0x{lo:x}\ns_mov_b32 {sr(sT3+1)}, 0x{hi:x}' if r == 0 else f's_cmp_eq_u32 {sr(sx1)}, {r}\ns_cselect_b32 {sr(sT3)}, 0x{lo:x}, {sr(sT3)}\ns_cselect_b32 {sr(sT3+1)}, 0x{hi:x}, {sr(sT3+1)}')
    F(f's_mul_i32 {sr(sWL3)}, {sr(sw)}, 7168\ns_lshl2_add_u32 {sr(sAb)}, {sr(sm3)}, {sr(sw)}\ns_lshl_b32 {sr(sAb)}, {sr(sAb)}, 17\ns_add_u32 {sr(sAb)}, {sr(sAb)}, {WS_Y}')
    osel = F(f's_cmp_ge_u32 {sr(sw)}, 2\ns_cselect_b64 {sr(sWG,2)}, {sr(sWU,2)}, {sr(sWG,2)}')
    F(f'v_lshrrev_b32 {vr(u)}, 2, {vr(vl)}\nv_mul_u32_u24 {vr(u)}, 224, {vr(u)}\nv_and_b32 {vr(u+1)}, 3, {vr(vl)}\nv_lshl_add_u32 {vr(wa3)}, {vr(u+1)}, 3, {vr(u)}\nv_add_u32 {vr(wa3+1)}, {2*SB3}, {vr(wa3)}')
    F(f's_mul_i32 {sr(sx0)}, {sr(sn3)}, 224\ns_and_b32 {sr(sx1)}, {sr(sw)}, 1\ns_mul_i32 {sr(sx1)}, {sr(sx1)}, {64*ldw}\ns_add_u32 {sr(sx0)}, {sr(sx0)}, {sr(sx1)}\ns_and_b32 {sr(sx1)}, {sr(sn3)}, 1\ns_lshl_b32 {sr(sx1)}, {sr(sx1)}, 1')
    for i in range(7):
        F(f'v_add_u32 {vr(u)}, {64*i}, {vr(vl)}\nv_mul_u32_u24 {vr(u+1)}, 4682, {vr(u)}\nv_lshrrev_b32 {vr(u+1)}, 16, {vr(u+1)}\nv_mul_i32_i24 {vr(u+2)}, -14, {vr(u+1)}\nv_add3_u32 {vr(u)}, {vr(u)}, {vr(u+2)}, {sr(sx1)}')
        F(f'v_add_u32 {vr(u+2)}, -14, {vr(u)}\nv_min_u32 {vr(u)}, {vr(u)}, {vr(u+2)}\nv_mul_u32_u24 {vr(u+1)}, {ldw}, {vr(u+1)}\nv_lshl_add_u32 {vr(u)}, {vr(u)}, 4, {vr(u+1)}\nv_add_u32 {vr(vd3+i)}, {sr(sx0)}, {vr(u)}')
        F(f's_sub_u32 {sr(sx0)}, {sr(sx0)}, {1024 if i != 3 else -3072}')
    F(f's_and_b32 {sr(sx0)}, {sr(sm3)}, 1\ns_lshl_b32 {sr(sx0)}, {sr(sx0)}, 7\ns_and_b32 {sr(sx1)}, {sr(sm3)}, 6\ns_add_u32 {sr(sx0)}, {sr(sx0)}, {sr(sx1)}')
    F(f'v_bfe_u32 {vr(u)}, {vr(vl)}, 1, 4\nv_and_b32 {vr(u+1)}, 1, {vr(vl)}\nv_lshl_add_u32 {vr(u)}, {vr(u)}, 3, {vr(u+1)}\nv_add_lshl_u32 {vr(vpo+3)}, {vr(u)}, {sr(sx0)}, 7')
    F(f'v_add_u32 {vr(vpo+3)}, {FL_Y-FL_H}, {vr(vpo+3)}\nv_and_b32 {vr(u)}, 7, {vr(vl)}\nv_lshlrev_b32 {vr(u)}, 5, {vr(u)}\ns_and_b32 {sr(sx0)}, s2, 31\nv_add_lshl_u32 {vr(u)}, {vr(u)}, {sr(sx0)}, 7\nv_cmp_gt_u32 vcc, 32, {vr(vl)}\nv_add_u32 {vr(u)}, 4, {vr(u)}\ns_nop 0\nv_cndmask_b32 {vr(vpo+3)}, {vr(u)}, {vr(vpo+3)}, vcc', d=co.end - 60)
    def wo_dma(pc, i, E, EV):
        if i == 0: E(f's_xor_b32 {sr(sk2)}, {sr(sor2)}, {pc << 18}\ns_add_u32 m0, {sr(sW4)}, {WOP[pc]*16384}')
        EV(VM(p, f'buffer_load_dwordx4 {vr(vw2+i)}, {sr(sWO,4)}, {sr(sk2)} offen offset:{1024*i} lds', ('D2', pc, i)), i == 0)
    e = lastd + 4
    def wo_in_loop(lo, hi, e):
        for ps in range(lo, hi):
            pc = WOP.index(ps)
            e = max(e, co.free_after(27 + ((ps + 1) * 16384 - 1) // SB1) + 1)
            for i in range(4):
                wo_dma(pc, i, lambda t_: sc.add('v', e - 4, INF, t_), lambda f, sep: sc.add('v', e, INF, f, sep=sep)); e += 4
        return e
    npl0, npl = g1.get('npl0', 1), g1.get('npl', 3)
    sc.add('v', e - 6, INF, 's_nop 0', after=osu2)
    if g1.get('whelp') is not None:
        eh = lastd + g1['whelp']; vhp = vrd
        sc.add('h', eh - 30, INF, f's_lshr_b32 {sr(sC+2)}, s2, 3\ns_lshl2_add_u32 {sr(sC+2)}, {sr(sC+2)}, {sr(sw)}\ns_bfe_u32 {sr(sC+3)}, s2, 0x20001\ns_lshl_b32 {sr(sC+3)}, {sr(sC+3)}, 7\ns_add_u32 {sr(sC+3)}, {sr(sC+3)}, {sr(sC+2)}\ns_lshl_b32 {sr(sC+3)}, {sr(sC+3)}, 13\ns_lshl_b32 {sr(sC+2)}, {sr(sC+2)}, 14'
               f'\ns_bitcmp1_b32 s2, 0\ns_cselect_b32 {sr(sC+2)}, {sr(sC+2)}, {OOB}\ns_cselect_b32 {sr(sC+3)}, {sr(sC+3)}, {OOB}\nv_and_b32 {vr(vhp)}, 15, {vr(vl)}\nv_lshlrev_b32 {vr(vhp)}, 10, {vr(vhp)}', after=owa2)
        sc.add('h', eh, eh + 6, VM(p, f'buffer_load_dword a252, {vr(vhp)}, {sr(sWO,4)}, {sr(sC+2)} offen offset:384'))
        sc.add('h', eh, INF, f'v_and_b32 {vr(vhp)}, 0x1fff, {vr(vhp)}')
        sc.add('h', eh + 4, eh + 12, VM(p, f'buffer_load_dword a252, {vr(vhp)}, {sr(sX,4)}, {sr(sC+3)} offen offset:384'))
    e = wo_in_loop(0, npl0, e)
    def xtouch(e):
        sc.add('v', e - 8, INF, f'v_mul_u32_u24 {vr(vph)}, 43, {vr(vl)}\nv_lshrrev_b32 {vr(vph)}, 7, {vr(vph)}\nv_mul_i32_i24 {vr(vswz)}, -3, {vr(vph)}\nv_min_u32 {vr(vph)}, (XEND-G3S)/4096, {vr(vph)}\nv_add_u32 {vr(vswz)}, {vr(vswz)}, {vr(vl)}\nv_lshlrev_b32 {vr(vswz)}, 7, {vr(vswz)}\nv_lshl_add_u32 {vr(vph)}, {vr(vph)}, 12, {vr(vswz)}\n'
               f's_add_u32 s94, s92, AL-{k.name}+((G3S-AL+4095)/4096)*4096\ns_addc_u32 s95, s93, 0')
        sc.add('v', e, INF, VM(p, f'global_load_dword a252, {vr(vph)}, s[94:95]'))
        sc.add('v', e, INF, k.flag_off(sC, FL_H, 2) + f'\nv_and_b32 {vr(vph)}, 7, {vr(vl)}\nv_lshlrev_b32 {vr(vph)}, 15, {vr(vph)}')
        sc.add('v', e + 4, INF, VM(p, f'buffer_load_dword a252, {vr(vph)}, {sr(sWS,4)}, {sr(sC)} offen sc1')); e += 4
        pr = g1.get('prow2', 128)
        if pr:
            nl = pr * 56 // 512
            sc.add('v', e, INF, f's_and_b32 {sr(sC)}, {sr(sw)}, 1\ns_lshl1_add_u32 {sr(sC)}, s2, {sr(sC)}\ns_mul_i32 {sr(sC)}, {sr(sC)}, {nl}\nv_min_u32 {vr(vph)}, {nl-1}, {vr(vl)}\nv_add_u32 {vr(vph)}, {sr(sC)}, {vr(vph)}'
                   f'\nv_lshrrev_b32 {vr(vswz)}, 8, {vr(vph)}\nv_mul_u32_u24 {vr(vswz)}, 9363, {vr(vswz)}\nv_lshrrev_b32 {vr(vswz)}, 16, {vr(vswz)}\nv_mul_u32_u24 {vr(vswz)}, 1792, {vr(vswz)}\nv_add_lshl_u32 {vr(vph)}, {vr(vph)}, {vr(vswz)}, 7', after=osel)
            sc.add('v', e + 4, INF, VM(p, f'buffer_load_dword a252, {vr(vph)}, {sr(sWG,4)}, 0 offen'))
        return e + 8
    if g1.get('xt', 0) == 0: e = xtouch(e)
    if g1.get('jhelp', True) and not jmn:
        sc.add('v', e - 20, INF, f's_bfe_u32 {sr(sC)}, s2, 0x30004\ns_and_b32 {sr(sC+1)}, s2, 3\ns_lshl3_add_u32 {sr(sC)}, {sr(sC+1)}, {sr(sC)}\ns_lshl2_add_u32 {sr(sC)}, {sr(sC)}, {sr(sw)}\ns_mul_i32 {sr(sC)}, {sr(sC)}, {8*12288}\ns_and_b32 {sr(sC+1)}, {sr(sjw)}, 0x3800\ns_add_u32 {sr(sC)}, {sr(sC)}, {sr(sC+1)}\ns_and_b32 {sr(sC+1)}, s2, 8\ns_lshl_b32 {sr(sC+1)}, {sr(sC+1)}, 7\ns_add_u32 {sr(sC)}, {sr(sC)}, {sr(sC+1)}'
               f'\nv_and_b32 {vr(vph)}, 7, {vr(vl)}\nv_mul_u32_u24 {vr(vph)}, 12288, {vr(vph)}')
        sc.add('v', e, INF, VM(p, f'buffer_load_dword a252, {vr(vph)}, {sr(sWM,4)}, {sr(sC)} offen offset:384')); e += 4
    for i in range(jmn, 8):
        sc.add('v', e, INF, VM(p, f'buffer_load_dwordx4 {vr(jw+4*i,4)}, {vr(jad)}, {sr(sWM,4)}, {sr(sjw)} offen nt', ('jw', i)))
        if i < 7: sc.add('v', e, INF, f's_add_u32 {sr(sjw)}, {sr(sjw)}, 12288')
        e += g1.get('jstep', 4)
    if g1.get('xt', 0) == 1: e = xtouch(e + g1.get('xgap', 0))
    e = wo_in_loop(npl0, npl, e + g1.get('jgap', 50))
    assert e < co.end + 4
    sc.bias = dict(x=10000)
    k.ctouch(sc, g1.get('ct0', 40), lastd - 20, 270)
    kf = lambda m: accr(0, m) if m >= 0 else vov
    vd = lambda c, m: accr(2 + c, 0) + 2 * (m + 1)
    def cv(d, r): return pk(d, r) + '\n' + pk(d + 1, r + 2) if d != r + 2 else pk(d + 1, r + 2) + '\n' + pk(d, r)
    def X(e, txt): sc.add('x', e, INF, txt)
    hk, hv = accr(0, 4), accr(2, 4)
    e = co.cdone[(0, 4)] + 8
    X(e, cv(hk, hk))
    X(e, LG(p, f'ds_write_b64 {vr(ea+2)}, {vr(hk,2)}'))
    for m in (3, 2, 1, 0):
        e = co.cdone[(1, m)] + 7
        X(e, cv(kf(m), kf(m)) + '\n' + cv(kf(m) + 2, accr(1, m)))
        if m == 3:
            X(e, LG(p, f'ds_write_b64 {vr(ea)}, {vr(kf(3),2)}'))
            X(e, LG(p, f'ds_write_b64 {vr(ea+1)}, {vr(kf(3)+2,2)}'))
    for m in range(4): X(co.cdone[(2, m)] + 7, cv(vd(0, m), accr(2, m)))
    e = co.cdone[(2, 4)] + 7
    X(e, cv(hv, hv))
    X(e, LG(p, f'ds_write_b64 {vr(ea)}, {vr(vd(0,3),2)} offset:1024'))
    X(e, LG(p, f'ds_write_b64 {vr(ea+2)}, {vr(hv,2)} offset:1024'))
    e = co.cdone[(3, 0)] + 7
    for m in range(4): X(e, cv(vd(1, m), accr(3, m)))
    X(e, LG(p, f'ds_write_b64 {vr(ea+1)}, {vr(vd(1,3),2)} offset:1024'))
    if TL:
        for s in g1.get('marks', (2, 6, 26)): sc.before(co.sfirst[s] + 1, lambda s=s: k.T(f'g1:s{s}'), 0)
    left = sc.run()
    k.T('g1:loopend')
    for st_, o in left: now(o.fn, o.sep)
    k.info = f'g1 over {sc.over} left {len(left)}'
    p.wait(lg='all')
    p.ins('s_barrier')
    for c in range(2): p.lg(f'ds_read_b64 {vr(kf(-1)+2*c,2)}, {vr(ea+3+c)}', ('pk', c))
    for c in range(2): p.lg(f'ds_read_b64 {vr(vd(c,-1),2)}, {vr(ea+5)} offset:{1024+8*c}', ('pv', c))
    Q = lambda m: accr(4, m)
    Sv = lambda m, h: accr(5 if h else 1, m)
    P_ = lambda m: accr(1, m)
    O_ = lambda m, c: accr(4 if c else 0, m)
    C = []
    mF = sC
    SCL = (32 ** -0.5) * LOG2E
    for m in (3, 2, 1, 0):
        C.append(cv(Q(m), Q(m)) + '\n' + cv(Q(m) + 2, accr(5, m)))
        if m < 3:
            for h in (1, 0): C.append(f'{MFMA} {vr(Sv(m+1,h),4)}, {vr(kf(m+h),4)}, {vr(Q(m+1),4)}, 0')
    C.append(f's_cmp_eq_u32 {sr(sm)}, 0\ns_cselect_b64 {sr(mF,2)}, {sr(mPa,2)}, 0\ns_cselect_b64 {sr(mF+2,2)}, {sr(mPb,2)}, 0')
    C.append(WT(p, lg=[('pk', 1)]))
    for h in (1, 0): C.append(f'{MFMA} {vr(Sv(0,h),4)}, {vr(kf(h-1),4)}, {vr(Q(0),4)}, 0')
    def vswap():
        p.ins(f's_cmp_eq_u32 {sr(swm)}, 0\ns_cbranch_scc1 F_sw')
        for i in range(8): p.ins(f'v_swap_b32 {vr(vd(0,0)+i)}, {vr(vd(1,0)+i)}')
        p.label('F_sw')
    C.append(vswap)
    C.append(f'v_mov_b32 {vr(vt)}, {f32(-1e9 * 32 ** 0.5)}\nv_mov_b32 {vr(vt+2)}, {f32(SCL)}')
    def al(f):
        for m in (3, 2, 1, 0): C.append(f(m, Wv + 4 * m))
    al(lambda m, w: '\n'.join(f'v_cndmask_b32 {vr(w+i)}, {vr(Sv(m,i>>1)+2*(i&1))}, {vr(Sv(m,i>>1)+2*(i&1)+1)}, {sr(mO,2)}' for i in (2, 3, 0, 1)))
    al(lambda m, w: f'v_cndmask_b32 {vr(w)}, {vr(w+2)}, {vr(w)}, {sr(mPa,2)}\nv_cndmask_b32 {vr(w+1)}, {vr(w+3)}, {vr(w+1)}, {sr(mPb,2)}')
    C.append(f'v_cndmask_b32 {vr(Wv)}, {vr(Wv)}, {vr(vt)}, {sr(mF,2)}\nv_cndmask_b32 {vr(Wv+1)}, {vr(Wv+1)}, {vr(vt)}, {sr(mF+2,2)}')
    def xred(op):
        al(lambda m, w: f'{op} {vr(w+2)}, {vr(w)}, {vr(w+1)}\n{op} {vr(w+3)}, {vr(w)}, {vr(w+1)}')
        al(lambda m, w: f'v_permlane16_swap_b32 {vr(w+2)}, {vr(w+3)}')
        al(lambda m, w: f'{op} {vr(w+2)}, {vr(w+2)}, {vr(w+3)}')
        al(lambda m, w: f'v_mov_b32 {vr(w+3)}, {vr(w+2)}')
        al(lambda m, w: f'v_permlane32_swap_b32 {vr(w+2)}, {vr(w+3)}')
        al(lambda m, w: f'{op} {vr(w+2)}, {vr(w+2)}, {vr(w+3)}')
    xred('v_max_f32')
    al(lambda m, w: f'v_mul_f32 {vr(w+2)}, {f32(-SCL)}, {vr(w+2)}')
    al(lambda m, w: f'v_pk_fma_f32 {vr(w,2)}, {vr(w,2)}, {vr(vt+2,2)}, {vr(w+2,2)} op_sel_hi:[1,0,0]')
    al(lambda m, w: f'v_exp_f32 {vr(w)}, {vr(w)}\nv_exp_f32 {vr(w+1)}, {vr(w+1)}')
    xred('v_add_f32')
    al(lambda m, w: f'v_rcp_f32 {vr(w+2)}, {vr(w+2)}')
    al(lambda m, w: f'v_pk_mul_f32 {vr(w,2)}, {vr(w,2)}, {vr(w+2,2)} op_sel_hi:[1,0]')
    al(lambda m, w: pk(w, w))
    def xd(m, q):
        if q == 0: p.ins(f's_add_u32 m0, {sr(sW4)}, {XL+2048*m}\n' + (f's_add_u32 {sr(s0)}, {sr(sro)}, 32768' if m else 's_nop 0'))
        p.vm(f'buffer_load_dwordx4 {vr(vro+q)}, {sr(sX,4)}, {sr(s0 if m else sro)} offen offset:{1024*q} lds', ('xd', m, q))
    wl = [(lambda pc=pc, i=i: wo_dma(pc, i, p.ins, now)) for pc in range(8) if WOP[pc] >= npl for i in range(4)] + [(lambda m=m, q=q: xd(m, q)) for m in range(2) for q in range(2)]
    if cfg['g2'].get('xe'): wl = wl[:4] + wl[-4:] + wl[4:-4]
    nat, ndr = g1.get('nat', 8), g1.get('ndr', 8)
    assert not weave(p, C, wl[:nat], g1.get('astep', 10), g1.get('afirst', 0))
    p.wait(lg=[('pv', 1)])
    pv = lambda m: '\n'.join(f'{MFMA} {vr(O_(m,c),4)}, {vr(vd(c,m-1),4)}, {vr(P_(m),4)}, 0' for c in range(2))
    for m in (3, 2, 1, 0):
        for i in range(4): p.ins(f'v_perm_b32 {vr(P_(m)+i)}, {vr(Wv+4*m)}, {vr(Wv+4*m)}, {vr(vM+i)}')
        if m < 3: p.ins(pv(m + 1))
    p.ins('s_nop 0\n' + pv(0))
    for m in (3, 2, 1, 0):
        w = Wv + 4 * m
        for i in range(4): p.ins(pk(w + i, O_(m, i >> 1) + 2 * (i & 1)))
        p.vm(f'buffer_store_dwordx4 {vr(w,4)}, v0, {sr(sWS,4)}, {sr(soo+(m>>1))} offen offset:{1024*(m&1)} sc1', 'os')
    k.T('o:st')
    p.wait(vm=[('jw', 7)])
    JA = acc1 + 32
    assert not weave(p, gemv(None, JA, JA + 8), wl[nat:nat + ndr], g1.get('dstep', 12))
    k.publish('o', sfl, vt, vm=['os'])
    if stop == 1: return finish(k)
    for i in range(4): p.lg(f'ds_read_b32 {vr(JA+i)}, {vr(JA+8)} offset:{256*i}', 'jr')
    p.ins(f's_cmp_eq_u32 {sr(sw)}, 1\ns_cselect_b32 {sr(s1)}, {sr(sjo)}, {OOB}\n' + k.flag_off(sfl, FL_Y))
    p.wait(lg=['jr'])
    p.ins(f'v_add_f32 {vr(JA)}, {vr(JA)}, {vr(JA+1)}\nv_add_f32 {vr(JA+2)}, {vr(JA+2)}, {vr(JA+3)}\nv_add_f32 {vr(JA)}, {vr(JA)}, {vr(JA+2)}')
    p.vm(f'buffer_store_dword {vr(JA)}, {vr(jad+2)}, {sr(sWS,4)}, {sr(s1)} offen sc1')
    S.free(sjo)
    wl = wl[nat + ndr:]
    for r_, n_ in ((sm, 1), (swm, 1), (sK, 1), (sXc, 1), (sWL, 3), (sC, 4), (sjw, 1), (soo, 2), (so, 1), (mO, 2), (mPa, 2), (mPb, 2)): S.free(r_, n_)
    env = dict(locals())
    import k3b
    return k3b.rest(k, env)

def finish(k):
    p = k.p
    if TL:
        k.T('preend')
        p.ins('s_waitcnt vmcnt(0) lgkmcnt(0)')
        k.T('end')
        p.ins(f's_load_dwordx2 s[96:97], s[0:1], 88\nv_lshrrev_b32 v1, 2, v0\ns_lshl_b32 s98, s2, 12\ns_lshl_b32 s99, {sr(sw)}, 9\ns_add_u32 s98, s98, s99\ns_add_u32 s98, s98, {WS_STAMP}\nv_add_u32 v1, s98, v1\ns_waitcnt lgkmcnt(0)')
        p.ins('global_store_dword v1, a254, s[96:97]\nglobal_store_dword v1, a255, s[96:97] offset:256')
        if k.cfg.get('diag'):
            a_, b_ = (k.tn.index(x) for x in k.cfg['diag'])
            p.ins(f'v_accvgpr_read_b32 v2, a254\ns_nop 1\nv_readlane_b32 s90, v2, {a_}\nv_readlane_b32 s91, v2, {b_}\nv_readlane_b32 s88, v2, 0\ns_nop 3\ns_sub_u32 s90, s91, s90\ns_min_u32 s90, s90, 8000\ns_lshl_b32 s90, s90, 1\ns_add_u32 s90, s90, 7500')
            p.label('DGL')
            p.ins('s_memrealtime s[96:97]\ns_waitcnt lgkmcnt(0)\ns_sub_u32 s96, s96, s88\ns_cmp_lt_u32 s96, s90\ns_cbranch_scc1 DGL')
    p.label('XEND')
    p.ins('s_endpgm')
    t0 = k.text
    k.text = lambda: t0() + ''.join(k.cold)
    return k
```

```python
from k3 import *
import k3

def rest(k, env):
    p, cfg = k.p, k.cfg
    stop = cfg.get('stop', 9)
    TL = k3.TL
    g = lambda n: env[n]
    S, vl, vt, s0, s1, sfl, spc, now = g('S'), g('vl'), g('vt'), g('s0'), g('s1'), g('sfl'), g('spc'), g('now')
    sm2, sn2, sorg, sro, sW4, sy, sst, sax = g('sm2'), g('sn2'), g('sorg'), g('sro'), g('sW4'), g('sy'), g('sst'), g('sax')
    wa2, vxa, va2, vgo, vpo = g('wa2'), g('vxa'), g('va2'), g('vgo'), g('vpo')
    sm3, sn3, sT3, sWL3, sAb, wa3, vd3, SB3, ldw = g('sm3'), g('sn3'), g('sT3'), g('sWL3'), g('sAb'), g('wa3'), g('vd3'), g('SB3'), g('ldw')
    g1, g2, g3, g4 = cfg['g1'], cfg['g2'], cfg['g3'], cfg['g4']
    ST1, GBA = A(232), A(248)

    V = Regs('v', 20, g('vw2'))
    acc = V.alloc('acc', 32, 4); vf = V.alloc('f', 32, 4); vg = V.alloc('g', 16, 4); vc = V.alloc('c', 16, 4); vx = V.alloc('x', 16, 4)
    vy = V.alloc('y', 24, 4); gp = V.alloc('gp', 16, 4)
    sA2 = S.alloc(); sy1 = S.alloc()
    u = vt
    sc = Sched(p, g2.get('cap', 2))
    LG2 = g2.get('lag', 8)
    DAS, R, AL2 = g2.get('DAS', LG2 + 3), g2.get('R', 14), g2.get('AL', 4)
    assert 16 * DAS + 4 * R <= 232
    def wrd(s, t, j, h):
        st, off = divmod(WOP[s // 2] * 16384 + (2 * (s % 2) + j) * 4096 + h * 2048, 65536)
        return wa2 + 4 * st + t, off
    accr = lambda t, m: acc + (t * 2 + m) * 4
    co = Core(p, sc, 16, 2, A(16 * DAS), R, g2.get('lead', 16), A(0), DAS, accr, wrd, ard=False, name='g2')
    co.build([(s, t) for s in range(16) for t in range(4 if s < 16 - LG2 else 2)] + [(s, t) for s in range(16 - LG2, 16) for t in (2, 3)], wg=g2.get('wg', 1), fine0=True)
    P1 = 256 - 8 * LG2
    co.barriers(None, have=range(16))
    NP = 2 * R - g2.get('rlate', 0)
    assert NP == 0 or NP // 32 < g('nat') // 4
    co.rtime = lambda n: -1 if n < 2 * R else int((n - 2 * R) * 236 / (256 - 2 * R))
    co.wreads()
    xe = g2.get('xe')
    xr = [LG(p, f'ds_read_b64 {vr(vx+8*m+2*t,2)}, {vr(vxa+t)} offset:{2048*m}', 'xl') for m in range(2) for t in range(4)]
    xu = [f'v_lshrrev_b32 {vr(u+2)}, 4, {vr(vl)}\nv_cmp_eq_u32 vcc, 2, {vr(u+2)}\ns_add_u32 {sr(sy1)}, {sr(sy)}, 65536\nv_mov_b32 {vr(u)}, {sr(sTok)}\nv_cndmask_b32 {vr(u+2)}, 0, 1.0, vcc', WT(p, lg=['xl'])] + [unpack(vf + 2 * i, vx + i) for i in range(16)]
    if xe:
        assert g('nat') >= 8
        for f in weave(p, xr + xu, g('wl'), 3): f()
    else:
        for f in g('wl'): f()
    for _ in range(NP): co.rq.pop(0)[2]()
    sor2 = g('sor2')
    p.ins(f's_lshr_b32 {sr(sor2)}, {sr(sor2)}, 5')
    hs = cfg.get('hsplit')
    if hs: k.hop('c', 'G3S', 'G3M', (1, 2, 3))
    k.poll('o', vpo + 2, FL_H, u + 1, spc, pre=lambda: p.wait(vm=[('xd', 1, 1), ('D2', 7, 3)]))
    a0 = g2.get('a0', 2); last = -2
    for s in range(16):
        for i in (0, 2, 1, 3) if s == 0 else range(4):
            j, m = divmod(i, 2)
            if s < a0: e, d = -1, 0
            else:
                e = last = max(last + g2.get('asp', 2), co.alast[(s - DAS, j, m)] if s >= DAS else 0, co.sfirst[s - AL2] + (co.sfirst[s - AL2 + 1] - co.sfirst[s - AL2]) * i // 4 + 1 if s >= AL2 else 0); d = co.await_[(s, j, m)]
            if i == 0 and s: sc.add('v', e - 1, d, f's_xor_b32 {sr(sA2)}, {sr(sor2)}, {4096*s}')
            sc.add('v', e, d, VM(p, f'buffer_load_dwordx4 {vr(co.abf(s,j,m),4)}, {vr(va2)}, {sr(sWS,4)}, {sr(sA2 if s else sor2)} offen offset:{1024*i} sc1', co.atag(s, j, m)))
    co.flush_reads()
    if not xe:
        for c in xr + xu: sc.add('x', -1, 0, c)
    pos = [g2.get('jf', 12)]
    def F(t_, d=INF): return sc.add('x', pos[0], d, t_)
    ld = [(f's_mov_b32 {sr(s1)}, {24576*q}', f'buffer_load_dwordx4 {vr(gp+4*q,4)}, {vr(vpo+1)}, {sr(sWS,4)}, {sr(s1)} offen sc1') for q in range(4)]
    for a_, b_ in ld: F(a_); F(VM(p, b_, 'gp'))
    pos[0] += g2.get('jl', 76)
    F(WT(p, vm=['gp']))
    tst = f'v_max_u32 {vr(u+3)}, {vr(gp)}, {vr(gp+1)}\n' + '\n'.join(f'v_max3_u32 {vr(u+3)}, {vr(u+3)}, {vr(gp+i)}, {vr(gp+i+1)}' for i in range(2, 16, 2))
    F(tst)
    o = F(lambda: k.dcheck('jf', '\n'.join(a_ + '\n' + b_ for a_, b_ in ld), tst, u + 3, spc), d=pos[0] + 20); o.cost = 4; o.wscc = True; o.kind = 'V'
    for i in range(8): F(f'v_add_f32 {vr(gp+i)}, {vr(gp+i)}, {vr(gp+8+i)}')
    for i in range(4): F(f'v_add_f32 {vr(gp+i)}, {vr(gp+i)}, {vr(gp+4+i)}')
    F(rb2(gp, gp + 4) + '\n' + rb2(gp + 2, gp + 5))
    for i in range(4): F(f'v_add_f32 {vr(gp+i)}, {vr(u+2)}, {vr(gp+i)}')
    F(rb2(gp, gp + 4) + '\n' + rb2(gp + 2, gp + 5))
    F(LG(p, f'ds_write_b128 {vr(vgo+2)}, {vr(gp,4)}'))
    for t in range(4):
        F(LG(p, f'ds_read_b128 {vr(vg+4*t,4)}, {vr(vgo)} offset:{64*t}'))
        F(LG(p, f'ds_read_b128 {vr(vc+4*t,4)}, {vr(vgo)} offset:{512+64*t}', 'vv'), d=P1 - 8)
    for t in range(4): F(LG(p, f'ds_read_b128 {vr(vx+4*t,4)}, {vr(vgo+1)} offset:{512+64*t}', 'ax'))
    for i in range(4): F(f'v_accvgpr_write_b32 {vr(GBA+i)}, {vr(gp+i)}')
    oax = sc.streams['x'][-5]
    sc.add('x', pos[0], INF, WT(p, lg=['ax']), after=oax).gap = 10
    for i in range(8): F(pk(vy + 16 + i, vx + 2 * i))
    pos[0] = P1 + 8
    for q in range(2):
        if q: F(f's_add_u32 {sr(sax)}, {sr(sax)}, 16384')
        F(VM(p, f'buffer_store_dwordx4 {vr(vy+16+4*q,4)}, v0, {sr(sWS,4)}, {sr(sax)} offen sc1'))
    sxo = S.alloc(4); so = S.alloc(3); sx = S.alloc(3); sK = S.alloc(); sAc = S.alloc(); sC = S.alloc(); sk4 = S.alloc()
    NS, AUX = 4, g3.get('aux', (6, 9))
    cx = lambda d, s: f's_bfe_u32 {sr(d)}, {sr(sT3 + s // 8)}, {hex(0x40000 + 4 * (s % 8))}'
    def dma3(s, i, E, EV):
        if i == 0: E(f's_bfe_u32 {sr(sK)}, {sr(sT3 + s // 8)}, {hex(0x30000 + 4 * (s % 8))}\ns_lshl_b32 {sr(sK)}, {sr(sK)}, 2\ns_bitcmp1_b32 {sr(sT3 + s // 8)}, {4 * (s % 8) + 3}\ns_addc_u32 {sr(sK)}, {sr(sK)}, 0\ns_mul_i32 {sr(sK)}, {sr(sK)}, {32*ldw}')
        if i % 4 == 0: E(f's_add_u32 m0, {sr(sWL3)}, {((s + 3) % 4) * SB3 + 1024 * i}')
        EV(VM(p, f'buffer_load_dwordx4 {vr(vd3+i)}, {sr(sWG,4)}, {sr(sK)} offen offset:{1024*(i%4)} lds', ('D3', s, i)), i % 4 == 0)
    def yhalf(tp):
        C = []
        for m in (1, 0):
            fm = vf + 16 * m; ym = vy + 8 * m
            for t in (tp, tp + 1):
                for e in (0, 2): C.append(f'v_pk_fma_f32 {vr(fm+4*t+e,2)}, {vr(vg+4*t+e,2)}, {vr(accr(t,m)+e,2)}, {vr(fm+4*t+e,2)}')
            for t in (tp, tp + 1):
                for e in (0, 2): C.append(f'v_pk_mul_f32 {vr(accr(t,m)+e,2)}, {vr(fm+4*t+e,2)}, {vr(vc+4*t+e,2)}')
            for t in (tp, tp + 1): C.append(pk(ym + 2 * t, accr(t, m)) + '\n' + pk(ym + 2 * t + 1, accr(t, m) + 2))
            C.append(VM(p, f'buffer_store_dwordx4 {vr(ym+2*tp,4)}, v0, {sr(sWS,4)}, {sr(sy1 if tp else sy)} offen offset:{1024*m} sc1', ('yh', tp)))
        return C
    def first_half():
        k.T('y:p1')
        p.wait(lg=['vv'])
        p.ins('s_nop 3')
        weave(p, yhalf(0), [], 1)
    sc.before(P1 + 1, first_half, 2)
    yb = min(P1 + g2.get('ydr', 40), 254)
    co.addbar(yb, vm=[('yh', 0)])
    o = sc.add('f', yb, yb + 2, lambda: (k.flag_store(sfl, u), k.T('y:pub'))); o.cost = 3
    sc.add('f', yb, INF, f's_add_u32 {sr(sfl)}, {sr(sfl)}, {FL_JOB - FL_Y}')
    assert LG2 <= 8
    d3l = [(s, i) for s in range(g3.get('npre', 2)) for i in range(7)]
    e = yb + 2
    if g2.get('d0e') is not None:
        co.addbar(co.sfirst[5] + 2); e = P1 + g2['d0e']
    for _ in range(g2.get('nin', 7)):
        dma3(*d3l.pop(0), lambda t_: sc.add('v', e - 5, INF, t_), lambda f, sep: sc.add('v', e, INF, f, sep=sep)); e += g2.get('d3step', 3)
    d3l = [(lambda s=s, i=i: dma3(s, i, p.ins, now)) for s, i in d3l]
    sc.bias = dict(x=g2.get('bias', 0))
    sc.capf = lambda i: 4 if g2.get('c3', 110) <= i < P1 else 2
    if TL:
        for s in g2.get('marks', (1, 4, 10)): sc.before(co.sfirst[s] + 1, lambda s=s: k.T(f'g2:s{s}'), 0)
    left = sc.run()
    k.T('g2:loopend')
    k.info += f' | g2 over {sc.over} left {len(left)}'
    for st_, o in left: now(o.fn, o.sep)
    p.ins(cx(sAc, 0) + f'\ns_lshl_b32 {sr(sAc)}, {sr(sAc)}, 13\ns_add_u32 {sr(sAc)}, {sr(sAc)}, {sr(sAb)}\ns_nop 0')
    Y2 = yhalf(2)
    npo = g2.get('npo', 7)
    for f in weave(p, [c for c in Y2 if isinstance(c, str)], d3l[:npo], 4): f()
    d3l = d3l[npo:]
    def g2_rest(acc=acc, vf=vf, vx=vx):
        for c in Y2:
            if not isinstance(c, str): c()
        q_ = acc + 8
        for i in range(0, 16, 2):
            for m in range(2):
                r = vf + 16 * m + i
                if i == 0: p.ins(f'v_pk_mul_f32 {vr(q_+4*m+2,2)}, {vr(r,2)}, {vr(r,2)}')
                else: p.ins(f'v_pk_fma_f32 {vr(q_+4*m+2,2)}, {vr(r,2)}, {vr(r,2)}, {vr(q_+4*m+2,2)}\nv_pk_add_f32 {vr(q_+4*m,2)}, {vr(r,2)}, {vr(r-2 if i == 2 else q_+4*m,2)}')
        for i in range(4): p.ins(f'v_add_f32 {vr(acc+i)}, {vr(q_+2*i)}, {vr(q_+2*i+1)}')
        for st in (16, 32):
            for i in range(4): p.ins(f'v_mov_b32 {vr(acc+4+i)}, {vr(acc+i)}')
            for i in range(4): p.ins(f'v_permlane{st}_swap_b32 {vr(acc+i)}, {vr(acc+4+i)}')
            for i in (0, 2): p.ins(f'v_pk_add_f32 {vr(acc+i,2)}, {vr(acc+i,2)}, {vr(acc+4+i,2)}')
        p.ins('s_mov_b64 exec, 0xffff')
        p.vm(f'buffer_store_dwordx4 {vr(acc,4)}, v0, {sr(sWS,4)}, {sr(sst)} offen sc1', 'ys')
        p.ins('s_mov_b64 exec, -1')
        for f in weave(p, [pk(vx + i, vf + 2 * i) for i in range(16)] + [f'v_accvgpr_write_b32 {vr(ST1+i)}, {vr(vx+i)}' for i in range(16)], d3l, 4, -4): f()
        p.ins(f'v_and_b32 v30, 0x7f80, {vr(vpo+3)}')
        for r_ in (sA2, sy1, sy, sst, sax, sor2): S.free(r_)

    nst, FS = 16, 3
    DAS, R = 4, g3.get('R', 12)
    abuf, wbuf = A(0), A(128); xw = A(176); xb = A(208); xacc = A(216)
    assert 128 + 4 * R <= 176
    UTL = 159744
    acc = 32; vs = 10; tm = 22
    accr = lambda t, m: acc + (t * 4 + m) * 4
    sc = Sched(p, 2)
    def wrd(s, t, j, h):
        st, sl = divmod((s + 3) % 4, 2)
        return wa3 + st, sl * SB3 + (t // 7) * 14336 + (32 * j + 16 * h) * 224 + (t % 7) * 32
    co = Core(p, sc, NS, 4, wbuf, R, g3.get('lead', 32), abuf, DAS, accr, wrd, ard=False, name='g3')
    order = [6, 0, 1, 2, 3, 4, 5]
    j0 = g3.get('j0', 0)
    groups = [([(0, 0)], t) for t in range(j0)] + [([(0, 1)], t) for t in range(j0)] + [(s, t) for s in range(nst - FS) for t in range(14)][j0:] + [(s, t + 7 * sg) for t in order for s in range(nst - FS, nst) for sg in range(2)]
    xpos = {}
    def auxm(n):
        def f(pos):
            xpos[n] = pos
            for i in range(4):
                for j in range(2):
                    c = xacc + 4 * i
                    sc.mf.append(f'{MFMA} {vr(c,4)}, {vr(xw+8*i+4*j,4)}, {vr(xb+4*j,4)}, {vr(c,4) if (n or j) else 0}')
            sc.before(pos, lambda: p.wait(vm=[('xb', n, 1)], lg=[('xw', n)]))
        return f
    ipos = {}
    BI, WI = A(0), A(16)
    def injm(oi):
        def f(pos):
            ipos[oi] = pos
            for sg in range(2):
                for m in range(4):
                    c = accr(order[oi] + 7 * sg, m)
                    sc.mf.append(f'{MFMA} {vr(c,4)}, {vr(WI+8*(oi&1)+4*sg,4)}, {vr(BI+4*m,4)}, {vr(c,4)}')
            sc.before(pos, WT(p, lg=[('wi', oi)]))
        return f
    ins = {j0 + 14 * s + (4, 2)[n]: auxm(n) for n, s in enumerate(AUX)}
    ins.update({j0 + 14 * (nst - FS) + 2 * FS * oi + (4 if oi == 0 else 1): injm(oi) for oi in range(7)})
    co.build(groups, wg=g3.get('wg', 2), ins=ins, fine0=True)
    early = range(g3.get('early', 13), nst - FS + 1)
    co.barriers(lambda s: [('D3', s, 6)], have=[0, nst - 1] + list(early))
    co.bar[nst - 1] = co.sfirst[nst - FS] + 2
    for o in range(g3.get('bar0', 1), nst - FS + 1):
        co.addbar(co.sfirst[o] + 2, vm=[('D3', o + 1, 6)] if o + 1 in early else [('D3', nst - 1, 6)] if o == nst - FS else None)
        if o + 1 in early: co.bar[o + 1] = co.sfirst[o] + 2
    z = co.sfirst[nst - FS]
    def al3(s, i, E, EV):
        j, m = divmod(i, 4)
        if i == 0: E(cx(sAc, s) + f'\ns_lshl_b32 {sr(sAc)}, {sr(sAc)}, 13\ns_add_u32 {sr(sAc)}, {sr(sAc)}, {sr(sAb)}')
        if i == 4: E(f's_add_u32 {sr(sAc)}, {sr(sAc)}, 4096')
        EV(VM(p, f'buffer_load_dwordx4 {vr(co.abf(s,j,m),4)}, v0, {sr(sWS,4)}, {sr(sAc)} offen offset:{1024*m} sc1', co.atag(s, j, m)), False)
    npre = g3.get('npre', 2)
    p.ins(f's_lshl2_add_u32 {sr(s0)}, s2, {sr(sw)}\ns_cmp_eq_u32 {sr(s0)}, 1\ns_cbranch_scc1 CKSs')
    p.label('CKSx')
    sd_ = (f'CKSs:\ns_mov_b32 {sr(spc)}, 30000\nv_lshlrev_b32 {vr(u+2)}, 3, v0\nCKS:\n' + ''.join(f's_mov_b32 {sr(s0)}, {FL_H+8192*i}\nbuffer_load_dword {vr(u+4+i)}, {vr(u+2)}, {sr(sWS,4)}, {sr(s0)} offen sc1\n' for i in range(4))
           + f's_sub_u32 {sr(spc)}, {sr(spc)}, 1\ns_cmp_eq_u32 {sr(spc)}, 0\ns_waitcnt vmcnt(0)\ns_cbranch_scc1 CKSy\nv_xor_b32 {vr(u+3)}, {sr(sTok)}, {vr(u+4)}\n'
           + ''.join(f'v_bitop3_b32 {vr(u+3)}, {vr(u+3)}, {vr(u+4+i)}, {sr(sTok)} bitop3:0xf6\n' for i in range(1, 4))
           + f'v_cmp_ne_u32 vcc, 0, {vr(u+3)}\ns_nop 4\ns_cbranch_vccnz CKS\nCKSy:\ns_mov_b32 {sr(s0)}, {WS_SEED}\ns_mov_b64 exec, 1\nbuffer_store_dword {vr(u)}, v0, {sr(sWS,4)}, {sr(s0)} offen sc1\ns_mov_b64 exec, -1\ns_branch CKSx')
    k.cold.append('\n'.join(l if l.endswith(':') else '  ' + l for l in sd_.split('\n')) + '\n')
    if g4.get('mv'):
        p.ins(f'; HOPS b G3M CUT 1\ns_and_b32 {sr(s0)}, s2, 1\ns_lshl2_add_u32 {sr(s0)}, {sr(s0)}, {sr(sw)}\ns_mov_b64 exec, 0\ns_cmp_eq_u32 {sr(sw)}, 1\ns_cbranch_scc1 Hb0')
        for v_, l_ in ((2, 'He0'), (3, 'He1'), (6, 'Ho0'), (7, 'Ho1')): p.ins(f's_cmp_eq_u32 {sr(s0)}, {v_}\ns_cbranch_scc1 {l_}')
        for l_ in ('Rb', 'Re', 'Ro'): p.label(l_)
        p.ins('s_mov_b64 exec, -1')
    elif hs != 99: k.hop('b', 'G3M' if hs else 'G3S', 'NONE', (1, 2, 3))
    p.label('G3S')
    k.poll('y', vpo + 3, FL_H, u + 1, spc, pre=lambda: p.wait(vm=[('D3', 0, 6)]))
    for i in range(8): al3(0, i, p.ins if i else (lambda t_: None), now)
    g2_rest()
    f2 = g3.get('f2', 34)
    co.addbar(f2, vm=['ys'])
    o = sc.add('f', f2, f2 + 3, lambda u=u: k.flag_store(sfl, u)); o.cost = 3
    ev = []
    at = lambda x: co.sfirst[min(int(x), nst - FS)] + int((x % 1) * 112) if x >= 0 else 0
    c0, c1 = g3.get('catch', (6, 11))
    def warp(x, lag):
        return x + lag * min(1.0, max(0.0, (c1 - x) / (c1 - c0)))
    for s in range(1, nst):
        w = 1.0 if s < nst - 1 else g3.get('wl', 0.62)
        if s == nst - 1:
            ev += [(co.slotfree(s) + 2 + 5 * i, 'D', s, i, co.bar[s]) for i in range(7)]
            ev += [(co.slotfree(s) + 38 + 6 * i, 'A', s, i, co.await_[(s,) + divmod(i, 4)]) for i in range(8)]
            continue
        if s >= npre:
            ev += [(max(co.slotfree(s) + 1 + i, at(warp(s - 3 + w * (i + 0.55) / 7.5, g3.get('dlag', 0.6)))), 'D', s, i, co.bar[s]) for i in range(7)]
        ev += [(at(warp(s - 3 + w * (i + 0.05) / 7.5, g3.get('alag', 1.2))), 'A', s, i, co.await_[(s,) + divmod(i, 4)]) for i in range(8)]
    ev.sort(key=lambda x: (x[0], x[4]))
    for kind in 'AD':
        L = [x[2:4] for x in ev if x[1] == kind]
        assert L == sorted(L), (kind, L)
    s2nd = min(s for T in g3_orders(AUX, g3.get('leads')) for s in range(16) if T[s] >= 8)
    e2 = [x[0] for x in ev if x[1:4] == ('A', s2nd, 0)][0] - 6
    sc.add('c', 10, INF, f's_mov_b32 {sr(sk4)}, {FL_JOB}')
    sc.add('c', e2 - 70, e2 - 60, VM(p, f'buffer_load_dword v29, v30, {sr(sWS,4)}, {sr(sk4)} offen sc1', 'zf'))
    oz = sc.add('c', e2, e2 + 3, lambda: k.check(30, sk4, 29, spc, 'zf')); oz.cost = 4; oz.wscc = True
    assert e2 < xpos[0] - 160
    for e, kind, s, i, d in ev:
        (dma3 if kind == 'D' else al3)(s, i, lambda t_: sc.add('v', max(e - 4, 0), d, t_, after=oz if (kind, s, i) == ('A', s2nd, 0) else None), lambda f, sep: sc.add('v', e, d, f, sep=sep))
    lastv = ev[-1][0]
    co.wreads(); co.flush_reads()
    pos = [40]
    def F(t_, d=INF): return sc.add('x', pos[0], d, t_)
    def U(t_, d=INF): return sc.add('u', pos[0], d, t_)
    vxa_ = tm + 9
    F(f's_lshr_b32 {sr(sx)}, {sr(sw)}, 1\ns_mul_i32 {sr(sx)}, {sr(sx)}, 14336\ns_and_b32 {sr(sx+1)}, {sr(sw)}, 1\ns_lshl_b32 {sr(sx+1)}, {sr(sx+1)}, 7\ns_add_u32 {sr(sx)}, {sr(sx)}, {sr(sx+1)}\nv_add_u32 {vr(vxa_)}, {sr(sx)}, {vr(wa3)}', d=200)
    U(cx(sC, AUX[0]) + f'\ns_lshl4_add_u32 {sr(sC)}, {sr(sm3)}, {sr(sC)}\ns_lshl_b32 {sr(sC)}, {sr(sC)}, 11\ns_add_u32 {sr(sC)}, {sr(sC)}, {WS_AUX}')
    def auxl(n):
        s = AUX[n]
        pos[0] = xpos[n] - 150
        dlt = ((s + 3) % 4 - ((AUX[0] + 3) % 4 if n else 0)) * SB3
        if dlt: F(f'v_add_u32 {vr(vxa_)}, {dlt}, {vr(vxa_)}')
        if n: U(f's_add_u32 {sr(sC)}, {sr(sC)}, 16384')
        for j in range(2): U(VM(p, f'buffer_load_dwordx4 {vr(xb+4*j,4)}, v0, {sr(sWS,4)}, {sr(sC)} offen offset:{1024*j} sc1', ('xb', n, j)), d=xpos[n] - 90)
        pos[0] = max(co.bar[s], xpos[n] - 60)
        for i in range(4):
            for j in range(2):
                for h in range(2):
                    off = (32 * j + 16 * h) * 224 + 32 * i
                    F(LG(p, f'ds_read_b64_tr_b16 {vr(xw+8*i+4*j+2*h,2)}, {vr(vxa_)} offset:{off}', ('xw', n)), d=xpos[n] - 8); pos[0] += 2
    F(f's_lshl_b32 {sr(sxo)}, s2, 15\ns_lshl1_add_u32 {sr(sxo)}, {sr(sW4)}, {sr(sxo)}\ns_xor_b32 {sr(sxo+2)}, {sr(sxo)}, 32768\ns_add_u32 {sr(sxo)}, {sr(sxo)}, {WS_XC}\ns_add_u32 {sr(sxo+1)}, {sr(sxo)}, 4096\ns_add_u32 {sr(sxo+2)}, {sr(sxo+2)}, {WS_XC}\ns_add_u32 {sr(sxo+3)}, {sr(sxo+2)}, 4096')
    auxl(0)
    pos[0] = xpos[0] + 10
    osx = F(f's_lshl2_add_u32 {sr(sx)}, {sr(sm3)}, {sr(sw)}\ns_lshl_b32 {sr(sx)}, {sr(sx)}, 13\ns_add_u32 {sr(sx)}, {sr(sx)}, {WS_ST}\ns_add_u32 {sr(sx+1)}, {sr(sx)}, 4096')
    for h in range(2):
        for q in range(4):
            F(VM(p, f'buffer_load_dwordx4 {vr(xw+16*h+4*q,4)}, v0, {sr(sWS,4)}, {sr(sx+h)} offen offset:{1024*q} sc1', 'st'), d=pos[0] + 30); pos[0] += 9
    pos[0] += 70
    F(WT(p, vm=['st']))
    for m in range(4):
        b = tm + 2 * (m & 1); o = vs + 3 * m
        if m % 2 == 0:
            for i in range(4): F(f'v_accvgpr_read_b32 {vr(tm+i)}, {vr(xw+8*m+i)}')
            for q in range(1, 4):
                for i in range(4): F(f'v_accvgpr_read_b32 {vr(tm+4+i)}, {vr(xw+8*m+4*q+i)}')
                for i in range(4): F(f'v_add_f32 {vr(tm+i)}, {vr(tm+i)}, {vr(tm+4+i)}')
            for st in (16, 32):
                for i in range(4): F(f'v_mov_b32 {vr(tm+4+i)}, {vr(tm+i)}')
                for i in range(4): F(f'v_permlane{st}_swap_b32 {vr(tm+i)}, {vr(tm+4+i)}')
                for i in range(4): F(f'v_add_f32 {vr(tm+i)}, {vr(tm+i)}, {vr(tm+4+i)}')
        F(f'v_mul_f32 {vr(b)}, {f32(1/1024)}, {vr(b)}\nv_mul_f32 {vr(b+1)}, {f32(1/1024)}, {vr(b+1)}\nv_fma_f32 {vr(b+1)}, -{vr(b)}, {vr(b)}, {vr(b+1)}\nv_max_f32 {vr(b+1)}, 0, {vr(b+1)}\n' + rb(b + 1))
        F(f'v_add_f32 {vr(b+1)}, {f32(1e-5)}, {vr(b+1)}\n' + rb(b + 1) + f'\nv_sqrt_f32 {vr(b+1)}, {vr(b+1)}\ns_nop 0\nv_cvt_pk_bf16_f32 {vr(o+2)}, -{vr(b)}, {vr(b+1)}\nv_and_b32 {vr(b+1)}, 0xffff0000, {vr(o+2)}')
        F(f'v_rcp_f32 {vr(o)}, {vr(b+1)}\nv_mul_f32 {vr(o+1)}, {vr(b+1)}, {vr(b+1)}\nv_mul_f32 {vr(o)}, {f32(-LOG2E)}, {vr(o)}')
    auxl(1)
    b = tm
    F(f'v_lshrrev_b32 {vr(b)}, 4, v0\nv_and_b32 {vr(b+1)}, 14, {vr(b)}\nv_lshlrev_b32 {vr(b+1)}, 27, {vr(b+1)}\nv_and_b32 {vr(b+2)}, 1, {vr(b)}\nv_lshl_add_u32 {vr(b+1)}, {vr(b+2)}, 9, {vr(b+1)}\nv_and_b32 {vr(b)}, 0x30, {vr(b)}\nv_add_u32 {vr(b)}, {vr(b)}, {vr(b+1)}')
    F(f's_lshl3_add_u32 {sr(sx)}, {sr(sn3)}, {sr(sm3)}\ns_lshr_b32 {sr(sx+1)}, {sr(sw)}, 1\ns_lshl1_add_u32 {sr(sx)}, {sr(sx)}, {sr(sx+1)}\ns_and_b32 {sr(sx+1)}, {sr(sw)}, 1\ns_lshl2_add_u32 {sr(sx)}, {sr(sx)}, {sr(sx+1)}\ns_lshl_b32 {sr(sx)}, {sr(sx)}, 8\ns_add_u32 {sr(sx)}, {sr(sx)}, {WS_UT}')
    pos[0] = xpos[1] + 8 + 8
    for i in range(4): F(VM(p, f'buffer_store_dwordx4 {vr(xacc+4*i,4)}, {vr(b)}, {sr(sWS,4)}, {sr(sx)} offen offset:{64*i} sc1', 'us'), d=pos[0] + 12 + 4 * i)
    ub = pos[0] + 30
    F(f's_lshl_b32 {sr(sx+1)}, {sr(sn3)}, 14\ns_lshl_b32 {sr(sx+2)}, {sr(sw)}, 9\ns_add_u32 {sr(sx+1)}, {sr(sx+1)}, {sr(sx+2)}\ns_add_u32 {sr(sx+1)}, {sr(sx+1)}, {WS_UT}')
    F(f's_lshr_b32 {sr(sx+2)}, {sr(sw)}, 1\ns_lshl_b32 {sr(sx+2)}, {sr(sx+2)}, 8\ns_and_b32 {sr(so)}, {sr(sw)}, 1\ns_add_u32 {sr(sx+2)}, {sr(sx+2)}, {sr(so)}\ns_lshl3_add_u32 {sr(sx+2)}, {sr(sx+2)}, {UTL}')
    F(f'v_and_b32 {vr(b+2)}, 0x1f0, v0\nv_min_u32 {vr(b+2)}, {27*16}, {vr(b+2)}\nv_and_b32 {vr(b+4)}, 0x200, v0\nv_lshl_add_u32 {vr(b+3)}, {vr(b+4)}, 4, {vr(b+2)}\nv_lshrrev_b32 {vr(b+4)}, 4, {vr(b+4)}\nv_lshl_add_u32 {vr(b+2)}, {vr(b+2)}, 2, {vr(b+4)}\nv_add_u32 {vr(b+2)}, {sr(sx+2)}, {vr(b+2)}')
    F(f's_lshl2_add_u32 {sr(so)}, {sr(sm3)}, {sr(sw)}\ns_lshl_b32 {sr(so)}, {sr(so)}, 19\ns_mul_i32 {sr(so+1)}, {sr(sn3)}, 7\ns_and_b32 {sr(sx+2)}, {sr(sn3)}, 1\ns_add_u32 {sr(so+1)}, {sr(so+1)}, {sr(sx+2)}\ns_lshl_b32 {sr(so+1)}, {sr(so+1)}, 10\ns_add_u32 {sr(so)}, {sr(so)}, {sr(so+1)}\ns_add_u32 {sr(so+2)}, {sr(so)}, {WS_ACT}')
    F(f's_mul_i32 {sr(sx+2)}, {sr(sx+2)}, {8192-512}\ns_sub_u32 {sr(so)}, {sr(so+2)}, {sr(sx+2)}\ns_add_u32 {sr(so)}, {sr(so)}, 6144\ns_add_u32 {sr(so+1)}, {sr(so)}, 262144')
    F(k.flag_off(sfl, FL_UT))
    F(f's_add_u32 {sr(sx)}, {sr(sx+1)}, 4096')
    pos[0] = ub + g3.get('uwait', 200)
    ld = [f'buffer_load_dwordx4 {vr(xb+4*q,4)}, {vr(b+3)}, {sr(sWS,4)}, {sr(sx if q >= 2 else sx+1)} offen offset:{2048*(q&1)} sc1' for q in range(4)]
    for q in range(4): F(VM(p, ld[q], 'up'), d=pos[0] + 8 + 5 * q)
    pos[0] += 95
    F(WT(p, vm=['up']))
    c4 = b + 4; mx = b + 9
    tst = [f'v_accvgpr_read_b32 {vr(c4+i)}, {vr(xb+i)}' for i in range(4)]
    tst += [f'v_max_u32 {vr(mx)}, {vr(c4)}, {vr(c4+1)}', f'v_max3_u32 {vr(mx)}, {vr(mx)}, {vr(c4+2)}, {vr(c4+3)}']
    for q in range(1, 4):
        for h in range(2):
            tst += [f'v_accvgpr_read_b32 {vr(b+i)}, {vr(xb+4*q+2*h+i)}' for i in range(2)]
            tst += [f'v_max3_u32 {vr(mx)}, {vr(mx)}, {vr(b)}, {vr(b+1)}'] + [f'v_add_f32 {vr(c4+2*h+i)}, {vr(c4+2*h+i)}, {vr(b+i)}' for i in range(2)]
    tst = '\n'.join(tst)
    F(tst)
    o = F(lambda: k.dcheck('uf', '\n'.join(ld), tst, mx, spc)); o.cost = 4; o.wscc = True; o.kind = 'V'
    F(f's_nop 0\nv_permlane32_swap_b32 {vr(c4)}, {vr(c4+2)}\nv_permlane32_swap_b32 {vr(c4+1)}, {vr(c4+3)}\nv_add_f32 {vr(c4)}, {vr(c4)}, {vr(c4+2)}\nv_add_f32 {vr(c4+1)}, {vr(c4+1)}, {vr(c4+3)}')
    tb = z + 2
    for i in range(2):
        x_, h_, d_ = c4 + i, b + 3, (b, c4 + 2)[i]
        F(rb(h_, x_) + f'\nv_sub_f32 {vr(b+8)}, {vr(x_)}, {vr(h_)}\nv_cvt_pk_bf16_f32 {vr(d_)}, {vr(x_)}, {vr(b+8)}\nv_and_b32 {vr(h_)}, 0xffff0000, {vr(d_)}\nv_sub_f32 {vr(b+8)}, {vr(b+8)}, {vr(h_)}\nv_cvt_pk_bf16_f32 {vr(d_+1)}, {vr(b+8)}, 0')
        F(LG(p, f'ds_write_b64 {vr(b+2)}, {vr(d_,2)} offset:{16*i}', 'utw'), d=tb - 10)
    pos[0] = tb - 3
    F(WT(p, lg=['utw']), d=tb)
    sc.add('z', lastv, INF, f's_lshl_b32 {sr(sk4)}, {sr(sw)}, 8\ns_add_u32 {sr(sk4)}, {sr(sk4)}, s2\ns_mul_i32 {sr(sk4)}, {sr(sk4)}, 7168')
    sc.add('z', z + 3, INF, f'v_min_u32 {vr(vd3)}, {55*16}, v0\nv_lshlrev_b32 {vr(vd3)}, 3, {vr(vd3)}')
    if not g3.get('nowd'): sc.add('z', z + 3, z + 20, VM(p, f'buffer_load_dword a252, {vr(vd3)}, {sr(sWD,4)}, {sr(sk4)} offen'))
    if g3.get('wd3', 0):
        e = z + g3.get('wd3', 0)
        sc.add('z', z + 22, INF, f's_lshr_b32 {sr(sk4)}, s2, 4\ns_and_b32 {sr(sC)}, s2, 1\ns_lshl3_add_u32 {sr(sk4)}, {sr(sC)}, {sr(sk4)}\ns_mul_i32 {sr(sk4)}, {sr(sk4)}, {7*65536}\ns_bfe_u32 {sr(sC)}, s2, 0x10003\ns_lshl_b32 {sr(sC)}, {sr(sC)}, 10\ns_add_u32 {sr(sk4)}, {sr(sk4)}, {sr(sC)}\ns_add_u32 {sr(sk4)}, {sr(sk4)}, {3*65536}'
               f'\ns_lshl_b32 {sr(sC)}, {sr(sw)}, 8\ns_add_u32 {sr(sC)}, {sr(sC)}, s2\ns_cmp_lt_u32 {sr(sC)}, 128\ns_cselect_b32 {sr(sk4)}, {sr(sk4)}, {OOB}\nv_lshlrev_b32 {vr(vd3)}, 7, v0')
        k.owd3 = sc.add('z', e, e + 6, VM(p, f'buffer_load_dword a252, {vr(vd3)}, {sr(sWD,4)}, {sr(sk4)} offen offset:{384+2048}'))
    ve = [22 + i for i in range(8)]; vub = 31
    pos[0] = z
    F(f'v_lshrrev_b32 v8, 1, v0\nv_and_b32 {vr(vub)}, 0xf0, v0\nv_add_u32 {vr(vub)}, {UTL}, {vr(vub)}\nv_cmp_gt_u32 vcc, 0x100, v0\ns_mov_b32 {sr(sx)}, 0x01000100\ns_mov_b32 {sr(sx+1)}, 0x03020302', d=z + 12)
    for m in range(4):
        q_ = vs + 3 * m + 2; t_ = ve[4 * (m & 1):]
        F(f'v_cndmask_b32 {vr(q_)}, 0, {vr(q_)}, vcc\nv_perm_b32 {vr(t_[0])}, {vr(q_)}, {vr(q_)}, {sr(sx)}\nv_and_b32 {vr(t_[1])}, 0xffff, {vr(q_)}\nv_perm_b32 {vr(t_[2])}, {vr(q_)}, {vr(q_)}, {sr(sx+1)}\nv_lshrrev_b32 {vr(t_[3])}, 16, {vr(q_)}')
        F('\n'.join(f'v_accvgpr_write_b32 {vr(BI+4*m+i)}, {vr(t_[i])}' for i in range(4)), d=ipos[0] - 2)
    for oi, t in enumerate(order):
        for sg in range(2):
            sc.add('u', max(tb + 11 + sg, ipos[oi] - 24 + 2 * sg), ipos[oi] - 6, LG(p, f'ds_read_b128 {vr(WI+8*(oi&1)+4*sg,4)}, {vr(vub)} offset:{2048*sg+256*t}', ('wi', oi)))
    edone = {}
    def mix(a_, b_):
        out = []
        for n in range(max(len(a_), len(b_))): out += a_[n:n+1] + b_[n:n+1]
        return out
    for oi, t in enumerate(order):
        ph = []
        for m in range(4):
            st_ = vs + 3 * m; a_, u_ = accr(t, m), accr(t + 7, m); e4 = ve[4 * (m & 1):]
            o = accr(t & ~1, m) + 2 * (t & 1)
            fin = [pk(o, u_), pk(o + 1, u_ + 2)]
            if t & 1: fin.append(VM(p, f'buffer_store_dwordx4 {vr(o-2,4)}, v0, {sr(sWS,4)}, {sr(so+(m>>1))} offen offset:{1024*(m&1)} sc1', ('as', t)))
            elif t == 6: fin.append(VM(p, f'buffer_store_dwordx2 {vr(o,2)}, v8, {sr(sWS,4)}, {sr(so+(m>>1))} offen offset:{1024*(m&1)} sc1', ('as', t)))
            ph.append(dict(A=[f'v_mul_f32 {vr(e4[x])}, {vr(st_)}, {vr(a_+x)}' for x in range(4)], B=[f'v_exp_f32 {vr(e4[x])}, {vr(e4[x])}' for x in range(4)],
                           C=[f'v_mul_f32 {vr(u_+x)}, {vr(a_+x)}, {vr(u_+x)}' for x in range(4)], D=[f'v_fma_f32 {vr(e4[x])}, {vr(e4[x])}, {vr(st_+1)}, {vr(st_+1)}' for x in range(4)],
                           E=[f'v_rcp_f32 {vr(e4[x])}, {vr(e4[x])}' for x in range(4)], G=[f'v_mul_f32 {vr(u_+x)}, {vr(u_+x)}, {vr(e4[x])}' for x in range(4)], H=fin))
        pg = max(co.cdone[(t, m)] for m in range(4)) + 1; pu = max(co.cdone[(t + 7, m)] for m in range(4)) + 4
        pos[0] = pg
        a, b_, c_, d_ = ph
        for x in a['A'] + mix(a['B'], b_['A']) + mix(b_['B'], a['D']) + mix(a['E'], b_['D']): F(x)
        pos[0] = pu
        for x in mix(b_['E'], a['C']) + a['G'] + c_['A'] + mix(c_['B'], b_['C']) + b_['G'] + a['H'] + d_['A'] + mix(d_['B'], c_['D']) + b_['H'] + mix(c_['E'], d_['D']) + mix(d_['E'], c_['C']) + c_['G'] + d_['C'] + c_['H'] + d_['G'] + d_['H']: lo = F(x)
        edone[t] = lo
        if t == 6: F(f's_mov_b32 {sr(so)}, {sr(so+2)}\ns_add_u32 {sr(so+1)}, {sr(so+2)}, 262144')
        elif t & 1 and t < 5: F(f's_add_u32 {sr(so)}, {sr(so)}, 2048\ns_add_u32 {sr(so+1)}, {sr(so+1)}, 2048')
    if hs and hs != 99: sc.before(z + hs, lambda: p.label('G3M'), 0)
    E3 = co.end; co3 = co; accr3 = accr
    TP = 16 * FS + 8
    for oi, t in enumerate(order[:-1]): edone[t].d = z + (oi + 2) * TP + g3.get('eslack', 10)
    k.ctouch(sc, g3.get('ct0', 20), z, g3.get('cts', 250)); k.ctouch(sc, z, E3, g3.get('cts2', 80))
    if TL:
        for s in g3.get('marks', (1, 3, 11, 13)): sc.before(at(s) + 1, lambda s=s: k.T(f'g3:s{s}'), 0)
        for n in g3.get('fmarks', ()): sc.before(z + n * TP + 1, lambda n=n: k.T(f'g3:f{n}'), 0)

    MV = g4.get('mv', 0)
    NS, nst, FS, DAS, R = 9, 28 + g4.get('side', 0) * MV, g4.get('FS', 6), g4.get('DAS', 7), 10
    NC = 10
    sK4 = S.alloc(); sA4 = S.alloc(); sC4 = [S.alloc() for _ in range(NC)]; sLead = S.alloc(); sD7 = S.alloc(); sg0 = S.alloc(); sg1 = S.alloc(); sfp = S.alloc()
    Va = Regs('v', accr3(6, 0), accr3(6, 0) + 16); Vb = Regs('v', accr3(13, 0), accr3(13, 0) + 16)
    vl = Va.alloc('l'); u = Va.alloc('u', 4); vdma = Va.alloc('vdma', 4); va = Va.alloc('va'); vpl = Va.alloc('pl', 2); vxa = Va.alloc('xa', 4)
    waddr = Vb.alloc('waddr', 12); vro = Vb.alloc('ro', 2); vol = Vb.alloc('ol')
    acc4 = [accr3(0, 0), accr3(7, 0)]
    accr = lambda t, m: acc4[t // 4] + ((t % 4) * 2 + m) * 4
    vf = accr3(2, 0); vg = accr3(9, 0); vx = accr3(10, 0); vp = accr3(4, 0)
    GL = 0
    base4 = lambda s: 12288 + ((s + 5) % NS) * 16384
    NP4 = g4.get('np4', 4)
    def wrd(s, t, j, h):
        st, off = divmod(base4(s) + (2 * j + h) * 4096 + (t >> 2) * 2048, 65536)
        return waddr + 4 * st + (t & 3), off
    co = Core(p, sc, NS, 2, A(176), R, g4.get('lead', 16), 0, DAS, accr, wrd, ard=False, name='g4')
    aset = [216, 0, 16, 32, 48, 64, 80, 96, 112, 128]
    NA4 = g4.get('na4', 4)
    afirst = [A(216), accr3(9, 0)] + ([A(0), A(16)] if g4.get('p4') else [accr3(2, 0), accr3(3, 0)])
    co.abf = lambda s, j, m: (afirst[s] if s < NA4 == 4 else A(aset[s % DAS])) + (2 * j + m) * 4
    Ss = list(range(nst - FS, nst))
    groups = [(s, t) for s in range(nst - FS) for t in range(8)] + [(s, t) for s in Ss for t in range(4, 8)] + [(s, t) for s in Ss for t in range(4)]
    co.build(groups, wg=g4.get('wg', 1))
    co.base = z
    be, b0 = g4.get('be', 2), g4.get('b0', 5)
    co.barriers(lambda s: [('D4', s, 3)], have=(), grp=lambda s: 0 if s < NP4 else s if s < b0 else s - (s - b0) % be)
    rf = co3.wdl[-1] + 1
    co.addbar(rf)
    gpos = [z + TP + 20]
    def G(t_, d=INF, after=None): return sc.add('g', gpos[0], d, t_, after=after)
    G(f'v_lshrrev_b32 {vr(vl)}, 4, v0\ns_lshr_b32 {sr(sg1)}, {sr(sorg)}, 2\ns_mul_i32 {sr(sg1)}, {sr(sg1)}, {g4.get("lm", 2)}\ns_add_u32 {sr(sLead)}, {sr(sm2)}, {sr(sorg)}\ns_add_u32 {sr(sLead)}, {sr(sLead)}, {sr(sg1)}\ns_and_b32 {sr(sLead)}, {sr(sLead)}, 3\ns_and_b32 {sr(sg1)}, s2, 1', after=edone[6])
    G(f's_lshl_b32 {sr(sg0)}, {sr(sn2)}, 7\ns_lshl3_add_u32 {sr(sg0)}, {sr(sW4)}, {sr(sg0)}\ns_mul_i32 {sr(sD7)}, {sr(sg1)}, {1792*2048}\ns_add_u32 {sr(sg0)}, {sr(sg0)}, {sr(sD7)}\ns_lshr_b32 {sr(sD7)}, {sr(sw)}, 1\ns_mul_i32 {sr(sD7)}, {sr(sD7)}, {3*65536}')
    G(f'v_bfe_u32 {vr(u)}, {vr(vl)}, 4, 2\nv_bfe_u32 {vr(u+1)}, {vr(vl)}, 1, 2\nv_xor_b32 {vr(u)}, {vr(u)}, {vr(u+1)}\nv_lshlrev_b32 {vr(u)}, 5, {vr(u)}\nv_and_b32 {vr(u+1)}, 1, {vr(vl)}\nv_lshl_add_u32 {vr(u)}, {vr(u+1)}, 4, {vr(u)}\nv_lshrrev_b32 {vr(u+1)}, 3, {vr(vl)}\nv_lshlrev_b32 {vr(u+1)}, 11, {vr(u+1)}')
    G(f's_sub_u32 {sr(sWD)}, {sr(sWD)}, 2048\ns_subb_u32 {sr(sWD+1)}, {sr(sWD+1)}, 0\ns_mov_b32 {sr(sWD+2)}, {FF*DM*2+2048}')
    if g3.get('wd3', 0): k.owd3.after = sc.streams['g'][-1]
    osu = G(f'v_add3_u32 {vr(u)}, {vr(u)}, {vr(u+1)}, {sr(sg0)}\nv_add_u32 {vr(vdma)}, 2048, {vr(u)}\nv_add_u32 {vr(vdma+1)}, {16384+1024}, {vr(u)}\nv_xor_b32 {vr(vdma+2)}, 128, {vr(u)}\nv_add_u32 {vr(vdma+3)}, {16384-1024}, {vr(vdma+2)}')
    G(f'v_and_b32 {vr(u)}, 7, {vr(vl)}\nv_lshrrev_b32 {vr(u+2)}, 4, {vr(vl)}\nv_xor_b32 {vr(u)}, {vr(u)}, {vr(u+2)}\nv_lshl_add_u32 {vr(vro)}, {vr(u)}, 4, {vr(u+1)}\nv_xor_b32 {vr(vro+1)}, 64, {vr(vro)}\nv_add_u32 {vr(vro+1)}, 16384, {vr(vro+1)}')
    G(f's_lshl2_add_u32 {sr(sg0)}, {sr(sm2)}, {sr(sw)}\ns_lshl_b32 {sr(sg0)}, {sr(sg0)}, 18\ns_mul_i32 {sr(sfp)}, {sr(sg1)}, {56*2048}\ns_add_u32 {sr(sg0)}, {sr(sg0)}, {sr(sfp)}\ns_add_u32 {sr(sg0)}, {sr(sg0)}, {WS_ACT}\nv_add_u32 {vr(va)}, {sr(sg0)}, v0\nv_add_u32 v7, {sr(sg0)}, v8')
    G(f'v_bfe_u32 {vr(u)}, {vr(vl)}, 3, 2\nv_lshlrev_b32 {vr(u)}, 5, {vr(u)}\nv_and_b32 {vr(u+1)}, 3, {vr(vl)}\nv_lshl_add_u32 {vr(u)}, {vr(u+1)}, 3, {vr(u)}\nv_lshrrev_b32 {vr(u+1)}, 2, {vr(vl)}\nv_lshl_add_u32 {vr(waddr)}, {vr(u+1)}, 7, {vr(u)}')
    for t in range(1, 12): G(f'v_xor_b32 {vr(waddr+t)}, {((t & 3) << 5) + ((t >> 2) << 16)}, {vr(waddr)}')
    G(f's_lshr_b32 {sr(sg0)}, {sr(sm2)}, 1\ns_lshl_b32 {sr(sg0)}, {sr(sg0)}, 5\ns_lshl2_add_u32 {sr(sg0)}, {sr(sg1)}, {sr(sg0)}\nv_and_b32 {vr(u)}, 3, {vr(vl)}\nv_bfe_u32 {vr(u+1)}, {vr(vl)}, 2, 2\nv_lshl_add_u32 {vr(u)}, {vr(u)}, 3, {vr(u+1)}\nv_add_lshl_u32 {vr(vpl)}, {vr(u)}, {sr(sg0)}, 7\ns_or_b32 {sr(sg0)}, {sr(sg0)}, 4\ns_lshl_b32 {sr(sg0)}, {sr(sg0)}, 7\nv_writelane_b32 {vr(vpl)}, {sr(sg0)}, 16\ns_add_u32 {sr(sg0)}, {sr(sg0)}, 1024\nv_writelane_b32 {vr(vpl)}, {sr(sg0)}, 17\ns_mov_b32 {sr(sfp)}, {FL_UT}', d=z + 4 * TP)
    assert FL_AE - FL_UT == FL_AL - FL_AE == 32768
    one = 9
    sc.add('f', z + 30, z + 60, f'v_mov_b32 {vr(one)}, {sr(sTok)}')
    edone[6].d = z + g3.get('e6', 96); edone[1].d = z + g3.get('e1', 216)
    edone[5].d = E3 + g4.get('ldl', 84)
    p4 = g4.get('p4')
    if p4: edone[3].d = E3 + p4[0]; edone[4].d = INF; edone[5].d = E3 + p4[1]
    for t, dr in ((6, g3.get('dr6', 60)), (1, g3.get('dr1', 50))) + (((3, None),) if p4 else ()) + ((5, None),):
        if dr: eb = edone[t].d + dr; co.addbar(eb, vm=[('as', t)])
        else:
            eb = co.nextbar(edone[t].d + g4.get('ldrain', 40))
            sc.add('f', eb - 2, eb, WT(p, vm=[('as', t)]))
        o = sc.add('f', eb, eb + 3, lambda: k.flag_store(sfl, one)); o.cost = 3
        sc.add('f', eb, INF, f's_add_u32 {sr(sfl)}, {sr(sfl)}, {4 if t == 3 else 32768}')
    def chk(tag, pl_, pc_):
        gpos[0] = pl_
        G(VM(p, f'buffer_load_dword {vr(vpl+1)}, {vr(vpl)}, {sr(sWS,4)}, {sr(sfp)} offen sc1', tag), d=pl_ + 4)
        gpos[0] = pc_
        o = G(lambda: k.check(vpl, sfp, vpl + 1, spc, tag), d=pc_ + 3); o.cost = 4; o.wscc = True
        G(f's_add_u32 {sr(sfp)}, {sr(sfp)}, {4 if tag == "lf" else 32768}')
        return o
    ock = chk('ef', z + g4.get('c0', 262), z + g4.get('c0', 262) + 32)
    a_e0 = gpos[0] + 1
    DF = g4.get('DF', FS)
    for s_ in range(nst - DF, nst):
        if (s_ - nst + DF) % be == 0:
            b_ = co.gpos[groups.index((s_, 0))] - co.lead - 8
            co.addbar(b_, vm=[('D4', min(s_ + be, nst) - 1, 1)])
        for t in range(4): co.bar2[(s_, t)] = b_
    n1 = 4 * (2 * nst - NP4 - NA4) - 2 * DF
    nb4 = lambda s: sum(4 for x in range(s + 1) if x >= NP4) + sum(4 for x in range(s) if x >= NA4) - 3
    tl_ = co.bar[nst - 1] - g4.get('margin', 56) - E3
    sp0 = (tl_ - 32 * (nst - 28)) / (n1 - 8 * (nst - 28) - 1); nA = 80
    vt_ = lambda n: E3 + g4.get('v0', -6) + int(n * sp0 if n <= nA else nA * sp0 + (n - nA) * (tl_ - nA * sp0) / (n1 - 1 - nA))
    omk = chk('mf', vt_(nb4(4)) - g4.get('c1', 45), vt_(nb4(4)) - 3)
    lck = vt_(nb4(12)) - 3
    olk = chk('lf', lck - 50, lck)
    KB = [14 * q + 3 for q in range(4)] + [7 * q for q in range(8)] + [7 * (q // 2) + 1 + 4 * (q % 2) for q in range(16)]
    KB = KB[:12] + KB[12 + MV:] + KB[12:12 + MV] + [56 + x for x in KB[12:12 + MV]]
    assert MV <= 2 and not (MV and p4)
    onk = None
    if p4:
        onk = chk('nf', vt_(nb4(19) + 7) - 53, vt_(nb4(19) + 7) - 3)
        KB[12:] = [7 * q + 1 for q in range(8)] + [7 * q + 2 for q in range(8)]
    XS = lambda s: 2 if s < 4 else 1 if s < 12 or p4 else 0
    dist = g4.get('dist', 2)
    def ord4(r):
        o = list(range(nst))
        for s in range(4, nst):
            if dist == 4: o[s] = s if s % 4 != r else 4 + lead_chunk(s - 4, 8) if s < 12 else 12 + lead_chunk(s - 12, 16)
            elif s % 4 == r and s + dist < nst and XS(s) == XS(s + dist) and (not p4 or (s - 4) // 8 == (s + dist - 4) // 8): o[s], o[s + dist] = o[s + dist], o[s]
        return o
    O4 = [ord4(r) for r in range(4)]
    done = set()
    def chunk(E, s):
        if s in done: return
        done.add(s)
        c = sC4[s % NC]
        alt = [r for r in range(4) if O4[r][s] != s]
        if not alt: E(f's_mov_b32 {sr(c)}, {KB[s]}')
        for n, r in enumerate(alt): E(f's_cmp_eq_u32 {sr(sLead)}, {r}\ns_cselect_b32 {sr(c)}, {KB[O4[r][s]]}, {sr(c) if n else KB[s]}')
    def dma4(s, i, E, EV):
        fst = i == 0 or (i == 2 and s >= nst - DF)
        if fst:
            chunk(E, s)
            E(f's_lshl_b32 {sr(sK4)}, {sr(sC4[s % NC])}, 16' + ('', f'\ns_add_u32 {sr(sK4)}, {sr(sK4)}, {sr(sD7)}', f'\ns_lshl1_add_u32 {sr(sK4)}, {sr(sD7)}, {sr(sK4)}')[XS(s)])
            E(f's_add_u32 m0, {sr(sW4)}, {base4(s)}')
        EV(VM(p, f'buffer_load_dwordx4 {vr(vdma+i)}, {sr(sWD,4)}, {sr(sK4)} offen offset:{1024*i} lds', ('D4', s, i)), fst)
    def al4(s, i, E, EV):
        j, m = divmod(i, 2)
        if i == 0: E(f's_lshl_b32 {sr(sA4)}, {sr(sC4[s % NC])}, 11')
        if i == 2 and XS(s): E(f's_add_u32 {sr(sA4)}, {sr(sA4)}, {3*2048*XS(s)}')
        if s < 4:
            for h in range(2): EV(VM(p, f'buffer_load_dwordx2 {vr(co.abf(s,j,m)+2*h,2)}, v7, {sr(sWS,4)}, {sr(sA4)} offen offset:{1024*i+512*h} sc1', co.atag(s, j, m)), False)
            return
        EV(VM(p, f'buffer_load_dwordx4 {vr(co.abf(s,j,m),4)}, {vr(va)}, {sr(sWS,4)}, {sr(sA4)} offen offset:{1024*i} sc1', co.atag(s, j, m)), False)
    ev = []
    e = z + g4.get('d0', 142)
    for s in range(NP4):
        for i in range(4): ev.append((e, 'D', s, i, co.bar[s])); e += g4.get('dsp', 4)
    e = a_e0
    for s in range(NA4):
        if (s == 1 and NA4 == 3) or (s == 2 and p4): e = max(e, ipos[6] + 9)
        for i in range(4): ev.append((e, 'A', s, i, co.await_[(s,) + divmod(i, 2)])); e += 3
    c_ = 0
    for n in range(3, nst):
        for i in range(4):
            if n >= NP4 and (n < nst - DF or i >= 2):
                ev.append((max(rf + 1, co.slotfree(n) + 1, vt_(c_), ev[-1][0]), 'D', n, i, co.bar[n])); c_ += 1
            if n < NA4: continue
            ev.append((max(E3, co.alast[(n - DAS,) + divmod(i, 2)] + 1 if n >= DAS else 0, vt_(c_), ev[-1][0]), 'A', n, i, co.await_[(n,) + divmod(i, 2)])); c_ += 1
    for n in range(nst - DF, nst):
        for i in range(2): ev.append((ev[-1][0] + 4, 'D', n, i, co.bar2[(n, 0)]))
    for e, kind, s, i, d in ev:
        aft = osu if (kind, s, i) == ('D', 0, 0) else ock if (kind, s, i) == ('A', 0, 0) else edone[3] if (kind, s, i) == ('A', 2, 0) and not p4 else edone[2] if (kind, s, i) == ('A', 1, 0) else onk if (kind, s, i) == ('A', 20, 0) else omk if (kind, s, i) == ('A', 4, 0) else olk if (kind, s, i) == ('A', 12, 0) else None
        if kind == 'A' and i == 0: chunk(lambda t_: sc.add('v', e - 4, d, t_), s)
        (dma4 if kind == 'D' else al4)(s, i, lambda t_: sc.add('v', e - 4, d, t_, after=aft), lambda f, sep: sc.add('v', e, d, f, sep=sep))
    co.wreads(); co.flush_reads('w4')
    pos[0] = E3 + 150
    XL = base4(28 + MV - FS)
    assert co.free_after(28 + MV - FS) and 28 + MV - FS + NS >= nst
    assert DF >= 2
    F(f's_add_u32 {sr(sx)}, {sr(sW4)}, {XL}\n' + xa_setup(vxa, u, sx, vl) + f'\nv_add_u32 {vr(vol)}, {sr(sx)}, v0')
    F(f's_lshl_b32 {sr(sx)}, {sr(sw)}, 10\ns_add_u32 {sr(sx)}, {sr(sx)}, {GL}\nv_add_u32 {vr(u)}, {sr(sx)}, v0\nv_lshrrev_b32 {vr(u+1)}, 4, {vr(vl)}\nv_lshl_add_u32 {vr(u+1)}, {vr(u+1)}, 4, {sr(sx)}')
    F(LG(p, f'ds_write_b128 {vr(u)}, {vr(GBA,4)}'))
    for t in range(4): F(LG(p, f'ds_read_b128 {vr(vg+4*t,4)}, {vr(u+1)} offset:{768+64*t}'))
    for i in range(16): F(f'v_accvgpr_read_b32 {vr(u+2)}, {vr(ST1+i)}\n' + unpack(vf + 2 * i, u + 2))
    F(f's_add_u32 {sr(s1)}, {sr(sro)}, 32768\ns_lshl_b32 {sr(sx)}, s2, 5\ns_add_u32 {sr(sx)}, {sr(sx)}, {sr(sw)}\ns_lshl2_add_u32 {sr(sx)}, {sr(sx)}, {FL_XC}\ns_xor_b32 {sr(sx+1)}, {sr(sx)}, 128\nv_mov_b32 {vr(u+3)}, 0')
    for t in range(4, 8):
        pos[0] = max(co.cdone[(t, 0)], co.cdone[(t, 1)]) + 4
        for m in range(2):
            i = (t - 4) * 2 + m
            F(VM(p, f'buffer_store_dwordx4 {vr(accr(t, m),4)}, v0, {sr(sWS,4)}, {sr(sxo + i // 4)} offen offset:{1024*(i%4)} sc1', 'xs'), d=pos[0] + 4)
    xl = [f'buffer_load_dwordx4 {vr(vp+4*i,4)}, v0, {sr(sWS,4)}, {sr(sxo + 2 + i // 4)} offen offset:{1024*(i%4)} sc1' for i in range(8)]
    xfl = f'buffer_load_dword {vr(vpl+1)}, {vr(u+3)}, {sr(sWS,4)}, {sr(sx+1)} offen sc1'
    pos[0] += g4.get('xf1', 4)
    F(VM(p, xfl, 'xf'), d=pos[0] + 6)
    pos[0] = co.end - g4.get('xpub', 56)
    F(WT(p, vm=['xf']), d=pos[0] + 2)
    o = F(lambda: k.flag_store(sx, one), d=pos[0] + 3); o.cost = 3
    F(f'v_readfirstlane_b32 {sr(sx+2)}, {vr(vpl+1)}\ns_nop 0\ns_cmp_eq_u32 {sr(sx+2)}, {sr(sTok)}\ns_cselect_b32 {sr(sg0)}, {sr(sxo+2)}, {OOB}\ns_cselect_b32 {sr(sg1)}, {sr(sxo+3)}, {OOB}', d=pos[0] + 8)
    for i in range(8): F(VM(p, xl[i].replace(sr(sxo + 2 + i // 4) + ' ', sr((sg0, sg1)[i // 4]) + ' '), ('xc', i)), d=pos[0] + 12 + 3 * i)
    pos[0] = co.end - g4.get('xf2', 12)
    F(VM(p, xfl), d=pos[0] + 3)
    sc.bias = dict(x=10000)
    ce, c4_ = g3.get('ecap', 3), g4.get('cap0', 3)
    sc.capf = lambda i: 2 if i < z + TP - 10 else ce + (i % g3.get('emod', 4) == 0) if i < min(E3, z + g3.get('cs', 999)) else g3.get('cap2', 2) if i < E3 else c4_ if i < edone[5].d else 2
    sc.vgap = lambda i: g3.get('vgap', 5) if i < z else 2 if i < E3 + 60 else g4.get('vgap', 3)
    sc.mcap = lambda i: g3.get('mcap', 2) if i < E3 - 30 else 2
    if g4.get('ct', True): k.ctouch(sc, E3, co.end - 250, 190)
    if TL:
        for s in g4.get('marks', (0, 4, 8, 16, 23)): sc.before(co.sfirst[s] + 1, lambda s=s: k.T(f'g4:s{s}'), 0)
        if cfg.get('ckm'):
            for x_ in (16 * FS + 48, 16 * FS, 90, 68, 58, 38, 28): sc.before(co.end - x_, lambda x_=x_: k.T(f'g4:e-{x_}'), 0)
    left = sc.run()
    k.T('g4:loopend')
    k.info += f' | g34 over {sc.over} left {len(left)} edone ' + ' '.join(str(edone[t].pos - z) for t in order)
    assert not left
    for t in (0, 1): assert edone[t].pos < E3 - 4
    p.ins(f's_cmp_eq_u32 {sr(sx+2)}, {sr(sTok)}\ns_cbranch_scc0 CKXs')
    p.label('CKXx')
    k.cold.append(f'CKXs:\n  s_mov_b32 {sr(spc)}, 60000\n  s_branch CKXw\nCKX:\n  {xfl}\nCKXw:\n  s_sub_u32 {sr(spc)}, {sr(spc)}, 1\n  s_cmp_eq_u32 {sr(spc)}, 0\n  s_waitcnt vmcnt(0)\n  s_cbranch_scc1 CKXy\n'
                  f'  v_cmp_ne_u32 vcc, {sr(sTok)}, {vr(vpl+1)}\n  s_nop 4\n  s_cbranch_vccnz CKX\nCKXy:\n  ' + '\n  '.join(xl + [xfl]) + '\n  s_branch CKXx\n')
    k.T('xc:rel')
    for t in range(4):
        for m in range(2):
            for e in (0, 2): p.ins(f'v_pk_fma_f32 {vr(vf+16*m+4*t+e,2)}, {vr(vg+4*t+e,2)}, {vr(accr(t, m)+e,2)}, {vr(vf+16*m+4*t+e,2)}')
    for i in range(8):
        t, m = divmod(i, 2)
        p.wait(vm=[('xc', i)])
        fm = vf + 16 * m + 4 * t
        for e in (0, 2): p.ins(f'v_pk_fma_f32 {vr(fm+e,2)}, {vr(vg+4*t+e,2)}, {vr(vp+4*i+e,2)}, {vr(fm+e,2)}')
        p.ins(pk(vx + 8 * m + 2 * t, fm) + '\n' + pk(vx + 8 * m + 2 * t + 1, fm + 2))
        p.lg(f'ds_write_b64 {vr(vxa+t)}, {vr(vx+8*m+2*t,2)} offset:{2048*m}')
    for i in range(4): p.lg(f'ds_read_b128 {vr(vf+4*i,4)}, {vr(vol)} offset:{1024*i}', ('o', i))
    for i in range(4):
        p.wait(lg=[('o', i)])
        p.vm(f'buffer_store_dwordx4 {vr(vf+4*i,4)}, {vr(vro+(i&1))}, {sr(sOUT,4)}, {sr(s1 if i >= 2 else sro)} offen {g4.get("oflags", "")}')
    return finish(k)
```

```python
import sys
sys.path.insert(0, 'gen3'); sys.path.insert(0, 'gen')
import kernels as KO
import k3, pads
import re
def merge(a, b):
    A, B = a.text().split('\n'), b.text().split('\n')
    n = next(i for i, (x, y) in enumerate(zip(A, B)) if x != y) - 8
    def scc_dead(i):
        for l in A[i:]:
            l = l.strip()
            if l.startswith(('s_cselect', 's_addc', 's_subb', 's_cbranch_scc')): return False
            if l.startswith(('s_cmp', 's_add_u32', 's_lshl', 's_and', 's_bitcmp')): return True
    while not ('v_mfma' in A[n - 1] and not A[n].startswith('  s_') and scc_dead(n)): n -= 1
    ea, eb = A.index('XEND:'), B.index('XEND:')
    tail = B[n:eb]
    own = {l[:-1] for l in tail if l.endswith(':')}
    cold = [c for c in b.cold if any(re.search(r'\b' + l + r'\b', c) for l in own)]
    own |= {l[:-1] for c in cold for l in c.split('\n') if l.endswith(':')}
    ren = lambda t: re.sub(r'\b(' + '|'.join(sorted(own)) + r')\b', r'\1_o', t)
    a.info += f' | cut at mfma {sum("v_mfma" in l for l in A[:n])}'
    return '\n'.join(A[:n] + ['CUT:', '  s_bitcmp1_b32 s2, 0', '  s_cbranch_scc1 ALT'] + A[n:ea] + ['  s_endpgm', 'ALT:'] + [ren(l) for l in tail] + A[ea:]) + ''.join(ren(c) for c in cold)
def make(opts=None):
    o = dict(ct=False, hsplit=380, k1=dict(zero=True, lq='', tq_rows=341, tx='', nfl=8, sent=k3.WS_UT, r2=(341, 683)), g1=dict(wln=0, npw=7, n0=4, vgap=4, prow=0, mcap=1, t1=0, prow2=320, xt=1, whelp=-60, npl0=0, npl=1, jgap=76, jm=(8, 4, 60), dsp2=3.85, nat=10, astep=12, afirst=10, ndr=6, b0=24), g2=dict(ydr=30, AL=5, ob=0, nin=10, npo=4), g3=dict(alag=1.5, dlag=0.9, j0=6, f2=66, dr6=60, dr1=60, ecap=4, emod=100, bar0=8, mcap=1, cts2=160, catch=(7.5, 12), thin=(0, 0), leads={2: [5], 3: [6], 4: [7], 5: [8, 9, 10], 7: [11, 12, 13], 8: [14]}), g4=dict(cap0=4, ldl=60, FS=8, DAS=10, margin=40, xpub=70, xf1=14, xf2=16, v0=4, be=1, d0=190, c0=262))
    for kk, v in (opts or {}).items():
        if isinstance(v, dict): o[kk].update(v)
        else: o[kk] = v
    if o['g4'].get('mv'):
        ks = [k3.build_k3(dict(o, g4=dict(o['g4'], side=1)))]
        alt = k3.build_k3(dict(o, g4=dict(o['g4'], side=-1)))
        assert ks[0].tn == alt.tn
        t = merge(ks[0], alt)
        ks[0].text = lambda: t
    else: ks = [k3.build_k3(o)]
    return ks
def render(ks):
    t = KO.build(ks).replace('gen/main.py', 'gen3/main3.py')
    t, info, size = pads.add_pads(t)
    ks[-1].info += f' | pads {info} bytes {size}'
    return t
if __name__ == '__main__':
    opts = eval(sys.argv[2]) if len(sys.argv) > 2 else {}
    ks = make(opts)
    open(sys.argv[1], 'w').write(render(ks))
    print(ks[-1].info)
```
